```python
import torch

def _softmax(x, axis=-1):
    return torch.softmax(x, dim=axis)
def _gelu(x):
    return torch.nn.functional.gelu(x, approximate="tanh")
def _silu(x):
    return torch.nn.functional.silu(x)
def _sigmoid(x):
    return torch.sigmoid(x)
def _layernorm(x, axis=-1, eps=1e-5):
    m = x.mean(dim=axis, keepdim=True)
    v = x.var(dim=axis, keepdim=True, unbiased=False)
    return (x - m) / torch.sqrt(v + eps)
def _scatter_add(tgt, idx, src, axis=0):
    return tgt.clone().index_add_(axis, idx, src)
def _segment_sum(src, seg, n):
    out = torch.zeros((n,) + src.shape[1:], dtype=src.dtype)
    return out.index_add_(0, seg, src)
def _pad(x, pw):
    flat = tuple(v for pair in reversed(pw) for v in pair)
    return torch.nn.functional.pad(x, flat)

kernel_name = 'interleave_layers__gqa_block_cached__mixer_token_mlp__decode'

def setup_inputs():

    _w = (lambda a: (lambda t: t.to(torch.bfloat16) if t.is_floating_point() else t)(torch.as_tensor(a)))
    def _A_setup():
        B, Sq, D = 2, 1, 576
        Hq, Hkv, Sk, Dh = 32, 16, 16384, 128
        assert Hq % Hkv == 0, (Hq, Hkv)
        return {
            "x": _w((lambda *s: torch.randn(*s, dtype=torch.bfloat16) * 0.1)(B, Sq, D)),
            "k_cache": _w((lambda *s: torch.randn(*s, dtype=torch.bfloat16) * 0.8)(B, Hkv, Sk, Dh)),
            "v_cache": _w((lambda *s: torch.randn(*s, dtype=torch.bfloat16) * 3.2)(B, Hkv, Sk, Dh)),
            "wq": _w((lambda *s: torch.randn(*s, dtype=torch.bfloat16) * 0.8)(D, Hq * Dh) * (D ** -0.5)),
            "wo": _w((lambda *s: torch.randn(*s, dtype=torch.bfloat16) * 3.2)(Hq * Dh, D) * ((Hq * Dh) ** -0.5)),
        }
    _A_in = _A_setup()

    def _B_setup():
        B, S, D, F = 2, 1, 576, 4608
        return {
            "x": _w((lambda *s: torch.randn(*s, dtype=torch.bfloat16) * 0.1)(B, S, D)),
            "w1": _w((lambda *s: torch.randn(*s, dtype=torch.bfloat16) * 0.8)(S, F) * (S ** -0.5)),
            "b1": _w((lambda *s: torch.randn(*s, dtype=torch.bfloat16) * 0.8)(F) * 0.02),
            "w2": _w((lambda *s: torch.randn(*s, dtype=torch.bfloat16) * 0.4)(F, S) * (F ** -0.5)),
            "b2": _w((lambda *s: torch.randn(*s, dtype=torch.bfloat16) * 0.4)(S) * 0.02),
        }
    _B_in = _B_setup()

    return {
        "A_x": _A_in["x"],
        "A_k_cache": _A_in["k_cache"],
        "A_v_cache": _A_in["v_cache"],
        "A_wq": _A_in["wq"],
        "A_wo": _A_in["wo"],
        "B_x": _B_in["x"],
        "B_w1": _B_in["w1"],
        "B_b1": _B_in["b1"],
        "B_w2": _B_in["w2"],
        "B_b2": _B_in["b2"],
    }

def reference(A_x, A_k_cache, A_v_cache, A_wq, A_wo, B_x, B_w1, B_b1, B_w2, B_b2):
    def _A_ref(x, k_cache, v_cache, wq, wo):
        B, Sq, D = x.shape
        Hq, Dh = 32, 128
        Hkv = k_cache.shape[1]
        rep = Hq // Hkv
        q = (lambda x, *d: x.permute(*d))((x @ wq).reshape(B, Sq, Hq, Dh), 0, 2, 1, 3)
        k = (lambda x, n, axis: torch.repeat_interleave(x, n, dim=axis))(k_cache, rep, axis=1)
        v = (lambda x, n, axis: torch.repeat_interleave(x, n, dim=axis))(v_cache, rep, axis=1)
        scores = torch.einsum("bhqd,bhkd->bhqk", q, k) * (Dh ** -0.5)
        p = _softmax(scores, axis=-1)
        o = torch.einsum("bhqk,bhkd->bhqd", p, v)
        return (lambda x, *d: x.permute(*d))(o, 0, 2, 1, 3).reshape(B, Sq, Hq * Dh) @ wo

    def _B_ref(x, w1, b1, w2, b2):
        B, S, D = x.shape
        h = _layernorm(x, axis=-1)
        u = torch.einsum("bsd,sf->bdf", h, w1) + b1
        u = _gelu(u)
        y = torch.einsum("bdf,fs->bds", u, w2) + b2
        return (lambda x, *d: x.permute(*d))(y, 0, 2, 1)

    x = A_x
    x = x + _A_ref(_layernorm(x, axis=-1), A_k_cache, A_v_cache, A_wq, A_wo)
    x = x + _B_ref(_layernorm(x, axis=-1), B_w1, B_b1, B_w2, B_b2)
    x = x + _A_ref(_layernorm(x, axis=-1), A_k_cache, A_v_cache, A_wq, A_wo)
    x = x + _B_ref(_layernorm(x, axis=-1), B_w1, B_b1, B_w2, B_b2)
    return x
```

```python
import re

_REG = re.compile(r'(?<![\w.])([vas])(?:(\d+)|\[(\d+):(\d+)\])(?![\w])')
TRANS = ("v_exp_f32", "v_log_f32", "v_rcp_f32", "v_rsq_f32", "v_sqrt_f32", "v_sin_f32", "v_cos_f32")

def regs_of(op):
    out = set()
    op = op.strip()
    for m in _REG.finditer(op):
        f = m.group(1)
        if m.group(2) is not None:
            out.add((f, int(m.group(2))))
        else:
            for i in range(int(m.group(3)), int(m.group(4)) + 1):
                out.add((f, i))
    if re.search(r'\bvcc\b', op): out |= {('s', 106), ('s', 107)}
    if re.search(r'\bvcc_lo\b', op): out.add(('s', 106))
    if re.search(r'\bvcc_hi\b', op): out.add(('s', 107))
    if re.search(r'\bm0\b', op): out.add(('s', 124))
    if re.search(r'\bexec\b', op): out |= {('s', 126), ('s', 127)}
    return out

class Ins:
    __slots__ = ("mn", "kind", "wr", "rd", "slots", "srcc", "srcab", "dpp", "lanesel", "stdata", "text", "lds_dma")

def split_ops(s):
    ops, depth, cur = [], 0, ""
    for ch in s:
        if ch == '[': depth += 1
        if ch == ']': depth -= 1
        if ch == ',' and depth == 0:
            ops.append(cur.strip()); cur = ""
        else:
            cur += ch
    if cur.strip(): ops.append(cur.strip())
    return ops

def parse(text):
    t = text.split(';')[0].strip()
    parts = t.split(None, 1)
    mn = parts[0]
    rest = parts[1] if len(parts) > 1 else ""
    ops = split_ops(rest)
    mods = ""
    if ops:
        lo = ops[-1].split(None, 1)
        if len(lo) > 1 and not lo[0].endswith('('):
            ops[-1] = lo[0]; mods = lo[1]
    I = Ins(); I.mn = mn; I.text = t; I.slots = 1; I.wr = set(); I.rd = set(); I.srcc = set(); I.srcab = set()
    I.dpp = set(); I.lanesel = set(); I.stdata = set(); I.lds_dma = False
    R = [regs_of(o) for o in ops]
    allr = lambda lst: set().union(*lst) if lst else set()
    if mn == "s_nop":
        I.kind = "nop"; I.slots = int(ops[0], 0) + 1
    elif mn.startswith("v_mfma"):
        I.kind = "mfma"; I.wr = R[0]; I.srcab = R[1] | R[2]; I.srcc = R[3]; I.rd = I.srcab | I.srcc
    elif mn.startswith("v_"):
        I.kind = "trans" if mn.replace("_e32", "").replace("_e64", "") in TRANS else "valu"
        if mn.startswith("v_permlane"):
            I.kind = "permlane"; I.wr = R[0] | R[1]; I.rd = R[0] | R[1]
        elif mn.startswith("v_readlane") or mn.startswith("v_readfirstlane"):
            I.kind = "readlane"; I.wr = R[0]; I.rd = allr(R[1:]); I.lanesel = R[2] if len(R) > 2 else set()
        elif mn.startswith("v_writelane"):
            I.wr = R[0]; I.rd = allr(R[1:]); I.lanesel = R[2]
        else:
            I.wr = R[0]; I.rd = allr(R[1:])
            if mn.startswith("v_fmac") or mn.startswith("v_dot2c"): I.rd |= R[0]
            if mn.startswith("v_cndmask") and len(R) == 3: I.rd |= {('s', 106), ('s', 107)}
            if mn.endswith("_dpp"): I.dpp = R[1]
    elif mn.startswith("ds_"):
        I.kind = "ds"
        if mn.startswith("ds_read") or mn.startswith("ds_bpermute") or mn.startswith("ds_swizzle") or mn.startswith("ds_permute"):
            I.wr = R[0]; I.rd = allr(R[1:])
        else:
            I.rd = allr(R)
    elif mn.startswith("buffer_") or mn.startswith("global_"):
        I.kind = "vmem"
        lds = bool(re.search(r'\blds\b', mods)) or "_lds_" in mn
        I.lds_dma = lds
        if "load" in mn and not lds:
            I.wr = R[0]; I.rd = allr(R[1:])
        else:
            I.rd = allr(R)
            if "store" in mn and ("x3" in mn or "x4" in mn):
                I.stdata = R[0] if mn.startswith("buffer_") else R[1]
    elif mn.startswith("s_"):
        I.kind = "salu"
        nodst = ("s_cmp", "s_cbranch", "s_branch", "s_waitcnt", "s_barrier", "s_sleep", "s_setpc", "s_endpgm", "s_setprio", "s_bitcmp", "s_set_gpr")
        if mn.startswith(nodst):
            I.rd = allr(R)
        else:
            I.wr = R[0] if R else set(); I.rd = allr(R[1:])
            if "saveexec" in mn: I.wr = I.wr | {('s', 126), ('s', 127)}
    else:
        raise ValueError("unknown instr " + t)
    return I

VALUISH = ("valu", "trans", "permlane", "readlane")
def vonly(s): return {r for r in s if r[0] in "va"}
def sonly(s): return {r for r in s if r[0] == "s"}

def need(p, c):
    n = 0
    if p.kind in VALUISH:
        pv, ps = vonly(p.wr), sonly(p.wr)
        if pv & c.dpp: n = max(n, 2)
        if c.kind == "permlane" and pv & c.rd: n = max(n, 2)
        if c.kind == "mfma" and pv & c.rd: n = max(n, 2)
        if c.kind == "readlane" and pv & c.rd: n = max(n, 1)
        if p.kind == "trans" and c.kind in ("valu", "permlane", "readlane") and pv & c.rd: n = max(n, 1)
        if ps:
            if c.kind in VALUISH and ps & c.rd: n = max(n, 2)
            if ps & c.lanesel: n = max(n, 4)
            if c.kind == "vmem" and ps & c.rd: n = max(n, 5)
            if c.kind == "salu" and ps & c.rd: n = max(n, 1)
    if p.kind == "mfma":
        if c.kind == "mfma":
            if p.wr & c.srcab: n = max(n, 8)
            if p.wr & c.srcc and p.wr != c.srcc: n = max(n, 6)
            if p.wr & c.wr and not (p.wr == c.srcc): n = max(n, 6)
        else:
            if p.wr & (c.rd | c.wr): n = max(n, 8)
            if c.kind in VALUISH and p.srcc & c.wr: n = max(n, 3)
    if p.kind == "salu" and ('s', 124) in p.wr and c.lds_dma: n = max(n, 1)
    if p.kind == "vmem" and p.stdata:
        if c.kind in VALUISH and p.stdata & c.wr: n = max(n, 2)
        elif p.stdata & c.wr: n = max(n, 1)
    return n

class Asm:
    def __init__(self):
        self.lines = []; self.hist = []; self.lab = 0; self.nops_added = 0
    def raw(self, s): self.lines.append(s)
    def comment(self, s): self.lines.append("    ; " + s)
    def label(self, name, flush=True):
        self.lines.append(name + ":")
    def newlabel(self, p="L"):
        self.lab += 1; return "%s_%d" % (p, self.lab)
    def emit(self, text):
        I = parse(text)
        dist = 0; pad = 0
        for p in reversed(self.hist):
            k = need(p, I) - dist
            if k > pad: pad = k
            dist += p.slots
            if dist >= 10: break
        if pad > 0:
            N = parse("s_nop %d" % (pad - 1)); self.hist.append(N)
            self.lines.append("    s_nop %d" % (pad - 1)); self.nops_added += pad
        self.hist.append(I)
        if len(self.hist) > 16: self.hist.pop(0)
        self.lines.append("    " + text.strip())
    def flush(self, n=8):
        dist = 0; pad = 0
        for p in reversed(self.hist):
            req = 8 if p.kind == "mfma" else (5 if (p.kind in VALUISH and sonly(p.wr)) else (2 if p.kind in VALUISH or p.stdata else 0))
            pad = max(pad, req - dist); dist += p.slots
            if dist >= 10: break
        if pad > 0: self.emit("s_nop %d" % (pad - 1))
    def __call__(self, s):
        for l in s.strip("\n").split("\n"):
            l = l.strip()
            if not l or l.startswith(";"):
                if l: self.lines.append("    " + l)
                continue
            if l.endswith(":"): self.label(l[:-1])
            else: self.emit(l)
    def text(self): return "\n".join(self.lines) + "\n"
```

```python
import sys, struct, math
sys.path.insert(0, "gen")
from asmlib import *

NAME = "interleave_layers__gqa_block_cached__mixer_token_mlp__decode"
def f32(x): return "0x%08x" % struct.unpack("<I", struct.pack("<f", x))[0]

class Cfg:
    stamps = False
    spin = 20000
    s0 = dict(A=0, B=0, C=0, D=0)
    s1 = 2
cfg = Cfg()
for arg in sys.argv[2:]:
    k, v = arg.split("=")
    if k.startswith("s0"): cfg.s0[k[2]] = int(v)
    else: setattr(cfg, k, int(v))

W = 52; NL = 13
LV = 0; LWO = 53248; LWQ = 86016; LMX = 118784; LXB = 146432; LX = 151040; LQ = 160256; LLN = 162304; LRED = 163456
LO = LX + 8448
LDS_TOTAL = 163840
A_O = lambda i: i * 0x40000
A_L = lambda i: 0x100000 + i * 0x1000
B_A = lambda i: 0x110000 + i * 0x10000
C_A = lambda i: 0x150000 + i * 0x1000
D_A = lambda i: 0x160000 + i * 0x40000
STAMP = 0x10000000
CSM = math.log2(math.e) / math.sqrt(128.0)
C1 = -2.0 * math.sqrt(2.0 / math.pi) * math.log2(math.e)
C2 = C1 * 0.044715
DPPALL = "row_mask:0xf bank_mask:0xf"

a = Asm()
nstamp = [0]
def stamp():
    if not cfg.stamps: return
    i = nstamp[0]; nstamp[0] += 1
    assert i < 11
    a(f"s_memrealtime s[{80+2*i}:{81+2*i}]\ns_waitcnt lgkmcnt(0)")

def khome(kt): return f"a[{4*kt}:{4*kt+3}]"
def vhome(vt):
    r = W + 4 * (vt - NL); return f"v[{r}:{r+3}]"

def load_k(kts):
    lastG = None
    for kt in kts:
        G, t, half = kt >> 3, (kt >> 1) & 3, kt & 1
        if G != lastG:
            a(f"s_add_u32 s28, s27, {G*8192}"); lastG = G
        a(f"buffer_load_dwordx4 {khome(kt)}, v1, s[8:11], s28 offen offset:{t*256+half*128} nt")
def load_v(vts):
    lastQ = None
    for vt in vts:
        Q = vt >> 2
        if Q != lastQ:
            a(f"s_add_u32 s28, s27, {Q*4096}")
            if vt < NL: a(f"s_add_u32 m0, s29, {Q*4096}")
            lastQ = Q
        if vt < NL:
            a(f"buffer_load_dwordx4 v2, s[12:15], s28 offen offset:{(vt&3)*1024} nt lds")
        else:
            a(f"buffer_load_dwordx4 {vhome(vt)}, v2, s[12:15], s28 offen offset:{(vt&3)*1024} nt")

def rbf(v, t):
    a(f"v_cvt_pk_bf16_f32 v{t}, v{v}, v{v}\nv_lshlrev_b32 v{v}, 16, v{t}")
def rbf_list(vs, t):
    i = 0; k = 0
    while i < len(vs):
        tt = t + (k & 1); k += 1
        if i + 1 < len(vs):
            a(f"v_cvt_pk_bf16_f32 v{tt}, v{vs[i]}, v{vs[i+1]}\nv_lshlrev_b32 v{vs[i]}, 16, v{tt}\nv_and_b32 v{vs[i+1]}, 0xffff0000, v{tt}")
            i += 2
        else:
            a(f"v_cvt_pk_bf16_f32 v{tt}, v{vs[i]}, v{vs[i]}\nv_lshlrev_b32 v{vs[i]}, 16, v{tt}"); i += 1
def rows_reduce(op, v, t):
    a(f"v_mov_b32 v{t}, v{v}\nv_permlane16_swap_b32 v{v}, v{t}\n{op} v{v}, v{v}, v{t}")
    a(f"v_mov_b32 v{t}, v{v}\nv_permlane32_swap_b32 v{v}, v{t}\n{op} v{v}, v{v}, v{t}")
def row16_reduce(op, vs):
    for ctl in ("quad_perm:[1,0,3,2]", "quad_perm:[2,3,0,1]", "row_half_mirror", "row_mirror"):
        for v in vs: a(f"{op}_dpp v{v}, v{v}, v{v} {ctl} {DPPALL}")
def allreduce(op, v, t):
    row16_reduce(op, [v]); rows_reduce(op, v, t)

def layernorm(X, t):
    m, s, t0, t1, t2 = t, t + 1, t + 2, t + 3, t + 4
    a(f"v_add_f32 v{m}, v{X[0]}, v{X[1]}\nv_add_f32 v{s}, v{X[2]}, v{X[3]}\nv_add_f32 v{t0}, v{X[4]}, v{X[5]}\nv_add_f32 v{t1}, v{X[6]}, v{X[7]}")
    a(f"v_add_f32 v{m}, v{m}, v{s}\nv_add_f32 v{t0}, v{t0}, v{t1}\nv_add_f32 v{m}, v{m}, v{X[8]}\nv_add_f32 v{m}, v{m}, v{t0}")
    allreduce("v_add_f32", m, t0)
    a(f"v_mul_f32 v{m}, {f32(1.0/576)}, v{m}")
    for i in range(9):
        tt = t0 + (i & 1)
        a(f"v_sub_f32 v{tt}, v{X[i]}, v{m}")
        a(f"v_mul_f32 v{s}, v{tt}, v{tt}" if i == 0 else f"v_fmac_f32 v{s}, v{tt}, v{tt}")
    rbf(m, t0)
    ctl = ["quad_perm:[1,0,3,2]", "quad_perm:[2,3,0,1]", "row_half_mirror", "row_mirror"]
    for i in range(9):
        a(f"v_sub_f32 v{X[i]}, v{X[i]}, v{m}")
        if i % 2 == 1: a(f"v_add_f32_dpp v{s}, v{s}, v{s} {ctl[i//2]} {DPPALL}")
    rows_reduce("v_add_f32", s, t2)
    rbf_list(X, t0)
    a(f"v_mul_f32 v{s}, {f32(1.0/576)}, v{s}")
    rbf(s, t0)
    a(f"v_add_f32 v{s}, {f32(1e-5)}, v{s}")
    rbf(s, t0)
    a(f"v_sqrt_f32 v{s}, v{s}")
    rbf(s, t0)
    a(f"v_rcp_f32 v{s}, v{s}")
    for i in range(9): a(f"v_mul_f32 v{X[i]}, v{X[i]}, v{s}")
    rbf_list(X, t0)

def check_sentinel(regs, t):
    regs = list(regs)
    if len(regs) == 1:
        a(f"v_cmp_eq_u32 vcc, -1, v{regs[0]}"); return
    if len(regs) % 2 == 0:
        a(f"v_max_u32 v{t}, v{regs[0]}, v{regs[1]}"); regs = regs[2:]
    else:
        a(f"v_max3_u32 v{t}, v{regs[0]}, v{regs[1]}, v{regs[2]}"); regs = regs[3:]
    for i in range(0, len(regs), 2):
        a(f"v_max3_u32 v{t}, v{t}, v{regs[i]}, v{regs[i+1]}")
    a(f"v_cmp_eq_u32 vcc, -1, v{t}")

def poll(issue, check, s0=0, first=None):
    L = a.newlabel("Lpoll"); D = a.newlabel("Lpd"); M = a.newlabel("Lpm")
    a("s_mov_b32 s68, 0")
    if s0: a(f"s_sleep {s0}")
    if first is not None:
        issue(); first[0](); a(f"s_waitcnt vmcnt({first[1]})"); a(f"s_branch {M}")
    a.label(L)
    issue(); a("s_waitcnt vmcnt(0)")
    a.label(M)
    check()
    a(f"s_cbranch_vccz {D}")
    a(f"s_sleep {cfg.s1}\ns_add_u32 s68, s68, 1\ns_cmp_lt_u32 s68, {cfg.spin}\ns_cbranch_scc1 {L}")
    a.label(D)

def call(lbl):
    a.flush(); a(f"s_call_b64 s[30:31], {lbl}")
def ret():
    a.flush(); a("s_setpc_b64 s[30:31]")

def qgather_issue(qi, base):
    def f():
        a(f"s_add_u32 s70, s69, {D_A(qi)}\ns_add_u32 s71, s70, 4096\ns_add_u32 s72, s70, 8192")
        for i in range(9):
            a(f"buffer_load_dword v{base+i}, v40, s[16:19], s{70 + (i>>2)} offen offset:{(i&3)*1024} sc1")
    return f
def qgather_finish(qi, base):
    for i in range(1, 9): a(f"v_add_f32 v{base}, v{base}, v{base+i}")
    a(f"v_cvt_pk_bf16_f32 v{base}, v{base}, v{base}")
    a(f"v_lshrrev_b32 v41, 1, v40\nv_add_u32 v41, {LQ + qi*512}, v41\nds_write_b16 v41, v{base}")
def qgather_addr():
    a("s_lshl_b32 s70, s3, 8\nv_lshl_add_u32 v40, v0, 2, s70\ns_mul_i32 s69, s4, 9216")
def qgather(qi):
    qgather_addr()
    poll(qgather_issue(qi, 4), lambda: check_sentinel(range(4, 13), 13), s0=cfg.s0["D"])
    qgather_finish(qi, 4)
    a("s_waitcnt lgkmcnt(0)\ns_barrier")

a(f"""
s_cmp_ge_u32 s2, 256
s_cbranch_scc1 L_end
s_load_dwordx16 s[32:47], s[0:1], 0
s_load_dwordx8 s[48:55], s[0:1], 64
s_load_dwordx2 s[56:57], s[0:1], 96
v_lshrrev_b32 v1, 6, v0
v_readfirstlane_b32 s3, v1
v_and_b32 v0, 63, v0
s_lshr_b32 s4, s2, 4
s_and_b32 s6, s2, 15
s_add_u32 s5, s6, s4
s_and_b32 s5, s5, 15
v_lshlrev_b32 v2, 4, v0
v_bfe_u32 v1, v0, 1, 3
v_lshlrev_b32 v1, 10, v1
v_lshrrev_b32 v3, 4, v0
v_lshl_add_u32 v1, v3, 5, v1
v_and_b32 v3, 1, v0
v_lshl_add_u32 v1, v3, 4, v1
s_mov_b32 s24, 0xaaaaaaaa
s_mov_b32 s25, 0xaaaaaaaa
v_mov_b32 v3, 0xffff
v_mov_b32 v4, 0xffff0000
v_cndmask_b32 v3, v3, v4, s[24:25]
s_mov_b32 s26, {f32(CSM)}
s_lshl_b32 s27, s2, 18
s_lshl_b32 s28, s3, 16
s_add_u32 s27, s27, s28
s_mul_i32 s29, s3, {NL*1024}
s_mov_b32 s10, 0x8000000
s_mov_b32 s11, 0x20000
s_mov_b32 s14, 0x8000000
s_mov_b32 s15, 0x20000
s_mov_b32 s18, 0x20000000
s_mov_b32 s19, 0x20000
s_mov_b32 s23, 0x20000
s_waitcnt lgkmcnt(0)
s_mov_b32 s8, s34
s_mov_b32 s9, s35
s_mov_b32 s12, s36
s_mov_b32 s13, s37
s_mov_b32 s16, s56
s_mov_b32 s17, s57
""")
stamp()
load_k(range(0, 16))
a(f"""
v_mov_b32 v4, -1
v_mov_b32 v5, -1
v_mov_b32 v6, -1
v_mov_b32 v7, -1
s_lshl_b32 s70, s3, 18
s_lshl_b32 s71, s2, 10
s_add_u32 s70, s70, s71
buffer_store_dwordx4 v[4:7], v2, s[16:19], s70 offen sc1
s_lshl_b32 s70, s3, 12
s_lshl_b32 s71, s4, 7
s_add_u32 s70, s70, s71
s_lshl_b32 s71, s6, 2
s_add_u32 s70, s70, s71
s_add_u32 s70, s70, {A_L(0)}
v_lshlrev_b32 v8, 6, v0
s_mov_b64 exec, 3
buffer_store_dword v4, v8, s[16:19], s70 offen sc1
s_mov_b64 exec, -1
s_mul_i32 s7, s4, 9
s_add_u32 s7, s7, s5
s_cmp_ge_u32 s5, 9
s_cbranch_scc1 L_pro_s1
v_lshlrev_b32 v8, 2, v0
s_lshl_b32 s70, s3, 16
s_lshl_b32 s71, s7, 8
s_add_u32 s70, s70, s71
s_add_u32 s70, s70, {B_A(0)}
buffer_store_dword v4, v8, s[16:19], s70 offen sc1
s_lshl_b32 s70, s3, 18
s_lshl_b32 s71, s7, 10
s_add_u32 s70, s70, s71
s_add_u32 s70, s70, {D_A(0)}
buffer_store_dwordx4 v[4:7], v2, s[16:19], s70 offen sc1
s_lshl_b32 s70, s3, 12
s_lshl_b32 s71, s7, 4
s_add_u32 s70, s70, s71
s_add_u32 s70, s70, {C_A(0)}
s_mov_b64 exec, 15
buffer_store_dword v4, v8, s[16:19], s70 offen sc1
s_mov_b64 exec, -1
s_mov_b32 s20, s32
s_mov_b32 s21, s33
s_mov_b32 s22, 2304
v_lshlrev_b32 v9, 3, v0
v_lshlrev_b32 v10, 1, v0
buffer_load_dwordx2 v[12:13], v9, s[20:23], 0 offen
buffer_load_dwordx2 v[14:15], v9, s[20:23], 0 offen offset:512
buffer_load_ushort v16, v10, s[20:23], 0 offen offset:1024
buffer_load_dwordx2 v[18:19], v9, s[20:23], 0 offen offset:1152
buffer_load_dwordx2 v[20:21], v9, s[20:23], 0 offen offset:1664
buffer_load_ushort v22, v10, s[20:23], 0 offen offset:2176
v_mov_b32 v11, 0
global_load_ushort v23, v11, s[50:51]
s_mov_b32 s20, s38
s_mov_b32 s21, s39
s_mov_b32 s22, {576*8192}
v_lshrrev_b32 v24, 5, v0
v_and_b32 v25, 31, v0
v_lshlrev_b32 v25, 4, v25
v_lshlrev_b32 v26, 5, v24
v_xor_b32 v25, v25, v26
v_lshl_add_u32 v24, v24, 13, v25
v_xor_b32 v25, 64, v24
v_xor_b32 v26, 128, v24
v_xor_b32 v27, 192, v24
s_lshl_b32 s70, s5, 19
s_lshl_b32 s71, s3, 17
s_add_u32 s70, s70, s71
s_lshl_b32 s71, s4, 9
s_add_u32 s70, s70, s71
s_lshl_b32 s71, s3, 13
s_add_u32 s71, s71, {LWQ}
""")
for i in range(8):
    fs = ((i >> 2) & 1) * 2 + (i & 1)
    a(f"s_add_u32 m0, s71, {i*1024}\nbuffer_load_dwordx4 v{24+fs}, s[20:23], s70 offen lds")
    if i < 7: a("s_add_u32 s70, s70, 16384")
a.label("L_pro_s1")
load_k(range(16, 40))
a("s_waitcnt vmcnt(24)")
a(f"""
s_cmp_ge_u32 s5, 9
s_cbranch_scc1 L_pro_s2
v_lshlrev_b32 v23, 16, v23
v_readfirstlane_b32 s78, v23
v_add_u32 v24, {LXB}, v2
v_lshlrev_b32 v25, 2, v0
v_add_u32 v25, {LXB+2048}, v25
""")
for b in range(2):
    r = 12 + 6 * b
    a(f"""v_lshlrev_b32 v28, 16, v{r}
    v_and_b32 v29, 0xffff0000, v{r}
    v_lshlrev_b32 v30, 16, v{r+1}
    v_and_b32 v31, 0xffff0000, v{r+1}
    v_lshlrev_b32 v32, 16, v{r+2}
    v_and_b32 v33, 0xffff0000, v{r+2}
    v_lshlrev_b32 v34, 16, v{r+3}
    v_and_b32 v35, 0xffff0000, v{r+3}
    v_lshlrev_b32 v36, 16, v{r+4}
    ds_write_b128 v24, v[28:31] offset:{b*2304}
    ds_write_b128 v24, v[32:35] offset:{b*2304+1024}
    ds_write_b32 v25, v36 offset:{b*2304}
    s_waitcnt lgkmcnt(0)""")
a.label("L_pro_s2")
a(f"""
s_barrier
s_cmp_lg_u32 s3, 0
s_cbranch_scc1 L_pro_arr
s_lshl_b32 s70, s6, 2
v_mov_b32 v4, s70
v_mov_b32 v5, 1
s_mov_b64 exec, 1
global_atomic_add v4, v5, s[54:55] sc1
s_mov_b64 exec, -1
L_pro_arr:
s_cmp_ge_u32 s5, 9
s_cbranch_scc1 L_pro_s3
""")
for b in range(2):
    a(f"s_mov_b32 s63, 1\ns_mov_b32 s64, {LXB + b*2304}\ns_mov_b32 s62, {D_A(b)}")
    call("SUB_CH2")
    if b == 0: a("s_barrier")
a(f"""
s_mov_b32 s20, s40
s_mov_b32 s21, s41
s_mov_b32 s22, {4096*1152}
v_lshrrev_b32 v24, 3, v0
v_mul_u32_u24 v24, 1152, v24
v_and_b32 v25, 7, v0
v_lshlrev_b32 v25, 4, v25
v_bfe_u32 v26, v0, 4, 1
v_lshlrev_b32 v26, 5, v26
v_xor_b32 v25, v25, v26
v_xor_b32 v26, 64, v25
v_add_u32 v25, v25, v24
v_add_u32 v26, v26, v24
s_lshl_b32 s70, s4, 2
s_add_u32 s70, s70, s3
s_mul_i32 s70, s70, {64*1152}
s_lshl_b32 s71, s5, 7
s_add_u32 s70, s70, s71
s_lshl_b32 s71, s3, 13
s_add_u32 s71, s71, {LWO}
""")
for i in range(8):
    a(f"s_add_u32 m0, s71, {i*1024}\nbuffer_load_dwordx4 v{25+(i&1)}, s[20:23], s70 offen lds")
    if i < 7: a(f"s_add_u32 s70, s70, {8*1152}")
a(f"""
s_lshl_b32 s70, s3, 10
v_add_u32 v24, s70, v2
v_add_u32 v25, 4096, v24
v_add_u32 v26, 8192, v2
s_add_u32 s71, s70, {LMX}
""")
for j, p in enumerate((44, 46, 48)):
    a(f"""s_add_u32 m0, s71, {j*9216}
    global_load_lds_dwordx4 v24, s[{p}:{p+1}]
    s_add_u32 m0, s71, {j*9216+4096}
    global_load_lds_dwordx4 v25, s[{p}:{p+1}]
    s_mov_b32 m0, {LMX+j*9216+8192}
    global_load_lds_dwordx4 v26, s[{p}:{p+1}]""")
a.label("L_pro_s3")
a("s_waitcnt vmcnt(36)")
load_k(range(40, 64))
a("v_and_b32 v4, 15, v0\nv_lshlrev_b32 v4, 2, v4\ns_waitcnt vmcnt(36)")
poll(lambda: a("global_load_dword v5, v4, s[54:55] sc1"), lambda: a("v_cmp_ne_u32 vcc, 16, v5"),
     first=(lambda: load_v(range(0, 24)), 24))
qgather_addr()
def iss2():
    qgather_issue(0, 4)(); qgather_issue(1, 14)()
poll(iss2, lambda: check_sentinel(list(range(4, 13)) + list(range(14, 23)), 13), first=(lambda: load_v(range(24, 44)), 20))
qgather_finish(0, 4); qgather_finish(1, 14)
load_v(range(44, 64))
a("s_waitcnt lgkmcnt(0)\ns_barrier")
stamp()

def att(ai, seq, loadnext):
    a(f"s_mov_b32 s58, {A_O(ai)}\ns_mov_b32 s59, {A_L(ai)}\ns_mov_b32 s65, {LQ + ai*512}\ns_mov_b32 s64, {LX + (seq&1)*4224}")
    a("s_mov_b64 vcc, -1" if loadnext else "s_mov_b64 vcc, 0")
    call("SUB_ATT")
def ch1(inst, final):
    b = inst & 1
    a(f"s_mov_b32 s58, {A_O(inst)}\ns_mov_b32 s59, {A_L(inst)}\ns_mov_b32 s60, {B_A(inst)}\ns_mov_b32 s64, {LXB + b*2304}")
    a(f"s_mov_b32 s63, {1 if final else 0}\ns_mov_b32 s61, {b*1152 if final else C_A(inst)}")
    call("SUB_CH1")
def ch2(inst):
    b = inst & 1
    a(f"s_mov_b32 s63, 0\ns_mov_b32 s61, {C_A(inst)}\ns_mov_b32 s64, {LXB + b*2304}\ns_mov_b32 s62, {D_A(2+inst)}")
    call("SUB_CH2")

att(0, 0, False)
stamp()
a("s_cmp_ge_u32 s5, 9\ns_cbranch_scc1 L_m1")
ch1(0, False); ch2(0)
a.label("L_m1")
qgather(2)
stamp()
a("s_add_u32 s27, s27, 0x4000000")
att(2, 1, True)
stamp()
att(1, 2, False)
stamp()
a("s_cmp_ge_u32 s5, 9\ns_cbranch_scc1 L_m2")
ch1(1, False); ch2(1)
a.label("L_m2")
qgather(3)
stamp()
att(3, 3, False)
stamp()
a("s_cmp_ge_u32 s5, 9\ns_cbranch_scc1 L_m3")
ch1(2, True)
stamp()
ch1(3, True)
a.label("L_m3")
if cfg.stamps:
    n = nstamp[0]
    a(f"s_memrealtime s[{80+2*n}:{81+2*n}]\ns_waitcnt lgkmcnt(0)")
    n += 1
    a(f"""s_cmp_ge_u32 s5, 9
    s_cselect_b32 s96, s94, s96
    s_cselect_b32 s97, s95, s97
    s_lshl_b32 s70, s2, 2
    s_add_u32 s70, s70, s3
    s_mul_i32 s70, s70, {8*n}
    s_add_u32 s70, s70, {STAMP}
    v_mov_b32 v4, 0
    s_mov_b64 exec, 1""")
    for i in range(n):
        a(f"v_mov_b32 v6, s{80+2*i}\nv_mov_b32 v7, s{81+2*i}\nbuffer_store_dwordx2 v[6:7], v4, s[16:19], s70 offen offset:{8*i}\ns_nop 1")
    print("nstamps", n, file=sys.stderr)
a("s_waitcnt vmcnt(0)")
a.label("L_end")
a("s_endpgm")

a.hist = []
a.label("SUB_ATT")
outofline = []
def site(wait, fn):
    Lo = a.newlabel("Lo"); Lb = a.newlabel("Lb")
    a(f"s_cbranch_vccnz {Lo}")
    if wait is not None: a(f"s_waitcnt vmcnt({wait})")
    a.label(Lb)
    outofline.append((Lo, Lb, fn))
a(f"""
v_bfe_u32 v12, v0, 1, 1
v_lshlrev_b32 v12, 8, v12
v_lshrrev_b32 v13, 4, v0
v_lshl_add_u32 v12, v13, 5, v12
v_and_b32 v14, 1, v0
v_lshl_add_u32 v12, v14, 4, v12
v_add_u32 v12, s65, v12
ds_read_b128 v[4:7], v12
ds_read_b128 v[8:11], v12 offset:128
v_bfe_u32 v15, v0, 1, 1
v_xor_b32 v15, v15, v14
v_lshlrev_b32 v47, 9, v15
v_lshl_add_u32 v47, v13, 7, v47
v_bfe_u32 v15, v0, 2, 2
v_lshl_add_u32 v47, v15, 3, v47
v_lshl_add_u32 v47, v14, 2, v47
s_lshl_b32 s70, s3, 10
s_add_u32 s70, s70, s64
v_add_u32 v47, s70, v47
""")
for i in range(8): a(f"v_mov_b32 v{34+i}, 0")
a("s_waitcnt vmcnt(63) lgkmcnt(0)")
def Dset(i): return 12 + 4 * (i % 3)
def adds(i):
    G, t = i >> 2, i & 3; d = Dset(i)
    a(f"v_add_f32_dpp v32, v{d+1}, v{d} quad_perm:[1,0,3,2] row_mask:{1<<t:#x} bank_mask:0xf")
    a(f"v_add_f32_dpp v33, v{d+2}, v{d+3} quad_perm:[1,0,3,2] row_mask:{1<<t:#x} bank_mask:0xf")
    if t == 3: a(f"v_cndmask_b32 v{24+G}, v32, v33, s[24:25]")
for i in range(32):
    d = Dset(i)
    a(f"v_mfma_f32_16x16x32_bf16 v[{d}:{d+3}], v[4:7], {khome(2*i)}, 0")
    a(f"v_mfma_f32_16x16x32_bf16 v[{d}:{d+3}], v[8:11], {khome(2*i+1)}, v[{d}:{d+3}]")
    if i >= 2: adds(i - 2)
    if (i & 3) == 3:
        G = i >> 2
        site(None, (lambda G=G: (a("s_waitcnt vmcnt(48)"), load_k(range(8*G, 8*G+8)))))
adds(30); adds(31)
a("v_max3_f32 v46, v24, v25, v26\nv_max3_f32 v32, v27, v28, v29\nv_max3_f32 v46, v46, v30, v31\nv_max_f32 v46, v46, v32")
for ctl in ("quad_perm:[2,3,0,1]", "row_ror:4", "row_ror:8"):
    a(f"v_max_f32_dpp v46, v46, v46 {ctl} {DPPALL}")
rows_reduce("v_max_f32", 46, 32)
a("v_mul_f32 v32, s26, v46")
for G in range(8): a(f"v_fma_f32 v{24+G}, v{24+G}, s26, -v32")
for G in range(8): a(f"v_exp_f32 v{24+G}, v{24+G}")
a("v_add_f32 v51, v24, v25\nv_add_f32 v32, v26, v27\nv_add_f32 v33, v28, v29\nv_add_f32 v48, v30, v31\nv_add_f32 v51, v51, v32\nv_add_f32 v33, v33, v48\nv_add_f32 v51, v51, v33")
lctl = ["quad_perm:[2,3,0,1]", "row_ror:8", "row_ror:4"]
for G in range(8):
    t = 32 + (G & 1)
    a(f"v_mov_b32_dpp v{t}, v{24+G} quad_perm:[1,0,3,2] {DPPALL}")
    if G in (1, 3, 5): a(f"v_add_f32_dpp v51, v51, v51 {lctl[G//2]} {DPPALL}")
    a(f"v_cvt_pk_bf16_f32 v{24+G}, v{24+G}, v{t}")
rows_reduce("v_add_f32", 51, 32)
a("v_add_u32 v33, s29, v2")
sites = list(range(0, 60, 4)) + [60, 61, 62, 63]
consumed = [0]; issued = [0]
def zreg(G, rot): return 24 + G if rot == 0 else 47 + rot
def fetch(i):
    if i in sites:
        nxt = [s for s in sites if s > i]
        last = (nxt[0] if nxt else 64) - 1
        lo, hi = issued[0], consumed[0]; issued[0] = hi
        site(63 - last, (lambda lo=lo, hi=hi: (a("s_waitcnt vmcnt(52)"), load_v(range(lo, hi)))))
    if i < NL:
        t = 12 + 4 * (i % 3)
        a(f"ds_read_b128 v[{t}:{t+3}], v33 offset:{i*1024}")
def build(i):
    G, kap = i >> 3, i & 7
    if kap == 0:
        for rot in (1, 2, 3): a(f"v_mov_b32_dpp v{47+rot}, v{24+G} row_ror:{4*rot} {DPPALL}")
    bs = 34 + 4 * (i & 1); x = 2 * (kap & 1); hb = kap >> 1
    order = [hb] + [k for k in range(4) if k != hb]
    for k in order:
        rot = (k - hb) % 4
        a(f"v_and_b32_dpp v{bs+k}, v{zreg(G, rot)}, v3 quad_perm:[{x},{x},{x+1},{x+1}] row_mask:0xf bank_mask:{1<<k:#x}")
def mm(i):
    bs = 34 + 4 * (i & 1)
    if i < NL:
        young = min(NL - 1, i + 2) - i
        a(f"s_waitcnt lgkmcnt({young})")
        t = 12 + 4 * (i % 3); src = f"v[{t}:{t+3}]"
    else: src = vhome(i)
    a(f"v_mfma_f32_16x16x32_bf16 v[42:45], {src}, v[{bs}:{bs+3}], {'0' if i == 0 else 'v[42:45]'}")
    consumed[0] = i + 1
for i in range(66):
    if i < 64 and i < NL: fetch(i)
    if 1 <= i <= 64: build(i - 1)
    if i >= 2:
        if i - 2 >= NL: fetch(i - 2)
        mm(i - 2)
lo, hi = issued[0], 64
site(None, (lambda: (a("s_waitcnt vmcnt(52)"), load_v(range(lo, hi)))))
a(f"""
v_and_b32 v32, 1, v0
v_lshlrev_b32 v32, 5, v32
s_lshl_b32 s70, s3, 2
s_add_u32 s70, s70, s64
s_add_u32 s70, s70, 4096
v_add_u32 v32, s70, v32
ds_write2_b32 v32, v46, v51 offset0:0 offset1:4
ds_write2_b32 v47, v42, v43 offset0:0 offset1:8
ds_write2_b32 v47, v44, v45 offset0:16 offset1:24
v_add_u32 v32, s64, v2
v_lshrrev_b32 v33, 5, v0
v_lshlrev_b32 v34, 6, v33
v_lshlrev_b32 v33, 5, v33
v_add_u32 v33, s64, v33
s_waitcnt lgkmcnt(0)
s_barrier
s_cmp_lg_u32 s3, 0
s_cbranch_scc1 L_att_ret
ds_read_b128 v[20:23], v33 offset:4096
ds_read_b128 v[24:27], v33 offset:4112
ds_read_b128 v[4:7], v32
ds_read_b128 v[8:11], v32 offset:1024
ds_read_b128 v[12:15], v32 offset:2048
ds_read_b128 v[16:19], v32 offset:3072
s_lshl_b32 s70, s2, 10
s_add_u32 s70, s70, s58
s_lshl_b32 s71, s4, 7
s_add_u32 s71, s71, s59
s_lshl_b32 s72, s6, 2
s_add_u32 s71, s71, s72
s_waitcnt lgkmcnt(4)
v_max3_f32 v28, v20, v21, v22
v_max_f32 v28, v28, v23
v_mul_f32 v28, s26, v28
""")
for w in range(4): a(f"v_fma_f32 v{20+w}, v{20+w}, s26, -v28")
for w in range(4): a(f"v_exp_f32 v{20+w}, v{20+w}")
a("v_mul_f32 v29, v20, v24\nv_fmac_f32 v29, v21, v25\nv_fmac_f32 v29, v22, v26\nv_fmac_f32 v29, v23, v27\nv_rcp_f32 v30, v29\nv_log_f32 v29, v29")
for w in range(4): a(f"v_mul_f32 v{20+w}, v{20+w}, v30")
a("v_add_f32 v29, v29, v28\ns_waitcnt lgkmcnt(0)")
for v in range(4): a(f"v_mul_f32 v{4+v}, v{4+v}, v20")
for w in range(1, 4):
    for v in range(4): a(f"v_fmac_f32 v{4+v}, v{4+4*w+v}, v{20+w}")
a("""buffer_store_dwordx4 v[4:7], v2, s[16:19], s70 offen sc1
s_mov_b32 exec_lo, 1
s_mov_b32 exec_hi, 1
buffer_store_dword v29, v34, s[16:19], s71 offen sc1
s_mov_b64 exec, -1
L_att_ret:""")
ret()
for Lo, Lb, fn in outofline:
    a.hist = []
    a.label(Lo); fn(); a(f"s_branch {Lb}")

a.hist = []
a.label("SUB_CH1")
a(f"""
v_lshrrev_b32 v21, 4, v0
v_bfe_u32 v22, v0, 2, 2
v_lshl_add_u32 v23, v21, 3, v22
v_lshlrev_b32 v23, 7, v23
v_bfe_u32 v21, v0, 3, 2
v_xor_b32 v21, s3, v21
v_lshl_add_u32 v23, v21, 5, v23
v_and_b32 v21, 3, v0
v_lshl_add_u32 v23, v21, 3, v23
v_add_u32 v23, {LWO}, v23
""")
for ks in range(7):
    for jh in range(2):
        r = 24 + 4 * ks + 2 * jh
        a(f"ds_read_b64_tr_b16 v[{r}:{r+1}], v23 offset:{(32*ks+4*jh)*128}")
a(f"""
v_lshlrev_b32 v21, 2, v0
s_lshl_b32 s70, s4, 14
s_add_u32 s70, s70, s58
s_lshl_b32 s71, s3, 8
s_add_u32 s70, s70, s71
s_add_u32 s71, s70, 4096
s_add_u32 s72, s70, 8192
s_add_u32 s73, s70, 12288
s_lshl_b32 s74, s4, 7
s_add_u32 s74, s74, s59
s_lshr_b32 s75, s3, 1
s_lshl_b32 s75, s75, 6
s_add_u32 s74, s74, s75
""")
def issA():
    a("v_and_b32 v20, 60, v21\nbuffer_load_dword v20, v20, s[16:19], s74 offen sc1")
    for s in range(16):
        a(f"buffer_load_dword v{4+s}, v21, s[16:19], s{70+(s>>2)} offen offset:{(s&3)*1024} sc1")
chkA = lambda: check_sentinel(range(4, 21), 22)
poll(issA, chkA, s0=cfg.s0["A"])
a("v_mov_b32 v22, v20")
row16_reduce("v_max_f32", [22])
a("v_sub_f32 v20, v20, v22\nv_exp_f32 v20, v20\nv_mov_b32 v21, 0\nv_mov_b32 v22, v20")
ctl = ["quad_perm:[1,0,3,2]", "quad_perm:[2,3,0,1]", "row_half_mirror", "row_mirror"]
for s in range(16):
    a(f"v_fmac_f32_dpp v21, v20, v{4+s} row_newbcast:{s} {DPPALL}")
    if s in (2, 5, 8, 11): a(f"v_add_f32_dpp v22, v22, v22 {ctl[s//3]} {DPPALL}")
    if s == 13: a("v_rcp_f32 v22, v22")
a(f"""
ds_read_b64_tr_b16 v[4:5], v23 offset:{(32*7)*128}
ds_read_b64_tr_b16 v[6:7], v23 offset:{(32*7+4)*128}
v_mul_f32 v21, v21, v22
v_cvt_pk_bf16_f32 v21, v21, v21
s_lshl_b32 s70, s3, 7
s_add_u32 s70, s70, {LO}
v_lshl_add_u32 v22, v0, 1, s70
ds_write_b16 v22, v21
v_lshrrev_b32 v22, 4, v0
v_lshlrev_b32 v22, 4, v22
v_add_u32 v22, {LO}, v22
s_waitcnt lgkmcnt(0)
s_barrier
""")
order = [7, 0, 1, 2, 3, 4, 5, 6]
def frag(ks): return "v[4:7]" if ks == 7 else f"v[{24+4*ks}:{27+4*ks}]"
bufs = ["v[8:11]", "v[12:15]"]
a(f"ds_read_b128 {bufs[0]}, v22 offset:{order[0]*64}\nds_read_b128 {bufs[1]}, v22 offset:{order[1]*64}")
free = []
for n, ks in enumerate(order):
    a(f"s_waitcnt lgkmcnt({1 if n < 7 else 0})")
    a(f"v_mfma_f32_16x16x32_bf16 v[16:19], {bufs[n]}, {frag(ks)}, {'0' if n == 0 else 'v[16:19]'}")
    if n + 2 < 8:
        bufs.append(frag(ks))
        a(f"ds_read_b128 {bufs[n+2]}, v22 offset:{order[n+2]*64}")
a(f"""
s_lshl_b32 s70, s7, 8
s_add_u32 s70, s70, s60
s_lshl_b32 s71, s3, 6
s_add_u32 s70, s70, s71
v_lshlrev_b32 v40, 2, v0
s_mov_b64 exec, 0xffff
buffer_store_dword v16, v40, s[16:19], s70 offen sc1
s_mov_b64 exec, -1
s_mul_i32 s70, s3, 9216
s_add_u32 s70, s70, s60
s_add_u32 s71, s70, 2304
s_add_u32 s72, s70, 4608
s_add_u32 s73, s70, 6912
""")
def issB():
    for r in range(4):
        a(f"buffer_load_dwordx4 v[{4+8*r}:{7+8*r}], v2, s[16:19], s{70+r} offen sc1")
        a(f"buffer_load_dwordx4 v[{8+8*r}:{11+8*r}], v2, s[16:19], s{70+r} offen offset:1024 sc1")
        a(f"buffer_load_dword v{36+r}, v40, s[16:19], s{70+r} offen offset:2048 sc1")
poll(issB, lambda: check_sentinel(range(4, 40), 41), s0=cfg.s0["B"])
for i in range(8): a(f"v_add_f32 v{4+i}, v{4+i}, v{12+i}\nv_add_f32 v{20+i}, v{20+i}, v{28+i}")
a("v_add_f32 v36, v36, v37\nv_add_f32 v38, v38, v39")
for i in range(8): a(f"v_add_f32 v{4+i}, v{4+i}, v{20+i}")
a(f"""v_add_f32 v36, v36, v38
s_mul_i32 s70, s3, 2304
s_add_u32 s70, s70, {LX}
v_add_u32 v41, s70, v2
v_add_u32 v42, s70, v40
ds_write_b128 v41, v[4:7]
ds_write_b128 v41, v[8:11] offset:1024
ds_write_b32 v42, v36 offset:2048
v_add_u32 v49, s64, v2
v_add_u32 v50, s64, v40
v_add_u32 v51, {LX}, v2
v_add_u32 v41, {LX}, v40
s_waitcnt lgkmcnt(0)
s_barrier
""")
for r in range(4):
    a(f"ds_read_b128 v[{4+8*r}:{7+8*r}], v51 offset:{r*2304}\nds_read_b128 v[{8+8*r}:{11+8*r}], v51 offset:{r*2304+1024}\nds_read_b32 v{36+r}, v41 offset:{r*2304+2048}")
a("ds_read_b128 v[40:43], v49\nds_read_b128 v[44:47], v49 offset:1024\nds_read_b32 v48, v50 offset:2048\ns_waitcnt lgkmcnt(3)")
for i in range(8): a(f"v_add_f32 v{4+i}, v{4+i}, v{12+i}\nv_add_f32 v{20+i}, v{20+i}, v{28+i}")
a("v_add_f32 v36, v36, v37\nv_add_f32 v38, v38, v39")
for i in range(8): a(f"v_add_f32 v{4+i}, v{4+i}, v{20+i}")
a("v_add_f32 v12, v36, v38")
X = list(range(4, 13))
rbf_list(X, 13)
a("s_waitcnt lgkmcnt(0)")
for i in range(9): a(f"v_add_f32 v{4+i}, v{4+i}, v{40+i}")
rbf_list(X, 13)
a(f"s_lshl_b32 s70, s3, 8\ns_add_u32 s70, s70, {LMX}\nv_lshl_add_u32 v51, v0, 2, s70")
for i in range(9):
    for j in range(3): a(f"ds_read_b32 v{24+3*i+j}, v51 offset:{j*9216+i*1024}")
def extract(dst):
    L1 = a.newlabel("Lx"); L2 = a.newlabel("Lx"); L3 = a.newlabel("Lx")
    a.flush()
    a(f"s_cmp_ge_u32 s7, 64\ns_cbranch_scc1 {L1}")
    for e in range(4): a(f"v_readlane_b32 s{dst+2*e}, v{4+e}, s7")
    a(f"s_branch {L3}\n{L1}:\ns_cmp_ge_u32 s7, 128\ns_cbranch_scc1 {L2}\ns_sub_u32 s66, s7, 64")
    for e in range(4): a(f"v_readlane_b32 s{dst+2*e}, v{8+e}, s66")
    a(f"s_branch {L3}\n{L2}:\ns_sub_u32 s66, s7, 128\ns_lshl_b32 s66, s66, 2")
    for e in range(4): a(f"v_readlane_b32 s{dst+2*e}, v12, s66\ns_add_u32 s66, s66, 1")
    a.label(L3)
    a("s_nop 1")
extract(71)
layernorm(X, 13)
layernorm(X, 13)
extract(70)
a(f"v_mov_b32 v22, {f32(C1)}\ns_mov_b32 s66, {f32(C2)}")
for i in range(8): a(f"v_mov_b32 v{4+i}, 0")
a("s_waitcnt lgkmcnt(0)")
for i in range(9):
    for j in range(3):
        a(f"v_lshlrev_b32 v{12+2*j}, 16, v{24+3*i+j}\nv_and_b32 v{13+2*j}, 0xffff0000, v{24+3*i+j}")
    for e in range(4):
        a(f"""v_pk_fma_f32 v[18:19], v[12:13], s[{70+2*e}:{71+2*e}], v[14:15] op_sel_hi:[1,0,1]
        v_pk_mul_f32 v[20:21], v[18:19], v[18:19]
        v_pk_fma_f32 v[20:21], v[20:21], s[66:67], v[22:23] op_sel_hi:[1,0,0]
        v_pk_mul_f32 v[20:21], v[18:19], v[20:21]
        v_exp_f32 v20, v20
        v_exp_f32 v21, v21
        v_pk_mul_f32 v[18:19], v[18:19], v[16:17]
        v_pk_add_f32 v[20:21], v[20:21], 1.0 op_sel_hi:[1,0]
        v_rcp_f32 v20, v20
        v_rcp_f32 v21, v21
        v_pk_fma_f32 v[{4+2*e}:{5+2*e}], v[18:19], v[20:21], v[{4+2*e}:{5+2*e}]""")
for e in range(4): a(f"v_add_f32 v{4+2*e}, v{4+2*e}, v{5+2*e}")
row16_reduce("v_add_f32", [4, 6, 8, 10])
a(f"""
v_lshrrev_b32 v12, 4, v0
v_lshlrev_b32 v12, 2, v12
s_lshl_b32 s66, s3, 4
s_add_u32 s66, s66, {LRED}
v_add_u32 v12, s66, v12
ds_write2_b32 v12, v4, v6 offset0:0 offset1:16
ds_write2_b32 v12, v8, v10 offset0:32 offset1:48
v_and_b32 v13, 3, v0
v_lshlrev_b32 v12, 6, v13
v_add_u32 v12, {LRED}, v12
s_waitcnt lgkmcnt(0)
s_barrier
s_cmp_lg_u32 s3, 0
s_cbranch_scc1 L_ch1_ret
ds_read_b128 v[16:19], v12
ds_read_b128 v[20:23], v12 offset:16
ds_read_b128 v[24:27], v12 offset:32
ds_read_b128 v[28:31], v12 offset:48
v_mov_b32 v14, s71
v_writelane_b32 v14, s73, 1
v_writelane_b32 v14, s75, 2
v_writelane_b32 v14, s77, 3
s_waitcnt lgkmcnt(0)
""")
for i in range(8): a(f"v_add_f32 v{16+i}, v{16+i}, v{24+i}")
for i in range(4): a(f"v_add_f32 v{16+i}, v{16+i}, v{20+i}")
a("v_add_f32 v16, v16, v17\nv_add_f32 v18, v18, v19\nv_add_f32 v16, v16, v18")
rbf(16, 17); a("v_add_f32 v16, s78, v16"); rbf(16, 17); a("v_add_f32 v16, v16, v14"); rbf(16, 17)
a(f"""
s_mov_b64 exec, 15
s_cmp_eq_u32 s63, 1
s_cbranch_scc1 L_ch1_fin
v_lshlrev_b32 v13, 2, v13
s_lshl_b32 s66, s7, 4
s_add_u32 s66, s66, s61
buffer_store_dword v16, v13, s[16:19], s66 offen sc1
s_branch L_ch1_done
L_ch1_fin:
s_mov_b32 s20, s52
s_mov_b32 s21, s53
s_mov_b32 s22, 2304
v_lshlrev_b32 v13, 1, v13
s_lshl_b32 s66, s7, 3
s_add_u32 s66, s66, s61
buffer_store_short v17, v13, s[20:23], s66 offen
L_ch1_done:
s_mov_b64 exec, -1
L_ch1_ret:
""")
ret()

a.hist = []
a.label("SUB_CH2")
a(f"""
v_lshrrev_b32 v13, 4, v0
v_bfe_u32 v14, v0, 2, 2
v_lshl_add_u32 v15, v13, 3, v14
v_lshlrev_b32 v15, 9, v15
v_bfe_u32 v13, v0, 2, 3
s_lshl_b32 s70, s3, 2
v_xor_b32 v13, s70, v13
v_lshl_add_u32 v15, v13, 5, v15
v_and_b32 v13, 3, v0
v_lshl_add_u32 v15, v13, 3, v15
v_add_u32 v15, {LWQ}, v15
v_xor_b32 v16, 32, v15
v_xor_b32 v17, 64, v15
v_xor_b32 v18, 96, v15
""")
for cbk in range(4):
    for ks in range(2):
        for jh in range(2):
            r = 20 + 8 * cbk + 4 * ks + 2 * jh
            a(f"ds_read_b64_tr_b16 v[{r}:{r+1}], v{15+cbk} offset:{(32*ks+4*jh)*512}")
a(f"""
v_lshlrev_b32 v19, 2, v0
v_add_u32 v13, s64, v2
v_add_u32 v14, s64, v19
s_cmp_eq_u32 s63, 1
s_cbranch_scc0 L_ch2_g
ds_read_b128 v[4:7], v13
ds_read_b128 v[8:11], v13 offset:1024
ds_read_b32 v12, v14 offset:2048
s_waitcnt lgkmcnt(0)
s_branch L_ch2_x
L_ch2_g:
""")
def issC():
    a("buffer_load_dwordx4 v[4:7], v2, s[16:19], s61 offen sc1\nbuffer_load_dwordx4 v[8:11], v2, s[16:19], s61 offen offset:1024 sc1\nbuffer_load_dword v12, v19, s[16:19], s61 offen offset:2048 sc1")
poll(issC, lambda: check_sentinel(range(4, 13), 15), s0=cfg.s0["C"])
a("ds_write_b128 v13, v[4:7]\nds_write_b128 v13, v[8:11] offset:1024\nds_write_b32 v14, v12 offset:2048\ns_waitcnt lgkmcnt(0)")
a.label("L_ch2_x")
layernorm(X, 13)
a(f"""
v_cvt_pk_bf16_f32 v14, v4, v5
v_cvt_pk_bf16_f32 v15, v6, v7
v_cvt_pk_bf16_f32 v16, v8, v9
v_cvt_pk_bf16_f32 v17, v10, v11
v_lshlrev_b32 v13, 3, v0
v_add_u32 v13, {LLN}, v13
v_lshlrev_b32 v18, 1, v0
v_add_u32 v18, {LLN+1024}, v18
ds_write_b64 v13, v[14:15]
ds_write_b64 v13, v[16:17] offset:512
ds_write_b16_d16_hi v18, v12
v_lshrrev_b32 v13, 4, v0
v_lshlrev_b32 v13, 4, v13
s_lshl_b32 s70, s5, 7
s_add_u32 s70, s70, {LLN}
v_add_u32 v13, s70, v13
s_waitcnt lgkmcnt(0)
ds_read_b128 v[4:7], v13
ds_read_b128 v[8:11], v13 offset:64
s_lshl_b32 s70, s7, 10
s_add_u32 s70, s70, s62
s_lshl_b32 s71, s3, 8
s_add_u32 s70, s70, s71
s_waitcnt lgkmcnt(0)
""")
accs = [12, 20, 28, 36]
for cbk in range(4):
    d = accs[cbk]; f = 20 + 8 * cbk
    a(f"v_mfma_f32_16x16x32_bf16 v[{d}:{d+3}], v[4:7], v[{f}:{f+3}], 0")
    a(f"v_mfma_f32_16x16x32_bf16 v[{d}:{d+3}], v[8:11], v[{f+4}:{f+7}], v[{d}:{d+3}]")
for cbk in range(1, 4):
    a(f"v_mov_b32_dpp v12, v{accs[cbk]} quad_perm:[0,1,2,3] row_mask:{1<<cbk:#x} bank_mask:0xf")
a("buffer_store_dword v12, v19, s[16:19], s70 offen sc1")
ret()

hdr = open("cdna_kernels/" + NAME + ".s.ref").read().split("; Override launch")[0]
out = hdr + f"; @launch grid=(256,1,1) block=(256,1,1) lds={LDS_TOTAL}\n"
out += f""".amdgcn_target "amdgcn-amd-amdhsa--gfx950"
.text
.globl {NAME}_kernel
.p2align 8
.type {NAME}_kernel,@function
{NAME}_kernel:
""" + a.text() + f""".section .rodata,"a"
.p2align 6
.amdhsa_kernel {NAME}_kernel
  .amdhsa_next_free_vgpr 512
  .amdhsa_next_free_sgpr 102
  .amdhsa_accum_offset 256
  .amdhsa_group_segment_fixed_size 0
  .amdhsa_kernarg_size 104
  .amdhsa_user_sgpr_count 2
  .amdhsa_user_sgpr_kernarg_segment_ptr 1
  .amdhsa_system_sgpr_workgroup_id_x 1
.end_amdhsa_kernel
"""
open(sys.argv[1], "w").write(out)
print("nops added", a.nops_added, "lines", len(a.lines), file=sys.stderr)
```

```python
import re

_REG = re.compile(r'(?<![\w.])([vas])(?:(\d+)|\[(\d+):(\d+)\])(?![\w])')
TRANS = ("v_exp_f32", "v_log_f32", "v_rcp_f32", "v_rsq_f32", "v_sqrt_f32", "v_sin_f32", "v_cos_f32")

def regs_of(op):
    out = set()
    op = op.strip()
    for m in _REG.finditer(op):
        f = m.group(1)
        if m.group(2) is not None:
            out.add((f, int(m.group(2))))
        else:
            for i in range(int(m.group(3)), int(m.group(4)) + 1):
                out.add((f, i))
    if re.search(r'\bvcc\b', op): out |= {('s', 106), ('s', 107)}
    if re.search(r'\bvcc_lo\b', op): out.add(('s', 106))
    if re.search(r'\bvcc_hi\b', op): out.add(('s', 107))
    if re.search(r'\bm0\b', op): out.add(('s', 124))
    if re.search(r'\bexec\b', op): out |= {('s', 126), ('s', 127)}
    return out

class Ins:
    __slots__ = ("mn", "kind", "wr", "rd", "slots", "srcc", "srcab", "dpp", "lanesel", "stdata", "text", "lds_dma", "dotab")

def split_ops(s):
    ops, depth, cur = [], 0, ""
    for ch in s:
        if ch == '[': depth += 1
        if ch == ']': depth -= 1
        if ch == ',' and depth == 0:
            ops.append(cur.strip()); cur = ""
        else:
            cur += ch
    if cur.strip(): ops.append(cur.strip())
    return ops

def parse(text):
    t = text.split(';')[0].strip()
    parts = t.split(None, 1)
    mn = parts[0]
    rest = parts[1] if len(parts) > 1 else ""
    ops = split_ops(rest)
    mods = ""
    if ops:
        lo = ops[-1].split(None, 1)
        if len(lo) > 1 and not lo[0].endswith('('):
            ops[-1] = lo[0]; mods = lo[1]
    I = Ins(); I.mn = mn; I.text = t; I.slots = 1; I.wr = set(); I.rd = set(); I.srcc = set(); I.srcab = set()
    I.dpp = set(); I.lanesel = set(); I.stdata = set(); I.lds_dma = False; I.dotab = set()
    R = [regs_of(o) for o in ops]
    allr = lambda lst: set().union(*lst) if lst else set()
    if mn == "s_nop":
        I.kind = "nop"; I.slots = int(ops[0], 0) + 1
    elif mn.startswith("v_smfmac"):
        I.kind = "mfma"; I.wr = R[0]; I.srcab = R[1] | R[2] | R[3]; I.srcc = R[0]; I.rd = I.srcab | I.srcc
    elif mn.startswith("v_mfma"):
        I.kind = "mfma"; I.wr = R[0]; I.srcab = R[1] | R[2]; I.srcc = R[3]; I.rd = I.srcab | I.srcc
    elif mn.startswith("v_"):
        I.kind = "trans" if mn.replace("_e32", "").replace("_e64", "") in TRANS else "valu"
        if mn.startswith("v_permlane"):
            I.kind = "permlane"; I.wr = R[0] | R[1]; I.rd = R[0] | R[1]
        elif mn.startswith("v_readlane") or mn.startswith("v_readfirstlane"):
            I.kind = "readlane"; I.wr = R[0]; I.rd = allr(R[1:]); I.lanesel = R[2] if len(R) > 2 else set()
        elif mn.startswith("v_writelane"):
            I.wr = R[0]; I.rd = allr(R[1:]); I.lanesel = R[2]
        else:
            I.wr = R[0]; I.rd = allr(R[1:])
            if mn.startswith("v_fmac") or mn.startswith("v_dot2c"): I.rd |= R[0]
            if mn.startswith("v_cndmask") and len(R) == 3: I.rd |= {('s', 106), ('s', 107)}
            if mn.endswith("_dpp"): I.dpp = R[1]
            if mn.startswith("v_dot2"): I.dotab = R[1] | R[2]
    elif mn.startswith("ds_"):
        I.kind = "ds"
        if mn.startswith("ds_read") or mn.startswith("ds_bpermute") or mn.startswith("ds_swizzle") or mn.startswith("ds_permute"):
            I.wr = R[0]; I.rd = allr(R[1:])
        else:
            I.rd = allr(R)
    elif mn.startswith("buffer_") or mn.startswith("global_"):
        I.kind = "vmem"
        lds = bool(re.search(r'\blds\b', mods)) or "_lds_" in mn
        I.lds_dma = lds
        if ("load" in mn and not lds) or ("atomic" in mn and mn.startswith("global_") and len(R) == 4):
            I.wr = R[0]; I.rd = allr(R[1:])
        else:
            I.rd = allr(R)
            if "store" in mn and ("x3" in mn or "x4" in mn):
                I.stdata = R[0] if mn.startswith("buffer_") else R[1]
    elif mn.startswith("s_"):
        I.kind = "salu"
        nodst = ("s_cmp", "s_cbranch", "s_branch", "s_waitcnt", "s_barrier", "s_sleep", "s_setpc", "s_endpgm", "s_setprio", "s_bitcmp", "s_set_gpr")
        if mn.startswith(nodst):
            I.rd = allr(R)
        else:
            I.wr = R[0] if R else set(); I.rd = allr(R[1:])
            if "saveexec" in mn: I.wr = I.wr | {('s', 126), ('s', 127)}
    else:
        raise ValueError("unknown instr " + t)
    return I

VALUISH = ("valu", "trans", "permlane", "readlane")
def vonly(s): return {r for r in s if r[0] in "va"}
def sonly(s): return {r for r in s if r[0] == "s"}

def need(p, c):
    n = 0
    if p.kind in VALUISH:
        pv, ps = vonly(p.wr), sonly(p.wr)
        if pv & c.dpp: n = max(n, 2)
        if c.kind == "permlane" and pv & c.rd: n = max(n, 2)
        if c.kind == "mfma" and pv & c.rd: n = max(n, 2)
        if c.kind == "readlane" and pv & c.rd: n = max(n, 1)
        if p.kind == "trans" and c.kind in ("valu", "permlane", "readlane") and pv & c.rd: n = max(n, 1)
        if ps:
            if c.kind in VALUISH and ps & c.rd: n = max(n, 2)
            if ps & c.lanesel: n = max(n, 4)
            if c.kind == "vmem" and ps & c.rd: n = max(n, 5)
            if c.kind == "salu" and ps & c.rd: n = max(n, 1)
    if p.mn.startswith("v_dot2") and vonly(p.wr) & (c.rd | c.wr):
        same_c = c.mn == p.mn and not (vonly(p.wr) & c.dotab)
        if not same_c: n = max(n, 3)
    if p.kind == "mfma":
        if c.kind == "mfma":
            if p.wr & c.srcab: n = max(n, 8)
            if p.wr & c.srcc and p.wr != c.srcc: n = max(n, 6)
            if p.wr & c.wr and not (p.wr == c.srcc): n = max(n, 6)
        else:
            if p.wr & (c.rd | c.wr): n = max(n, 8)
            if c.kind in VALUISH and p.srcc & c.wr: n = max(n, 3)
    if p.kind == "salu" and ('s', 124) in p.wr and c.lds_dma: n = max(n, 1)
    if p.kind == "vmem" and p.stdata:
        if c.kind in VALUISH and p.stdata & c.wr: n = max(n, 2)
        elif p.stdata & c.wr: n = max(n, 1)
    return n

class Asm:
    def __init__(self):
        self.lines = []; self.hist = []; self.lab = 0; self.nops_added = 0
    def raw(self, s): self.lines.append(s)
    def comment(self, s): self.lines.append("    ; " + s)
    def label(self, name, flush=True):
        self.lines.append(name + ":")
    def newlabel(self, p="L"):
        self.lab += 1; return "%s_%d" % (p, self.lab)
    def emit(self, text):
        I = parse(text)
        dist = 0; pad = 0
        for p in reversed(self.hist):
            k = need(p, I) - dist
            if k > pad: pad = k
            dist += p.slots
            if dist >= 10: break
        if pad > 0:
            N = parse("s_nop %d" % (pad - 1)); self.hist.append(N)
            self.lines.append("    s_nop %d" % (pad - 1)); self.nops_added += pad
        self.hist.append(I)
        if len(self.hist) > 16: self.hist.pop(0)
        self.lines.append("    " + text.strip())
    def flush(self, n=8):
        dist = 0; pad = 0
        for p in reversed(self.hist):
            req = 8 if p.kind == "mfma" else (5 if (p.kind in VALUISH and sonly(p.wr)) else (3 if p.mn.startswith("v_dot2") else 2 if p.kind in VALUISH or p.stdata else 0))
            pad = max(pad, req - dist); dist += p.slots
            if dist >= 10: break
        if pad > 0: self.emit("s_nop %d" % (pad - 1))
    def __call__(self, s):
        for l in s.strip("\n").split("\n"):
            l = l.strip()
            if not l or l.startswith(";"):
                if l: self.lines.append("    " + l)
                continue
            if l.endswith(":"): self.label(l[:-1])
            else: self.emit(l)
    def text(self): return "\n".join(self.lines) + "\n"
```

```python
import sys, struct, math
sys.path.insert(0, "gen")
from asmlib import *

NAME = "interleave_layers__gqa_block_cached__mixer_token_mlp__decode"
def f32(x): return "0x%08x" % struct.unpack("<I", struct.pack("<f", x))[0]

class Cfg:
    stamps = 0
    spin = 20000
    s0 = dict(A=20, B=16, C=24, D=12)
    s1 = 2
    sh = 2
    sg = 8
    go = 40
    roles = 1
    n0 = 16
    n1 = 9
    thr = -1
    go0 = -1
    j0 = 32
    fa = 6
    dw = 2
    pre = 8
    d1 = 3
    d2 = 2
    d3 = 3
    d4 = 3
cfg = Cfg()
for arg in sys.argv[2:]:
    k, v = arg.split("=")
    if k.startswith("s0"): cfg.s0[k[2]] = int(v)
    else: setattr(cfg, k, int(v))

W = 52; NL = 13; NS = 20
LV = 0; LWO = 53248; LWQ = 86016; LMX = 118784; LXB = 146432; LX = 151040; LQ = 160256; LLN = 162304; LRED = 163456
LO = LX + 8448
LDS_TOTAL = 163840
A_O = lambda i: i * 0x40000
A_L = lambda i: 0x100000 + i * 0x1000
B_A = lambda i: 0x110000 + i * 0x10000
C_A = lambda i: 0x150000 + i * 0x1000
H_A = lambda i: 0x158000 + i * 0x1000
D_A = lambda i: 0x160000 + i * 0x40000
STAMP = 0x10000000
CSM = math.log2(math.e) / math.sqrt(128.0)
C1 = -2.0 * math.sqrt(2.0 / math.pi) * math.log2(math.e)
C2 = C1 * 0.044715
DPPALL = "row_mask:0xf bank_mask:0xf"
CTL4 = ["quad_perm:[1,0,3,2]", "quad_perm:[2,3,0,1]", "row_half_mirror", "row_mirror"]

a = Asm()
POOL = list(range(83, 100)) + list(range(32, 42)) + [43]
stamp_names = []
def stamp(name, cond=None):
    if not cfg.stamps: return
    if name in stamp_names: r = POOL[stamp_names.index(name)]
    else:
        r = POOL[len(stamp_names)]; stamp_names.append(name)
    a("s_memrealtime s[100:101]\ns_waitcnt lgkmcnt(0)")
    if cond is None: a(f"s_mov_b32 s{r}, s100")
    else: a(f"s_cmp_eq_u32 s79, {cond}\ns_cselect_b32 s{r}, s100, s{r}")

def khome(kt): return f"a[{4*kt}:{4*kt+3}]"
def vhome(vt):
    r = W + 4 * (vt - NL); return f"v[{r}:{r+3}]"
def R4(r): return f"v[{r}:{r+3}]"
def R2(r): return f"v[{r}:{r+1}]"

def load_k(kts):
    lastG = None
    for kt in kts:
        G, t, half = kt >> 3, (kt >> 1) & 3, kt & 1
        if G != lastG:
            a(f"s_add_u32 s28, s27, {G*8192}"); lastG = G
        a(f"buffer_load_dwordx4 {khome(kt)}, v1, s[8:11], s28 offen offset:{t*256+half*128} nt")
def load_v(vts):
    lastQ = None
    for vt in vts:
        Q = vt >> 2
        if Q != lastQ:
            a(f"s_add_u32 s28, s27, {Q*4096}")
            if vt < NL: a(f"s_add_u32 m0, s29, {Q*4096}")
            lastQ = Q
        if vt < NL:
            a(f"buffer_load_dwordx4 v2, s[12:15], s28 offen offset:{(vt&3)*1024} nt lds")
        else:
            a(f"buffer_load_dwordx4 {vhome(vt)}, v2, s[12:15], s28 offen offset:{(vt&3)*1024} nt")

def rbf(v, t):
    a(f"v_cvt_pk_bf16_f32 v{t}, v{v}, v{v}\nv_lshlrev_b32 v{v}, 16, v{t}")
def rows_reduce(op, v, t):
    a(f"v_mov_b32 v{t}, v{v}\nv_permlane16_swap_b32 v{v}, v{t}\n{op} v{v}, v{v}, v{t}")
    a(f"v_mov_b32 v{t}, v{v}\nv_permlane32_swap_b32 v{v}, v{t}\n{op} v{v}, v{v}, v{t}")
def row16_reduce(op, vs):
    for ctl in CTL4:
        for v in vs: a(f"{op}_dpp v{v}, v{v}, v{v} {ctl} {DPPALL}")
def sum_to_row3(vs, fillers=()):
    fillers = list(fillers)
    steps = [f"{c} {DPPALL}" for c in CTL4] + ["row_bcast:15 row_mask:0xa bank_mask:0xf", "row_bcast:31 row_mask:0xc bank_mask:0xf"]
    per = (len(fillers) + 5) // 6
    for st in steps:
        for _ in range(per):
            if fillers: a(fillers.pop(0))
        for v in vs: a(f"v_add_f32_dpp v{v}, v{v}, v{v} {st}")
def stats(P, s1, s2, fillers=()):
    for i, p in enumerate(P):
        a(f"v_dot2_f32_bf16 v{s1}, v{p}, s67, {'0' if i == 0 else 'v%d' % s1}")
        a(f"v_dot2_f32_bf16 v{s2}, v{p}, v{p}, {'0' if i == 0 else 'v%d' % s2}")
    sum_to_row3([s1, s2], fillers)
    a(f"v_mul_f32 v{s1}, {f32(1.0/576)}, v{s1}\nv_mul_f32 v{s2}, {f32(1.0/576)}, v{s2}\nv_fma_f32 v{s2}, -v{s1}, v{s1}, v{s2}\nv_max_f32 v{s2}, 0, v{s2}")
def ln_scalars(m, q, mb, r, t):
    a(f"v_cvt_pk_bf16_f32 v{t}, v{m}, v{q}\nv_and_b32 v{r}, 0xffff0000, v{t}\nv_lshlrev_b32 v{mb}, 16, v{t}\nv_add_f32 v{r}, {f32(1e-5)}, v{r}")
    rbf(r, t); a(f"v_sqrt_f32 v{r}, v{r}"); rbf(r, t); a(f"v_rcp_f32 v{r}, v{r}")

def check_sentinel(regs, t):
    regs = list(regs)
    if len(regs) % 2 == 0:
        a(f"v_max_u32 v{t}, v{regs[0]}, v{regs[1]}"); regs = regs[2:]
    else:
        a(f"v_max3_u32 v{t}, v{regs[0]}, v{regs[1]}, v{regs[2]}"); regs = regs[3:]
    for i in range(0, len(regs), 2):
        a(f"v_max3_u32 v{t}, v{t}, v{regs[i]}, v{regs[i+1]}")
    a(f"v_cmp_eq_u32 vcc, -1, v{t}")

tramps = []
def ln(wait, depth=None):
    Lo = a.newlabel("Lt"); Lb = a.newlabel("Ltb")
    a(f"s_cmp_lt_u32 s82, 16\ns_cbranch_scc1 {Lo}")
    if wait: a("s_waitcnt vmcnt(0)")
    a.label(Lb)
    tramps.append((Lo, Lb, wait, depth or (cfg.dw if wait else 1)))
retries = []
def poll(issue, check, s0=0, depth=None):
    L = a.newlabel("Lpoll"); D = a.newlabel("Lpd"); Rr = a.newlabel("Lpr")
    a("s_mov_b32 s68, 0")
    if s0: a(f"s_sleep {s0}")
    a.label(L)
    issue(); ln(True, depth)
    check()
    a(f"s_cbranch_vccnz {Rr}")
    a.label(D)
    retries.append((Rr, L, D, cfg.s1))
def ln_until(n):
    L = a.newlabel("Lrest"); D = a.newlabel("Lrd")
    a.label(L); a(f"s_cmp_ge_u32 s82, {n}\ns_cbranch_scc1 {D}\ns_call_b64 s[80:81], SUB_LN\ns_branch {L}"); a.label(D)
def call(lbl):
    a.flush(); a(f"s_call_b64 s[30:31], {lbl}")
def ret():
    a.flush(); a("s_setpc_b64 s[30:31]")
def flagwait(inst, sl, off=0, count=0):
    a(f"s_lshl_b32 s70, s4, 7\ns_add_u32 s70, s70, {H_A(inst)+off}\nv_mov_b32 v4, 0")
    L = a.newlabel("Lh"); D = a.newlabel("Lhd")
    a(f"s_mov_b32 s68, 0\ns_cmp_lg_u32 s3, 0\ns_cbranch_scc1 {D}")
    a.label(L)
    a(f"buffer_load_dword v5, v4, s[16:19], s70 offen sc1\ns_waitcnt vmcnt(0)")
    a(f"v_cmp_gt_i32 vcc, {count*0xffff - 1}, v5" if count else "v_cmp_eq_u32 vcc, -1, v5")
    a(f"s_cbranch_vccz {D}")
    a(f"s_sleep {sl}\ns_add_u32 s68, s68, 1\ns_cmp_lt_u32 s68, {cfg.spin}\ns_cbranch_scc1 {L}")
    a.label(D)
    a("s_barrier")

def qg_issue(base, sb):
    for i in range(9):
        a(f"buffer_load_dword v{base+i}, v22, s[16:19], s{sb + (i>>2)} offen offset:{(i&3)*1024} sc1")
def qg_sum(base):
    b = base
    a(f"""v_add_f32 v{b}, v{b}, v{b+1}
    v_add_f32 v{b+2}, v{b+2}, v{b+3}
    v_add_f32 v{b+4}, v{b+4}, v{b+5}
    v_add_f32 v{b+6}, v{b+6}, v{b+7}
    v_add_f32 v{b}, v{b}, v{b+2}
    v_add_f32 v{b+4}, v{b+4}, v{b+6}
    v_add_f32 v{b}, v{b}, v{b+8}
    v_add_f32 v{b}, v{b}, v{b+4}
    v_cvt_pk_bf16_f32 v{b}, v{b}, v{b}""")

a(f"""
s_cmp_ge_u32 s2, 256
s_cbranch_scc1 L_end
s_load_dwordx16 s[32:47], s[0:1], 0
s_load_dwordx8 s[48:55], s[0:1], 64
s_load_dwordx2 s[56:57], s[0:1], 96
v_lshrrev_b32 v1, 6, v0
v_readfirstlane_b32 s3, v1
v_and_b32 v0, 63, v0
s_lshr_b32 s4, s2, 4
s_and_b32 s6, s2, 15
s_add_u32 s5, s6, s4
s_and_b32 s5, s5, 15
v_lshlrev_b32 v2, 4, v0
v_bfe_u32 v1, v0, 1, 3
v_lshlrev_b32 v1, 10, v1
v_lshrrev_b32 v3, 4, v0
v_lshl_add_u32 v1, v3, 5, v1
v_and_b32 v3, 1, v0
v_lshl_add_u32 v1, v3, 4, v1
s_lshl_b32 s27, s2, 18
s_lshl_b32 s28, s3, 16
s_add_u32 s27, s27, s28
s_mov_b32 s10, 0x8000000
s_mov_b32 s11, 0x20000
s_mov_b32 s14, 0x8000000
s_mov_b32 s15, 0x20000
s_mov_b32 s18, 0x20000000
s_mov_b32 s19, 0x20000
s_mov_b32 s23, 0x20000
s_waitcnt lgkmcnt(0)
s_mov_b32 s8, s34
s_mov_b32 s9, s35
""")
load_k(range(0, cfg.pre))
a(f"""
s_mov_b32 s12, s36
s_mov_b32 s13, s37
s_mov_b32 s16, s56
s_mov_b32 s17, s57
s_mov_b32 s82, {cfg.pre//8}
s_mov_b32 s79, 0
s_cmp_ge_u32 s5, 9
s_cselect_b32 s42, 1, 0
s_mov_b32 s24, 0xaaaaaaaa
s_mov_b32 s25, 0xaaaaaaaa
v_mov_b32 v3, 0xffff
v_mov_b32 v4, 0xffff0000
v_cndmask_b32 v3, v3, v4, s[24:25]
s_mov_b32 s26, {f32(CSM)}
s_mov_b32 s67, 0x3f803f80
s_mul_i32 s29, s3, {NL*1024}
""")
for r in POOL[:17]:
    if cfg.stamps: a(f"s_mov_b32 s{r}, 0")
stamp("start")
a(f"""
v_mov_b32 v4, -1
v_mov_b32 v5, -1
v_mov_b32 v6, -1
v_mov_b32 v7, -1
s_lshl_b32 s70, s3, 18
s_lshl_b32 s71, s2, 10
s_add_u32 s70, s70, s71
buffer_store_dwordx4 v[4:7], v2, s[16:19], s70 offen sc1
s_lshl_b32 s70, s3, 12
s_lshl_b32 s71, s4, 7
s_add_u32 s70, s70, s71
s_lshl_b32 s71, s6, 2
s_add_u32 s70, s70, s71
s_add_u32 s70, s70, {A_L(0)}
v_lshlrev_b32 v8, 6, v0
s_mov_b64 exec, 3
buffer_store_dword v4, v8, s[16:19], s70 offen sc1
s_mov_b64 exec, -1
v_mov_b32 v11, 0
global_load_ushort v23, v11, s[50:51]
s_mul_i32 s7, s4, 9
s_add_u32 s7, s7, s5
s_cmp_ge_u32 s5, 9
s_cbranch_scc1 L_pro_s1
v_lshlrev_b32 v8, 2, v0
s_lshl_b32 s70, s3, 16
s_lshl_b32 s71, s7, 8
s_add_u32 s70, s70, s71
s_add_u32 s70, s70, {B_A(0)}
buffer_store_dword v4, v8, s[16:19], s70 offen sc1
s_lshl_b32 s70, s3, 18
s_lshl_b32 s71, s7, 10
s_add_u32 s70, s70, s71
s_add_u32 s70, s70, {D_A(0)}
buffer_store_dwordx4 v[4:7], v2, s[16:19], s70 offen sc1
s_lshl_b32 s70, s3, 12
s_lshl_b32 s71, s7, 4
s_add_u32 s70, s70, s71
s_add_u32 s70, s70, {C_A(0)}
s_mov_b64 exec, 15
buffer_store_dword v4, v8, s[16:19], s70 offen sc1
s_lshl_b32 s70, s3, 12
s_lshl_b32 s71, s4, 7
s_add_u32 s70, s70, s71
s_add_u32 s70, s70, {H_A(0)}
buffer_store_dword v4, v8, s[16:19], s70 offen sc1
s_mov_b64 exec, -1
s_mov_b32 s20, s32
s_mov_b32 s21, s33
s_mov_b32 s22, 2304
v_lshlrev_b32 v9, 3, v0
v_lshlrev_b32 v10, 1, v0
buffer_load_dwordx2 v[12:13], v9, s[20:23], 0 offen
buffer_load_dwordx2 v[14:15], v9, s[20:23], 0 offen offset:512
buffer_load_ushort v16, v10, s[20:23], 0 offen offset:1024
buffer_load_dwordx2 v[18:19], v9, s[20:23], 0 offen offset:1152
buffer_load_dwordx2 v[20:21], v9, s[20:23], 0 offen offset:1664
buffer_load_ushort v22, v10, s[20:23], 0 offen offset:2176
s_mov_b32 s20, s38
s_mov_b32 s21, s39
s_mov_b32 s22, {576*8192}
v_lshrrev_b32 v24, 5, v0
v_and_b32 v25, 31, v0
v_lshlrev_b32 v25, 4, v25
v_lshlrev_b32 v26, 5, v24
v_xor_b32 v25, v25, v26
v_lshl_add_u32 v24, v24, 13, v25
v_xor_b32 v25, 64, v24
v_xor_b32 v26, 128, v24
v_xor_b32 v27, 192, v24
s_lshl_b32 s70, s5, 19
s_lshl_b32 s71, s3, 17
s_add_u32 s70, s70, s71
s_lshl_b32 s71, s4, 9
s_add_u32 s70, s70, s71
s_lshl_b32 s71, s3, 13
s_add_u32 s71, s71, {LWQ}
""")
for i in range(8):
    fs = ((i >> 2) & 1) * 2 + (i & 1)
    a(f"s_add_u32 m0, s71, {i*1024}\nbuffer_load_dwordx4 v{24+fs}, s[20:23], s70 offen nt lds")
    if i < 7: a("s_add_u32 s70, s70, 16384")
a.label("L_pro_s1")
ln(True, cfg.d1)
pass
a(f"""
v_lshlrev_b32 v23, 16, v23
v_readfirstlane_b32 s78, v23
s_mov_b32 s56, {LMX}
s_cmp_ge_u32 s5, 9
s_cbranch_scc1 L_pro_s2
v_add_u32 v24, {LXB}, v2
v_lshlrev_b32 v25, 2, v0
v_add_u32 v25, {LXB+2048}, v25
""")
for b in range(2):
    r = 12 + 6 * b
    a(f"""v_lshlrev_b32 v28, 16, v{r}
    v_and_b32 v29, 0xffff0000, v{r}
    v_lshlrev_b32 v30, 16, v{r+1}
    v_and_b32 v31, 0xffff0000, v{r+1}
    v_lshlrev_b32 v32, 16, v{r+2}
    v_and_b32 v33, 0xffff0000, v{r+2}
    v_lshlrev_b32 v34, 16, v{r+3}
    v_and_b32 v35, 0xffff0000, v{r+3}
    v_lshlrev_b32 v36, 16, v{r+4}
    ds_write_b128 v24, v[28:31] offset:{b*2304}
    ds_write_b128 v24, v[32:35] offset:{b*2304+1024}
    ds_write_b32 v25, v36 offset:{b*2304}
    s_waitcnt lgkmcnt(0)""")
a.label("L_pro_s2")
a(f"""
s_barrier
s_cmp_lg_u32 s3, 0
s_cbranch_scc1 L_pro_arr
s_lshl_b32 s70, s6, 2
v_mov_b32 v4, s70
v_mov_b32 v5, 1
s_mov_b64 exec, 1
global_atomic_add v4, v5, s[54:55] sc1
s_mov_b64 exec, -1
L_pro_arr:
s_cmp_ge_u32 s5, 9
s_cbranch_scc1 L_pro_s3
""")
for b in range(2):
    a(f"s_mov_b32 s63, 1\ns_mov_b32 s64, {LXB + b*2304}\ns_mov_b32 s62, {D_A(b)}")
    call("SUB_CH2")
    if b == 0: a("s_barrier")
a(f"""
s_mov_b32 s20, s40
s_mov_b32 s21, s41
s_mov_b32 s22, {4096*1152}
v_lshrrev_b32 v24, 3, v0
v_mul_u32_u24 v24, 1152, v24
v_and_b32 v25, 7, v0
v_lshlrev_b32 v25, 4, v25
v_bfe_u32 v26, v0, 4, 1
v_lshlrev_b32 v26, 5, v26
v_xor_b32 v25, v25, v26
v_xor_b32 v26, 64, v25
v_add_u32 v25, v25, v24
v_add_u32 v26, v26, v24
s_lshl_b32 s70, s4, 2
s_add_u32 s70, s70, s3
s_mul_i32 s70, s70, {64*1152}
s_lshl_b32 s71, s5, 7
s_add_u32 s70, s70, s71
s_lshl_b32 s71, s3, 13
s_add_u32 s71, s71, {LWO}
""")
for i in range(8):
    a(f"s_add_u32 m0, s71, {i*1024}\nbuffer_load_dwordx4 v{25+(i&1)}, s[20:23], s70 offen nt lds")
    if i < 7: a(f"s_add_u32 s70, s70, {8*1152}")
def load_mixer(base):
    a(f"""
    s_lshl_b32 s70, s3, 10
    v_add_u32 v24, s70, v2
    v_add_u32 v25, 4096, v24
    v_add_u32 v26, 8192, v2
    s_add_u32 s71, s70, {base}
    """)
    for j, p in enumerate((44, 46, 48)):
        a(f"""s_add_u32 m0, s71, {j*9216}
        global_load_lds_dwordx4 v24, s[{p}:{p+1}]
        s_add_u32 m0, s71, {j*9216+4096}
        global_load_lds_dwordx4 v25, s[{p}:{p+1}]
        s_mov_b32 m0, {base+j*9216+8192}
        global_load_lds_dwordx4 v26, s[{p}:{p+1}]""")
load_mixer(LMX)
a.label("L_pro_s3")
for r in POOL[17:]:
    if cfg.stamps: a(f"s_mov_b32 s{r}, 0")
ln(False, cfg.d2)
a("v_and_b32 v4, 15, v0\nv_lshlrev_b32 v4, 2, v4")
poll(lambda: a("global_load_dword v5, v4, s[54:55] sc1"), lambda: a("v_cmp_gt_u32 vcc, 16, v5"), depth=cfg.d3)
pass
a(f"""s_lshl_b32 s70, s3, 8
v_lshl_add_u32 v22, v0, 2, s70
s_mul_i32 s69, s4, 9216
s_add_u32 s70, s69, {D_A(0)}
s_add_u32 s71, s70, 4096
s_add_u32 s72, s70, 8192
s_add_u32 s73, s69, {D_A(1)}
s_add_u32 s74, s73, 4096
s_add_u32 s75, s73, 8192
v_lshrrev_b32 v24, 1, v22
v_add_u32 v24, {LQ}, v24""")
poll(lambda: (qg_issue(4, 70), qg_issue(13, 73)), lambda: check_sentinel(range(4, 22), 23), depth=cfg.d4)
qg_sum(4); qg_sum(13)
a("ds_write_b16 v24, v4\nds_write_b16 v24, v13 offset:512")
stamp("q1")
ln_until(10)
a("s_waitcnt lgkmcnt(0)\ns_barrier")

def att_params(ai, seq):
    a(f"s_mov_b32 s58, {A_O(ai)}\ns_mov_b32 s59, {A_L(ai)}\ns_mov_b32 s65, {LQ + ai*512}\ns_mov_b32 s64, {LX + (seq&1)*4224}")
def att_p1(ai, seq):
    att_params(ai, seq); a("s_mov_b64 vcc, -1"); call("SUB_ATT")
def qatt(ai, seq, loadnext):
    att_params(ai, seq); a(f"s_mov_b32 s62, {D_A(ai)}\ns_mov_b32 s63, {2 if loadnext else 0}"); call("SUB_QATT")
def ch1(inst, final, entry="SUB_CH1", aonly=False):
    b = inst & 1
    a(f"s_mov_b32 s58, {A_O(inst)}\ns_mov_b32 s59, {A_L(inst)}\ns_mov_b32 s60, {B_A(inst)}\ns_mov_b32 s64, {LXB + b*2304}")
    a(f"s_mov_b32 s63, {2 if aonly else 1 if final else 0}\ns_mov_b32 s61, {b*1152 if final else C_A(inst)}")
    call(entry)
def ch2(inst):
    b = inst & 1
    a(f"s_mov_b32 s63, 0\ns_mov_b32 s61, {C_A(inst)}\ns_mov_b32 s64, {LXB + b*2304}\ns_mov_b32 s62, {D_A(2+inst)}")
    call("SUB_CH2")

a(f"s_cmp_eq_u32 s3, 0\ns_cselect_b32 s63, 4, 0\ns_lshl_b32 s60, s4, 7\ns_add_u32 s60, s60, {H_A(2)+4}")
att_p1(0, 0)
stamp("P1b0")
a("s_add_u32 s27, s27, 0x4000000\ns_cmp_ge_u32 s5, 9\ns_cbranch_scc1 L_srole")
ch1(0, False); ch2(0)
stamp("wq0")
a(f"s_mov_b32 s69, {cfg.s0['D']}")
qatt(2, 1, True)
stamp("P2b0")
if cfg.roles:
    ln_until(cfg.fa)
    ch1(2, True, aonly=True)
    a(f"""s_or_b32 s70, s5, s3
    s_cbranch_scc1 L_nf3
    s_lshl_b32 s70, s4, 7
    s_add_u32 s70, s70, {H_A(3)}
    s_mov_b64 exec, 1
    buffer_store_dword v2, v2, s[16:19], s70 offen sc1
    s_mov_b64 exec, -1
    L_nf3:""")
else:
    ch1(2, True)
stamp("fin0")
ln_until(10)
a(f"s_cmp_eq_u32 s3, 0\ns_cselect_b32 s63, 3, 0\ns_lshl_b32 s60, s4, 7\ns_add_u32 s60, s60, {H_A(2)}")
att_p1(1, 2)
stamp("P1b1")
a("s_mov_b32 s79, 1")
ch1(1, False); ch2(1)
qatt(3, 3, False)
stamp("P2b1")
a("s_mov_b32 s79, 2")
ch1(3, True)
stamp("end")
a("s_branch L_stamps" if cfg.stamps else "s_branch L_fin")
a.label("L_srole")
a("s_mov_b32 s42, 0")
a(f"s_mov_b32 s69, 0")
if cfg.roles:
    a(f"s_mul_i32 s57, s3, {NS*1024}\ns_add_u32 s57, s57, {LWO}")
    if cfg.go0 >= 0: flagwait(2, cfg.sh, 4, cfg.n0)
    att_params(1, 1); call("SUB_RING")
    stamp("s.ring")
    flagwait(0, cfg.sh)
    qatt(2, 2, False)
    stamp("s.P2b0")
    if cfg.j0 < 64:
        att_params(1, 1); a("s_mov_b32 s63, 0"); call("SUB_RESUME")
        stamp("s.P1b1")
    load_mixer(0)
    a(f"""s_mov_b32 s56, 0
    s_mov_b32 s70, {C_A(0)}
    v_lshlrev_b32 v13, 2, v0
    buffer_load_dwordx4 v[4:7], v2, s[16:19], s70 offen sc1
    buffer_load_dwordx4 v[8:11], v2, s[16:19], s70 offen offset:1024 sc1
    buffer_load_dword v12, v13, s[16:19], s70 offen offset:2048 sc1
    v_add_u32 v14, {LXB}, v2
    v_add_u32 v13, {LXB}, v13
    s_mul_i32 s7, s4, 7
    s_add_u32 s7, s7, s5
    s_sub_u32 s7, s7, 9
    s_waitcnt vmcnt(0)
    ds_write_b128 v14, v[4:7]
    ds_write_b128 v14, v[8:11] offset:1024
    ds_write_b32 v13, v12 offset:2048""")
    flagwait(3, cfg.sg)
    ch1(2, True, entry="SUB_CH1B")
    a("s_add_u32 s7, s7, 112\ns_cmp_ge_u32 s7, 144\ns_cbranch_scc1 L_s_nf")
    call("SUB_CH1B")
    a.label("L_s_nf")
    stamp("s.fin0")
    flagwait(2, cfg.sg, 0, cfg.n1)
    stamp("s.go")
    a("s_mov_b32 s82, 0")
    ln_until(8)
    load_v(range(13, 16))
    a("s_mov_b32 s82, 10\ns_mov_b32 s29, s57")
    ln_until(8 + cfg.j0 // 8)
    a("s_mov_b32 s82, 16")
    if cfg.stamps: a("s_waitcnt vmcnt(0)")
    stamp("s.rel")
else:
    flagwait(0, cfg.sh)
    qatt(2, 1, True)
    ln_until(10)
    a("s_mov_b32 s63, 0")
    att_p1(1, 2)
    stamp("s.P1b1")
flagwait(1, cfg.sh)
qatt(3, 2 if (cfg.roles and cfg.j0 < 64) else 3, False)
stamp("s.end")
if cfg.stamps: a("s_branch L_stamps")
a.label("L_fin")
a("s_waitcnt vmcnt(0)")
a.label("L_end")
a("s_endpgm")

def att_pre(zero=True):
    a(f"""
    v_bfe_u32 v15, v0, 1, 1
    v_lshlrev_b32 v12, 8, v15
    v_lshrrev_b32 v13, 4, v0
    v_lshl_add_u32 v12, v13, 5, v12
    v_and_b32 v14, 1, v0
    v_lshl_add_u32 v12, v14, 4, v12
    v_add_u32 v12, s65, v12
    v_xor_b32 v15, v15, v14
    v_lshlrev_b32 v47, 9, v15
    v_lshl_add_u32 v47, v13, 7, v47
    v_bfe_u32 v15, v0, 2, 2
    v_lshl_add_u32 v47, v15, 3, v47
    v_lshl_add_u32 v47, v14, 2, v47
    s_lshl_b32 s70, s3, 10
    s_add_u32 s70, s70, s64
    v_add_u32 v47, s70, v47
    """)
    if zero:
        for i in range(8): a(f"v_mov_b32 v{34+i}, 0")
def Dset(i): return 12 + 4 * (i % 3)
def adds(i):
    G, t = i >> 2, i & 3; d = Dset(i)
    a(f"v_add_f32_dpp v32, v{d+1}, v{d} quad_perm:[1,0,3,2] row_mask:{1<<t:#x} bank_mask:0xf")
    a(f"v_add_f32_dpp v33, v{d+2}, v{d+3} quad_perm:[1,0,3,2] row_mask:{1<<t:#x} bank_mask:0xf")
    if t == 3:
        a(f"v_cndmask_b32 v{24+G}, v32, v33, s[24:25]")
        if G == 1: a("v_max_f32 v46, v24, v25")
        elif G % 2 == 1: a(f"v_max3_f32 v46, v46, v{23+G}, v{24+G}")
def kmm(kt, src):
    d = Dset(kt >> 1)
    if kt & 1: a(f"v_mfma_f32_16x16x32_bf16 {R4(d)}, v[8:11], {src}, {R4(d)}")
    else: a(f"v_mfma_f32_16x16x32_bf16 {R4(d)}, v[4:7], {src}, 0")
def softmax():
    for ctl in ("quad_perm:[2,3,0,1]", "row_ror:4", "row_ror:8"):
        a(f"v_max_f32_dpp v46, v46, v46 {ctl} {DPPALL}")
    rows_reduce("v_max_f32", 46, 32)
    a("v_mul_f32 v32, s26, v46")
    for G in range(8): a(f"v_fma_f32 v{24+G}, v{24+G}, s26, -v32")
    for G in range(8): a(f"v_exp_f32 v{24+G}, v{24+G}")
    a("v_pk_add_f32 v[4:5], v[24:25], v[26:27]\nv_pk_add_f32 v[6:7], v[28:29], v[30:31]\nv_pk_add_f32 v[4:5], v[4:5], v[6:7]\nv_add_f32 v51, v4, v5")
    lctl = ["quad_perm:[2,3,0,1]", "row_ror:8", "row_ror:4"]
    for G in range(8):
        t = 32 + (G & 1)
        a(f"v_mov_b32_dpp v{t}, v{24+G} quad_perm:[1,0,3,2] {DPPALL}")
        if G in (1, 3, 5): a(f"v_add_f32_dpp v51, v51, v51 {lctl[G//2]} {DPPALL}")
        a(f"v_cvt_pk_bf16_f32 v{24+G}, v{24+G}, v{t}")
    rows_reduce("v_add_f32", 51, 32)
curG = [None]
def build(vt, par):
    G, kap = vt >> 3, vt & 7
    if G != curG[0]:
        for rot in (1, 2, 3): a(f"v_mov_b32_dpp v{47+rot}, v{24+G} row_ror:{4*rot} {DPPALL}")
        curG[0] = G
    bs = 34 + 4 * par; x = 2 * (kap & 1); hb = kap >> 1
    for rot in range(4):
        k = (hb + rot) % 4
        z = 24 + G if rot == 0 else 47 + rot
        a(f"v_and_b32_dpp v{bs+k}, v{z}, v3 quad_perm:[{x},{x},{x+1},{x+1}] row_mask:0xf bank_mask:{1<<k:#x}")
def vmm(src, par, first):
    a(f"v_mfma_f32_16x16x32_bf16 v[42:45], {src}, {R4(34+4*par)}, {'0' if first else 'v[42:45]'}")

a.hist = []
a.label("SUB_QATT")
att_pre()
a(f"""s_lshl_b32 s70, s3, 8
v_lshl_add_u32 v22, v0, 2, s70
s_mul_i32 s70, s4, 9216
s_add_u32 s70, s70, s62
s_add_u32 s71, s70, 4096
s_add_u32 s72, s70, 8192
v_lshrrev_b32 v24, 1, v22
v_add_u32 v24, s65, v24
s_cmp_eq_u32 s69, 0
s_cbranch_scc1 L_qatt_ns
s_sleep {max(1, cfg.s0['D'])}
L_qatt_ns:""")
poll(lambda: qg_issue(13, 70), lambda: check_sentinel(range(13, 22), 23))
qg_sum(13)
a("ds_write_b16 v24, v13\ns_cmp_eq_u32 s63, 2\ns_cselect_b32 s82, 0, s82\ns_mov_b64 vcc, 0\ns_waitcnt lgkmcnt(0)\ns_barrier")
stamp("q2b1", 1)
a.label("SUB_ATT2")
outofline = []
def site(fn):
    Lo = a.newlabel("Lo"); Lb = a.newlabel("Lb")
    a(f"s_cbranch_vccnz {Lo}"); a.label(Lb)
    outofline.append((Lo, Lb, fn))
a("ds_read_b128 v[4:7], v12\nds_read_b128 v[8:11], v12 offset:128\ns_waitcnt vmcnt(16) lgkmcnt(0)")
for i in range(32):
    kmm(2*i, khome(2*i)); kmm(2*i+1, khome(2*i+1))
    if i >= 2: adds(i - 2)
    if i in (3, 7):
        Lo = a.newlabel("Lo"); Lb = a.newlabel("Lb")
        a(f"s_cmp_lt_u32 s82, 2\ns_cbranch_scc1 {Lo}"); a.label(Lb)
        outofline.append((Lo, Lb, lambda: a("s_call_b64 s[80:81], SUB_LN")))
adds(30); adds(31)
softmax()
a("v_add_u32 v33, s29, v2")
sites = list(range(0, 60, 4)) + [60, 61, 62, 63]
def fetch(i):
    if i in sites:
        nxt = [s for s in sites if s > i]
        last = (nxt[0] if nxt else 64) - 1
        g = min(7, (i >> 3) + 2)
        def fn(i=i, g=g, last=last):
            if i % 8 == 0 and (i >> 3) + 2 <= 7:
                L = a.newlabel("Lsk")
                a(f"s_cmp_gt_u32 s82, {8+g}\ns_cbranch_scc1 {L}\ns_call_b64 s[80:81], SUB_LN"); a.label(L)
            a(f"s_waitcnt vmcnt({8*g + 7 - last})")
            for gi, code in ((cfg.go, 3), (cfg.go0, 4)):
              if i == gi:
                L = a.newlabel("Lsg")
                a(f"s_cmp_lg_u32 s63, {code}\ns_cbranch_scc1 {L}\ns_mov_b64 exec, 1\nbuffer_atomic_add v3, v2, s[16:19], s60 offen sc1\ns_mov_b64 exec, -1"); a.label(L)
        site(fn)
    if i < NL:
        a(f"ds_read_b128 {R4(12 + 4*(i%3))}, v33 offset:{i*1024}")
curG[0] = None
for i in range(66):
    if i == cfg.j0 + 2: a.label("L_att_resume")
    if i < NL: fetch(i)
    if 1 <= i <= 64: build(i - 1, (i - 1) & 1)
    if i >= 2:
        j = i - 2
        if j >= NL: fetch(j); src = vhome(j)
        else:
            a(f"s_waitcnt lgkmcnt({min(NL - 1, j + 2) - j})"); src = R4(12 + 4*(j%3))
        vmm(src, j & 1, j == 0)
a.label("L_att_epi")
a(f"""
v_and_b32 v32, 1, v0
v_lshlrev_b32 v32, 5, v32
s_lshl_b32 s70, s3, 2
s_add_u32 s70, s70, s64
s_add_u32 s70, s70, 4096
v_add_u32 v32, s70, v32
ds_write2_b32 v32, v46, v51 offset0:0 offset1:4
v_add_u32 v32, s64, v2
v_lshrrev_b32 v33, 5, v0
v_lshlrev_b32 v34, 6, v33
v_lshlrev_b32 v33, 5, v33
v_add_u32 v33, s64, v33
ds_write2_b32 v47, v42, v43 offset0:0 offset1:8
ds_write2_b32 v47, v44, v45 offset0:16 offset1:24
s_lshl_b32 s70, s2, 10
s_add_u32 s70, s70, s58
s_lshl_b32 s71, s4, 7
s_add_u32 s71, s71, s59
s_lshl_b32 s72, s6, 2
s_add_u32 s71, s71, s72
s_cmp_lg_u32 s3, 0
s_waitcnt lgkmcnt(0)
s_barrier
s_cbranch_scc1 L_att_ret
ds_read_b128 v[20:23], v33 offset:4096
ds_read_b128 v[24:27], v33 offset:4112
ds_read_b128 v[4:7], v32
ds_read_b128 v[8:11], v32 offset:1024
ds_read_b128 v[12:15], v32 offset:2048
ds_read_b128 v[16:19], v32 offset:3072
s_waitcnt lgkmcnt(4)
v_max3_f32 v28, v20, v21, v22
v_max_f32 v28, v28, v23
v_mul_f32 v28, s26, v28
""")
for w in range(4): a(f"v_fma_f32 v{20+w}, v{20+w}, s26, -v28")
for w in range(4): a(f"v_exp_f32 v{20+w}, v{20+w}")
a("""v_mul_f32 v30, v20, v24
v_fmac_f32 v30, v21, v25
v_fmac_f32 v30, v22, v26
v_fmac_f32 v30, v23, v27
s_waitcnt lgkmcnt(0)
v_pk_mul_f32 v[4:5], v[4:5], v[20:21] op_sel:[0,0] op_sel_hi:[1,0]
v_log_f32 v29, v30
v_rcp_f32 v30, v30
v_pk_mul_f32 v[6:7], v[6:7], v[20:21] op_sel:[0,0] op_sel_hi:[1,0]
v_pk_fma_f32 v[4:5], v[8:9], v[20:21], v[4:5] op_sel:[0,1,0] op_sel_hi:[1,1,1]
v_pk_fma_f32 v[6:7], v[10:11], v[20:21], v[6:7] op_sel:[0,1,0] op_sel_hi:[1,1,1]
v_pk_fma_f32 v[4:5], v[12:13], v[22:23], v[4:5] op_sel:[0,0,0] op_sel_hi:[1,0,1]
v_pk_fma_f32 v[6:7], v[14:15], v[22:23], v[6:7] op_sel:[0,0,0] op_sel_hi:[1,0,1]
v_pk_fma_f32 v[4:5], v[16:17], v[22:23], v[4:5] op_sel:[0,1,0] op_sel_hi:[1,1,1]
v_pk_fma_f32 v[6:7], v[18:19], v[22:23], v[6:7] op_sel:[0,1,0] op_sel_hi:[1,1,1]
v_pk_mul_f32 v[4:5], v[4:5], v[30:31] op_sel:[0,0] op_sel_hi:[1,0]
v_pk_mul_f32 v[6:7], v[6:7], v[30:31] op_sel:[0,0] op_sel_hi:[1,0]
v_add_f32 v29, v29, v28
buffer_store_dwordx4 v[4:7], v2, s[16:19], s70 offen sc1
s_mov_b32 exec_lo, 1
s_mov_b32 exec_hi, 1
buffer_store_dword v29, v34, s[16:19], s71 offen sc1
s_mov_b64 exec, -1
L_att_ret:""")
ret()
a.hist = []
a.label("SUB_ATT")
att_pre()
a("s_branch SUB_ATT2")
for Lo, Lb, fn in outofline:
    a.hist = []
    a.label(Lo); fn(); a(f"s_branch {Lb}")

a.hist = []
a.label("SUB_LN")
if cfg.thr >= 0: a(f"s_cmp_eq_u32 s42, 0\ns_cbranch_scc1 L_ln_nt\ns_waitcnt vmcnt({cfg.thr})\nL_ln_nt:")
for k in range(15): a(f"s_cmp_eq_u32 s82, {k}\ns_cbranch_scc1 L_lnb{k}")
for k in [15] + list(range(15)):
    a.label(f"L_lnb{k}")
    if k < 8: load_k(range(8*k, 8*k+8))
    else: load_v(range(8*(k-8), 8*(k-8)+8))
    a("s_add_u32 s82, s82, 1\ns_setpc_b64 s[80:81]")

a.hist = []
a.label("SUB_CH1")
a(f"""
v_lshrrev_b32 v21, 4, v0
v_bfe_u32 v22, v0, 2, 2
v_lshl_add_u32 v23, v21, 3, v22
v_lshlrev_b32 v23, 7, v23
v_bfe_u32 v21, v0, 3, 2
v_xor_b32 v21, s3, v21
v_lshl_add_u32 v23, v21, 5, v23
v_and_b32 v21, 3, v0
v_lshl_add_u32 v23, v21, 3, v23
v_add_u32 v23, {LWO}, v23
""")
for ks in range(7):
    for jh in range(2):
        a(f"ds_read_b64_tr_b16 {R2(24 + 4*ks + 2*jh)}, v23 offset:{(32*ks+4*jh)*128}")
a(f"""
v_lshlrev_b32 v21, 2, v0
s_lshl_b32 s70, s4, 14
s_add_u32 s70, s70, s58
s_lshl_b32 s71, s3, 8
s_add_u32 s70, s70, s71
s_add_u32 s71, s70, 4096
s_add_u32 s72, s70, 8192
s_add_u32 s73, s70, 12288
s_lshl_b32 s74, s4, 7
s_add_u32 s74, s74, s59
s_lshr_b32 s75, s3, 1
s_lshl_b32 s75, s75, 6
s_add_u32 s74, s74, s75
s_lshl_b32 s75, s3, 7
s_add_u32 s75, s75, {LO}
""")
def issA():
    a("v_and_b32 v20, 60, v21\nbuffer_load_dword v20, v20, s[16:19], s74 offen sc1")
    for s in range(16):
        a(f"buffer_load_dword v{4+s}, v21, s[16:19], s{70+(s>>2)} offen offset:{(s&3)*1024} sc1")
poll(issA, lambda: check_sentinel(range(4, 21), 22), s0=cfg.s0["A"])
stamp("c.A", 1); stamp("f.A", 2)
a(f"v_max_f32_dpp v22, v20, v20 {CTL4[0]} {DPPALL}")
for c in CTL4[1:]: a(f"v_max_f32_dpp v22, v22, v22 {c} {DPPALL}")
a("v_sub_f32 v20, v20, v22\nv_exp_f32 v20, v20")
a(f"v_mul_f32_dpp v21, v20, v4 row_newbcast:0 {DPPALL}\nv_add_f32_dpp v22, v20, v20 {CTL4[0]} {DPPALL}")
for s in range(1, 16):
    a(f"v_fmac_f32_dpp v21, v20, v{4+s} row_newbcast:{s} {DPPALL}")
    if s in (2, 4, 6): a(f"v_add_f32_dpp v22, v22, v22 {CTL4[s//2]} {DPPALL}")
    if s == 4: a(f"ds_read_b64_tr_b16 v[4:5], v23 offset:{(32*7)*128}\nds_read_b64_tr_b16 v[6:7], v23 offset:{(32*7+4)*128}")
    if s == 8: a("v_rcp_f32 v22, v22")
    if s == 9: a("v_lshl_add_u32 v23, v0, 1, s75")
a(f"""
v_mul_f32 v21, v21, v22
v_cvt_pk_bf16_f32 v21, v21, v21
ds_write_b16 v23, v21
v_and_b32 v0, 48, v0
v_add_u32 v0, {LO}, v0
s_lshl_b32 s70, s7, 8
s_add_u32 s70, s70, s60
s_lshl_b32 s71, s3, 6
s_add_u32 s74, s70, s71
s_mul_i32 s70, s3, 9216
s_add_u32 s70, s70, s60
s_add_u32 s71, s70, 2304
s_add_u32 s72, s70, 4608
s_add_u32 s73, s70, 6912
s_waitcnt lgkmcnt(0)
s_barrier
""")
order = [7, 0, 1, 2, 3, 4, 5, 6]
def frag(ks): return "v[4:7]" if ks == 7 else R4(24 + 4*ks)
bufs = ["v[8:11]", "v[12:15]", "v[16:19]"]
for n in range(3): a(f"ds_read_b128 {bufs[n]}, v0 offset:{order[n]*64}")
for n, ks in enumerate(order):
    a(f"s_waitcnt lgkmcnt({len(bufs) - 1 - n})")
    a(f"v_mfma_f32_16x16x32_bf16 v[20:23], {bufs[n]}, {frag(ks)}, {'0' if n == 0 else 'v[20:23]'}")
    for fr in (frag(ks), bufs[n]):
        if len(bufs) < 8:
            a(f"ds_read_b128 {fr}, v0 offset:{order[len(bufs)]*64}"); bufs.append(fr)
a(f"""
v_lshrrev_b32 v0, 4, v2
v_lshlrev_b32 v49, 2, v0
s_mul_i32 s75, s3, 2304
s_add_u32 s75, s75, {LX}
v_add_u32 v51, s75, v2
s_mov_b64 exec, 0xffff
buffer_store_dword v20, v49, s[16:19], s74 offen sc1
s_mov_b64 exec, -1
""")
stamp("c.wo", 1)
a("s_cmp_eq_u32 s63, 2\ns_cbranch_scc1 L_ch1_ret")
a.label("L_ch1_b")
ln(False)
def issB():
    for r in range(4):
        a(f"buffer_load_dwordx4 {R4(4+8*r)}, v2, s[16:19], s{70+r} offen sc1")
        a(f"buffer_load_dwordx4 {R4(8+8*r)}, v2, s[16:19], s{70+r} offen offset:1024 sc1")
        a(f"buffer_load_dword v{36+r}, v49, s[16:19], s{70+r} offen offset:2048 sc1")
def chkB():
    for i in range(4): a(f"v_pk_add_f32 {R2(40+2*i)}, {R2(4+2*i)}, {R2(12+2*i)}")
    a("v_add_f32 v48, v36, v37")
    for r in (2, 3):
        for i in range(4): a(f"v_pk_add_f32 {R2(40+2*i)}, {R2(40+2*i)}, {R2(4+8*r+2*i)}")
        a(f"v_add_f32 v48, v48, v{36+r}")
    a("v_add_u32 v50, s75, v49\nds_write_b128 v51, v[40:43]\nds_write_b128 v51, v[44:47] offset:1024\nds_write_b32 v50, v48 offset:2048")
    check_sentinel(range(4, 40), 50)
poll(issB, chkB, s0=cfg.s0["B"])
stamp("c.B", 1); stamp("f.B", 2)
a(f"""
v_add_u32 v14, s64, v2
v_add_u32 v15, s64, v49
ds_read_b128 v[4:7], v14
ds_read_b128 v[8:11], v14 offset:1024
ds_read_b32 v12, v15 offset:2048
v_add_u32 v14, {LX}, v2
v_add_u32 v15, {LX+2048}, v49
s_waitcnt lgkmcnt(3)
s_barrier
""")
for r in range(4):
    a(f"ds_read_b128 {R4(16+8*r)}, v14 offset:{r*2304}\nds_read_b128 {R4(20+8*r)}, v14 offset:{r*2304+1024}")
    if r == 0: a("ds_read2st64_b32 v[48:49], v15 offset0:0 offset1:9\nds_read2st64_b32 v[50:51], v15 offset0:18 offset1:27")
a(f"""
v_lshlrev_b32 v13, 3, v0
v_add_u32 v13, {LLN}, v13
v_lshlrev_b32 v14, 1, v0
v_add_u32 v14, {LLN+1024}, v14
v_and_b32 v15, 3, v0
s_lshl_b32 s70, s7, 3
s_add_u32 s70, s70, {LLN}
v_lshl_add_u32 v15, v15, 1, s70
s_lshl_b32 s70, s3, 8
s_add_u32 s70, s70, s56
""")
for r in range(4):
    a(f"s_waitcnt lgkmcnt({6 - 2*r})")
    for i in range(4): a(f"v_pk_add_f32 {R2(4+2*i)}, {R2(4+2*i)}, {R2(16+8*r+2*i)}")
    a(f"v_add_f32 v12, v12, v{48+r}")
a("""v_cvt_pk_bf16_f32 v16, v4, v5
v_cvt_pk_bf16_f32 v17, v6, v7
v_cvt_pk_bf16_f32 v18, v8, v9
v_cvt_pk_bf16_f32 v19, v10, v11
v_cvt_pk_bf16_f32 v20, v12, 0
ds_write_b64 v13, v[16:17]
ds_write_b64 v13, v[18:19] offset:512
ds_write_b16 v14, v20
ds_read_u16 v27, v15
v_lshl_add_u32 v26, v0, 2, s70""")
fill = [f"ds_read2st64_b32 {R2(28+2*i)}, v26 offset0:{4*i} offset1:{36+4*i}" for i in range(8)]
fill += [f"ds_read2st64_b32 {R2(44+2*i)}, v26 offset0:{72+8*i} offset1:{76+8*i}" for i in range(4)]
fill = [fill[0], fill[8]] + fill[1:8] + fill[9:]
stats([16, 17, 18, 19, 20], 4, 5, fill)
ln_scalars(4, 5, 6, 7, 8)
a("s_waitcnt lgkmcnt(12)\nv_lshlrev_b32 v27, 16, v27\nv_sub_f32 v9, v27, v6\nv_sub_f32 v4, v4, v6\nv_mul_f32 v5, v5, v7\nv_mul_f32 v4, v4, v7\nv_mul_f32 v5, v5, v7")
rbf(9, 10); a("v_mul_f32 v9, v9, v7"); rbf(9, 10)
ln_scalars(4, 5, 6, 7, 8)
a("v_sub_f32 v9, v9, v6"); rbf(9, 10); a("v_mul_f32 v9, v9, v7"); rbf(9, 10)
a("v_mov_b32 v25, v26")
for e in range(4): a(f"v_readlane_b32 s{70+2*e}, v9, {60+e}")
stamp("c.ln", 1)
ln(False)
a(f"v_mov_b32 v26, {f32(C1)}\ns_mov_b32 s66, {f32(C2)}\ns_waitcnt lgkmcnt(0)")
for i in range(9):
    w1, b1, w2 = (28+2*i, 29+2*i, 44+i) if i < 8 else (28, 29, 44)
    if i == 8: a("s_waitcnt lgkmcnt(0)")
    for j, r in enumerate((w1, b1, w2)):
        a(f"v_lshlrev_b32 v{12+2*j}, 16, v{r}\nv_and_b32 v{13+2*j}, 0xffff0000, v{r}")
    if i == 0: a("ds_read2st64_b32 v[28:29], v25 offset0:32 offset1:68\nds_read_b32 v44, v25 offset:26624")
    for e0 in (0, 2):
        U = (18, 22); T = (20, 24); E = (e0, e0 + 1)
        for k in range(2): a(f"v_pk_fma_f32 {R2(U[k])}, v[12:13], s[{70+2*E[k]}:{71+2*E[k]}], v[14:15] op_sel_hi:[1,0,1]")
        for k in range(2): a(f"v_pk_mul_f32 {R2(T[k])}, {R2(U[k])}, {R2(U[k])}")
        for k in range(2): a(f"v_pk_fma_f32 {R2(T[k])}, {R2(T[k])}, s[66:67], v[26:27] op_sel_hi:[1,0,0]")
        for k in range(2): a(f"v_pk_mul_f32 {R2(T[k])}, {R2(U[k])}, {R2(T[k])}")
        for k in range(2): a(f"v_exp_f32 v{T[k]}, v{T[k]}\nv_exp_f32 v{T[k]+1}, v{T[k]+1}")
        for k in range(2): a(f"v_pk_mul_f32 {R2(U[k])}, {R2(U[k])}, v[16:17]")
        for k in range(2): a(f"v_pk_add_f32 {R2(T[k])}, {R2(T[k])}, 1.0 op_sel_hi:[1,0]")
        for k in range(2): a(f"v_rcp_f32 v{T[k]}, v{T[k]}\nv_rcp_f32 v{T[k]+1}, v{T[k]+1}")
        for k in range(2):
            acc = R2(4 + 2*E[k])
            a(f"v_pk_mul_f32 {acc}, {R2(U[k])}, {R2(T[k])}" if i == 0 else f"v_pk_fma_f32 {acc}, {R2(U[k])}, {R2(T[k])}, {acc}")
stamp("c.mix", 1); stamp("f.mix", 2)
for e in range(4): a(f"v_add_f32 v{4+2*e}, v{4+2*e}, v{5+2*e}")
a(f"""v_lshrrev_b32 v12, 4, v0
v_lshlrev_b32 v12, 2, v12
s_lshl_b32 s66, s3, 4
s_add_u32 s66, s66, {LRED}
v_add_u32 v12, s66, v12""")
row16_reduce("v_add_f32", [4, 6, 8, 10])
a(f"""
ds_write2_b32 v12, v4, v6 offset0:0 offset1:16
ds_write2_b32 v12, v8, v10 offset0:32 offset1:48
v_and_b32 v13, 3, v0
v_lshlrev_b32 v12, 6, v13
v_add_u32 v12, {LRED}, v12
s_mov_b32 s20, s52
s_mov_b32 s21, s53
s_mov_b32 s22, 2304
s_lshl_b32 s66, s7, 4
s_lshr_b32 s66, s66, s63
s_add_u32 s66, s66, s61
v_lshlrev_b32 v13, 2, v13
v_lshrrev_b32 v13, s63, v13
s_cmp_lg_u32 s3, 0
s_waitcnt lgkmcnt(0)
s_barrier
s_cbranch_scc1 L_ch1_ret
ds_read_b128 v[16:19], v12
ds_read_b128 v[20:23], v12 offset:16
ds_read_b128 v[28:31], v12 offset:32
ds_read_b128 v[32:35], v12 offset:48
s_cmp_eq_u32 s63, 1
s_mov_b64 exec, 15
s_waitcnt lgkmcnt(2)
v_pk_add_f32 v[16:17], v[16:17], v[18:19]
v_pk_add_f32 v[20:21], v[20:21], v[22:23]
s_waitcnt lgkmcnt(0)
v_pk_add_f32 v[28:29], v[28:29], v[30:31]
v_pk_add_f32 v[32:33], v[32:33], v[34:35]
v_pk_add_f32 v[16:17], v[16:17], v[20:21]
v_pk_add_f32 v[28:29], v[28:29], v[32:33]
v_pk_add_f32 v[16:17], v[16:17], v[28:29]
v_add_f32 v16, v16, v17
""")
rbf(16, 17); a("v_add_f32 v16, s78, v16"); rbf(16, 17); a("v_add_f32 v16, v16, v27"); rbf(16, 17)
a(f"""
s_cbranch_scc1 L_ch1_fin
buffer_store_dword v16, v13, s[16:19], s66 offen sc1
s_branch L_ch1_done
L_ch1_fin:
buffer_store_short v17, v13, s[20:23], s66 offen
L_ch1_done:
s_mov_b64 exec, -1
L_ch1_ret:
""")
stamp("c.pub", 1)
ret()

a.hist = []
a.label("SUB_CH1B")
a(f"""s_mul_i32 s70, s3, 9216
s_add_u32 s70, s70, s60
s_add_u32 s71, s70, 2304
s_add_u32 s72, s70, 4608
s_add_u32 s73, s70, 6912
v_lshlrev_b32 v49, 2, v0
s_mul_i32 s75, s3, 2304
s_add_u32 s75, s75, {LX}
v_add_u32 v51, s75, v2
s_barrier
s_branch L_ch1_b""")

a.hist = []
a.label("SUB_CH2")
a(f"""
v_lshrrev_b32 v13, 4, v0
v_bfe_u32 v14, v0, 2, 2
v_lshl_add_u32 v15, v13, 3, v14
v_lshlrev_b32 v15, 9, v15
v_bfe_u32 v13, v0, 2, 3
s_lshl_b32 s70, s3, 2
v_xor_b32 v13, s70, v13
v_lshl_add_u32 v15, v13, 5, v15
v_and_b32 v13, 3, v0
v_lshl_add_u32 v15, v13, 3, v15
v_add_u32 v15, {LWQ}, v15
v_xor_b32 v16, 32, v15
v_xor_b32 v17, 64, v15
v_xor_b32 v18, 96, v15
""")
for cbk in range(4):
    for ks in range(2):
        for jh in range(2):
            a(f"ds_read_b64_tr_b16 {R2(20 + 8*cbk + 4*ks + 2*jh)}, v{15+cbk} offset:{(32*ks+4*jh)*512}")
a(f"""
v_lshlrev_b32 v19, 2, v0
v_add_u32 v15, s64, v2
v_add_u32 v16, s64, v19
s_lshl_b32 s72, s5, 8
s_lshl_b32 s74, s7, 10
s_add_u32 s74, s74, s62
s_lshl_b32 s71, s3, 8
s_add_u32 s74, s74, s71
s_cmp_eq_u32 s63, 1
s_cbranch_scc0 L_ch2_g
v_add_u32 v17, s72, v16
ds_read_b128 v[4:7], v15
ds_read_b128 v[8:11], v15 offset:1024
ds_read_b32 v12, v16 offset:2048
ds_read_b32 v13, v17
s_waitcnt lgkmcnt(0)
s_branch L_ch2_x
L_ch2_g:
s_add_u32 s72, s72, s61
s_lshl_b32 s73, s4, 7
s_add_u32 s73, s73, s61
s_add_u32 s73, s73, 0x8000
""")
def issC():
    a("""buffer_load_dwordx4 v[4:7], v2, s[16:19], s61 offen sc1
    buffer_load_dwordx4 v[8:11], v2, s[16:19], s61 offen offset:1024 sc1
    buffer_load_dword v12, v19, s[16:19], s61 offen offset:2048 sc1
    buffer_load_dword v13, v19, s[16:19], s72 offen sc1""")
poll(issC, lambda: check_sentinel(range(4, 14), 14), s0=cfg.s0["C"])
stamp("c.C", 1)
a("""s_or_b32 s70, s5, s3
s_cbranch_scc1 L_ch2_nh
s_mov_b64 exec, 1
buffer_store_dword v19, v19, s[16:19], s73 offen sc1
s_mov_b64 exec, -1
L_ch2_nh:
ds_write_b128 v15, v[4:7]
ds_write_b128 v15, v[8:11] offset:1024
ds_write_b32 v16, v12 offset:2048
L_ch2_x:
v_cvt_pk_bf16_f32 v14, v4, v5
v_cvt_pk_bf16_f32 v15, v6, v7
v_cvt_pk_bf16_f32 v16, v8, v9
v_cvt_pk_bf16_f32 v17, v10, v11
v_cvt_pk_bf16_f32 v18, v12, 0""")
stats([14, 15, 16, 17, 18], 4, 5, ["v_lshlrev_b32 v9, 1, v0", f"v_add_u32 v9, {LRED}, v9", "v_and_b32 v12, 48, v0", f"v_add_u32 v12, {LRED}, v12"])
ln_scalars(4, 5, 6, 7, 8)
a("v_readlane_b32 s70, v6, 63\nv_readlane_b32 s71, v7, 63\nv_subrev_f32 v13, s70, v13")
rbf(13, 8)
a("""v_mul_f32 v13, s71, v13
v_cvt_pk_bf16_f32 v13, v13, v13
ds_write_b16 v9, v13
ds_read_b128 v[4:7], v12
ds_read_b128 v[8:11], v12 offset:64
s_waitcnt lgkmcnt(0)""")
accs = [12, 20, 28, 36]
for cbk in range(4):
    d = accs[cbk]; f = 20 + 8 * cbk
    a(f"v_mfma_f32_16x16x32_bf16 {R4(d)}, v[4:7], {R4(f)}, 0")
    a(f"v_mfma_f32_16x16x32_bf16 {R4(d)}, v[8:11], {R4(f+4)}, {R4(d)}")
for cbk in range(1, 4):
    a(f"v_mov_b32_dpp v12, v{accs[cbk]} quad_perm:[0,1,2,3] row_mask:{1<<cbk:#x} bank_mask:0xf")
a("buffer_store_dword v12, v19, s[16:19], s74 offen sc1")
stamp("c.wq", 1)
ret()

if cfg.roles:
    a.hist = []
    a.label("SUB_RING")
    vts = list(range(NL, cfg.j0)) + list(range(NL))
    NT = 64 + len(vts)
    slot = lambda n: (n - (NT - NL)) % NS
    lastso = [None]
    def rload(n):
        if n >= NT: return
        if n < 64:
            so, imm, va, srd = ("k", (n >> 3) * 8192), ((n >> 1) & 3) * 256 + (n & 1) * 128, "v1", "s[8:11]"
        else:
            vt = vts[n - 64]
            so, imm, va, srd = ("v", (vt >> 2) * 4096), (vt & 3) * 1024, "v2", "s[12:15]"
        if so != lastso[0]:
            a(f"s_add_u32 s28, s27, {so[1]}"); lastso[0] = so
        a(f"s_add_u32 m0, s57, {slot(n)*1024 - imm}")
        a(f"buffer_load_dwordx4 {va}, {srd}, s28 offen offset:{imm} nt lds")
    for n in range(16): rload(n)
    att_pre(zero=False)
    a("ds_read_b128 v[4:7], v12\nds_read_b128 v[8:11], v12 offset:128\nv_add_u32 v48, s57, v2")
    KT = [34, 38, 42]
    for n in range(66):
        if n < 64:
            rload(n + 16)
            a(f"s_waitcnt vmcnt(16)\nds_read_b128 {R4(KT[n%3])}, v48 offset:{slot(n)*1024}")
        if n >= 2:
            kt = n - 2
            a(f"s_waitcnt lgkmcnt({min(63, n) - kt})")
            kmm(kt, R4(KT[kt % 3]))
            if kt & 1 and (kt >> 1) >= 2: adds((kt >> 1) - 2)
    adds(30); adds(31)
    softmax()
    for i in range(8): a(f"v_mov_b32 v{34+i}, 0")
    a("v_add_u32 v33, s57, v2")
    curG[0] = None
    NV = len(vts)
    for m in range(NV + 2):
        if m < NV:
            n = 64 + m
            rload(n + 16)
            a(f"s_waitcnt vmcnt({min(16, NT - 1 - n)})\nds_read_b128 {R4(12 + 4*(m%3))}, v33 offset:{slot(n)*1024}")
        if 1 <= m <= NV: build(vts[m - 1], (m - 1) & 1)
        if m >= 2:
            j = m - 2
            a(f"s_waitcnt lgkmcnt({min(NV - 1, m) - j})")
            vmm(R4(12 + 4*(j%3)), j & 1, j == 0)
    if cfg.j0 == 64:
        a("s_branch L_att_epi")
    else:
        a(f"""v_mov_b32 v47, v51
        ds_write_b128 v33, v[24:27] offset:{13*1024}
        ds_write_b128 v33, v[28:31] offset:{14*1024}
        ds_write_b64 v33, v[46:47] offset:{16*1024}
        ds_write_b128 v33, v[42:45] offset:{15*1024}
        s_waitcnt lgkmcnt(0)""")
        ret()
        a.hist = []
        a.label("SUB_RESUME")
        a(f"s_mov_b32 s82, {8 + cfg.j0//8}\ns_call_b64 s[80:81], SUB_LN\ns_call_b64 s[80:81], SUB_LN")
        att_pre()
        a(f"""v_add_u32 v33, s57, v2
        ds_read_b128 v[24:27], v33 offset:{13*1024}
        ds_read_b128 v[28:31], v33 offset:{14*1024}
        ds_read_b128 v[42:45], v33 offset:{15*1024}
        ds_read_b64 v[50:51], v33 offset:{16*1024}
        s_mov_b64 vcc, -1
        s_waitcnt lgkmcnt(0)
        v_mov_b32 v46, v50""")
        curG[0] = None
        build(cfg.j0, cfg.j0 & 1)
        a.flush()
        a("s_branch L_att_resume")

for Lo, Lb, wait, depth in tramps:
    a.hist = []
    a.label(Lo)
    for d in range(1, depth + 1):
        a("s_call_b64 s[80:81], SUB_LN")
        L2 = a.newlabel("Lt2")
        if d < depth: a(f"s_cmp_lt_u32 s82, 16\ns_cbranch_scc1 {L2}")
        if wait: a(f"s_waitcnt vmcnt({8*d})")
        a(f"s_branch {Lb}")
        if d < depth: a.label(L2)
for Rr, L, D, sl in retries:
    a.hist = []
    a.label(Rr)
    a(f"s_sleep {sl}\ns_add_u32 s68, s68, 1\ns_cmp_lt_u32 s68, {cfg.spin}\ns_cbranch_scc1 {L}\ns_branch {D}")
if cfg.stamps:
    n = len(stamp_names)
    a.hist = []
    a.label("L_stamps")
    a(f"""s_lshl_b32 s70, s2, 2
    s_add_u32 s70, s70, s3
    s_mul_i32 s70, s70, {8*n}
    s_add_u32 s70, s70, {STAMP}
    v_mov_b32 v4, 0
    v_mov_b32 v7, 0
    s_mov_b64 exec, 1""")
    for i in range(n):
        a(f"v_mov_b32 v6, s{POOL[i]}\nbuffer_store_dwordx2 v[6:7], v4, s[16:19], s70 offen offset:{8*i}\ns_nop 1")
    a("s_branch L_fin")
    open(sys.argv[1] + ".names", "w").write(" ".join(stamp_names))
    print("nstamps", n, file=sys.stderr)
hdr = open("cdna_kernels/" + NAME + ".s.ref").read().split("; Override launch")[0]
out = hdr + f"; @launch grid=(256,1,1) block=(256,1,1) lds={LDS_TOTAL}\n"
out += f""".amdgcn_target "amdgcn-amd-amdhsa--gfx950"
.text
.globl {NAME}_kernel
.p2align 8
.type {NAME}_kernel,@function
{NAME}_kernel:
""" + a.text() + f""".section .rodata,"a"
.p2align 6
.amdhsa_kernel {NAME}_kernel
  .amdhsa_next_free_vgpr 512
  .amdhsa_next_free_sgpr 102
  .amdhsa_accum_offset 256
  .amdhsa_group_segment_fixed_size 0
  .amdhsa_kernarg_size 104
  .amdhsa_user_sgpr_count 2
  .amdhsa_user_sgpr_kernarg_segment_ptr 1
  .amdhsa_system_sgpr_workgroup_id_x 1
.end_amdhsa_kernel
"""
open(sys.argv[1], "w").write(out)
print("nops added", a.nops_added, "lines", len(a.lines), file=sys.stderr)
```

```python
import sys, struct, math
sys.path.insert(0, "gen")
from asmlib import *

NAME = "interleave_layers__gqa_block_cached__mixer_token_mlp__decode"
def f32(x): return "0x%08x" % struct.unpack("<I", struct.pack("<f", x))[0]

class Cfg:
    stamps = 0
    spin = 20000
    s0 = dict(A=20, B=16, C=24, D=12)
    s1 = 2
    sh = 2
    sg = 8
    go = 40
    roles = 1
    dbg = 0
    n0 = 16
    n1 = 9
    thr = -1
    go0 = -1
    j0 = 32
    fa = 6
    dw = 2
    pre = 8
    d1 = 3
    d2 = 2
    d3 = 3
    d4 = 3
cfg = Cfg()
for arg in sys.argv[2:]:
    k, v = arg.split("=")
    if k.startswith("s0"): cfg.s0[k[2]] = int(v)
    else: setattr(cfg, k, int(v))

W = 52; NL = 13; NS = 20
LV = 0; LWO = 53248; LWQ = 86016; LMX = 118784; LXB = 146432; LX = 151040; LQ = 160256; LLN = 162304; LRED = 163456
LO = LX + 8448
LDS_TOTAL = 163840
A_O = lambda i: i * 0x40000
A_L = lambda i: 0x100000 + i * 0x1000
B_A = lambda i: 0x110000 + i * 0x10000
C_A = lambda i: 0x150000 + i * 0x1000
H_A = lambda i: 0x158000 + i * 0x1000
D_A = lambda i: 0x160000 + i * 0x40000
STAMP = 0x10000000
CSM = math.log2(math.e) / math.sqrt(128.0)
C1 = -2.0 * math.sqrt(2.0 / math.pi) * math.log2(math.e)
C2 = C1 * 0.044715
DPPALL = "row_mask:0xf bank_mask:0xf"
CTL4 = ["quad_perm:[1,0,3,2]", "quad_perm:[2,3,0,1]", "row_half_mirror", "row_mirror"]

a = Asm()
POOL = list(range(83, 100)) + list(range(32, 42)) + [43]
stamp_names = []
def stamp(name, cond=None):
    if not cfg.stamps: return
    if name in stamp_names: r = POOL[stamp_names.index(name)]
    else:
        r = POOL[len(stamp_names)]; stamp_names.append(name)
    a("s_memrealtime s[100:101]\ns_waitcnt lgkmcnt(0)")
    if cond is None: a(f"s_mov_b32 s{r}, s100")
    else: a(f"s_cmp_eq_u32 s79, {cond}\ns_cselect_b32 s{r}, s100, s{r}")

def khome(kt): return f"a[{4*kt}:{4*kt+3}]"
def vhome(vt):
    r = W + 4 * (vt - NL); return f"v[{r}:{r+3}]"
def R4(r): return f"v[{r}:{r+3}]"
def R2(r): return f"v[{r}:{r+1}]"

def load_k(kts):
    lastG = None
    for kt in kts:
        G, t, half = kt >> 3, (kt >> 1) & 3, kt & 1
        if G != lastG:
            a(f"s_add_u32 s28, s27, {G*8192}"); lastG = G
        a(f"buffer_load_dwordx4 {khome(kt)}, v1, s[8:11], s28 offen offset:{t*256+half*128} nt")
def load_v(vts):
    lastQ = None
    for vt in vts:
        Q = vt >> 2
        if Q != lastQ:
            a(f"s_add_u32 s28, s27, {Q*4096}")
            if vt < NL: a(f"s_add_u32 m0, s29, {Q*4096}")
            lastQ = Q
        if vt < NL:
            a(f"buffer_load_dwordx4 v2, s[12:15], s28 offen offset:{(vt&3)*1024} nt lds")
        else:
            a(f"buffer_load_dwordx4 {vhome(vt)}, v2, s[12:15], s28 offen offset:{(vt&3)*1024} nt")

def rbf(v, t):
    a(f"v_cvt_pk_bf16_f32 v{t}, v{v}, v{v}\nv_lshlrev_b32 v{v}, 16, v{t}")
def rows_reduce(op, v, t):
    a(f"v_mov_b32 v{t}, v{v}\nv_permlane16_swap_b32 v{v}, v{t}\n{op} v{v}, v{v}, v{t}")
    a(f"v_mov_b32 v{t}, v{v}\nv_permlane32_swap_b32 v{v}, v{t}\n{op} v{v}, v{v}, v{t}")
def row16_reduce(op, vs):
    for ctl in CTL4:
        for v in vs: a(f"{op}_dpp v{v}, v{v}, v{v} {ctl} {DPPALL}")
def sum_to_row3(vs, fillers=()):
    fillers = list(fillers)
    steps = [f"{c} {DPPALL}" for c in CTL4] + ["row_bcast:15 row_mask:0xa bank_mask:0xf", "row_bcast:31 row_mask:0xc bank_mask:0xf"]
    per = (len(fillers) + 5) // 6
    for st in steps:
        for _ in range(per):
            if fillers: a(fillers.pop(0))
        for v in vs: a(f"v_add_f32_dpp v{v}, v{v}, v{v} {st}")
def stats(P, s1, s2, fillers=()):
    for i, p in enumerate(P):
        a(f"v_dot2_f32_bf16 v{s1}, v{p}, s67, {'0' if i == 0 else 'v%d' % s1}")
        a(f"v_dot2_f32_bf16 v{s2}, v{p}, v{p}, {'0' if i == 0 else 'v%d' % s2}")
    sum_to_row3([s1, s2], fillers)
    a(f"v_mul_f32 v{s1}, {f32(1.0/576)}, v{s1}\nv_mul_f32 v{s2}, {f32(1.0/576)}, v{s2}\nv_fma_f32 v{s2}, -v{s1}, v{s1}, v{s2}\nv_max_f32 v{s2}, 0, v{s2}")
def ln_scalars(m, q, mb, r, t):
    a(f"v_cvt_pk_bf16_f32 v{t}, v{m}, v{q}\nv_and_b32 v{r}, 0xffff0000, v{t}\nv_lshlrev_b32 v{mb}, 16, v{t}\nv_add_f32 v{r}, {f32(1e-5)}, v{r}")
    rbf(r, t); a(f"v_sqrt_f32 v{r}, v{r}"); rbf(r, t); a(f"v_rcp_f32 v{r}, v{r}")

def check_sentinel(regs, t):
    regs = list(regs)
    if len(regs) % 2 == 0:
        a(f"v_max_u32 v{t}, v{regs[0]}, v{regs[1]}"); regs = regs[2:]
    else:
        a(f"v_max3_u32 v{t}, v{regs[0]}, v{regs[1]}, v{regs[2]}"); regs = regs[3:]
    for i in range(0, len(regs), 2):
        a(f"v_max3_u32 v{t}, v{t}, v{regs[i]}, v{regs[i+1]}")
    a(f"v_cmp_eq_u32 vcc, -1, v{t}")

tramps = []
def ln(wait, depth=None):
    Lo = a.newlabel("Lt"); Lb = a.newlabel("Ltb")
    a(f"s_cmp_lt_u32 s82, 16\ns_cbranch_scc1 {Lo}")
    if wait: a("s_waitcnt vmcnt(0)")
    a.label(Lb)
    tramps.append((Lo, Lb, wait, depth or (cfg.dw if wait else 1)))
retries = []
def poll(issue, check, s0=0, depth=None):
    L = a.newlabel("Lpoll"); D = a.newlabel("Lpd"); Rr = a.newlabel("Lpr")
    a("s_mov_b32 s68, 0")
    if s0: a(f"s_sleep {s0}")
    a.label(L)
    issue(); ln(True, depth)
    check()
    a(f"s_cbranch_vccnz {Rr}")
    a.label(D)
    retries.append((Rr, L, D, cfg.s1))
def ln_until(n):
    L = a.newlabel("Lrest"); D = a.newlabel("Lrd")
    a.label(L); a(f"s_cmp_ge_u32 s82, {n}\ns_cbranch_scc1 {D}\ns_call_b64 s[80:81], SUB_LN\ns_branch {L}"); a.label(D)
def call(lbl):
    a.flush(); a(f"s_call_b64 s[30:31], {lbl}")
def ret():
    a.flush(); a("s_setpc_b64 s[30:31]")
def flagwait(inst, sl, off=0, count=0):
    a(f"s_lshl_b32 s70, s4, 7\ns_add_u32 s70, s70, {H_A(inst)+off}\nv_mov_b32 v4, 0")
    L = a.newlabel("Lh"); D = a.newlabel("Lhd")
    a(f"s_mov_b32 s68, 0\ns_cmp_lg_u32 s3, 0\ns_cbranch_scc1 {D}")
    a.label(L)
    a(f"buffer_load_dword v5, v4, s[16:19], s70 offen sc1\ns_waitcnt vmcnt(0)")
    a(f"v_cmp_gt_i32 vcc, {count*0xffff - 1}, v5" if count else "v_cmp_eq_u32 vcc, -1, v5")
    a(f"s_cbranch_vccz {D}")
    a(f"s_sleep {sl}\ns_add_u32 s68, s68, 1\ns_cmp_lt_u32 s68, {cfg.spin}\ns_cbranch_scc1 {L}")
    a.label(D)
    a("s_barrier")

def qg_issue(base, sb):
    for i in range(9):
        a(f"buffer_load_dword v{base+i}, v22, s[16:19], s{sb + (i>>2)} offen offset:{(i&3)*1024} sc1")
def qg_sum(base):
    b = base
    a(f"""v_add_f32 v{b}, v{b}, v{b+1}
    v_add_f32 v{b+2}, v{b+2}, v{b+3}
    v_add_f32 v{b+4}, v{b+4}, v{b+5}
    v_add_f32 v{b+6}, v{b+6}, v{b+7}
    v_add_f32 v{b}, v{b}, v{b+2}
    v_add_f32 v{b+4}, v{b+4}, v{b+6}
    v_add_f32 v{b}, v{b}, v{b+8}
    v_add_f32 v{b}, v{b}, v{b+4}
    v_cvt_pk_bf16_f32 v{b}, v{b}, v{b}""")

a(f"""
s_cmp_ge_u32 s2, 256
s_cbranch_scc1 L_end
s_load_dwordx16 s[32:47], s[0:1], 0
s_load_dwordx8 s[48:55], s[0:1], 64
s_load_dwordx2 s[56:57], s[0:1], 96
v_lshrrev_b32 v1, 6, v0
v_readfirstlane_b32 s3, v1
v_and_b32 v0, 63, v0
s_lshr_b32 s4, s2, 4
s_and_b32 s6, s2, 15
s_add_u32 s5, s6, s4
s_and_b32 s5, s5, 15
v_lshlrev_b32 v2, 4, v0
v_bfe_u32 v1, v0, 1, 3
v_lshlrev_b32 v1, 10, v1
v_lshrrev_b32 v3, 4, v0
v_lshl_add_u32 v1, v3, 5, v1
v_and_b32 v3, 1, v0
v_lshl_add_u32 v1, v3, 4, v1
s_lshl_b32 s27, s2, 18
s_lshl_b32 s28, s3, 16
s_add_u32 s27, s27, s28
s_mov_b32 s10, 0x8000000
s_mov_b32 s11, 0x20000
s_mov_b32 s14, 0x8000000
s_mov_b32 s15, 0x20000
s_mov_b32 s18, 0x20000000
s_mov_b32 s19, 0x20000
s_mov_b32 s23, 0x20000
s_waitcnt lgkmcnt(0)
s_mov_b32 s8, s34
s_mov_b32 s9, s35
""")
load_k(range(0, cfg.pre))
a(f"""
s_mov_b32 s12, s36
s_mov_b32 s13, s37
s_mov_b32 s16, s56
s_mov_b32 s17, s57
s_mov_b32 s82, {cfg.pre//8}
s_mov_b32 s79, 0
s_cmp_ge_u32 s5, 9
s_cselect_b32 s42, 1, 0
s_mov_b32 s24, 0xaaaaaaaa
s_mov_b32 s25, 0xaaaaaaaa
v_mov_b32 v3, 0xffff
v_mov_b32 v4, 0xffff0000
v_cndmask_b32 v3, v3, v4, s[24:25]
s_mov_b32 s26, {f32(CSM)}
s_mov_b32 s67, 0x3f803f80
s_mul_i32 s29, s3, {NL*1024}
""")
for r in POOL[:17]:
    if cfg.stamps: a(f"s_mov_b32 s{r}, 0")
stamp("start")
a(f"""
v_mov_b32 v4, -1
v_mov_b32 v5, -1
v_mov_b32 v6, -1
v_mov_b32 v7, -1
s_lshl_b32 s70, s3, 18
s_lshl_b32 s71, s2, 10
s_add_u32 s70, s70, s71
buffer_store_dwordx4 v[4:7], v2, s[16:19], s70 offen sc1
s_lshl_b32 s70, s3, 12
s_lshl_b32 s71, s4, 7
s_add_u32 s70, s70, s71
s_lshl_b32 s71, s6, 2
s_add_u32 s70, s70, s71
s_add_u32 s70, s70, {A_L(0)}
v_lshlrev_b32 v8, 6, v0
s_mov_b64 exec, 3
buffer_store_dword v4, v8, s[16:19], s70 offen sc1
s_mov_b64 exec, -1
v_mov_b32 v11, 0
global_load_ushort v23, v11, s[50:51]
s_mul_i32 s7, s4, 9
s_add_u32 s7, s7, s5
s_cmp_ge_u32 s5, 9
s_cbranch_scc1 L_pro_s1
v_lshlrev_b32 v8, 2, v0
s_lshl_b32 s70, s3, 16
s_lshl_b32 s71, s7, 8
s_add_u32 s70, s70, s71
s_add_u32 s70, s70, {B_A(0)}
buffer_store_dword v4, v8, s[16:19], s70 offen sc1
s_lshl_b32 s70, s3, 18
s_lshl_b32 s71, s7, 10
s_add_u32 s70, s70, s71
s_add_u32 s70, s70, {D_A(0)}
buffer_store_dwordx4 v[4:7], v2, s[16:19], s70 offen sc1
s_lshl_b32 s70, s3, 12
s_lshl_b32 s71, s7, 4
s_add_u32 s70, s70, s71
s_add_u32 s70, s70, {C_A(0)}
s_mov_b64 exec, 15
buffer_store_dword v4, v8, s[16:19], s70 offen sc1
s_lshl_b32 s70, s3, 12
s_lshl_b32 s71, s4, 7
s_add_u32 s70, s70, s71
s_add_u32 s70, s70, {H_A(0)}
buffer_store_dword v4, v8, s[16:19], s70 offen sc1
s_mov_b64 exec, -1
s_mov_b32 s20, s32
s_mov_b32 s21, s33
s_mov_b32 s22, 2304
v_lshlrev_b32 v9, 3, v0
v_lshlrev_b32 v10, 1, v0
buffer_load_dwordx2 v[12:13], v9, s[20:23], 0 offen
buffer_load_dwordx2 v[14:15], v9, s[20:23], 0 offen offset:512
buffer_load_ushort v16, v10, s[20:23], 0 offen offset:1024
buffer_load_dwordx2 v[18:19], v9, s[20:23], 0 offen offset:1152
buffer_load_dwordx2 v[20:21], v9, s[20:23], 0 offen offset:1664
buffer_load_ushort v22, v10, s[20:23], 0 offen offset:2176
s_mov_b32 s20, s38
s_mov_b32 s21, s39
s_mov_b32 s22, {576*8192}
v_lshrrev_b32 v24, 5, v0
v_and_b32 v25, 31, v0
v_lshlrev_b32 v25, 4, v25
v_lshlrev_b32 v26, 5, v24
v_xor_b32 v25, v25, v26
v_lshl_add_u32 v24, v24, 13, v25
v_xor_b32 v25, 64, v24
v_xor_b32 v26, 128, v24
v_xor_b32 v27, 192, v24
s_lshl_b32 s70, s5, 19
s_lshl_b32 s71, s3, 17
s_add_u32 s70, s70, s71
s_lshl_b32 s71, s4, 9
s_add_u32 s70, s70, s71
s_lshl_b32 s71, s3, 13
s_add_u32 s71, s71, {LWQ}
""")
for i in range(8):
    fs = ((i >> 2) & 1) * 2 + (i & 1)
    a(f"s_add_u32 m0, s71, {i*1024}\nbuffer_load_dwordx4 v{24+fs}, s[20:23], s70 offen nt lds")
    if i < 7: a("s_add_u32 s70, s70, 16384")
a.label("L_pro_s1")
ln(True, cfg.d1)
pass
a(f"""
v_lshlrev_b32 v23, 16, v23
v_readfirstlane_b32 s78, v23
s_mov_b32 s56, {LMX}
s_cmp_ge_u32 s5, 9
s_cbranch_scc1 L_pro_s2
v_add_u32 v24, {LXB}, v2
v_lshlrev_b32 v25, 2, v0
v_add_u32 v25, {LXB+2048}, v25
""")
for b in range(2):
    r = 12 + 6 * b
    a(f"""v_lshlrev_b32 v28, 16, v{r}
    v_and_b32 v29, 0xffff0000, v{r}
    v_lshlrev_b32 v30, 16, v{r+1}
    v_and_b32 v31, 0xffff0000, v{r+1}
    v_lshlrev_b32 v32, 16, v{r+2}
    v_and_b32 v33, 0xffff0000, v{r+2}
    v_lshlrev_b32 v34, 16, v{r+3}
    v_and_b32 v35, 0xffff0000, v{r+3}
    v_lshlrev_b32 v36, 16, v{r+4}
    ds_write_b128 v24, v[28:31] offset:{b*2304}
    ds_write_b128 v24, v[32:35] offset:{b*2304+1024}
    ds_write_b32 v25, v36 offset:{b*2304}
    s_waitcnt lgkmcnt(0)""")
a.label("L_pro_s2")
a(f"""
s_barrier
s_cmp_lg_u32 s3, 0
s_cbranch_scc1 L_pro_arr
s_lshl_b32 s70, s6, 2
v_mov_b32 v4, s70
v_mov_b32 v5, 1
s_mov_b64 exec, 1
global_atomic_add v4, v5, s[54:55] offset:64 sc1
s_mov_b64 exec, -1
L_pro_arr:
s_cmp_ge_u32 s5, 9
s_cbranch_scc1 L_pro_s3
""")
for b in range(2):
    a(f"s_mov_b32 s63, 1\ns_mov_b32 s64, {LXB + b*2304}\ns_mov_b32 s62, {D_A(b)}")
    call("SUB_CH2")
    if b == 0: a("s_barrier")
a(f"""
s_mov_b32 s20, s40
s_mov_b32 s21, s41
s_mov_b32 s22, {4096*1152}
v_lshrrev_b32 v24, 3, v0
v_mul_u32_u24 v24, 1152, v24
v_and_b32 v25, 7, v0
v_lshlrev_b32 v25, 4, v25
v_bfe_u32 v26, v0, 4, 1
v_lshlrev_b32 v26, 5, v26
v_xor_b32 v25, v25, v26
v_xor_b32 v26, 64, v25
v_add_u32 v25, v25, v24
v_add_u32 v26, v26, v24
s_lshl_b32 s70, s4, 2
s_add_u32 s70, s70, s3
s_mul_i32 s70, s70, {64*1152}
s_lshl_b32 s71, s5, 7
s_add_u32 s70, s70, s71
s_lshl_b32 s71, s3, 13
s_add_u32 s71, s71, {LWO}
""")
for i in range(8):
    a(f"s_add_u32 m0, s71, {i*1024}\nbuffer_load_dwordx4 v{25+(i&1)}, s[20:23], s70 offen nt lds")
    if i < 7: a(f"s_add_u32 s70, s70, {8*1152}")
def load_mixer(base):
    a(f"""
    s_lshl_b32 s70, s3, 10
    v_add_u32 v24, s70, v2
    v_add_u32 v25, 4096, v24
    v_add_u32 v26, 8192, v2
    s_add_u32 s71, s70, {base}
    """)
    for j, p in enumerate((44, 46, 48)):
        a(f"""s_add_u32 m0, s71, {j*9216}
        global_load_lds_dwordx4 v24, s[{p}:{p+1}]
        s_add_u32 m0, s71, {j*9216+4096}
        global_load_lds_dwordx4 v25, s[{p}:{p+1}]
        s_mov_b32 m0, {base+j*9216+8192}
        global_load_lds_dwordx4 v26, s[{p}:{p+1}]""")
load_mixer(LMX)
a.label("L_pro_s3")
for r in POOL[17:]:
    if cfg.stamps: a(f"s_mov_b32 s{r}, 0")
ln(False, cfg.d2)
a("v_and_b32 v4, 15, v0\nv_lshlrev_b32 v4, 2, v4")
poll(lambda: a("global_load_dword v5, v4, s[54:55] offset:64 sc1"), lambda: a("v_cmp_gt_u32 vcc, 16, v5"), depth=cfg.d3)
pass
a(f"""s_lshl_b32 s70, s3, 8
v_lshl_add_u32 v22, v0, 2, s70
s_mul_i32 s69, s4, 9216
s_add_u32 s70, s69, {D_A(0)}
s_add_u32 s71, s70, 4096
s_add_u32 s72, s70, 8192
s_add_u32 s73, s69, {D_A(1)}
s_add_u32 s74, s73, 4096
s_add_u32 s75, s73, 8192
v_lshrrev_b32 v24, 1, v22
v_add_u32 v24, {LQ}, v24""")
poll(lambda: (qg_issue(4, 70), qg_issue(13, 73)), lambda: check_sentinel(range(4, 22), 23), depth=cfg.d4)
qg_sum(4); qg_sum(13)
a("ds_write_b16 v24, v4\nds_write_b16 v24, v13 offset:512")
stamp("q1")
ln_until(10)
a("s_waitcnt lgkmcnt(0)\ns_barrier")

def att_params(ai, seq):
    a(f"s_mov_b32 s58, {A_O(ai)}\ns_mov_b32 s59, {A_L(ai)}\ns_mov_b32 s65, {LQ + ai*512}\ns_mov_b32 s64, {LX + (seq&1)*4224}")
def att_p1(ai, seq):
    att_params(ai, seq); a("s_mov_b64 vcc, -1"); call("SUB_ATT")
def qatt(ai, seq, loadnext):
    att_params(ai, seq); a(f"s_mov_b32 s62, {D_A(ai)}\ns_mov_b32 s63, {2 if loadnext else 0}"); call("SUB_QATT")
def ch1(inst, final, entry="SUB_CH1", aonly=False):
    b = inst & 1
    a(f"s_mov_b32 s58, {A_O(inst)}\ns_mov_b32 s59, {A_L(inst)}\ns_mov_b32 s60, {B_A(inst)}\ns_mov_b32 s64, {LXB + b*2304}")
    a(f"s_mov_b32 s63, {2 if aonly else 1 if final else 0}\ns_mov_b32 s61, {b*1152 if final else C_A(inst)}")
    call(entry)
def ch2(inst):
    b = inst & 1
    a(f"s_mov_b32 s63, 0\ns_mov_b32 s61, {C_A(inst)}\ns_mov_b32 s64, {LXB + b*2304}\ns_mov_b32 s62, {D_A(2+inst)}")
    call("SUB_CH2")

a(f"s_cmp_eq_u32 s3, 0\ns_cselect_b32 s63, 4, 0\ns_lshl_b32 s60, s4, 7\ns_add_u32 s60, s60, {H_A(2)+4}")
att_p1(0, 0)
stamp("P1b0")
a("s_add_u32 s27, s27, 0x4000000\ns_cmp_ge_u32 s5, 9\ns_cbranch_scc1 L_srole")
ch1(0, False); ch2(0)
stamp("wq0")
a(f"s_mov_b32 s69, {cfg.s0['D']}")
qatt(2, 1, True)
stamp("P2b0")
if cfg.roles:
    ln_until(cfg.fa)
    ch1(2, True, aonly=True)
    a(f"""s_or_b32 s70, s5, s3
    s_cbranch_scc1 L_nf3
    s_lshl_b32 s70, s4, 7
    s_add_u32 s70, s70, {H_A(3)}
    s_mov_b64 exec, 1
    buffer_store_dword v2, v2, s[16:19], s70 offen sc1
    s_mov_b64 exec, -1
    L_nf3:""")
else:
    ch1(2, True)
stamp("fin0")
ln_until(10)
a(f"s_cmp_eq_u32 s3, 0\ns_cselect_b32 s63, 3, 0\ns_lshl_b32 s60, s4, 7\ns_add_u32 s60, s60, {H_A(2)}")
att_p1(1, 2)
stamp("P1b1")
a("s_mov_b32 s79, 1")
ch1(1, False); ch2(1)
qatt(3, 3, False)
stamp("P2b1")
a("s_mov_b32 s79, 2")
ch1(3, True)
stamp("end")
a("s_branch L_stamps" if cfg.stamps else "s_branch L_fin")
a.label("L_srole")
a("s_mov_b32 s42, 0")
a(f"s_mov_b32 s69, 0")
if cfg.roles:
    a(f"s_mul_i32 s57, s3, {NS*1024}\ns_add_u32 s57, s57, {LWO}")
    if cfg.go0 >= 0: flagwait(2, cfg.sh, 4, cfg.n0)
    att_params(1, 1); call("SUB_RING")
    stamp("s.ring")
    flagwait(0, cfg.sh)
    qatt(2, 2, False)
    stamp("s.P2b0")
    if cfg.j0 < 64:
        att_params(1, 1); a("s_mov_b32 s63, 0"); call("SUB_RESUME")
        stamp("s.P1b1")
    load_mixer(0)
    a(f"""s_mov_b32 s56, 0
    s_mov_b32 s70, {C_A(0)}
    v_lshlrev_b32 v13, 2, v0
    buffer_load_dwordx4 v[4:7], v2, s[16:19], s70 offen sc1
    buffer_load_dwordx4 v[8:11], v2, s[16:19], s70 offen offset:1024 sc1
    buffer_load_dword v12, v13, s[16:19], s70 offen offset:2048 sc1
    v_add_u32 v14, {LXB}, v2
    v_add_u32 v13, {LXB}, v13
    s_mul_i32 s7, s4, 7
    s_add_u32 s7, s7, s5
    s_sub_u32 s7, s7, 9
    s_waitcnt vmcnt(0)
    ds_write_b128 v14, v[4:7]
    ds_write_b128 v14, v[8:11] offset:1024
    ds_write_b32 v13, v12 offset:2048""")
    flagwait(3, cfg.sg)
    ch1(2, True, entry="SUB_CH1B")
    a("s_add_u32 s7, s7, 112\ns_cmp_ge_u32 s7, 144\ns_cbranch_scc1 L_s_nf")
    call("SUB_CH1B")
    a.label("L_s_nf")
    stamp("s.fin0")
    flagwait(2, cfg.sg, 0, cfg.n1)
    stamp("s.go")
    a("s_mov_b32 s82, 0")
    ln_until(8)
    load_v(range(13, 16))
    a("s_mov_b32 s82, 10\ns_mov_b32 s29, s57")
    ln_until(8 + cfg.j0 // 8)
    a("s_mov_b32 s82, 16")
    if cfg.stamps: a("s_waitcnt vmcnt(0)")
    stamp("s.rel")
else:
    flagwait(0, cfg.sh)
    qatt(2, 1, True)
    ln_until(10)
    a("s_mov_b32 s63, 0")
    att_p1(1, 2)
    stamp("s.P1b1")
flagwait(1, cfg.sh)
qatt(3, 2 if (cfg.roles and cfg.j0 < 64) else 3, False)
stamp("s.end")
if cfg.stamps: a("s_branch L_stamps")
a.label("L_fin")
a("s_waitcnt vmcnt(0)")
a.label("L_end")
a("s_endpgm")

def att_pre(zero=True):
    a(f"""
    v_bfe_u32 v15, v0, 1, 1
    v_lshlrev_b32 v12, 8, v15
    v_lshrrev_b32 v13, 4, v0
    v_lshl_add_u32 v12, v13, 5, v12
    v_and_b32 v14, 1, v0
    v_lshl_add_u32 v12, v14, 4, v12
    v_add_u32 v12, s65, v12
    v_xor_b32 v15, v15, v14
    v_lshlrev_b32 v47, 9, v15
    v_lshl_add_u32 v47, v13, 7, v47
    v_bfe_u32 v15, v0, 2, 2
    v_lshl_add_u32 v47, v15, 3, v47
    v_lshl_add_u32 v47, v14, 2, v47
    s_lshl_b32 s70, s3, 10
    s_add_u32 s70, s70, s64
    v_add_u32 v47, s70, v47
    """)
    if zero:
        for i in range(8): a(f"v_mov_b32 v{34+i}, 0")
def Dset(i): return 12 + 4 * (i % 3)
def adds(i):
    G, t = i >> 2, i & 3; d = Dset(i)
    a(f"v_add_f32_dpp v32, v{d+1}, v{d} quad_perm:[1,0,3,2] row_mask:{1<<t:#x} bank_mask:0xf")
    a(f"v_add_f32_dpp v33, v{d+2}, v{d+3} quad_perm:[1,0,3,2] row_mask:{1<<t:#x} bank_mask:0xf")
    if t == 3:
        a(f"v_cndmask_b32 v{24+G}, v32, v33, s[24:25]")
        if G == 1: a("v_max_f32 v46, v24, v25")
        elif G % 2 == 1: a(f"v_max3_f32 v46, v46, v{23+G}, v{24+G}")
def kmm(kt, src):
    d = Dset(kt >> 1)
    if kt & 1: a(f"v_mfma_f32_16x16x32_bf16 {R4(d)}, v[8:11], {src}, {R4(d)}")
    else: a(f"v_mfma_f32_16x16x32_bf16 {R4(d)}, v[4:7], {src}, 0")
def softmax():
    for ctl in ("quad_perm:[2,3,0,1]", "row_ror:4", "row_ror:8"):
        a(f"v_max_f32_dpp v46, v46, v46 {ctl} {DPPALL}")
    rows_reduce("v_max_f32", 46, 32)
    a("v_mul_f32 v32, s26, v46")
    for G in range(8): a(f"v_fma_f32 v{24+G}, v{24+G}, s26, -v32")
    for G in range(8): a(f"v_exp_f32 v{24+G}, v{24+G}")
    a("v_pk_add_f32 v[4:5], v[24:25], v[26:27]\nv_pk_add_f32 v[6:7], v[28:29], v[30:31]\nv_pk_add_f32 v[4:5], v[4:5], v[6:7]\nv_add_f32 v51, v4, v5")
    lctl = ["quad_perm:[2,3,0,1]", "row_ror:8", "row_ror:4"]
    for G in range(8):
        t = 32 + (G & 1)
        a(f"v_mov_b32_dpp v{t}, v{24+G} quad_perm:[1,0,3,2] {DPPALL}")
        if G in (1, 3, 5): a(f"v_add_f32_dpp v51, v51, v51 {lctl[G//2]} {DPPALL}")
        a(f"v_cvt_pk_bf16_f32 v{24+G}, v{24+G}, v{t}")
    rows_reduce("v_add_f32", 51, 32)
curG = [None]
def build(vt, par):
    G, kap = vt >> 3, vt & 7
    if G != curG[0]:
        for rot in (1, 2, 3): a(f"v_mov_b32_dpp v{47+rot}, v{24+G} row_ror:{4*rot} {DPPALL}")
        curG[0] = G
    bs = 34 + 4 * par; x = 2 * (kap & 1); hb = kap >> 1
    for rot in range(4):
        k = (hb + rot) % 4
        z = 24 + G if rot == 0 else 47 + rot
        a(f"v_and_b32_dpp v{bs+k}, v{z}, v3 quad_perm:[{x},{x},{x+1},{x+1}] row_mask:0xf bank_mask:{1<<k:#x}")
def vmm(src, par, first):
    a(f"v_mfma_f32_16x16x32_bf16 v[42:45], {src}, {R4(34+4*par)}, {'0' if first else 'v[42:45]'}")

a.hist = []
a.label("SUB_QATT")
att_pre()
a(f"""s_lshl_b32 s70, s3, 8
v_lshl_add_u32 v22, v0, 2, s70
s_mul_i32 s70, s4, 9216
s_add_u32 s70, s70, s62
s_add_u32 s71, s70, 4096
s_add_u32 s72, s70, 8192
v_lshrrev_b32 v24, 1, v22
v_add_u32 v24, s65, v24
s_cmp_eq_u32 s69, 0
s_cbranch_scc1 L_qatt_ns
s_sleep {max(1, cfg.s0['D'])}
L_qatt_ns:""")
poll(lambda: qg_issue(13, 70), lambda: check_sentinel(range(13, 22), 23))
qg_sum(13)
a("ds_write_b16 v24, v13\ns_cmp_eq_u32 s63, 2\ns_cselect_b32 s82, 0, s82\ns_mov_b64 vcc, 0\ns_waitcnt lgkmcnt(0)\ns_barrier")
stamp("q2b1", 1)
a.label("SUB_ATT2")
outofline = []
def site(fn):
    Lo = a.newlabel("Lo"); Lb = a.newlabel("Lb")
    a(f"s_cbranch_vccnz {Lo}"); a.label(Lb)
    outofline.append((Lo, Lb, fn))
a("ds_read_b128 v[4:7], v12\nds_read_b128 v[8:11], v12 offset:128\ns_waitcnt vmcnt(16) lgkmcnt(0)")
for i in range(32):
    kmm(2*i, khome(2*i)); kmm(2*i+1, khome(2*i+1))
    if i >= 2: adds(i - 2)
    if i in (3, 7):
        Lo = a.newlabel("Lo"); Lb = a.newlabel("Lb")
        a(f"s_cmp_lt_u32 s82, 2\ns_cbranch_scc1 {Lo}"); a.label(Lb)
        outofline.append((Lo, Lb, lambda: a("s_call_b64 s[80:81], SUB_LN")))
adds(30); adds(31)
softmax()
a("v_add_u32 v33, s29, v2")
sites = list(range(0, 60, 4)) + [60, 61, 62, 63]
def fetch(i):
    if i in sites:
        nxt = [s for s in sites if s > i]
        last = (nxt[0] if nxt else 64) - 1
        g = min(7, (i >> 3) + 2)
        def fn(i=i, g=g, last=last):
            if i % 8 == 0 and (i >> 3) + 2 <= 7:
                L = a.newlabel("Lsk")
                a(f"s_cmp_gt_u32 s82, {8+g}\ns_cbranch_scc1 {L}\ns_call_b64 s[80:81], SUB_LN"); a.label(L)
            a(f"s_waitcnt vmcnt({8*g + 7 - last})")
            for gi, code in ((cfg.go, 3), (cfg.go0, 4)):
              if i == gi:
                L = a.newlabel("Lsg")
                a(f"s_cmp_lg_u32 s63, {code}\ns_cbranch_scc1 {L}\ns_mov_b64 exec, 1\nbuffer_atomic_add v3, v2, s[16:19], s60 offen sc1\ns_mov_b64 exec, -1"); a.label(L)
        site(fn)
    if i < NL:
        a(f"ds_read_b128 {R4(12 + 4*(i%3))}, v33 offset:{i*1024}")
curG[0] = None
for i in range(66):
    if i == cfg.j0 + 2: a.label("L_att_resume")
    if i < NL: fetch(i)
    if 1 <= i <= 64: build(i - 1, (i - 1) & 1)
    if i >= 2:
        j = i - 2
        if j >= NL: fetch(j); src = vhome(j)
        else:
            a(f"s_waitcnt lgkmcnt({min(NL - 1, j + 2) - j})"); src = R4(12 + 4*(j%3))
        vmm(src, j & 1, j == 0)
a.label("L_att_epi")
a(f"""
v_and_b32 v32, 1, v0
v_lshlrev_b32 v32, 5, v32
s_lshl_b32 s70, s3, 2
s_add_u32 s70, s70, s64
s_add_u32 s70, s70, 4096
v_add_u32 v32, s70, v32
ds_write2_b32 v32, v46, v51 offset0:0 offset1:4
v_add_u32 v32, s64, v2
v_lshrrev_b32 v33, 5, v0
v_lshlrev_b32 v34, 6, v33
v_lshlrev_b32 v33, 5, v33
v_add_u32 v33, s64, v33
ds_write2_b32 v47, v42, v43 offset0:0 offset1:8
ds_write2_b32 v47, v44, v45 offset0:16 offset1:24
s_lshl_b32 s70, s2, 10
s_add_u32 s70, s70, s58
s_lshl_b32 s71, s4, 7
s_add_u32 s71, s71, s59
s_lshl_b32 s72, s6, 2
s_add_u32 s71, s71, s72
s_cmp_lg_u32 s3, 0
s_waitcnt lgkmcnt(0)
s_barrier
s_cbranch_scc1 L_att_ret
ds_read_b128 v[20:23], v33 offset:4096
ds_read_b128 v[24:27], v33 offset:4112
ds_read_b128 v[4:7], v32
ds_read_b128 v[8:11], v32 offset:1024
ds_read_b128 v[12:15], v32 offset:2048
ds_read_b128 v[16:19], v32 offset:3072
s_waitcnt lgkmcnt(4)
v_max3_f32 v28, v20, v21, v22
v_max_f32 v28, v28, v23
v_mul_f32 v28, s26, v28
""")
for w in range(4): a(f"v_fma_f32 v{20+w}, v{20+w}, s26, -v28")
for w in range(4): a(f"v_exp_f32 v{20+w}, v{20+w}")
a("""v_mul_f32 v30, v20, v24
v_fmac_f32 v30, v21, v25
v_fmac_f32 v30, v22, v26
v_fmac_f32 v30, v23, v27
s_waitcnt lgkmcnt(0)
v_pk_mul_f32 v[4:5], v[4:5], v[20:21] op_sel:[0,0] op_sel_hi:[1,0]
v_log_f32 v29, v30
v_rcp_f32 v30, v30
v_pk_mul_f32 v[6:7], v[6:7], v[20:21] op_sel:[0,0] op_sel_hi:[1,0]
v_pk_fma_f32 v[4:5], v[8:9], v[20:21], v[4:5] op_sel:[0,1,0] op_sel_hi:[1,1,1]
v_pk_fma_f32 v[6:7], v[10:11], v[20:21], v[6:7] op_sel:[0,1,0] op_sel_hi:[1,1,1]
v_pk_fma_f32 v[4:5], v[12:13], v[22:23], v[4:5] op_sel:[0,0,0] op_sel_hi:[1,0,1]
v_pk_fma_f32 v[6:7], v[14:15], v[22:23], v[6:7] op_sel:[0,0,0] op_sel_hi:[1,0,1]
v_pk_fma_f32 v[4:5], v[16:17], v[22:23], v[4:5] op_sel:[0,1,0] op_sel_hi:[1,1,1]
v_pk_fma_f32 v[6:7], v[18:19], v[22:23], v[6:7] op_sel:[0,1,0] op_sel_hi:[1,1,1]
v_pk_mul_f32 v[4:5], v[4:5], v[30:31] op_sel:[0,0] op_sel_hi:[1,0]
v_pk_mul_f32 v[6:7], v[6:7], v[30:31] op_sel:[0,0] op_sel_hi:[1,0]
v_add_f32 v29, v29, v28
buffer_store_dwordx4 v[4:7], v2, s[16:19], s70 offen sc1
s_mov_b32 exec_lo, 1
s_mov_b32 exec_hi, 1
buffer_store_dword v29, v34, s[16:19], s71 offen sc1
s_mov_b64 exec, -1
L_att_ret:""")
ret()
a.hist = []
a.label("SUB_ATT")
att_pre()
a("s_branch SUB_ATT2")
for Lo, Lb, fn in outofline:
    a.hist = []
    a.label(Lo); fn(); a(f"s_branch {Lb}")

a.hist = []
a.label("SUB_LN")
if cfg.thr >= 0: a(f"s_cmp_eq_u32 s42, 0\ns_cbranch_scc1 L_ln_nt\ns_waitcnt vmcnt({cfg.thr})\nL_ln_nt:")
for k in range(15): a(f"s_cmp_eq_u32 s82, {k}\ns_cbranch_scc1 L_lnb{k}")
for k in [15] + list(range(15)):
    a.label(f"L_lnb{k}")
    if k < 8: load_k(range(8*k, 8*k+8))
    else: load_v(range(8*(k-8), 8*(k-8)+8))
    a("s_add_u32 s82, s82, 1\ns_setpc_b64 s[80:81]")

a.hist = []
a.label("SUB_CH1")
a(f"""
v_lshrrev_b32 v21, 4, v0
v_bfe_u32 v22, v0, 2, 2
v_lshl_add_u32 v23, v21, 3, v22
v_lshlrev_b32 v23, 7, v23
v_bfe_u32 v21, v0, 3, 2
v_xor_b32 v21, s3, v21
v_lshl_add_u32 v23, v21, 5, v23
v_and_b32 v21, 3, v0
v_lshl_add_u32 v23, v21, 3, v23
v_add_u32 v23, {LWO}, v23
""")
for ks in range(7):
    for jh in range(2):
        a(f"ds_read_b64_tr_b16 {R2(24 + 4*ks + 2*jh)}, v23 offset:{(32*ks+4*jh)*128}")
a(f"""
v_lshlrev_b32 v21, 2, v0
s_lshl_b32 s70, s4, 14
s_add_u32 s70, s70, s58
s_lshl_b32 s71, s3, 8
s_add_u32 s70, s70, s71
s_add_u32 s71, s70, 4096
s_add_u32 s72, s70, 8192
s_add_u32 s73, s70, 12288
s_lshl_b32 s74, s4, 7
s_add_u32 s74, s74, s59
s_lshr_b32 s75, s3, 1
s_lshl_b32 s75, s75, 6
s_add_u32 s74, s74, s75
s_lshl_b32 s75, s3, 7
s_add_u32 s75, s75, {LO}
""")
def issA():
    a("v_and_b32 v20, 60, v21\nbuffer_load_dword v20, v20, s[16:19], s74 offen sc1")
    for s in range(16):
        a(f"buffer_load_dword v{4+s}, v21, s[16:19], s{70+(s>>2)} offen offset:{(s&3)*1024} sc1")
poll(issA, lambda: check_sentinel(range(4, 21), 22), s0=cfg.s0["A"])
stamp("c.A", 1); stamp("f.A", 2)
a(f"v_max_f32_dpp v22, v20, v20 {CTL4[0]} {DPPALL}")
for c in CTL4[1:]: a(f"v_max_f32_dpp v22, v22, v22 {c} {DPPALL}")
a("v_sub_f32 v20, v20, v22\nv_exp_f32 v20, v20")
a(f"v_mul_f32_dpp v21, v20, v4 row_newbcast:0 {DPPALL}\nv_add_f32_dpp v22, v20, v20 {CTL4[0]} {DPPALL}")
for s in range(1, 16):
    a(f"v_fmac_f32_dpp v21, v20, v{4+s} row_newbcast:{s} {DPPALL}")
    if s in (2, 4, 6): a(f"v_add_f32_dpp v22, v22, v22 {CTL4[s//2]} {DPPALL}")
    if s == 4: a(f"ds_read_b64_tr_b16 v[4:5], v23 offset:{(32*7)*128}\nds_read_b64_tr_b16 v[6:7], v23 offset:{(32*7+4)*128}")
    if s == 8: a("v_rcp_f32 v22, v22")
    if s == 9: a("v_lshl_add_u32 v23, v0, 1, s75")
a(f"""
v_mul_f32 v21, v21, v22
v_cvt_pk_bf16_f32 v21, v21, v21
ds_write_b16 v23, v21
v_and_b32 v0, 48, v0
v_add_u32 v0, {LO}, v0
s_lshl_b32 s70, s7, 8
s_add_u32 s70, s70, s60
s_lshl_b32 s71, s3, 6
s_add_u32 s74, s70, s71
s_mul_i32 s70, s3, 9216
s_add_u32 s70, s70, s60
s_add_u32 s71, s70, 2304
s_add_u32 s72, s70, 4608
s_add_u32 s73, s70, 6912
s_waitcnt lgkmcnt(0)
s_barrier
""")
order = [7, 0, 1, 2, 3, 4, 5, 6]
def frag(ks): return "v[4:7]" if ks == 7 else R4(24 + 4*ks)
bufs = ["v[8:11]", "v[12:15]", "v[16:19]"]
for n in range(3): a(f"ds_read_b128 {bufs[n]}, v0 offset:{order[n]*64}")
for n, ks in enumerate(order):
    a(f"s_waitcnt lgkmcnt({len(bufs) - 1 - n})")
    a(f"v_mfma_f32_16x16x32_bf16 v[20:23], {bufs[n]}, {frag(ks)}, {'0' if n == 0 else 'v[20:23]'}")
    for fr in (frag(ks), bufs[n]):
        if len(bufs) < 8:
            a(f"ds_read_b128 {fr}, v0 offset:{order[len(bufs)]*64}"); bufs.append(fr)
a(f"""
v_lshrrev_b32 v0, 4, v2
v_lshlrev_b32 v49, 2, v0
s_mul_i32 s75, s3, 2304
s_add_u32 s75, s75, {LX}
v_add_u32 v51, s75, v2
s_mov_b64 exec, 0xffff
buffer_store_dword v20, v49, s[16:19], s74 offen sc1
s_mov_b64 exec, -1
""")
stamp("c.wo", 1)
a("s_cmp_eq_u32 s63, 2\ns_cbranch_scc1 L_ch1_ret")
a.label("L_ch1_b")
ln(False)
def issB():
    for r in range(4):
        a(f"buffer_load_dwordx4 {R4(4+8*r)}, v2, s[16:19], s{70+r} offen sc1")
        a(f"buffer_load_dwordx4 {R4(8+8*r)}, v2, s[16:19], s{70+r} offen offset:1024 sc1")
        a(f"buffer_load_dword v{36+r}, v49, s[16:19], s{70+r} offen offset:2048 sc1")
def chkB():
    for i in range(4): a(f"v_pk_add_f32 {R2(40+2*i)}, {R2(4+2*i)}, {R2(12+2*i)}")
    a("v_add_f32 v48, v36, v37")
    for r in (2, 3):
        for i in range(4): a(f"v_pk_add_f32 {R2(40+2*i)}, {R2(40+2*i)}, {R2(4+8*r+2*i)}")
        a(f"v_add_f32 v48, v48, v{36+r}")
    a("v_add_u32 v50, s75, v49\nds_write_b128 v51, v[40:43]\nds_write_b128 v51, v[44:47] offset:1024\nds_write_b32 v50, v48 offset:2048")
    check_sentinel(range(4, 40), 50)
poll(issB, chkB, s0=cfg.s0["B"])
stamp("c.B", 1); stamp("f.B", 2)
a(f"""
v_add_u32 v14, s64, v2
v_add_u32 v15, s64, v49
ds_read_b128 v[4:7], v14
ds_read_b128 v[8:11], v14 offset:1024
ds_read_b32 v12, v15 offset:2048
v_add_u32 v14, {LX}, v2
v_add_u32 v15, {LX+2048}, v49
s_waitcnt lgkmcnt(3)
s_barrier
""")
for r in range(4):
    a(f"ds_read_b128 {R4(16+8*r)}, v14 offset:{r*2304}\nds_read_b128 {R4(20+8*r)}, v14 offset:{r*2304+1024}")
    if r == 0: a("ds_read2st64_b32 v[48:49], v15 offset0:0 offset1:9\nds_read2st64_b32 v[50:51], v15 offset0:18 offset1:27")
a(f"""
v_lshlrev_b32 v13, 3, v0
v_add_u32 v13, {LLN}, v13
v_lshlrev_b32 v14, 1, v0
v_add_u32 v14, {LLN+1024}, v14
v_and_b32 v15, 3, v0
s_lshl_b32 s70, s7, 3
s_add_u32 s70, s70, {LLN}
v_lshl_add_u32 v15, v15, 1, s70
s_lshl_b32 s70, s3, 8
s_add_u32 s70, s70, s56
""")
for r in range(4):
    a(f"s_waitcnt lgkmcnt({6 - 2*r})")
    for i in range(4): a(f"v_pk_add_f32 {R2(4+2*i)}, {R2(4+2*i)}, {R2(16+8*r+2*i)}")
    a(f"v_add_f32 v12, v12, v{48+r}")
a("""v_cvt_pk_bf16_f32 v16, v4, v5
v_cvt_pk_bf16_f32 v17, v6, v7
v_cvt_pk_bf16_f32 v18, v8, v9
v_cvt_pk_bf16_f32 v19, v10, v11
v_cvt_pk_bf16_f32 v20, v12, 0
ds_write_b64 v13, v[16:17]
ds_write_b64 v13, v[18:19] offset:512
ds_write_b16 v14, v20
ds_read_u16 v27, v15
v_lshl_add_u32 v26, v0, 2, s70""")
fill = [f"ds_read2st64_b32 {R2(28+2*i)}, v26 offset0:{4*i} offset1:{36+4*i}" for i in range(8)]
fill += [f"ds_read2st64_b32 {R2(44+2*i)}, v26 offset0:{72+8*i} offset1:{76+8*i}" for i in range(4)]
fill = [fill[0], fill[8]] + fill[1:8] + fill[9:]
stats([16, 17, 18, 19, 20], 4, 5, fill)
ln_scalars(4, 5, 6, 7, 8)
a("s_waitcnt lgkmcnt(12)\nv_lshlrev_b32 v27, 16, v27\nv_sub_f32 v9, v27, v6\nv_sub_f32 v4, v4, v6\nv_mul_f32 v5, v5, v7\nv_mul_f32 v4, v4, v7\nv_mul_f32 v5, v5, v7")
rbf(9, 10); a("v_mul_f32 v9, v9, v7"); rbf(9, 10)
ln_scalars(4, 5, 6, 7, 8)
a("v_sub_f32 v9, v9, v6"); rbf(9, 10); a("v_mul_f32 v9, v9, v7"); rbf(9, 10)
a("v_mov_b32 v25, v26")
for e in range(4): a(f"v_readlane_b32 s{70+2*e}, v9, {60+e}")
stamp("c.ln", 1)
ln(False)
a(f"v_mov_b32 v26, {f32(C1)}\ns_mov_b32 s66, {f32(C2)}\ns_waitcnt lgkmcnt(0)")
for i in range(9):
    w1, b1, w2 = (28+2*i, 29+2*i, 44+i) if i < 8 else (28, 29, 44)
    if i == 8: a("s_waitcnt lgkmcnt(0)")
    for j, r in enumerate((w1, b1, w2)):
        a(f"v_lshlrev_b32 v{12+2*j}, 16, v{r}\nv_and_b32 v{13+2*j}, 0xffff0000, v{r}")
    if i == 0: a("ds_read2st64_b32 v[28:29], v25 offset0:32 offset1:68\nds_read_b32 v44, v25 offset:26624")
    for e0 in (0, 2):
        U = (18, 22); T = (20, 24); E = (e0, e0 + 1)
        for k in range(2): a(f"v_pk_fma_f32 {R2(U[k])}, v[12:13], s[{70+2*E[k]}:{71+2*E[k]}], v[14:15] op_sel_hi:[1,0,1]")
        for k in range(2): a(f"v_pk_mul_f32 {R2(T[k])}, {R2(U[k])}, {R2(U[k])}")
        for k in range(2): a(f"v_pk_fma_f32 {R2(T[k])}, {R2(T[k])}, s[66:67], v[26:27] op_sel_hi:[1,0,0]")
        for k in range(2): a(f"v_pk_mul_f32 {R2(T[k])}, {R2(U[k])}, {R2(T[k])}")
        for k in range(2): a(f"v_exp_f32 v{T[k]}, v{T[k]}\nv_exp_f32 v{T[k]+1}, v{T[k]+1}")
        for k in range(2): a(f"v_pk_mul_f32 {R2(U[k])}, {R2(U[k])}, v[16:17]")
        for k in range(2): a(f"v_pk_add_f32 {R2(T[k])}, {R2(T[k])}, 1.0 op_sel_hi:[1,0]")
        for k in range(2): a(f"v_rcp_f32 v{T[k]}, v{T[k]}\nv_rcp_f32 v{T[k]+1}, v{T[k]+1}")
        for k in range(2):
            acc = R2(4 + 2*E[k])
            a(f"v_pk_mul_f32 {acc}, {R2(U[k])}, {R2(T[k])}" if i == 0 else f"v_pk_fma_f32 {acc}, {R2(U[k])}, {R2(T[k])}, {acc}")
stamp("c.mix", 1); stamp("f.mix", 2)
for e in range(4): a(f"v_add_f32 v{4+2*e}, v{4+2*e}, v{5+2*e}")
a(f"""v_lshrrev_b32 v12, 4, v0
v_lshlrev_b32 v12, 2, v12
s_lshl_b32 s66, s3, 4
s_add_u32 s66, s66, {LRED}
v_add_u32 v12, s66, v12""")
row16_reduce("v_add_f32", [4, 6, 8, 10])
a(f"""
ds_write2_b32 v12, v4, v6 offset0:0 offset1:16
ds_write2_b32 v12, v8, v10 offset0:32 offset1:48
v_and_b32 v13, 3, v0
v_lshlrev_b32 v12, 6, v13
v_add_u32 v12, {LRED}, v12
s_mov_b32 s20, s52
s_mov_b32 s21, s53
s_mov_b32 s22, 2304
s_lshl_b32 s66, s7, 4
s_lshr_b32 s66, s66, s63
s_add_u32 s66, s66, s61
v_lshlrev_b32 v13, 2, v13
v_lshrrev_b32 v13, s63, v13
s_cmp_lg_u32 s3, 0
s_waitcnt lgkmcnt(0)
s_barrier
s_cbranch_scc1 L_ch1_ret
ds_read_b128 v[16:19], v12
ds_read_b128 v[20:23], v12 offset:16
ds_read_b128 v[28:31], v12 offset:32
ds_read_b128 v[32:35], v12 offset:48
s_cmp_eq_u32 s63, 1
s_mov_b64 exec, 15
s_waitcnt lgkmcnt(2)
v_pk_add_f32 v[16:17], v[16:17], v[18:19]
v_pk_add_f32 v[20:21], v[20:21], v[22:23]
s_waitcnt lgkmcnt(0)
v_pk_add_f32 v[28:29], v[28:29], v[30:31]
v_pk_add_f32 v[32:33], v[32:33], v[34:35]
v_pk_add_f32 v[16:17], v[16:17], v[20:21]
v_pk_add_f32 v[28:29], v[28:29], v[32:33]
v_pk_add_f32 v[16:17], v[16:17], v[28:29]
v_add_f32 v16, v16, v17
""")
rbf(16, 17); a("v_add_f32 v16, s78, v16"); rbf(16, 17); a("v_add_f32 v16, v16, v27"); rbf(16, 17)
a(f"""
s_cbranch_scc1 L_ch1_fin
buffer_store_dword v16, v13, s[16:19], s66 offen sc1
s_branch L_ch1_done
L_ch1_fin:
buffer_store_short v17, v13, s[20:23], s66 offen
L_ch1_done:
s_mov_b64 exec, -1
L_ch1_ret:
""")
stamp("c.pub", 1)
ret()

a.hist = []
a.label("SUB_CH1B")
a(f"""s_mul_i32 s70, s3, 9216
s_add_u32 s70, s70, s60
s_add_u32 s71, s70, 2304
s_add_u32 s72, s70, 4608
s_add_u32 s73, s70, 6912
v_lshlrev_b32 v49, 2, v0
s_mul_i32 s75, s3, 2304
s_add_u32 s75, s75, {LX}
v_add_u32 v51, s75, v2
s_barrier
s_branch L_ch1_b""")

a.hist = []
a.label("SUB_CH2")
a(f"""
v_lshrrev_b32 v13, 4, v0
v_bfe_u32 v14, v0, 2, 2
v_lshl_add_u32 v15, v13, 3, v14
v_lshlrev_b32 v15, 9, v15
v_bfe_u32 v13, v0, 2, 3
s_lshl_b32 s70, s3, 2
v_xor_b32 v13, s70, v13
v_lshl_add_u32 v15, v13, 5, v15
v_and_b32 v13, 3, v0
v_lshl_add_u32 v15, v13, 3, v15
v_add_u32 v15, {LWQ}, v15
v_xor_b32 v16, 32, v15
v_xor_b32 v17, 64, v15
v_xor_b32 v18, 96, v15
""")
for cbk in range(4):
    for ks in range(2):
        for jh in range(2):
            a(f"ds_read_b64_tr_b16 {R2(20 + 8*cbk + 4*ks + 2*jh)}, v{15+cbk} offset:{(32*ks+4*jh)*512}")
a(f"""
v_lshlrev_b32 v19, 2, v0
v_add_u32 v15, s64, v2
v_add_u32 v16, s64, v19
s_lshl_b32 s72, s5, 8
s_lshl_b32 s74, s7, 10
s_add_u32 s74, s74, s62
s_lshl_b32 s71, s3, 8
s_add_u32 s74, s74, s71
s_cmp_eq_u32 s63, 1
s_cbranch_scc0 L_ch2_g
v_add_u32 v17, s72, v16
ds_read_b128 v[4:7], v15
ds_read_b128 v[8:11], v15 offset:1024
ds_read_b32 v12, v16 offset:2048
ds_read_b32 v13, v17
s_waitcnt lgkmcnt(0)
s_branch L_ch2_x
L_ch2_g:
s_add_u32 s72, s72, s61
s_lshl_b32 s73, s4, 7
s_add_u32 s73, s73, s61
s_add_u32 s73, s73, 0x8000
""")
def issC():
    a("""buffer_load_dwordx4 v[4:7], v2, s[16:19], s61 offen sc1
    buffer_load_dwordx4 v[8:11], v2, s[16:19], s61 offen offset:1024 sc1
    buffer_load_dword v12, v19, s[16:19], s61 offen offset:2048 sc1
    buffer_load_dword v13, v19, s[16:19], s72 offen sc1""")
poll(issC, lambda: check_sentinel(range(4, 14), 14), s0=cfg.s0["C"])
stamp("c.C", 1)
a("""s_or_b32 s70, s5, s3
s_cbranch_scc1 L_ch2_nh
s_mov_b64 exec, 1
buffer_store_dword v19, v19, s[16:19], s73 offen sc1
s_mov_b64 exec, -1
L_ch2_nh:
ds_write_b128 v15, v[4:7]
ds_write_b128 v15, v[8:11] offset:1024
ds_write_b32 v16, v12 offset:2048
L_ch2_x:
v_cvt_pk_bf16_f32 v14, v4, v5
v_cvt_pk_bf16_f32 v15, v6, v7
v_cvt_pk_bf16_f32 v16, v8, v9
v_cvt_pk_bf16_f32 v17, v10, v11
v_cvt_pk_bf16_f32 v18, v12, 0""")
stats([14, 15, 16, 17, 18], 4, 5, ["v_lshlrev_b32 v9, 1, v0", f"v_add_u32 v9, {LRED}, v9", "v_and_b32 v12, 48, v0", f"v_add_u32 v12, {LRED}, v12"])
ln_scalars(4, 5, 6, 7, 8)
a("v_readlane_b32 s70, v6, 63\nv_readlane_b32 s71, v7, 63\nv_subrev_f32 v13, s70, v13")
rbf(13, 8)
a("""v_mul_f32 v13, s71, v13
v_cvt_pk_bf16_f32 v13, v13, v13
ds_write_b16 v9, v13
ds_read_b128 v[4:7], v12
ds_read_b128 v[8:11], v12 offset:64
s_waitcnt lgkmcnt(0)""")
accs = [12, 20, 28, 36]
for cbk in range(4):
    d = accs[cbk]; f = 20 + 8 * cbk
    a(f"v_mfma_f32_16x16x32_bf16 {R4(d)}, v[4:7], {R4(f)}, 0")
    a(f"v_mfma_f32_16x16x32_bf16 {R4(d)}, v[8:11], {R4(f+4)}, {R4(d)}")
for cbk in range(1, 4):
    a(f"v_mov_b32_dpp v12, v{accs[cbk]} quad_perm:[0,1,2,3] row_mask:{1<<cbk:#x} bank_mask:0xf")
a("buffer_store_dword v12, v19, s[16:19], s74 offen sc1")
stamp("c.wq", 1)
ret()

if cfg.roles:
    a.hist = []
    a.label("SUB_RING")
    vts = list(range(NL, cfg.j0)) + list(range(NL))
    NT = 64 + len(vts)
    slot = lambda n: (n - (NT - NL)) % NS
    lastso = [None]
    def rload(n):
        if n >= NT: return
        if n < 64:
            so, imm, va, srd = ("k", (n >> 3) * 8192), ((n >> 1) & 3) * 256 + (n & 1) * 128, "v1", "s[8:11]"
        else:
            vt = vts[n - 64]
            so, imm, va, srd = ("v", (vt >> 2) * 4096), (vt & 3) * 1024, "v2", "s[12:15]"
        if so != lastso[0]:
            a(f"s_add_u32 s28, s27, {so[1]}"); lastso[0] = so
        a(f"s_add_u32 m0, s57, {slot(n)*1024 - imm}")
        a(f"buffer_load_dwordx4 {va}, {srd}, s28 offen offset:{imm} nt lds")
    for n in range(16): rload(n)
    att_pre(zero=False)
    a("ds_read_b128 v[4:7], v12\nds_read_b128 v[8:11], v12 offset:128\nv_add_u32 v48, s57, v2")
    KT = [34, 38, 42]
    for n in range(66):
        if n < 64:
            rload(n + 16)
            a(f"s_waitcnt vmcnt(16)\nds_read_b128 {R4(KT[n%3])}, v48 offset:{slot(n)*1024}")
        if n >= 2:
            kt = n - 2
            a(f"s_waitcnt lgkmcnt({min(63, n) - kt})")
            kmm(kt, R4(KT[kt % 3]))
            if kt & 1 and (kt >> 1) >= 2: adds((kt >> 1) - 2)
    adds(30); adds(31)
    softmax()
    for i in range(8): a(f"v_mov_b32 v{34+i}, 0")
    a("v_add_u32 v33, s57, v2")
    curG[0] = None
    NV = len(vts)
    for m in range(NV + 2):
        if m < NV:
            n = 64 + m
            rload(n + 16)
            a(f"s_waitcnt vmcnt({min(16, NT - 1 - n)})\nds_read_b128 {R4(12 + 4*(m%3))}, v33 offset:{slot(n)*1024}")
        if 1 <= m <= NV: build(vts[m - 1], (m - 1) & 1)
        if m >= 2:
            j = m - 2
            a(f"s_waitcnt lgkmcnt({min(NV - 1, m) - j})")
            vmm(R4(12 + 4*(j%3)), j & 1, j == 0)
    if cfg.j0 == 64:
        a("s_branch L_att_epi")
    else:
        a(f"""v_mov_b32 v47, v51
        ds_write_b128 v33, v[24:27] offset:{13*1024}
        ds_write_b128 v33, v[28:31] offset:{14*1024}
        ds_write_b64 v33, v[46:47] offset:{16*1024}
        ds_write_b128 v33, v[42:45] offset:{15*1024}
        s_waitcnt lgkmcnt(0)""")
        ret()
        a.hist = []
        a.label("SUB_RESUME")
        a(f"s_mov_b32 s82, {8 + cfg.j0//8}\ns_call_b64 s[80:81], SUB_LN\ns_call_b64 s[80:81], SUB_LN")
        att_pre()
        a(f"""v_add_u32 v33, s57, v2
        ds_read_b128 v[24:27], v33 offset:{13*1024}
        ds_read_b128 v[28:31], v33 offset:{14*1024}
        ds_read_b128 v[42:45], v33 offset:{15*1024}
        ds_read_b64 v[50:51], v33 offset:{16*1024}
        s_mov_b64 vcc, -1
        s_waitcnt lgkmcnt(0)
        v_mov_b32 v46, v50""")
        curG[0] = None
        build(cfg.j0, cfg.j0 & 1)
        a.flush()
        a("s_branch L_att_resume")

for Lo, Lb, wait, depth in tramps:
    a.hist = []
    a.label(Lo)
    for d in range(1, depth + 1):
        a("s_call_b64 s[80:81], SUB_LN")
        L2 = a.newlabel("Lt2")
        if d < depth: a(f"s_cmp_lt_u32 s82, 16\ns_cbranch_scc1 {L2}")
        if wait: a(f"s_waitcnt vmcnt({8*d})")
        a(f"s_branch {Lb}")
        if d < depth: a.label(L2)
for Rr, L, D, sl in retries:
    a.hist = []
    a.label(Rr)
    a(f"s_sleep {sl}\ns_add_u32 s68, s68, 1\ns_cmp_lt_u32 s68, {cfg.spin}\ns_cbranch_scc1 {L}\ns_branch {D}")
if cfg.stamps:
    n = len(stamp_names)
    a.hist = []
    a.label("L_stamps")
    if cfg.dbg:
        sel = ["start", "start", "q1", "P1b0", "wq0", "s.ring", "P2b0", "s.P1b1", "s.fin0", "P1b1", "c.B", "c.wq", "s.rel", "s.end", "f.B", "end"]
        a("v_mov_b32 v6, 0")
        a(f"s_not_b32 s70, s{POOL[0]}\nv_writelane_b32 v6, s70, 0")
        for i, nm in enumerate(sel):
            if i and nm in stamp_names: a(f"v_writelane_b32 v6, s{POOL[stamp_names.index(nm)]}, {i}")
        a("v_lshrrev_b32 v4, 2, v2\ns_mov_b64 exec, 0xffff\nglobal_atomic_umax v4, v6, s[54:55] sc1\ns_branch L_fin")
    a(f"""s_lshl_b32 s70, s2, 2
    s_add_u32 s70, s70, s3
    s_mul_i32 s70, s70, {8*n}
    s_add_u32 s70, s70, {STAMP}
    v_mov_b32 v4, 0
    v_mov_b32 v7, 0
    s_mov_b64 exec, 1""")
    for i in range(n):
        a(f"v_mov_b32 v6, s{POOL[i]}\nbuffer_store_dwordx2 v[6:7], v4, s[16:19], s70 offen offset:{8*i}\ns_nop 1")
    a("s_branch L_fin")
    open(sys.argv[1] + ".names", "w").write(" ".join(stamp_names))
    print("nstamps", n, file=sys.stderr)
hdr = open("cdna_kernels/" + NAME + ".s.ref").read().split("; Override launch")[0]
out = hdr + f"; @launch grid=(256,1,1) block=(256,1,1) lds={LDS_TOTAL}\n"
out += f""".amdgcn_target "amdgcn-amd-amdhsa--gfx950"
.text
.globl {NAME}_kernel
.p2align 8
.type {NAME}_kernel,@function
{NAME}_kernel:
""" + a.text() + f""".section .rodata,"a"
.p2align 6
.amdhsa_kernel {NAME}_kernel
  .amdhsa_next_free_vgpr 512
  .amdhsa_next_free_sgpr 102
  .amdhsa_accum_offset 256
  .amdhsa_group_segment_fixed_size 0
  .amdhsa_kernarg_size 104
  .amdhsa_user_sgpr_count 2
  .amdhsa_user_sgpr_kernarg_segment_ptr 1
  .amdhsa_system_sgpr_workgroup_id_x 1
.end_amdhsa_kernel
"""
open(sys.argv[1], "w").write(out)
print("nops added", a.nops_added, "lines", len(a.lines), file=sys.stderr)
```

```python
import sys, struct, math
sys.path.insert(0, "gen")
from asmlib import *

NAME = "interleave_layers__gqa_block_cached__mixer_token_mlp__decode"
def f32(x): return "0x%08x" % struct.unpack("<I", struct.pack("<f", x))[0]

class Cfg:
    stamps = 0
    spin = 20000
    s0 = dict(A=20, B=16, C=24, D=12)
    s1 = 2
    sh = 2
    sg = 8
    go = 24
    roles = 1
    latew = 0
    vsites = 0
    l2n = 0
    dbg = 0
    n0 = 16
    n1 = 5
    thr = -1
    hint = -1
    xthr = 0
    thrm = -1
    sA2 = 0
    sB2 = 32
    aw = 0
    d0 = 1
    thrall = 0
    thr3 = 0
    go0 = -1
    j0 = 32
    fa = 3
    dw = 2
    pre = 8
    d1 = 3
    d2 = 2
    d3 = 3
    d4 = 3
cfg = Cfg()
for arg in sys.argv[2:]:
    k, v = arg.split("=")
    if k.startswith("s0"): cfg.s0[k[2]] = int(v)
    else: setattr(cfg, k, int(v))

W = 52; NL = 13; NS = 20
LV = 0; LWO = 53248; LWQ = 86016; LMX = 118784; LXB = 146432; LX = 151040; LQ = 160256; LLN = 162304; LRED = 163456
LO = LX + 8448
LDS_TOTAL = 163840
A_O = lambda i: i * 0x40000
A_L = lambda i: 0x100000 + i * 0x1000
B_A = lambda i: 0x110000 + i * 0x10000
C_A = lambda i: 0x150000 + i * 0x1000
H_A = lambda i: 0x158000 + i * 0x1000
D_A = lambda i: 0x160000 + i * 0x40000
STAMP = 0x10000000
CSM = math.log2(math.e) / math.sqrt(128.0)
C1 = -2.0 * math.sqrt(2.0 / math.pi) * math.log2(math.e)
C2 = C1 * 0.044715
DPPALL = "row_mask:0xf bank_mask:0xf"
CTL4 = ["quad_perm:[1,0,3,2]", "quad_perm:[2,3,0,1]", "row_half_mirror", "row_mirror"]

a = Asm()
POOL = list(range(83, 100)) + list(range(32, 40)) + [43, 50, 51]
stamp_names = []
def stamp(name, cond=None):
    if not cfg.stamps: return
    if name in stamp_names: r = POOL[stamp_names.index(name)]
    else:
        r = POOL[len(stamp_names)]; stamp_names.append(name)
    a("s_memrealtime s[100:101]\ns_waitcnt lgkmcnt(0)")
    if cond is None: a(f"s_mov_b32 s{r}, s100")
    else: a(f"s_cmp_eq_u32 s79, {cond}\ns_cselect_b32 s{r}, s100, s{r}")

def khome(kt): return f"a[{4*kt}:{4*kt+3}]"
def vhome(vt):
    r = W + 4 * (vt - NL); return f"v[{r}:{r+3}]"
def R4(r): return f"v[{r}:{r+3}]"
def R2(r): return f"v[{r}:{r+1}]"

def load_k(kts):
    lastG = None
    for kt in kts:
        G, t, half = kt >> 3, (kt >> 1) & 3, kt & 1
        if G != lastG:
            a(f"s_add_u32 s28, s27, {G*8192}"); lastG = G
        a(f"buffer_load_dwordx4 {khome(kt)}, v1, s[8:11], s28 offen offset:{t*256+half*128} nt")
def load_v(vts):
    lastQ = None
    for vt in vts:
        Q = vt >> 2
        if Q != lastQ:
            a(f"s_add_u32 s28, s27, {Q*4096}")
            if vt < NL: a(f"s_add_u32 m0, s29, {Q*4096}")
            lastQ = Q
        if vt < NL:
            a(f"buffer_load_dwordx4 v2, s[12:15], s28 offen offset:{(vt&3)*1024} nt lds")
        else:
            a(f"buffer_load_dwordx4 {vhome(vt)}, v2, s[12:15], s28 offen offset:{(vt&3)*1024} nt")

def rbf(v, t):
    a(f"v_cvt_pk_bf16_f32 v{t}, v{v}, v{v}\nv_lshlrev_b32 v{v}, 16, v{t}")
def rows_reduce(op, v, t):
    a(f"v_mov_b32 v{t}, v{v}\nv_permlane16_swap_b32 v{v}, v{t}\n{op} v{v}, v{v}, v{t}")
    a(f"v_mov_b32 v{t}, v{v}\nv_permlane32_swap_b32 v{v}, v{t}\n{op} v{v}, v{v}, v{t}")
def row16_reduce(op, vs):
    for ctl in CTL4:
        for v in vs: a(f"{op}_dpp v{v}, v{v}, v{v} {ctl} {DPPALL}")
def sum_to_row3(vs, fillers=()):
    fillers = list(fillers)
    steps = [f"{c} {DPPALL}" for c in CTL4] + ["row_bcast:15 row_mask:0xa bank_mask:0xf", "row_bcast:31 row_mask:0xc bank_mask:0xf"]
    per = (len(fillers) + 5) // 6
    for st in steps:
        for _ in range(per):
            if fillers: a(fillers.pop(0))
        for v in vs: a(f"v_add_f32_dpp v{v}, v{v}, v{v} {st}")
def stats(P, s1, s2, fillers=()):
    for i, p in enumerate(P):
        a(f"v_dot2_f32_bf16 v{s1}, v{p}, s67, {'0' if i == 0 else 'v%d' % s1}")
        a(f"v_dot2_f32_bf16 v{s2}, v{p}, v{p}, {'0' if i == 0 else 'v%d' % s2}")
    sum_to_row3([s1, s2], fillers)
    a(f"v_mul_f32 v{s1}, {f32(1.0/576)}, v{s1}\nv_mul_f32 v{s2}, {f32(1.0/576)}, v{s2}\nv_fma_f32 v{s2}, -v{s1}, v{s1}, v{s2}\nv_max_f32 v{s2}, 0, v{s2}")
def ln_scalars(m, q, mb, r, t):
    a(f"v_cvt_pk_bf16_f32 v{t}, v{m}, v{q}\nv_and_b32 v{r}, 0xffff0000, v{t}\nv_lshlrev_b32 v{mb}, 16, v{t}\nv_add_f32 v{r}, {f32(1e-5)}, v{r}")
    rbf(r, t); a(f"v_sqrt_f32 v{r}, v{r}"); rbf(r, t); a(f"v_rcp_f32 v{r}, v{r}")

def check_sentinel(regs, t):
    regs = list(regs)
    if len(regs) % 2 == 0:
        a(f"v_max_u32 v{t}, v{regs[0]}, v{regs[1]}"); regs = regs[2:]
    else:
        a(f"v_max3_u32 v{t}, v{regs[0]}, v{regs[1]}, v{regs[2]}"); regs = regs[3:]
    for i in range(0, len(regs), 2):
        a(f"v_max3_u32 v{t}, v{t}, v{regs[i]}, v{regs[i+1]}")
    a(f"v_cmp_eq_u32 vcc, -1, v{t}")

tramps = []
def ln(wait, depth=None):
    Lo = a.newlabel("Lt"); Lb = a.newlabel("Ltb")
    a(f"s_cmp_lt_u32 s82, 16\ns_cbranch_scc1 {Lo}")
    if wait: a("s_waitcnt vmcnt(0)")
    a.label(Lb)
    tramps.append((Lo, Lb, wait, depth or (cfg.dw if wait else 1)))
retries = []
def poll(issue, check, s0=0, depth=None):
    L = a.newlabel("Lpoll"); D = a.newlabel("Lpd"); Rr = a.newlabel("Lpr")
    a("s_mov_b32 s68, 0")
    if s0: a(f"s_sleep {s0}")
    a.label(L)
    issue(); ln(True, depth)
    check()
    a(f"s_cbranch_vccnz {Rr}")
    a.label(D)
    retries.append((Rr, L, D, cfg.s1))
def ln_until(n):
    L = a.newlabel("Lrest"); D = a.newlabel("Lrd")
    a.label(L); a(f"s_cmp_ge_u32 s82, {n}\ns_cbranch_scc1 {D}\ns_call_b64 s[80:81], SUB_LN\ns_branch {L}"); a.label(D)
def call(lbl):
    a.flush(); a(f"s_call_b64 s[30:31], {lbl}")
def ret():
    a.flush(); a("s_setpc_b64 s[30:31]")
def flagwait(inst, sl, off=0, count=0):
    a(f"s_lshl_b32 s70, s4, 7\ns_add_u32 s70, s70, {H_A(inst)+off}\nv_mov_b32 v4, 0")
    L = a.newlabel("Lh"); D = a.newlabel("Lhd")
    a(f"s_mov_b32 s68, 0\ns_cmp_lg_u32 s3, 0\ns_cbranch_scc1 {D}")
    a.label(L)
    a(f"buffer_load_dword v5, v4, s[16:19], s70 offen sc1\ns_waitcnt vmcnt(0)")
    a(f"v_cmp_gt_i32 vcc, {count*0xffff - 1}, v5" if count else "v_cmp_eq_u32 vcc, -1, v5")
    a(f"s_cbranch_vccz {D}")
    a(f"s_sleep {sl}\ns_add_u32 s68, s68, 1\ns_cmp_lt_u32 s68, {cfg.spin}\ns_cbranch_scc1 {L}")
    a.label(D)
    a("s_barrier")

def qg_issue(base, sb):
    for i in range(9):
        a(f"buffer_load_dword v{base+i}, v22, s[16:19], s{sb + (i>>2)} offen offset:{(i&3)*1024} sc1")
def qg_sum(base):
    b = base
    a(f"""v_add_f32 v{b}, v{b}, v{b+1}
    v_add_f32 v{b+2}, v{b+2}, v{b+3}
    v_add_f32 v{b+4}, v{b+4}, v{b+5}
    v_add_f32 v{b+6}, v{b+6}, v{b+7}
    v_add_f32 v{b}, v{b}, v{b+2}
    v_add_f32 v{b+4}, v{b+4}, v{b+6}
    v_add_f32 v{b}, v{b}, v{b+8}
    v_add_f32 v{b}, v{b}, v{b+4}
    v_cvt_pk_bf16_f32 v{b}, v{b}, v{b}""")

a(f"""
s_cmp_ge_u32 s2, 256
s_cbranch_scc1 L_end
s_load_dwordx16 s[32:47], s[0:1], 0
s_load_dwordx8 s[48:55], s[0:1], 64
s_load_dwordx2 s[56:57], s[0:1], 96
v_lshrrev_b32 v1, 6, v0
v_readfirstlane_b32 s3, v1
v_and_b32 v0, 63, v0
s_lshr_b32 s4, s2, 4
s_and_b32 s6, s2, 15
s_add_u32 s5, s6, s4
s_and_b32 s5, s5, 15
v_lshlrev_b32 v2, 4, v0
v_bfe_u32 v1, v0, 1, 3
v_lshlrev_b32 v1, 10, v1
v_lshrrev_b32 v3, 4, v0
v_lshl_add_u32 v1, v3, 5, v1
v_and_b32 v3, 1, v0
v_lshl_add_u32 v1, v3, 4, v1
s_lshl_b32 s27, s2, 18
s_lshl_b32 s28, s3, 16
s_add_u32 s27, s27, s28
s_mov_b32 s10, 0x8000000
s_mov_b32 s11, 0x20000
s_mov_b32 s14, 0x8000000
s_mov_b32 s15, 0x20000
s_mov_b32 s18, 0x20000000
s_mov_b32 s19, 0x20000
s_mov_b32 s23, 0x20000
s_waitcnt lgkmcnt(0)
s_mov_b32 s8, s34
s_mov_b32 s9, s35
""")
load_k(range(0, cfg.pre))
a(f"""
s_mov_b32 s12, s36
s_mov_b32 s13, s37
s_mov_b32 s16, s56
s_mov_b32 s17, s57
s_mov_b32 s82, {cfg.pre//8}
s_mov_b32 s79, 0
s_cmp_ge_u32 s5, 9
s_cselect_b32 s42, 1, {cfg.thrall}
""")
if cfg.xthr: a("s_getreg_b32 s42, hwreg(HW_REG_XCC_ID)\ns_andn2_b32 s42, 1, s42")
a(f"""
s_mov_b32 s24, 0xaaaaaaaa
s_mov_b32 s25, 0xaaaaaaaa
v_mov_b32 v3, 0xffff
v_mov_b32 v4, 0xffff0000
v_cndmask_b32 v3, v3, v4, s[24:25]
s_mov_b32 s26, {f32(CSM)}
s_mov_b32 s67, 0x3f803f80
s_mul_i32 s29, s3, {NL*1024}
""")
for r in POOL[:17]:
    if cfg.stamps: a(f"s_mov_b32 s{r}, 0")
stamp("start")
a(f"""
v_mov_b32 v4, -1
v_mov_b32 v5, -1
v_mov_b32 v6, -1
v_mov_b32 v7, -1
s_lshl_b32 s70, s3, 18
s_lshl_b32 s71, s2, 10
s_add_u32 s70, s70, s71
buffer_store_dwordx4 v[4:7], v2, s[16:19], s70 offen sc1
s_lshl_b32 s70, s3, 12
s_lshl_b32 s71, s4, 7
s_add_u32 s70, s70, s71
s_lshl_b32 s71, s6, 2
s_add_u32 s70, s70, s71
s_add_u32 s70, s70, {A_L(0)}
v_lshlrev_b32 v8, 6, v0
s_mov_b64 exec, 3
buffer_store_dword v4, v8, s[16:19], s70 offen sc1
s_mov_b64 exec, -1
v_mov_b32 v11, 0
global_load_ushort v23, v11, s[50:51]
s_mul_i32 s7, s4, 9
s_add_u32 s7, s7, s5
s_cmp_ge_u32 s5, 9
s_cbranch_scc1 L_pro_s1
v_lshlrev_b32 v8, 2, v0
s_lshl_b32 s70, s3, 16
s_lshl_b32 s71, s7, 8
s_add_u32 s70, s70, s71
s_add_u32 s70, s70, {B_A(0)}
buffer_store_dword v4, v8, s[16:19], s70 offen sc1
s_lshl_b32 s70, s3, 18
s_lshl_b32 s71, s7, 10
s_add_u32 s70, s70, s71
s_add_u32 s70, s70, {D_A(0)}
buffer_store_dwordx4 v[4:7], v2, s[16:19], s70 offen sc1
s_lshl_b32 s70, s3, 12
s_lshl_b32 s71, s7, 4
s_add_u32 s70, s70, s71
s_add_u32 s70, s70, {C_A(0)}
s_mov_b64 exec, 15
buffer_store_dword v4, v8, s[16:19], s70 offen sc1
s_lshl_b32 s70, s3, 12
s_lshl_b32 s71, s4, 7
s_add_u32 s70, s70, s71
s_add_u32 s70, s70, {H_A(0)}
buffer_store_dword v4, v8, s[16:19], s70 offen sc1
s_mov_b64 exec, -1
s_mov_b32 s20, s32
s_mov_b32 s21, s33
s_mov_b32 s22, 2304
v_lshlrev_b32 v9, 3, v0
v_lshlrev_b32 v10, 1, v0
buffer_load_dwordx2 v[12:13], v9, s[20:23], 0 offen
buffer_load_dwordx2 v[14:15], v9, s[20:23], 0 offen offset:512
buffer_load_ushort v16, v10, s[20:23], 0 offen offset:1024
buffer_load_dwordx2 v[18:19], v9, s[20:23], 0 offen offset:1152
buffer_load_dwordx2 v[20:21], v9, s[20:23], 0 offen offset:1664
buffer_load_ushort v22, v10, s[20:23], 0 offen offset:2176
s_mov_b32 s20, s38
s_mov_b32 s21, s39
s_mov_b32 s22, {576*8192}
v_lshrrev_b32 v24, 5, v0
v_and_b32 v25, 31, v0
v_lshlrev_b32 v25, 4, v25
v_lshlrev_b32 v26, 5, v24
v_xor_b32 v25, v25, v26
v_lshl_add_u32 v24, v24, 13, v25
v_xor_b32 v25, 64, v24
v_xor_b32 v26, 128, v24
v_xor_b32 v27, 192, v24
s_lshl_b32 s70, s5, 19
s_lshl_b32 s71, s3, 17
s_add_u32 s70, s70, s71
s_lshl_b32 s71, s4, 9
s_add_u32 s70, s70, s71
s_lshl_b32 s71, s3, 13
s_add_u32 s71, s71, {LWQ}
""")
for i in range(8):
    fs = ((i >> 2) & 1) * 2 + (i & 1)
    a(f"s_add_u32 m0, s71, {i*1024}\nbuffer_load_dwordx4 v{24+fs}, s[20:23], s70 offen nt lds")
    if i < 7: a("s_add_u32 s70, s70, 16384")
a.label("L_pro_s1")
ln(True, cfg.d1)
pass
a(f"""
v_lshlrev_b32 v23, 16, v23
v_readfirstlane_b32 s78, v23
s_mov_b32 s56, {LMX}
s_cmp_ge_u32 s5, 9
s_cbranch_scc1 L_pro_s2
v_add_u32 v24, {LXB}, v2
v_lshlrev_b32 v25, 2, v0
v_add_u32 v25, {LXB+2048}, v25
""")
for b in range(2):
    r = 12 + 6 * b
    a(f"""v_lshlrev_b32 v28, 16, v{r}
    v_and_b32 v29, 0xffff0000, v{r}
    v_lshlrev_b32 v30, 16, v{r+1}
    v_and_b32 v31, 0xffff0000, v{r+1}
    v_lshlrev_b32 v32, 16, v{r+2}
    v_and_b32 v33, 0xffff0000, v{r+2}
    v_lshlrev_b32 v34, 16, v{r+3}
    v_and_b32 v35, 0xffff0000, v{r+3}
    v_lshlrev_b32 v36, 16, v{r+4}
    ds_write_b128 v24, v[28:31] offset:{b*2304}
    ds_write_b128 v24, v[32:35] offset:{b*2304+1024}
    ds_write_b32 v25, v36 offset:{b*2304}
    s_waitcnt lgkmcnt(0)""")
a.label("L_pro_s2")
a(f"""
s_barrier
s_cmp_lg_u32 s3, {cfg.aw}
s_cbranch_scc1 L_pro_arr
v_mov_b32 v4, 0
v_mov_b32 v5, 1
s_mov_b64 exec, 1
global_atomic_add v6, v4, v5, s[54:55] offset:64 sc0 sc1
s_mov_b64 exec, -1
""")
ln(True, cfg.d0)
a(f"""v_readfirstlane_b32 s70, v6
s_cmp_lg_u32 s70, 255
s_cbranch_scc1 L_pro_arr
s_mov_b64 exec, 1
global_store_dword v4, v5, s[54:55] offset:128 sc1
s_mov_b64 exec, -1
L_pro_arr:
s_cmp_ge_u32 s5, 9
s_cbranch_scc1 L_pro_s3
""")
for b in range(2):
    a(f"s_mov_b32 s63, 1\ns_mov_b32 s64, {LXB + b*2304}\ns_mov_b32 s62, {D_A(b)}")
    call("SUB_CH2")
    if b == 0: a("s_barrier")
def load_wo():
    a(f"""
    s_mov_b32 s20, s40
    s_mov_b32 s21, s41
    s_mov_b32 s22, {4096*1152}
    v_lshrrev_b32 v24, 3, v0
    v_mul_u32_u24 v24, 1152, v24
    v_and_b32 v25, 7, v0
    v_lshlrev_b32 v25, 4, v25
    v_bfe_u32 v26, v0, 4, 1
    v_lshlrev_b32 v26, 5, v26
    v_xor_b32 v25, v25, v26
    v_xor_b32 v26, 64, v25
    v_add_u32 v25, v25, v24
    v_add_u32 v26, v26, v24
    s_lshl_b32 s70, s4, 2
    s_add_u32 s70, s70, s3
    s_mul_i32 s70, s70, {64*1152}
    s_lshl_b32 s71, s5, 7
    s_add_u32 s70, s70, s71
    s_lshl_b32 s71, s3, 13
    s_add_u32 s71, s71, {LWO}
    """)
    for i in range(8):
        a(f"s_add_u32 m0, s71, {i*1024}\nbuffer_load_dwordx4 v{25+(i&1)}, s[20:23], s70 offen nt lds")
        if i < 7: a(f"s_add_u32 s70, s70, {8*1152}")
def load_mixer(base):
    a(f"""
    s_lshl_b32 s70, s3, 10
    v_add_u32 v24, s70, v2
    v_add_u32 v25, 4096, v24
    v_add_u32 v26, 8192, v2
    s_add_u32 s71, s70, {base}
    """)
    for j, p in enumerate((44, 46, 48)):
        a(f"""s_add_u32 m0, s71, {j*9216}
        global_load_lds_dwordx4 v24, s[{p}:{p+1}]
        s_add_u32 m0, s71, {j*9216+4096}
        global_load_lds_dwordx4 v25, s[{p}:{p+1}]
        s_mov_b32 m0, {base+j*9216+8192}
        global_load_lds_dwordx4 v26, s[{p}:{p+1}]""")
if not cfg.latew:
    load_wo(); load_mixer(LMX)
a.label("L_pro_s3")
for r in POOL[17:]:
    if cfg.stamps: a(f"s_mov_b32 s{r}, 0")
ln(False, cfg.d2)
a("v_mov_b32 v4, 0")
poll(lambda: a("global_load_dword v5, v4, s[54:55] offset:128 sc1"), lambda: a("v_cmp_eq_u32 vcc, 0, v5"), depth=cfg.d3)
stamp("cnt")
a(f"""s_lshl_b32 s70, s3, 8
v_lshl_add_u32 v22, v0, 2, s70
s_mul_i32 s69, s4, 9216
s_add_u32 s70, s69, {D_A(0)}
s_add_u32 s71, s70, 4096
s_add_u32 s72, s70, 8192
s_add_u32 s73, s69, {D_A(1)}
s_add_u32 s74, s73, 4096
s_add_u32 s75, s73, 8192
v_lshrrev_b32 v24, 1, v22
v_add_u32 v24, {LQ}, v24""")
poll(lambda: (qg_issue(4, 70), qg_issue(13, 73)), lambda: check_sentinel(range(4, 22), 23), depth=cfg.d4)
qg_sum(4); qg_sum(13)
a("ds_write_b16 v24, v4\nds_write_b16 v24, v13 offset:512")
stamp("q1")
ln_until(10)
a("s_waitcnt lgkmcnt(0)\ns_barrier")

def att_params(ai, seq):
    a(f"s_mov_b32 s58, {A_O(ai)}\ns_mov_b32 s59, {A_L(ai)}\ns_mov_b32 s65, {LQ + ai*512}\ns_mov_b32 s64, {LX + (seq&1)*4224}")
def hint_addr(ai):
    a(f"s_lshl_b32 s62, s4, 7\ns_add_u32 s62, s62, {H_A(ai)+8}")
def att_p1(ai, seq):
    att_params(ai, seq); hint_addr(ai); a("s_mov_b64 vcc, -1"); call("SUB_ATT")
def qatt(ai, seq, loadnext):
    att_params(ai, seq); a(f"s_mov_b32 s62, {D_A(ai)}\ns_mov_b32 s63, {2 if loadnext else 0}"); call("SUB_QATT")
def ch1(inst, final, entry="SUB_CH1", aonly=False):
    b = inst & 1
    a(f"s_mov_b32 s58, {A_O(inst)}\ns_mov_b32 s59, {A_L(inst)}\ns_mov_b32 s60, {B_A(inst)}\ns_mov_b32 s64, {LXB + b*2304}")
    a(f"s_mov_b32 s63, {2 if aonly else 1 if final else 0}\ns_mov_b32 s61, {b*1152 if final else C_A(inst)}")
    call(entry)
def ch2(inst):
    b = inst & 1
    a(f"s_mov_b32 s63, 0\ns_mov_b32 s61, {C_A(inst)}\ns_mov_b32 s64, {LXB + b*2304}\ns_mov_b32 s62, {D_A(2+inst)}")
    call("SUB_CH2")

a(f"s_cmp_eq_u32 s3, 0\ns_cselect_b32 s63, 4, 0\ns_lshl_b32 s60, s4, 7\ns_add_u32 s60, s60, {H_A(2)+4}")
att_p1(0, 0)
stamp("P1b0")
a("s_add_u32 s27, s27, 0x4000000\ns_cmp_ge_u32 s5, 9\ns_cbranch_scc1 L_srole")
a(f"s_mov_b32 s42, {cfg.thr3}")
if cfg.latew:
    load_wo(); load_mixer(LMX)
    a("s_waitcnt vmcnt(9)\ns_barrier")
ch1(0, False); ch2(0)
stamp("wq0")
a(f"s_mov_b32 s69, {cfg.s0['D']}")
qatt(2, 1, True)
stamp("P2b0")
if cfg.roles:
    ln_until(cfg.fa)
    ch1(2, True, aonly=True)
    a(f"""s_or_b32 s70, s5, s3
    s_cbranch_scc1 L_nf3
    s_lshl_b32 s70, s4, 7
    s_add_u32 s70, s70, {H_A(3)}
    s_mov_b64 exec, 1
    buffer_store_dword v2, v2, s[16:19], s70 offen sc1
    s_mov_b64 exec, -1
    L_nf3:""")
else:
    ch1(2, True)
stamp("fin0")
ln_until(10)
a(f"s_cmp_eq_u32 s3, 0\ns_cselect_b32 s63, 3, 0\ns_lshl_b32 s60, s4, 7\ns_add_u32 s60, s60, {H_A(2)}")
att_p1(1, 2)
stamp("P1b1")
a("s_mov_b32 s79, 1")
ch1(1, False); ch2(1)
qatt(3, 3, False)
stamp("P2b1")
a("s_mov_b32 s79, 2")
ch1(3, True)
stamp("end")
a("s_branch L_stamps" if cfg.stamps else "s_branch L_fin")
a.label("L_srole")
a("s_mov_b32 s42, 0")
a(f"s_mov_b32 s69, 0")
if cfg.roles:
    a(f"s_mul_i32 s57, s3, {NS*1024}\ns_add_u32 s57, s57, {LWO}")
    if cfg.go0 >= 0: flagwait(2, cfg.sh, 4, cfg.n0)
    att_params(1, 1); call("SUB_RING")
    stamp("s.ring")
    flagwait(0, cfg.sh)
    qatt(2, 2, False)
    stamp("s.P2b0")
    if cfg.j0 < 64:
        att_params(1, 1); hint_addr(1); a("s_mov_b32 s63, 0"); call("SUB_RESUME")
        stamp("s.P1b1")
    load_mixer(0)
    a(f"""s_mov_b32 s56, 0
    s_mov_b32 s70, {C_A(0)}
    v_lshlrev_b32 v13, 2, v0
    buffer_load_dwordx4 v[4:7], v2, s[16:19], s70 offen sc1
    buffer_load_dwordx4 v[8:11], v2, s[16:19], s70 offen offset:1024 sc1
    buffer_load_dword v12, v13, s[16:19], s70 offen offset:2048 sc1
    v_add_u32 v14, {LXB}, v2
    v_add_u32 v13, {LXB}, v13
    s_mul_i32 s7, s4, 7
    s_add_u32 s7, s7, s5
    s_sub_u32 s7, s7, 9
    s_waitcnt vmcnt(0)
    ds_write_b128 v14, v[4:7]
    ds_write_b128 v14, v[8:11] offset:1024
    ds_write_b32 v13, v12 offset:2048""")
    flagwait(3, cfg.sg)
    ch1(2, True, entry="SUB_CH1B")
    a("s_add_u32 s7, s7, 112\ns_cmp_ge_u32 s7, 144\ns_cbranch_scc1 L_s_nf")
    call("SUB_CH1B")
    a.label("L_s_nf")
    stamp("s.fin0")
    flagwait(2, cfg.sg, 0, cfg.n1)
    stamp("s.go")
    a("s_mov_b32 s82, 0")
    ln_until(8)
    load_v(range(13, 16))
    a("s_mov_b32 s82, 10\ns_mov_b32 s29, s57")
    ln_until(8 + cfg.j0 // 8)
    a("s_mov_b32 s82, 16")
    if cfg.stamps: a("s_waitcnt vmcnt(0)")
    stamp("s.rel")
else:
    flagwait(0, cfg.sh)
    qatt(2, 1, True)
    ln_until(10)
    a("s_mov_b32 s63, 0")
    att_p1(1, 2)
    stamp("s.P1b1")
flagwait(1, cfg.sh)
qatt(3, 2 if (cfg.roles and cfg.j0 < 64) else 3, False)
stamp("s.end")
if cfg.stamps: a("s_branch L_stamps")
a.label("L_fin")
a("s_waitcnt vmcnt(0)")
a.label("L_end")
a("s_endpgm")

def att_pre(zero=True):
    a(f"""
    v_bfe_u32 v15, v0, 1, 1
    v_lshlrev_b32 v12, 8, v15
    v_lshrrev_b32 v13, 4, v0
    v_lshl_add_u32 v12, v13, 5, v12
    v_and_b32 v14, 1, v0
    v_lshl_add_u32 v12, v14, 4, v12
    v_add_u32 v12, s65, v12
    v_xor_b32 v15, v15, v14
    v_lshlrev_b32 v47, 9, v15
    v_lshl_add_u32 v47, v13, 7, v47
    v_bfe_u32 v15, v0, 2, 2
    v_lshl_add_u32 v47, v15, 3, v47
    v_lshl_add_u32 v47, v14, 2, v47
    s_lshl_b32 s70, s3, 10
    s_add_u32 s70, s70, s64
    v_add_u32 v47, s70, v47
    """)
    if zero:
        for i in range(8): a(f"v_mov_b32 v{34+i}, 0")
def Dset(i): return 12 + 4 * (i % 3)
def adds(i):
    G, t = i >> 2, i & 3; d = Dset(i)
    a(f"v_add_f32_dpp v32, v{d+1}, v{d} quad_perm:[1,0,3,2] row_mask:{1<<t:#x} bank_mask:0xf")
    a(f"v_add_f32_dpp v33, v{d+2}, v{d+3} quad_perm:[1,0,3,2] row_mask:{1<<t:#x} bank_mask:0xf")
    if t == 3:
        a(f"v_cndmask_b32 v{24+G}, v32, v33, s[24:25]")
        if G == 1: a("v_max_f32 v46, v24, v25")
        elif G % 2 == 1: a(f"v_max3_f32 v46, v46, v{23+G}, v{24+G}")
def kmm(kt, src):
    d = Dset(kt >> 1)
    if kt & 1: a(f"v_mfma_f32_16x16x32_bf16 {R4(d)}, v[8:11], {src}, {R4(d)}")
    else: a(f"v_mfma_f32_16x16x32_bf16 {R4(d)}, v[4:7], {src}, 0")
def softmax():
    for ctl in ("quad_perm:[2,3,0,1]", "row_ror:4", "row_ror:8"):
        a(f"v_max_f32_dpp v46, v46, v46 {ctl} {DPPALL}")
    rows_reduce("v_max_f32", 46, 32)
    a("v_mul_f32 v32, s26, v46")
    for G in range(8): a(f"v_fma_f32 v{24+G}, v{24+G}, s26, -v32")
    for G in range(8): a(f"v_exp_f32 v{24+G}, v{24+G}")
    a("v_pk_add_f32 v[4:5], v[24:25], v[26:27]\nv_pk_add_f32 v[6:7], v[28:29], v[30:31]\nv_pk_add_f32 v[4:5], v[4:5], v[6:7]\nv_add_f32 v51, v4, v5")
    lctl = ["quad_perm:[2,3,0,1]", "row_ror:8", "row_ror:4"]
    for G in range(8):
        t = 32 + (G & 1)
        a(f"v_mov_b32_dpp v{t}, v{24+G} quad_perm:[1,0,3,2] {DPPALL}")
        if G in (1, 3, 5): a(f"v_add_f32_dpp v51, v51, v51 {lctl[G//2]} {DPPALL}")
        a(f"v_cvt_pk_bf16_f32 v{24+G}, v{24+G}, v{t}")
    rows_reduce("v_add_f32", 51, 32)
curG = [None]
def build(vt, par):
    G, kap = vt >> 3, vt & 7
    if G != curG[0]:
        for rot in (1, 2, 3): a(f"v_mov_b32_dpp v{47+rot}, v{24+G} row_ror:{4*rot} {DPPALL}")
        curG[0] = G
    bs = 34 + 4 * par; x = 2 * (kap & 1); hb = kap >> 1
    for rot in range(4):
        k = (hb + rot) % 4
        z = 24 + G if rot == 0 else 47 + rot
        a(f"v_and_b32_dpp v{bs+k}, v{z}, v3 quad_perm:[{x},{x},{x+1},{x+1}] row_mask:0xf bank_mask:{1<<k:#x}")
def vmm(src, par, first):
    a(f"v_mfma_f32_16x16x32_bf16 v[42:45], {src}, {R4(34+4*par)}, {'0' if first else 'v[42:45]'}")

a.hist = []
a.label("SUB_QATT")
att_pre()
a(f"""s_lshl_b32 s70, s3, 8
v_lshl_add_u32 v22, v0, 2, s70
s_mul_i32 s70, s4, 9216
s_add_u32 s70, s70, s62
s_add_u32 s71, s70, 4096
s_add_u32 s72, s70, 8192
v_lshrrev_b32 v24, 1, v22
v_add_u32 v24, s65, v24
s_cmp_eq_u32 s69, 0
s_cbranch_scc1 L_qatt_ns
s_sleep {max(1, cfg.s0['D'])}
L_qatt_ns:""")
poll(lambda: qg_issue(13, 70), lambda: check_sentinel(range(13, 22), 23))
qg_sum(13)
a("ds_write_b16 v24, v13\ns_cmp_eq_u32 s63, 2\ns_cselect_b32 s82, 0, s82\ns_mov_b64 vcc, 0\ns_waitcnt lgkmcnt(0)\ns_barrier")
stamp("q2b1", 1)
a.label("SUB_ATT2")
outofline = []
def site(fn):
    Lo = a.newlabel("Lo"); Lb = a.newlabel("Lb")
    a(f"s_cbranch_vccnz {Lo}"); a.label(Lb)
    outofline.append((Lo, Lb, fn))
a("ds_read_b128 v[4:7], v12\nds_read_b128 v[8:11], v12 offset:128\ns_waitcnt vmcnt(16) lgkmcnt(0)")
for i in range(32):
    kmm(2*i, khome(2*i)); kmm(2*i+1, khome(2*i+1))
    if i >= 2: adds(i - 2)
    if i in (3, 7):
        Lo = a.newlabel("Lo"); Lb = a.newlabel("Lb")
        a(f"s_cmp_lt_u32 s82, 2\ns_cbranch_scc1 {Lo}"); a.label(Lb)
        outofline.append((Lo, Lb, lambda: a("s_call_b64 s[80:81], SUB_LN")))
adds(30); adds(31)
softmax()
a("v_add_u32 v33, s29, v2")
sites = list(range(0, 60, 4)) + [60, 61, 62, 63]
def fetch(i):
    if i in sites:
        nxt = [s for s in sites if s > i]
        last = (nxt[0] if nxt else 64) - 1
        g = min(7, (i >> 3) + 2)
        def fn(i=i, g=g, last=last):
            if i % 8 == 0 and (i >> 3) + 2 <= 7:
                L = a.newlabel("Lsk")
                a(f"s_cmp_gt_u32 s82, {8+g}\ns_cbranch_scc1 {L}\ns_call_b64 s[80:81], SUB_LN"); a.label(L)
            a(f"s_waitcnt vmcnt({8*g + 7 - last})")
            for gi, code in ((cfg.go, 3), (cfg.go0, 4)):
              if i == gi:
                L = a.newlabel("Lsg")
                a(f"s_cmp_lg_u32 s63, {code}\ns_cbranch_scc1 {L}\ns_mov_b64 exec, 1\nbuffer_atomic_add v3, v2, s[16:19], s60 offen sc1\ns_mov_b64 exec, -1"); a.label(L)
            if i == cfg.hint:
                L = a.newlabel("Lsh")
                a(f"s_cmp_lg_u32 s3, 0\ns_cbranch_scc1 {L}\ns_mov_b64 exec, 1\nbuffer_atomic_add v3, v2, s[16:19], s62 offen sc1\ns_mov_b64 exec, -1"); a.label(L)
        site(fn)
    if i < NL:
        a(f"ds_read_b128 {R4(12 + 4*(i%3))}, v33 offset:{i*1024}")
curG[0] = None
for i in range(66):
    if i == cfg.j0 + 2: a.label("L_att_resume")
    if i < NL: fetch(i)
    if 1 <= i <= 64: build(i - 1, (i - 1) & 1)
    if i >= 2:
        j = i - 2
        if j >= NL: fetch(j); src = vhome(j)
        else:
            a(f"s_waitcnt lgkmcnt({min(NL - 1, j + 2) - j})"); src = R4(12 + 4*(j%3))
        vmm(src, j & 1, j == 0)
        if cfg.vsites and j in (2, 18, 34, 50):
            Lo = a.newlabel("Lo"); Lb = a.newlabel("Lb")
            a(f"s_cmp_lt_u32 s82, 8\ns_cbranch_scc1 {Lo}"); a.label(Lb)
            outofline.append((Lo, Lb, lambda: a("s_call_b64 s[80:81], SUB_LN")))
a.label("L_att_epi")
a(f"""
v_and_b32 v32, 1, v0
v_lshlrev_b32 v32, 5, v32
s_lshl_b32 s70, s3, 2
s_add_u32 s70, s70, s64
s_add_u32 s70, s70, 4096
v_add_u32 v32, s70, v32
ds_write2_b32 v32, v46, v51 offset0:0 offset1:4
v_add_u32 v32, s64, v2
v_lshrrev_b32 v33, 5, v0
v_lshlrev_b32 v34, 6, v33
v_lshlrev_b32 v33, 5, v33
v_add_u32 v33, s64, v33
ds_write2_b32 v47, v42, v43 offset0:0 offset1:8
ds_write2_b32 v47, v44, v45 offset0:16 offset1:24
s_lshl_b32 s70, s2, 10
s_add_u32 s70, s70, s58
s_lshl_b32 s71, s4, 7
s_add_u32 s71, s71, s59
s_lshl_b32 s72, s6, 2
s_add_u32 s71, s71, s72
s_cmp_lg_u32 s3, 0
s_waitcnt lgkmcnt(0)
s_barrier
s_cbranch_scc1 L_att_ret
ds_read_b128 v[20:23], v33 offset:4096
ds_read_b128 v[24:27], v33 offset:4112
ds_read_b128 v[4:7], v32
ds_read_b128 v[8:11], v32 offset:1024
ds_read_b128 v[12:15], v32 offset:2048
ds_read_b128 v[16:19], v32 offset:3072
s_waitcnt lgkmcnt(4)
v_max3_f32 v28, v20, v21, v22
v_max_f32 v28, v28, v23
v_mul_f32 v28, s26, v28
""")
for w in range(4): a(f"v_fma_f32 v{20+w}, v{20+w}, s26, -v28")
for w in range(4): a(f"v_exp_f32 v{20+w}, v{20+w}")
a("""v_mul_f32 v30, v20, v24
v_fmac_f32 v30, v21, v25
v_fmac_f32 v30, v22, v26
v_fmac_f32 v30, v23, v27
s_waitcnt lgkmcnt(0)
v_pk_mul_f32 v[4:5], v[4:5], v[20:21] op_sel:[0,0] op_sel_hi:[1,0]
v_log_f32 v29, v30
v_rcp_f32 v30, v30
v_pk_mul_f32 v[6:7], v[6:7], v[20:21] op_sel:[0,0] op_sel_hi:[1,0]
v_pk_fma_f32 v[4:5], v[8:9], v[20:21], v[4:5] op_sel:[0,1,0] op_sel_hi:[1,1,1]
v_pk_fma_f32 v[6:7], v[10:11], v[20:21], v[6:7] op_sel:[0,1,0] op_sel_hi:[1,1,1]
v_pk_fma_f32 v[4:5], v[12:13], v[22:23], v[4:5] op_sel:[0,0,0] op_sel_hi:[1,0,1]
v_pk_fma_f32 v[6:7], v[14:15], v[22:23], v[6:7] op_sel:[0,0,0] op_sel_hi:[1,0,1]
v_pk_fma_f32 v[4:5], v[16:17], v[22:23], v[4:5] op_sel:[0,1,0] op_sel_hi:[1,1,1]
v_pk_fma_f32 v[6:7], v[18:19], v[22:23], v[6:7] op_sel:[0,1,0] op_sel_hi:[1,1,1]
v_pk_mul_f32 v[4:5], v[4:5], v[30:31] op_sel:[0,0] op_sel_hi:[1,0]
v_pk_mul_f32 v[6:7], v[6:7], v[30:31] op_sel:[0,0] op_sel_hi:[1,0]
v_add_f32 v29, v29, v28
buffer_store_dwordx4 v[4:7], v2, s[16:19], s70 offen sc1
s_mov_b32 exec_lo, 1
s_mov_b32 exec_hi, 1
buffer_store_dword v29, v34, s[16:19], s71 offen sc1
s_mov_b64 exec, -1
L_att_ret:""")
ret()
a.hist = []
a.label("SUB_ATT")
att_pre()
a("s_branch SUB_ATT2")
for Lo, Lb, fn in outofline:
    a.hist = []
    a.label(Lo); fn(); a(f"s_branch {Lb}")

a.hist = []
a.label("SUB_LN")
if cfg.thr >= 0: a(f"s_cmp_eq_u32 s42, 0\ns_cbranch_scc1 L_ln_nt\ns_waitcnt vmcnt({cfg.thr})\nL_ln_nt:")
for k in range(15): a(f"s_cmp_eq_u32 s82, {k}\ns_cbranch_scc1 L_lnb{k}")
for k in [15] + list(range(15)):
    a.label(f"L_lnb{k}")
    for hlf in range(2):
        if hlf and cfg.thrm >= 0: a(f"s_cmp_eq_u32 s42, 0\ns_cbranch_scc1 L_lnm{k}\ns_waitcnt vmcnt({cfg.thrm})\nL_lnm{k}:")
        if k < 8: load_k(range(8*k+4*hlf, 8*k+4*hlf+4))
        else: load_v(range(8*(k-8)+4*hlf, 8*(k-8)+4*hlf+4))
    a("s_add_u32 s82, s82, 1\ns_setpc_b64 s[80:81]")

a.hist = []
a.label("SUB_CH1")
a(f"""
v_lshrrev_b32 v21, 4, v0
v_bfe_u32 v22, v0, 2, 2
v_lshl_add_u32 v23, v21, 3, v22
v_lshlrev_b32 v23, 7, v23
v_bfe_u32 v21, v0, 3, 2
v_xor_b32 v21, s3, v21
v_lshl_add_u32 v23, v21, 5, v23
v_and_b32 v21, 3, v0
v_lshl_add_u32 v23, v21, 3, v23
v_add_u32 v23, {LWO}, v23
""")
for ks in range(7):
    for jh in range(2):
        a(f"ds_read_b64_tr_b16 {R2(24 + 4*ks + 2*jh)}, v23 offset:{(32*ks+4*jh)*128}")
a(f"""
v_lshlrev_b32 v21, 2, v0
s_lshl_b32 s70, s4, 14
s_add_u32 s70, s70, s58
s_lshl_b32 s71, s3, 8
s_add_u32 s70, s70, s71
s_add_u32 s71, s70, 4096
s_add_u32 s72, s70, 8192
s_add_u32 s73, s70, 12288
s_lshl_b32 s74, s4, 7
s_add_u32 s74, s74, s59
s_lshr_b32 s75, s3, 1
s_lshl_b32 s75, s75, 6
s_add_u32 s74, s74, s75
s_lshl_b32 s75, s3, 7
s_add_u32 s75, s75, {LO}
""")
def issA():
    a("v_and_b32 v20, 60, v21\nbuffer_load_dword v20, v20, s[16:19], s74 offen sc1")
    for s in range(16):
        a(f"buffer_load_dword v{4+s}, v21, s[16:19], s{70+(s>>2)} offen offset:{(s&3)*1024} sc1")
TGT = 16 * 0xffff - 1
if cfg.hint >= 0:
    a(f"""s_cmp_lg_u32 s63, 0
    s_cbranch_scc1 L_ch1_sa
    s_lshl_b32 s76, s4, 7
    s_add_u32 s76, s76, s61
    s_add_u32 s76, s76, {0x8008}
    v_mov_b32 v4, 0
    s_mov_b32 s68, 0
    L_ch1_wa:
    buffer_load_dword v5, v4, s[16:19], s76 offen sc1
    s_waitcnt vmcnt(0)
    v_cmp_gt_i32 vcc, {TGT}, v5
    s_cbranch_vccz L_ch1_pa
    s_sleep {cfg.sh}
    s_add_u32 s68, s68, 1
    s_cmp_lt_u32 s68, {cfg.spin}
    s_cbranch_scc1 L_ch1_wa
    s_branch L_ch1_pa
    L_ch1_sa:
    s_sleep {cfg.s0['A']}
    L_ch1_pa:""")
    poll(issA, lambda: check_sentinel(range(4, 21), 22), s0=cfg.sA2)
else:
    poll(issA, lambda: check_sentinel(range(4, 21), 22), s0=cfg.s0["A"])
stamp("c.A", 1); stamp("f.A", 2)
a(f"v_max_f32_dpp v22, v20, v20 {CTL4[0]} {DPPALL}")
for c in CTL4[1:]: a(f"v_max_f32_dpp v22, v22, v22 {c} {DPPALL}")
a("v_sub_f32 v20, v20, v22\nv_exp_f32 v20, v20")
a(f"v_mul_f32_dpp v21, v20, v4 row_newbcast:0 {DPPALL}\nv_add_f32_dpp v22, v20, v20 {CTL4[0]} {DPPALL}")
for s in range(1, 16):
    a(f"v_fmac_f32_dpp v21, v20, v{4+s} row_newbcast:{s} {DPPALL}")
    if s in (2, 4, 6): a(f"v_add_f32_dpp v22, v22, v22 {CTL4[s//2]} {DPPALL}")
    if s == 4: a(f"ds_read_b64_tr_b16 v[4:5], v23 offset:{(32*7)*128}\nds_read_b64_tr_b16 v[6:7], v23 offset:{(32*7+4)*128}")
    if s == 8: a("v_rcp_f32 v22, v22")
    if s == 9: a("v_lshl_add_u32 v23, v0, 1, s75")
a(f"""
v_mul_f32 v21, v21, v22
v_cvt_pk_bf16_f32 v21, v21, v21
ds_write_b16 v23, v21
v_and_b32 v0, 48, v0
v_add_u32 v0, {LO}, v0
s_lshl_b32 s70, s7, 8
s_add_u32 s70, s70, s60
s_lshl_b32 s71, s3, 6
s_add_u32 s74, s70, s71
s_mul_i32 s70, s3, 9216
s_add_u32 s70, s70, s60
s_add_u32 s71, s70, 2304
s_add_u32 s72, s70, 4608
s_add_u32 s73, s70, 6912
s_waitcnt lgkmcnt(0)
s_barrier
""")
order = [7, 0, 1, 2, 3, 4, 5, 6]
def frag(ks): return "v[4:7]" if ks == 7 else R4(24 + 4*ks)
bufs = ["v[8:11]", "v[12:15]", "v[16:19]"]
for n in range(3): a(f"ds_read_b128 {bufs[n]}, v0 offset:{order[n]*64}")
for n, ks in enumerate(order):
    a(f"s_waitcnt lgkmcnt({len(bufs) - 1 - n})")
    a(f"v_mfma_f32_16x16x32_bf16 v[20:23], {bufs[n]}, {frag(ks)}, {'0' if n == 0 else 'v[20:23]'}")
    for fr in (frag(ks), bufs[n]):
        if len(bufs) < 8:
            a(f"ds_read_b128 {fr}, v0 offset:{order[len(bufs)]*64}"); bufs.append(fr)
a(f"""
v_lshrrev_b32 v0, 4, v2
v_lshlrev_b32 v49, 2, v0
s_mul_i32 s75, s3, 2304
s_add_u32 s75, s75, {LX}
v_add_u32 v51, s75, v2
s_mov_b64 exec, 0xffff
buffer_store_dword v20, v49, s[16:19], s74 offen sc1
s_mov_b64 exec, -1
""")
stamp("c.wo", 1)
a("s_cmp_eq_u32 s63, 2\ns_cbranch_scc1 L_ch1_ret")
a.label("L_ch1_b")
ln(False)
def issB():
    for r in range(4):
        a(f"buffer_load_dwordx4 {R4(4+8*r)}, v2, s[16:19], s{70+r} offen sc1")
        a(f"buffer_load_dwordx4 {R4(8+8*r)}, v2, s[16:19], s{70+r} offen offset:1024 sc1")
        a(f"buffer_load_dword v{36+r}, v49, s[16:19], s{70+r} offen offset:2048 sc1")
def chkB():
    for i in range(4): a(f"v_pk_add_f32 {R2(40+2*i)}, {R2(4+2*i)}, {R2(12+2*i)}")
    a("v_add_f32 v48, v36, v37")
    for r in (2, 3):
        for i in range(4): a(f"v_pk_add_f32 {R2(40+2*i)}, {R2(40+2*i)}, {R2(4+8*r+2*i)}")
        a(f"v_add_f32 v48, v48, v{36+r}")
    a("v_add_u32 v50, s75, v49\nds_write_b128 v51, v[40:43]\nds_write_b128 v51, v[44:47] offset:1024\nds_write_b32 v50, v48 offset:2048")
    check_sentinel(range(4, 40), 50)
if cfg.hint >= 0:
    a(f"""s_cmp_lg_u32 s63, 0
    s_cbranch_scc1 L_ch1_sb
    s_add_u32 s76, s61, {0x8008}
    v_and_b32 v4, 15, v0
    v_lshlrev_b32 v4, 7, v4
    buffer_load_dword v5, v4, s[16:19], s76 offen sc1
    s_waitcnt vmcnt(0)
    v_cmp_gt_i32 vcc, {TGT}, v5
    s_cbranch_vccz L_ch1_pb
    s_mov_b32 s68, 0
    L_ch1_wb:
    s_sleep {cfg.sh}
    buffer_load_dword v5, v4, s[16:19], s76 offen sc1
    s_waitcnt vmcnt(0)
    v_cmp_gt_i32 vcc, {TGT}, v5
    s_cbranch_vccz L_ch1_wb2
    s_add_u32 s68, s68, 1
    s_cmp_lt_u32 s68, {cfg.spin}
    s_cbranch_scc1 L_ch1_wb
    L_ch1_wb2:
    s_sleep {cfg.sB2}
    s_branch L_ch1_pb
    L_ch1_sb:
    s_sleep {cfg.s0['B']}
    L_ch1_pb:""")
    poll(issB, chkB)
else:
    poll(issB, chkB, s0=cfg.s0["B"])
stamp("c.B", 1); stamp("f.B", 2)
a(f"""
v_add_u32 v14, s64, v2
v_add_u32 v15, s64, v49
ds_read_b128 v[4:7], v14
ds_read_b128 v[8:11], v14 offset:1024
ds_read_b32 v12, v15 offset:2048
v_add_u32 v14, {LX}, v2
v_add_u32 v15, {LX+2048}, v49
s_waitcnt lgkmcnt(3)
s_barrier
""")
for r in range(4):
    a(f"ds_read_b128 {R4(16+8*r)}, v14 offset:{r*2304}\nds_read_b128 {R4(20+8*r)}, v14 offset:{r*2304+1024}")
    if r == 0: a("ds_read2st64_b32 v[48:49], v15 offset0:0 offset1:9\nds_read2st64_b32 v[50:51], v15 offset0:18 offset1:27")
a(f"""
v_lshlrev_b32 v13, 3, v0
v_add_u32 v13, {LLN}, v13
v_lshlrev_b32 v14, 1, v0
v_add_u32 v14, {LLN+1024}, v14
v_and_b32 v15, 3, v0
s_lshl_b32 s70, s7, 3
s_add_u32 s70, s70, {LLN}
v_lshl_add_u32 v15, v15, 1, s70
s_lshl_b32 s70, s3, 8
s_add_u32 s70, s70, s56
""")
for r in range(4):
    a(f"s_waitcnt lgkmcnt({6 - 2*r})")
    for i in range(4): a(f"v_pk_add_f32 {R2(4+2*i)}, {R2(4+2*i)}, {R2(16+8*r+2*i)}")
    a(f"v_add_f32 v12, v12, v{48+r}")
a("""v_cvt_pk_bf16_f32 v16, v4, v5
v_cvt_pk_bf16_f32 v17, v6, v7
v_cvt_pk_bf16_f32 v18, v8, v9
v_cvt_pk_bf16_f32 v19, v10, v11
v_cvt_pk_bf16_f32 v20, v12, 0
ds_write_b64 v13, v[16:17]
ds_write_b64 v13, v[18:19] offset:512
ds_write_b16 v14, v20
ds_read_u16 v27, v15
v_lshl_add_u32 v26, v0, 2, s70""")
fill = [f"ds_read2st64_b32 {R2(28+2*i)}, v26 offset0:{4*i} offset1:{36+4*i}" for i in range(8)]
fill += [f"ds_read2st64_b32 {R2(44+2*i)}, v26 offset0:{72+8*i} offset1:{76+8*i}" for i in range(4)]
fill = [fill[0], fill[8]] + fill[1:8] + fill[9:]
stats([16, 17, 18, 19, 20], 4, 5, fill)
ln_scalars(4, 5, 6, 7, 8)
a("s_waitcnt lgkmcnt(12)\nv_lshlrev_b32 v27, 16, v27\nv_sub_f32 v9, v27, v6\nv_sub_f32 v4, v4, v6\nv_mul_f32 v5, v5, v7\nv_mul_f32 v4, v4, v7\nv_mul_f32 v5, v5, v7")
rbf(9, 10); a("v_mul_f32 v9, v9, v7"); rbf(9, 10)
ln_scalars(4, 5, 6, 7, 8)
a("v_sub_f32 v9, v9, v6"); rbf(9, 10); a("v_mul_f32 v9, v9, v7"); rbf(9, 10)
a("v_mov_b32 v25, v26")
for e in range(4): a(f"v_readlane_b32 s{70+2*e}, v9, {60+e}")
stamp("c.ln", 1)
ln(False)
a(f"v_mov_b32 v26, {f32(C1)}\ns_mov_b32 s66, {f32(C2)}\ns_waitcnt lgkmcnt(0)")
for i in range(9):
    w1, b1, w2 = (28+2*i, 29+2*i, 44+i) if i < 8 else (28, 29, 44)
    if i == 8: a("s_waitcnt lgkmcnt(0)")
    for j, r in enumerate((w1, b1, w2)):
        a(f"v_lshlrev_b32 v{12+2*j}, 16, v{r}\nv_and_b32 v{13+2*j}, 0xffff0000, v{r}")
    if i == 0: a("ds_read2st64_b32 v[28:29], v25 offset0:32 offset1:68\nds_read_b32 v44, v25 offset:26624")
    for e0 in (0, 2):
        U = (18, 22); T = (20, 24); E = (e0, e0 + 1)
        for k in range(2): a(f"v_pk_fma_f32 {R2(U[k])}, v[12:13], s[{70+2*E[k]}:{71+2*E[k]}], v[14:15] op_sel_hi:[1,0,1]")
        for k in range(2): a(f"v_pk_mul_f32 {R2(T[k])}, {R2(U[k])}, {R2(U[k])}")
        for k in range(2): a(f"v_pk_fma_f32 {R2(T[k])}, {R2(T[k])}, s[66:67], v[26:27] op_sel_hi:[1,0,0]")
        for k in range(2): a(f"v_pk_mul_f32 {R2(T[k])}, {R2(U[k])}, {R2(T[k])}")
        for k in range(2): a(f"v_exp_f32 v{T[k]}, v{T[k]}\nv_exp_f32 v{T[k]+1}, v{T[k]+1}")
        for k in range(2): a(f"v_pk_mul_f32 {R2(U[k])}, {R2(U[k])}, v[16:17]")
        for k in range(2): a(f"v_pk_add_f32 {R2(T[k])}, {R2(T[k])}, 1.0 op_sel_hi:[1,0]")
        for k in range(2): a(f"v_rcp_f32 v{T[k]}, v{T[k]}\nv_rcp_f32 v{T[k]+1}, v{T[k]+1}")
        for k in range(2):
            acc = R2(4 + 2*E[k])
            a(f"v_pk_mul_f32 {acc}, {R2(U[k])}, {R2(T[k])}" if i == 0 else f"v_pk_fma_f32 {acc}, {R2(U[k])}, {R2(T[k])}, {acc}")
stamp("c.mix", 1); stamp("f.mix", 2)
for e in range(4): a(f"v_add_f32 v{4+2*e}, v{4+2*e}, v{5+2*e}")
a(f"""v_lshrrev_b32 v12, 4, v0
v_lshlrev_b32 v12, 2, v12
s_lshl_b32 s66, s3, 4
s_add_u32 s66, s66, {LRED}
v_add_u32 v12, s66, v12""")
row16_reduce("v_add_f32", [4, 6, 8, 10])
a(f"""
ds_write2_b32 v12, v4, v6 offset0:0 offset1:16
ds_write2_b32 v12, v8, v10 offset0:32 offset1:48
v_and_b32 v13, 3, v0
v_lshlrev_b32 v12, 6, v13
v_add_u32 v12, {LRED}, v12
s_mov_b32 s20, s52
s_mov_b32 s21, s53
s_mov_b32 s22, 2304
s_lshl_b32 s66, s7, 4
s_lshr_b32 s66, s66, s63
s_add_u32 s66, s66, s61
v_lshlrev_b32 v13, 2, v13
v_lshrrev_b32 v13, s63, v13
s_cmp_lg_u32 s3, 0
s_waitcnt lgkmcnt(0)
s_barrier
s_cbranch_scc1 L_ch1_ret
ds_read_b128 v[16:19], v12
ds_read_b128 v[20:23], v12 offset:16
ds_read_b128 v[28:31], v12 offset:32
ds_read_b128 v[32:35], v12 offset:48
s_cmp_eq_u32 s63, 1
s_mov_b64 exec, 15
s_waitcnt lgkmcnt(2)
v_pk_add_f32 v[16:17], v[16:17], v[18:19]
v_pk_add_f32 v[20:21], v[20:21], v[22:23]
s_waitcnt lgkmcnt(0)
v_pk_add_f32 v[28:29], v[28:29], v[30:31]
v_pk_add_f32 v[32:33], v[32:33], v[34:35]
v_pk_add_f32 v[16:17], v[16:17], v[20:21]
v_pk_add_f32 v[28:29], v[28:29], v[32:33]
v_pk_add_f32 v[16:17], v[16:17], v[28:29]
v_add_f32 v16, v16, v17
""")
rbf(16, 17); a("v_add_f32 v16, s78, v16"); rbf(16, 17); a("v_add_f32 v16, v16, v27"); rbf(16, 17)
a(f"""
s_cbranch_scc1 L_ch1_fin
buffer_store_dword v16, v13, s[16:19], s66 offen sc1
s_branch L_ch1_done
L_ch1_fin:
buffer_store_short v17, v13, s[20:23], s66 offen
L_ch1_done:
s_mov_b64 exec, -1
L_ch1_ret:
""")
ret()

a.hist = []
a.label("SUB_CH1B")
a(f"""s_mul_i32 s70, s3, 9216
s_add_u32 s70, s70, s60
s_add_u32 s71, s70, 2304
s_add_u32 s72, s70, 4608
s_add_u32 s73, s70, 6912
v_lshlrev_b32 v49, 2, v0
s_mul_i32 s75, s3, 2304
s_add_u32 s75, s75, {LX}
v_add_u32 v51, s75, v2
s_barrier
s_branch L_ch1_b""")

a.hist = []
a.label("SUB_CH2")
a(f"""
v_lshrrev_b32 v13, 4, v0
v_bfe_u32 v14, v0, 2, 2
v_lshl_add_u32 v15, v13, 3, v14
v_lshlrev_b32 v15, 9, v15
v_bfe_u32 v13, v0, 2, 3
s_lshl_b32 s70, s3, 2
v_xor_b32 v13, s70, v13
v_lshl_add_u32 v15, v13, 5, v15
v_and_b32 v13, 3, v0
v_lshl_add_u32 v15, v13, 3, v15
v_add_u32 v15, {LWQ}, v15
v_xor_b32 v16, 32, v15
v_xor_b32 v17, 64, v15
v_xor_b32 v18, 96, v15
""")
for cbk in range(4):
    for ks in range(2):
        for jh in range(2):
            a(f"ds_read_b64_tr_b16 {R2(20 + 8*cbk + 4*ks + 2*jh)}, v{15+cbk} offset:{(32*ks+4*jh)*512}")
a(f"""
v_lshlrev_b32 v19, 2, v0
v_add_u32 v15, s64, v2
v_add_u32 v16, s64, v19
s_lshl_b32 s72, s5, 8
s_lshl_b32 s74, s7, 10
s_add_u32 s74, s74, s62
s_lshl_b32 s71, s3, 8
s_add_u32 s74, s74, s71
s_cmp_eq_u32 s63, 1
s_cbranch_scc0 L_ch2_g
v_add_u32 v17, s72, v16
ds_read_b128 v[4:7], v15
ds_read_b128 v[8:11], v15 offset:1024
ds_read_b32 v12, v16 offset:2048
ds_read_b32 v13, v17
s_waitcnt lgkmcnt(0)
s_branch L_ch2_x
L_ch2_g:
s_add_u32 s72, s72, s61
s_lshl_b32 s73, s4, 7
s_add_u32 s73, s73, s61
s_add_u32 s73, s73, 0x8000
""")
def issC():
    a("""buffer_load_dwordx4 v[4:7], v2, s[16:19], s61 offen sc1
    buffer_load_dwordx4 v[8:11], v2, s[16:19], s61 offen offset:1024 sc1
    buffer_load_dword v12, v19, s[16:19], s61 offen offset:2048 sc1
    buffer_load_dword v13, v19, s[16:19], s72 offen sc1""")
poll(issC, lambda: check_sentinel(range(4, 14), 14), s0=cfg.s0["C"])
stamp("c.C", 1)
a("""s_or_b32 s70, s5, s3
s_cbranch_scc1 L_ch2_nh
s_mov_b64 exec, 1
buffer_store_dword v19, v19, s[16:19], s73 offen sc1
s_mov_b64 exec, -1
L_ch2_nh:
ds_write_b128 v15, v[4:7]
ds_write_b128 v15, v[8:11] offset:1024
ds_write_b32 v16, v12 offset:2048
L_ch2_x:
v_cvt_pk_bf16_f32 v14, v4, v5
v_cvt_pk_bf16_f32 v15, v6, v7
v_cvt_pk_bf16_f32 v16, v8, v9
v_cvt_pk_bf16_f32 v17, v10, v11
v_cvt_pk_bf16_f32 v18, v12, 0""")
stats([14, 15, 16, 17, 18], 4, 5, ["v_lshlrev_b32 v9, 1, v0", f"v_add_u32 v9, {LRED}, v9", "v_and_b32 v12, 48, v0", f"v_add_u32 v12, {LRED}, v12"])
ln_scalars(4, 5, 6, 7, 8)
a("v_readlane_b32 s70, v6, 63\nv_readlane_b32 s71, v7, 63\nv_subrev_f32 v13, s70, v13")
rbf(13, 8)
a("""v_mul_f32 v13, s71, v13
v_cvt_pk_bf16_f32 v13, v13, v13
ds_write_b16 v9, v13
ds_read_b128 v[4:7], v12
ds_read_b128 v[8:11], v12 offset:64
s_waitcnt lgkmcnt(0)""")
accs = [12, 20, 28, 36]
for cbk in range(4):
    d = accs[cbk]; f = 20 + 8 * cbk
    a(f"v_mfma_f32_16x16x32_bf16 {R4(d)}, v[4:7], {R4(f)}, 0")
    a(f"v_mfma_f32_16x16x32_bf16 {R4(d)}, v[8:11], {R4(f+4)}, {R4(d)}")
for cbk in range(1, 4):
    a(f"v_mov_b32_dpp v12, v{accs[cbk]} quad_perm:[0,1,2,3] row_mask:{1<<cbk:#x} bank_mask:0xf")
a("buffer_store_dword v12, v19, s[16:19], s74 offen sc1")
stamp("c.wq", 1)
ret()

if cfg.roles:
    a.hist = []
    a.label("SUB_RING")
    vts = list(range(NL, cfg.j0)) + list(range(NL))
    NT = 64 + len(vts)
    slot = lambda n: (n - (NT - NL)) % NS
    lastso = [None]
    def rload(n):
        if n >= NT: return
        if n < 64:
            so, imm, va, srd = ("k", (n >> 3) * 8192), ((n >> 1) & 3) * 256 + (n & 1) * 128, "v1", "s[8:11]"
        else:
            vt = vts[n - 64]
            so, imm, va, srd = ("v", (vt >> 2) * 4096), (vt & 3) * 1024, "v2", "s[12:15]"
        if so != lastso[0]:
            a(f"s_add_u32 s28, s27, {so[1]}"); lastso[0] = so
        a(f"s_add_u32 m0, s57, {slot(n)*1024 - imm}")
        a(f"buffer_load_dwordx4 {va}, {srd}, s28 offen offset:{imm}{'' if n < cfg.l2n else ' nt'} lds")
    for n in range(16): rload(n)
    att_pre(zero=False)
    a("ds_read_b128 v[4:7], v12\nds_read_b128 v[8:11], v12 offset:128\nv_add_u32 v48, s57, v2")
    KT = [34, 38, 42]
    for n in range(66):
        if n < 64:
            rload(n + 16)
            a(f"s_waitcnt vmcnt(16)\nds_read_b128 {R4(KT[n%3])}, v48 offset:{slot(n)*1024}")
        if n >= 2:
            kt = n - 2
            a(f"s_waitcnt lgkmcnt({min(63, n) - kt})")
            kmm(kt, R4(KT[kt % 3]))
            if kt & 1 and (kt >> 1) >= 2: adds((kt >> 1) - 2)
    adds(30); adds(31)
    softmax()
    for i in range(8): a(f"v_mov_b32 v{34+i}, 0")
    a("v_add_u32 v33, s57, v2")
    curG[0] = None
    NV = len(vts)
    for m in range(NV + 2):
        if m < NV:
            n = 64 + m
            rload(n + 16)
            a(f"s_waitcnt vmcnt({min(16, NT - 1 - n)})\nds_read_b128 {R4(12 + 4*(m%3))}, v33 offset:{slot(n)*1024}")
        if 1 <= m <= NV: build(vts[m - 1], (m - 1) & 1)
        if m >= 2:
            j = m - 2
            a(f"s_waitcnt lgkmcnt({min(NV - 1, m) - j})")
            vmm(R4(12 + 4*(j%3)), j & 1, j == 0)
    if cfg.j0 == 64:
        a("s_branch L_att_epi")
    else:
        a(f"""v_mov_b32 v47, v51
        ds_write_b128 v33, v[24:27] offset:{13*1024}
        ds_write_b128 v33, v[28:31] offset:{14*1024}
        ds_write_b64 v33, v[46:47] offset:{16*1024}
        ds_write_b128 v33, v[42:45] offset:{15*1024}
        s_waitcnt lgkmcnt(0)""")
        ret()
        a.hist = []
        a.label("SUB_RESUME")
        a(f"s_mov_b32 s82, {8 + cfg.j0//8}\ns_call_b64 s[80:81], SUB_LN\ns_call_b64 s[80:81], SUB_LN")
        att_pre()
        a(f"""v_add_u32 v33, s57, v2
        ds_read_b128 v[24:27], v33 offset:{13*1024}
        ds_read_b128 v[28:31], v33 offset:{14*1024}
        ds_read_b128 v[42:45], v33 offset:{15*1024}
        ds_read_b64 v[50:51], v33 offset:{16*1024}
        s_mov_b64 vcc, -1
        s_waitcnt lgkmcnt(0)
        v_mov_b32 v46, v50""")
        curG[0] = None
        build(cfg.j0, cfg.j0 & 1)
        a.flush()
        a("s_branch L_att_resume")

for Lo, Lb, wait, depth in tramps:
    a.hist = []
    a.label(Lo)
    for d in range(1, depth + 1):
        a("s_call_b64 s[80:81], SUB_LN")
        L2 = a.newlabel("Lt2")
        if d < depth: a(f"s_cmp_lt_u32 s82, 16\ns_cbranch_scc1 {L2}")
        if wait: a(f"s_waitcnt vmcnt({8*d})")
        a(f"s_branch {Lb}")
        if d < depth: a.label(L2)
for Rr, L, D, sl in retries:
    a.hist = []
    a.label(Rr)
    a(f"s_sleep {sl}\ns_add_u32 s68, s68, 1\ns_cmp_lt_u32 s68, {cfg.spin}\ns_cbranch_scc1 {L}\ns_branch {D}")
if cfg.stamps:
    n = len(stamp_names)
    a.hist = []
    a.label("L_stamps")
    if cfg.dbg:
        sel = ["start", "start", "q1", "P1b0", "wq0", "s.ring", "P2b0", "s.P1b1", "s.fin0", "P1b1", "c.B", "c.wq", "s.rel", "s.end", "f.B", "end"]
        a("v_mov_b32 v6, 0")
        a(f"s_not_b32 s70, s{POOL[0]}\nv_writelane_b32 v6, s70, 0")
        for i, nm in enumerate(sel):
            if i and nm in stamp_names: a(f"v_writelane_b32 v6, s{POOL[stamp_names.index(nm)]}, {i}")
        a("v_lshrrev_b32 v4, 2, v2\ns_mov_b64 exec, 0xffff\nglobal_atomic_umax v4, v6, s[54:55] sc1\ns_branch L_fin")
    a(f"""s_lshl_b32 s70, s2, 2
    s_add_u32 s70, s70, s3
    s_mul_i32 s70, s70, {8*n}
    s_add_u32 s70, s70, {STAMP}
    v_mov_b32 v4, 0
    v_mov_b32 v7, 0
    s_mov_b64 exec, 1""")
    for i in range(n):
        a(f"v_mov_b32 v6, s{POOL[i]}\nbuffer_store_dwordx2 v[6:7], v4, s[16:19], s70 offen offset:{8*i}\ns_nop 1")
    a("s_branch L_fin")
    open(sys.argv[1] + ".names", "w").write(" ".join(stamp_names))
    print("nstamps", n, file=sys.stderr)
hdr = open("cdna_kernels/" + NAME + ".s.ref").read().split("; Override launch")[0]
out = hdr + f"; @launch grid=(256,1,1) block=(256,1,1) lds={LDS_TOTAL}\n"
out += f""".amdgcn_target "amdgcn-amd-amdhsa--gfx950"
.text
.globl {NAME}_kernel
.p2align 8
.type {NAME}_kernel,@function
{NAME}_kernel:
""" + a.text() + f""".section .rodata,"a"
.p2align 6
.amdhsa_kernel {NAME}_kernel
  .amdhsa_next_free_vgpr 512
  .amdhsa_next_free_sgpr 102
  .amdhsa_accum_offset 256
  .amdhsa_group_segment_fixed_size 0
  .amdhsa_kernarg_size 104
  .amdhsa_user_sgpr_count 2
  .amdhsa_user_sgpr_kernarg_segment_ptr 1
  .amdhsa_system_sgpr_workgroup_id_x 1
.end_amdhsa_kernel
"""
open(sys.argv[1], "w").write(out)
print("nops added", a.nops_added, "lines", len(a.lines), file=sys.stderr)
```

```python
import sys, struct, math
sys.path.insert(0, "gen")
from asmlib import *

NAME = "interleave_layers__gqa_block_cached__mixer_token_mlp__decode"
def f32(x): return "0x%08x" % struct.unpack("<I", struct.pack("<f", x))[0]

class Cfg:
    stamps = 0
    spin = 20000
    s0 = dict(A=20, B=16, C=24, D=12)
    s1 = 2
    sh = 2
    sg = 8
    go = 24
    roles = 1
    latew = 0
    vsites = 1
    l2n = 128
    dbg = 0
    n0 = 16
    n1 = 5
    thr = -1
    hint = -1
    relfirst = 0
    ksites = 1
    pf0 = 8
    nogo = 1
    xthr = 0
    thrm = -1
    sA2 = 0
    sB2 = 32
    aw = 0
    d0 = 1
    thrall = 0
    thr3 = 0
    go0 = -1
    j0 = 48
    fa = 3
    dw = 2
    pre = 8
    d1 = 3
    d2 = 2
    d3 = 3
    d4 = 3
cfg = Cfg()
for arg in sys.argv[2:]:
    k, v = arg.split("=")
    if k.startswith("s0"): cfg.s0[k[2]] = int(v)
    else: setattr(cfg, k, int(v))

W = 52; NL = 13; NS = 20
LV = 0; LWO = 53248; LWQ = 86016; LMX = 118784; LXB = 146432; LX = 151040; LQ = 160256; LLN = 162304; LRED = 163456
LO = LX + 8448
LDS_TOTAL = 163840
A_O = lambda i: i * 0x40000
A_L = lambda i: 0x100000 + i * 0x1000
B_A = lambda i: 0x110000 + i * 0x10000
C_A = lambda i: 0x150000 + i * 0x1000
H_A = lambda i: 0x158000 + i * 0x1000
D_A = lambda i: 0x160000 + i * 0x40000
STAMP = 0x10000000
CSM = math.log2(math.e) / math.sqrt(128.0)
C1 = -2.0 * math.sqrt(2.0 / math.pi) * math.log2(math.e)
C2 = C1 * 0.044715
DPPALL = "row_mask:0xf bank_mask:0xf"
CTL4 = ["quad_perm:[1,0,3,2]", "quad_perm:[2,3,0,1]", "row_half_mirror", "row_mirror"]

a = Asm()
POOL = list(range(83, 100)) + list(range(32, 40)) + [43, 50, 51]
stamp_names = []
def stamp(name, cond=None):
    if not cfg.stamps: return
    if name in stamp_names: r = POOL[stamp_names.index(name)]
    else:
        r = POOL[len(stamp_names)]; stamp_names.append(name)
    a("s_memrealtime s[100:101]\ns_waitcnt lgkmcnt(0)")
    if cond is None: a(f"s_mov_b32 s{r}, s100")
    else: a(f"s_cmp_eq_u32 s79, {cond}\ns_cselect_b32 s{r}, s100, s{r}")

def khome(kt): return f"a[{4*kt}:{4*kt+3}]"
def vhome(vt):
    r = W + 4 * (vt - NL); return f"v[{r}:{r+3}]"
def R4(r): return f"v[{r}:{r+3}]"
def R2(r): return f"v[{r}:{r+1}]"

def load_k(kts):
    lastG = None
    for kt in kts:
        G, t, half = kt >> 3, (kt >> 1) & 3, kt & 1
        if G != lastG:
            a(f"s_add_u32 s28, s27, {G*8192}"); lastG = G
        a(f"buffer_load_dwordx4 {khome(kt)}, v1, s[8:11], s28 offen offset:{t*256+half*128} nt")
def load_v(vts):
    lastQ = None
    for vt in vts:
        Q = vt >> 2
        if Q != lastQ:
            a(f"s_add_u32 s28, s27, {Q*4096}")
            if vt < NL: a(f"s_add_u32 m0, s29, {Q*4096}")
            lastQ = Q
        if vt < NL:
            a(f"buffer_load_dwordx4 v2, s[12:15], s28 offen offset:{(vt&3)*1024} nt lds")
        else:
            a(f"buffer_load_dwordx4 {vhome(vt)}, v2, s[12:15], s28 offen offset:{(vt&3)*1024} nt")

def rbf(v, t):
    a(f"v_cvt_pk_bf16_f32 v{t}, v{v}, v{v}\nv_lshlrev_b32 v{v}, 16, v{t}")
def rows_reduce(op, v, t):
    a(f"v_mov_b32 v{t}, v{v}\nv_permlane16_swap_b32 v{v}, v{t}\n{op} v{v}, v{v}, v{t}")
    a(f"v_mov_b32 v{t}, v{v}\nv_permlane32_swap_b32 v{v}, v{t}\n{op} v{v}, v{v}, v{t}")
def row16_reduce(op, vs):
    for ctl in CTL4:
        for v in vs: a(f"{op}_dpp v{v}, v{v}, v{v} {ctl} {DPPALL}")
def sum_to_row3(vs, fillers=()):
    fillers = list(fillers)
    steps = [f"{c} {DPPALL}" for c in CTL4] + ["row_bcast:15 row_mask:0xa bank_mask:0xf", "row_bcast:31 row_mask:0xc bank_mask:0xf"]
    per = (len(fillers) + 5) // 6
    for st in steps:
        for _ in range(per):
            if fillers: a(fillers.pop(0))
        for v in vs: a(f"v_add_f32_dpp v{v}, v{v}, v{v} {st}")
def stats(P, s1, s2, fillers=()):
    for i, p in enumerate(P):
        a(f"v_dot2_f32_bf16 v{s1}, v{p}, s67, {'0' if i == 0 else 'v%d' % s1}")
        a(f"v_dot2_f32_bf16 v{s2}, v{p}, v{p}, {'0' if i == 0 else 'v%d' % s2}")
    sum_to_row3([s1, s2], fillers)
    a(f"v_mul_f32 v{s1}, {f32(1.0/576)}, v{s1}\nv_mul_f32 v{s2}, {f32(1.0/576)}, v{s2}\nv_fma_f32 v{s2}, -v{s1}, v{s1}, v{s2}\nv_max_f32 v{s2}, 0, v{s2}")
def ln_scalars(m, q, mb, r, t):
    a(f"v_cvt_pk_bf16_f32 v{t}, v{m}, v{q}\nv_and_b32 v{r}, 0xffff0000, v{t}\nv_lshlrev_b32 v{mb}, 16, v{t}\nv_add_f32 v{r}, {f32(1e-5)}, v{r}")
    rbf(r, t); a(f"v_sqrt_f32 v{r}, v{r}"); rbf(r, t); a(f"v_rcp_f32 v{r}, v{r}")

def check_sentinel(regs, t):
    regs = list(regs)
    if len(regs) % 2 == 0:
        a(f"v_max_u32 v{t}, v{regs[0]}, v{regs[1]}"); regs = regs[2:]
    else:
        a(f"v_max3_u32 v{t}, v{regs[0]}, v{regs[1]}, v{regs[2]}"); regs = regs[3:]
    for i in range(0, len(regs), 2):
        a(f"v_max3_u32 v{t}, v{t}, v{regs[i]}, v{regs[i+1]}")
    a(f"v_cmp_eq_u32 vcc, -1, v{t}")

tramps = []
def ln(wait, depth=None):
    Lo = a.newlabel("Lt"); Lb = a.newlabel("Ltb")
    a(f"s_cmp_lt_u32 s82, 16\ns_cbranch_scc1 {Lo}")
    if wait: a("s_waitcnt vmcnt(0)")
    a.label(Lb)
    tramps.append((Lo, Lb, wait, depth or (cfg.dw if wait else 1)))
retries = []
def poll(issue, check, s0=0, depth=None):
    L = a.newlabel("Lpoll"); D = a.newlabel("Lpd"); Rr = a.newlabel("Lpr")
    a("s_mov_b32 s68, 0")
    if s0: a(f"s_sleep {s0}")
    a.label(L)
    issue(); ln(True, depth)
    check()
    a(f"s_cbranch_vccnz {Rr}")
    a.label(D)
    retries.append((Rr, L, D, cfg.s1))
def ln_until(n):
    L = a.newlabel("Lrest"); D = a.newlabel("Lrd")
    a.label(L); a(f"s_cmp_ge_u32 s82, {n}\ns_cbranch_scc1 {D}\ns_call_b64 s[80:81], SUB_LN\ns_branch {L}"); a.label(D)
def call(lbl):
    a.flush(); a(f"s_call_b64 s[30:31], {lbl}")
def ret():
    a.flush(); a("s_setpc_b64 s[30:31]")
def flagwait(inst, sl, off=0, count=0):
    a(f"s_lshl_b32 s70, s4, 7\ns_add_u32 s70, s70, {H_A(inst)+off}\nv_mov_b32 v4, 0")
    L = a.newlabel("Lh"); D = a.newlabel("Lhd")
    a(f"s_mov_b32 s68, 0\ns_cmp_lg_u32 s3, 0\ns_cbranch_scc1 {D}")
    a.label(L)
    a(f"buffer_load_dword v5, v4, s[16:19], s70 offen sc1\ns_waitcnt vmcnt(0)")
    a(f"v_cmp_gt_i32 vcc, {count*0xffff - 1}, v5" if count else "v_cmp_eq_u32 vcc, -1, v5")
    a(f"s_cbranch_vccz {D}")
    a(f"s_sleep {sl}\ns_add_u32 s68, s68, 1\ns_cmp_lt_u32 s68, {cfg.spin}\ns_cbranch_scc1 {L}")
    a.label(D)
    a("s_barrier")

def qg_issue(base, sb):
    for i in range(9):
        a(f"buffer_load_dword v{base+i}, v22, s[16:19], s{sb + (i>>2)} offen offset:{(i&3)*1024} sc1")
def qg_sum(base):
    b = base
    a(f"""v_add_f32 v{b}, v{b}, v{b+1}
    v_add_f32 v{b+2}, v{b+2}, v{b+3}
    v_add_f32 v{b+4}, v{b+4}, v{b+5}
    v_add_f32 v{b+6}, v{b+6}, v{b+7}
    v_add_f32 v{b}, v{b}, v{b+2}
    v_add_f32 v{b+4}, v{b+4}, v{b+6}
    v_add_f32 v{b}, v{b}, v{b+8}
    v_add_f32 v{b}, v{b}, v{b+4}
    v_cvt_pk_bf16_f32 v{b}, v{b}, v{b}""")

a(f"""
s_cmp_ge_u32 s2, 256
s_cbranch_scc1 L_end
s_load_dwordx16 s[32:47], s[0:1], 0
s_load_dwordx8 s[48:55], s[0:1], 64
s_load_dwordx2 s[56:57], s[0:1], 96
v_lshrrev_b32 v1, 6, v0
v_readfirstlane_b32 s3, v1
v_and_b32 v0, 63, v0
s_lshr_b32 s4, s2, 4
s_and_b32 s6, s2, 15
s_add_u32 s5, s6, s4
s_and_b32 s5, s5, 15
v_lshlrev_b32 v2, 4, v0
v_bfe_u32 v1, v0, 1, 3
v_lshlrev_b32 v1, 10, v1
v_lshrrev_b32 v3, 4, v0
v_lshl_add_u32 v1, v3, 5, v1
v_and_b32 v3, 1, v0
v_lshl_add_u32 v1, v3, 4, v1
s_lshl_b32 s27, s2, 18
s_lshl_b32 s28, s3, 16
s_add_u32 s27, s27, s28
s_mov_b32 s10, 0x8000000
s_mov_b32 s11, 0x20000
s_mov_b32 s14, 0x8000000
s_mov_b32 s15, 0x20000
s_mov_b32 s18, 0x20000000
s_mov_b32 s19, 0x20000
s_mov_b32 s23, 0x20000
s_waitcnt lgkmcnt(0)
s_mov_b32 s8, s34
s_mov_b32 s9, s35
""")
load_k(range(0, cfg.pre))
a(f"""
s_mov_b32 s12, s36
s_mov_b32 s13, s37
s_mov_b32 s16, s56
s_mov_b32 s17, s57
s_mov_b32 s82, {cfg.pre//8}
s_mov_b32 s79, 0
s_cmp_ge_u32 s5, 9
s_cselect_b32 s42, 1, {cfg.thrall}
""")
if cfg.xthr: a("s_getreg_b32 s42, hwreg(HW_REG_XCC_ID)\ns_andn2_b32 s42, 1, s42")
a(f"""
s_mov_b32 s24, 0xaaaaaaaa
s_mov_b32 s25, 0xaaaaaaaa
v_mov_b32 v3, 0xffff
v_mov_b32 v4, 0xffff0000
v_cndmask_b32 v3, v3, v4, s[24:25]
s_mov_b32 s26, {f32(CSM)}
s_mov_b32 s67, 0x3f803f80
s_mul_i32 s29, s3, {NL*1024}
""")
for r in POOL[:17]:
    if cfg.stamps: a(f"s_mov_b32 s{r}, 0")
stamp("start")
a(f"""
v_mov_b32 v4, -1
v_mov_b32 v5, -1
v_mov_b32 v6, -1
v_mov_b32 v7, -1
s_lshl_b32 s70, s3, 18
s_lshl_b32 s71, s2, 10
s_add_u32 s70, s70, s71
buffer_store_dwordx4 v[4:7], v2, s[16:19], s70 offen sc1
s_lshl_b32 s70, s3, 12
s_lshl_b32 s71, s4, 7
s_add_u32 s70, s70, s71
s_lshl_b32 s71, s6, 2
s_add_u32 s70, s70, s71
s_add_u32 s70, s70, {A_L(0)}
v_lshlrev_b32 v8, 6, v0
s_mov_b64 exec, 3
buffer_store_dword v4, v8, s[16:19], s70 offen sc1
s_mov_b64 exec, -1
v_mov_b32 v11, 0
global_load_ushort v23, v11, s[50:51]
s_mul_i32 s7, s4, 9
s_add_u32 s7, s7, s5
s_cmp_ge_u32 s5, 9
s_cbranch_scc1 L_pro_s1
v_lshlrev_b32 v8, 2, v0
s_lshl_b32 s70, s3, 16
s_lshl_b32 s71, s7, 8
s_add_u32 s70, s70, s71
s_add_u32 s70, s70, {B_A(0)}
buffer_store_dword v4, v8, s[16:19], s70 offen sc1
s_lshl_b32 s70, s3, 18
s_lshl_b32 s71, s7, 10
s_add_u32 s70, s70, s71
s_add_u32 s70, s70, {D_A(0)}
buffer_store_dwordx4 v[4:7], v2, s[16:19], s70 offen sc1
s_lshl_b32 s70, s3, 12
s_lshl_b32 s71, s7, 4
s_add_u32 s70, s70, s71
s_add_u32 s70, s70, {C_A(0)}
s_mov_b64 exec, 15
buffer_store_dword v4, v8, s[16:19], s70 offen sc1
s_lshl_b32 s70, s3, 12
s_lshl_b32 s71, s4, 7
s_add_u32 s70, s70, s71
s_add_u32 s70, s70, {H_A(0)}
buffer_store_dword v4, v8, s[16:19], s70 offen sc1
s_mov_b64 exec, -1
s_mov_b32 s20, s32
s_mov_b32 s21, s33
s_mov_b32 s22, 2304
v_lshlrev_b32 v9, 3, v0
v_lshlrev_b32 v10, 1, v0
buffer_load_dwordx2 v[12:13], v9, s[20:23], 0 offen
buffer_load_dwordx2 v[14:15], v9, s[20:23], 0 offen offset:512
buffer_load_ushort v16, v10, s[20:23], 0 offen offset:1024
buffer_load_dwordx2 v[18:19], v9, s[20:23], 0 offen offset:1152
buffer_load_dwordx2 v[20:21], v9, s[20:23], 0 offen offset:1664
buffer_load_ushort v22, v10, s[20:23], 0 offen offset:2176
s_mov_b32 s20, s38
s_mov_b32 s21, s39
s_mov_b32 s22, {576*8192}
v_lshrrev_b32 v24, 5, v0
v_and_b32 v25, 31, v0
v_lshlrev_b32 v25, 4, v25
v_lshlrev_b32 v26, 5, v24
v_xor_b32 v25, v25, v26
v_lshl_add_u32 v24, v24, 13, v25
v_xor_b32 v25, 64, v24
v_xor_b32 v26, 128, v24
v_xor_b32 v27, 192, v24
s_lshl_b32 s70, s5, 19
s_lshl_b32 s71, s3, 17
s_add_u32 s70, s70, s71
s_lshl_b32 s71, s4, 9
s_add_u32 s70, s70, s71
s_lshl_b32 s71, s3, 13
s_add_u32 s71, s71, {LWQ}
""")
for i in range(8):
    fs = ((i >> 2) & 1) * 2 + (i & 1)
    a(f"s_add_u32 m0, s71, {i*1024}\nbuffer_load_dwordx4 v{24+fs}, s[20:23], s70 offen nt lds")
    if i < 7: a("s_add_u32 s70, s70, 16384")
a.label("L_pro_s1")
ln(True, cfg.d1)
pass
a(f"""
v_lshlrev_b32 v23, 16, v23
v_readfirstlane_b32 s78, v23
s_mov_b32 s56, {LMX}
s_cmp_ge_u32 s5, 9
s_cbranch_scc1 L_pro_s2
v_add_u32 v24, {LXB}, v2
v_lshlrev_b32 v25, 2, v0
v_add_u32 v25, {LXB+2048}, v25
""")
for b in range(2):
    r = 12 + 6 * b
    a(f"""v_lshlrev_b32 v28, 16, v{r}
    v_and_b32 v29, 0xffff0000, v{r}
    v_lshlrev_b32 v30, 16, v{r+1}
    v_and_b32 v31, 0xffff0000, v{r+1}
    v_lshlrev_b32 v32, 16, v{r+2}
    v_and_b32 v33, 0xffff0000, v{r+2}
    v_lshlrev_b32 v34, 16, v{r+3}
    v_and_b32 v35, 0xffff0000, v{r+3}
    v_lshlrev_b32 v36, 16, v{r+4}
    ds_write_b128 v24, v[28:31] offset:{b*2304}
    ds_write_b128 v24, v[32:35] offset:{b*2304+1024}
    ds_write_b32 v25, v36 offset:{b*2304}
    s_waitcnt lgkmcnt(0)""")
a.label("L_pro_s2")
a(f"""
s_barrier
s_cmp_lg_u32 s3, {cfg.aw}
s_cbranch_scc1 L_pro_arr
v_mov_b32 v4, 0
v_mov_b32 v5, 1
s_mov_b64 exec, 1
global_atomic_add v6, v4, v5, s[54:55] offset:64 sc0 sc1
s_mov_b64 exec, -1
""")
ln(True, cfg.d0)
a(f"""v_readfirstlane_b32 s70, v6
s_cmp_lg_u32 s70, 255
s_cbranch_scc1 L_pro_arr
s_mov_b64 exec, 1
global_store_dword v4, v5, s[54:55] offset:128 sc1
s_mov_b64 exec, -1
L_pro_arr:
s_cmp_ge_u32 s5, 9
s_cbranch_scc1 L_pro_s3
""")
for b in range(2):
    a(f"s_mov_b32 s63, 1\ns_mov_b32 s64, {LXB + b*2304}\ns_mov_b32 s62, {D_A(b)}")
    call("SUB_CH2")
    if b == 0: a("s_barrier")
def load_wo():
    a(f"""
    s_mov_b32 s20, s40
    s_mov_b32 s21, s41
    s_mov_b32 s22, {4096*1152}
    v_lshrrev_b32 v24, 3, v0
    v_mul_u32_u24 v24, 1152, v24
    v_and_b32 v25, 7, v0
    v_lshlrev_b32 v25, 4, v25
    v_bfe_u32 v26, v0, 4, 1
    v_lshlrev_b32 v26, 5, v26
    v_xor_b32 v25, v25, v26
    v_xor_b32 v26, 64, v25
    v_add_u32 v25, v25, v24
    v_add_u32 v26, v26, v24
    s_lshl_b32 s70, s4, 2
    s_add_u32 s70, s70, s3
    s_mul_i32 s70, s70, {64*1152}
    s_lshl_b32 s71, s5, 7
    s_add_u32 s70, s70, s71
    s_lshl_b32 s71, s3, 13
    s_add_u32 s71, s71, {LWO}
    """)
    for i in range(8):
        a(f"s_add_u32 m0, s71, {i*1024}\nbuffer_load_dwordx4 v{25+(i&1)}, s[20:23], s70 offen nt lds")
        if i < 7: a(f"s_add_u32 s70, s70, {8*1152}")
def load_mixer(base):
    a(f"""
    s_lshl_b32 s70, s3, 10
    v_add_u32 v24, s70, v2
    v_add_u32 v25, 4096, v24
    v_add_u32 v26, 8192, v2
    s_add_u32 s71, s70, {base}
    """)
    for j, p in enumerate((44, 46, 48)):
        a(f"""s_add_u32 m0, s71, {j*9216}
        global_load_lds_dwordx4 v24, s[{p}:{p+1}]
        s_add_u32 m0, s71, {j*9216+4096}
        global_load_lds_dwordx4 v25, s[{p}:{p+1}]
        s_mov_b32 m0, {base+j*9216+8192}
        global_load_lds_dwordx4 v26, s[{p}:{p+1}]""")
if not cfg.latew:
    load_wo(); load_mixer(LMX)
a.label("L_pro_s3")
for r in POOL[17:]:
    if cfg.stamps: a(f"s_mov_b32 s{r}, 0")
ln(False, cfg.d2)
a("v_mov_b32 v4, 0")
poll(lambda: a("global_load_dword v5, v4, s[54:55] offset:128 sc1"), lambda: a("v_cmp_eq_u32 vcc, 0, v5"), depth=cfg.d3)
stamp("cnt")
a(f"""s_lshl_b32 s70, s3, 8
v_lshl_add_u32 v22, v0, 2, s70
s_mul_i32 s69, s4, 9216
s_add_u32 s70, s69, {D_A(0)}
s_add_u32 s71, s70, 4096
s_add_u32 s72, s70, 8192
s_add_u32 s73, s69, {D_A(1)}
s_add_u32 s74, s73, 4096
s_add_u32 s75, s73, 8192
v_lshrrev_b32 v24, 1, v22
v_add_u32 v24, {LQ}, v24""")
poll(lambda: (qg_issue(4, 70), qg_issue(13, 73)), lambda: check_sentinel(range(4, 22), 23), depth=cfg.d4)
qg_sum(4); qg_sum(13)
a("ds_write_b16 v24, v4\nds_write_b16 v24, v13 offset:512")
stamp("q1")
ln_until(10)
a("s_waitcnt lgkmcnt(0)\ns_barrier")

def att_params(ai, seq):
    a(f"s_mov_b32 s58, {A_O(ai)}\ns_mov_b32 s59, {A_L(ai)}\ns_mov_b32 s65, {LQ + ai*512}\ns_mov_b32 s64, {LX + (seq&1)*4224}")
def hint_addr(ai):
    a(f"s_lshl_b32 s62, s4, 7\ns_add_u32 s62, s62, {H_A(ai)+8}")
def att_p1(ai, seq):
    att_params(ai, seq); hint_addr(ai); a("s_mov_b64 vcc, -1"); call("SUB_ATT")
def qatt(ai, seq, loadnext):
    att_params(ai, seq); a(f"s_mov_b32 s62, {D_A(ai)}\ns_mov_b32 s63, {2 if loadnext else 0}"); call("SUB_QATT")
def ch1(inst, final, entry="SUB_CH1", aonly=False):
    b = inst & 1
    a(f"s_mov_b32 s58, {A_O(inst)}\ns_mov_b32 s59, {A_L(inst)}\ns_mov_b32 s60, {B_A(inst)}\ns_mov_b32 s64, {LXB + b*2304}")
    a(f"s_mov_b32 s63, {2 if aonly else 1 if final else 0}\ns_mov_b32 s61, {b*1152 if final else C_A(inst)}")
    call(entry)
def ch2(inst):
    b = inst & 1
    a(f"s_mov_b32 s63, 0\ns_mov_b32 s61, {C_A(inst)}\ns_mov_b32 s64, {LXB + b*2304}\ns_mov_b32 s62, {D_A(2+inst)}")
    call("SUB_CH2")

a(f"s_cmp_eq_u32 s3, 0\ns_cselect_b32 s63, 4, 0\ns_lshl_b32 s60, s4, 7\ns_add_u32 s60, s60, {H_A(2)+4}")
att_p1(0, 0)
stamp("P1b0")
a("s_add_u32 s27, s27, 0x4000000\ns_cmp_ge_u32 s5, 9\ns_cbranch_scc1 L_srole")
a(f"s_mov_b32 s42, {cfg.thr3}")
if cfg.latew:
    load_wo(); load_mixer(LMX)
    a("s_waitcnt vmcnt(9)\ns_barrier")
ch1(0, False); ch2(0)
stamp("wq0")
a(f"s_mov_b32 s69, {cfg.s0['D']}")
qatt(2, 1, True)
stamp("P2b0")
if cfg.roles:
    ln_until(cfg.fa)
    ch1(2, True, aonly=True)
    a(f"""s_or_b32 s70, s5, s3
    s_cbranch_scc1 L_nf3
    s_lshl_b32 s70, s4, 7
    s_add_u32 s70, s70, {H_A(3)}
    s_mov_b64 exec, 1
    buffer_store_dword v2, v2, s[16:19], s70 offen sc1
    s_mov_b64 exec, -1
    L_nf3:""")
else:
    ch1(2, True)
stamp("fin0")
ln_until(10)
a(f"s_cmp_eq_u32 s3, 0\ns_cselect_b32 s63, 3, 0\ns_lshl_b32 s60, s4, 7\ns_add_u32 s60, s60, {H_A(2)}")
att_p1(1, 2)
stamp("P1b1")
a("s_mov_b32 s79, 1")
ch1(1, False); ch2(1)
qatt(3, 3, False)
stamp("P2b1")
a("s_mov_b32 s79, 2")
ch1(3, True)
stamp("end")
a("s_branch L_stamps" if cfg.stamps else "s_branch L_fin")
def s_reload():
    if not cfg.nogo: flagwait(2, cfg.sg, 0, cfg.n1)
    stamp("s.go")
    a("s_mov_b32 s82, 0")
    ln_until(8)
    load_v(range(13, 16))
    a("s_mov_b32 s82, 10\ns_mov_b32 s29, s57")
    ln_until(8 + cfg.j0 // 8)
    a("s_mov_b32 s82, 16")
    if cfg.stamps: a("s_waitcnt vmcnt(0)")
    stamp("s.rel")
a.label("L_srole")
a("s_mov_b32 s42, 0")
a(f"s_mov_b32 s69, 0")
if cfg.roles:
    a(f"s_mul_i32 s57, s3, {NS*1024}\ns_add_u32 s57, s57, {LWO}")
    if cfg.go0 >= 0: flagwait(2, cfg.sh, 4, cfg.n0)
    att_params(1, 1); call("SUB_RING")
    stamp("s.ring")
    flagwait(0, cfg.sh)
    qatt(2, 2, False)
    stamp("s.P2b0")
    if cfg.j0 < 64:
        att_params(1, 1); hint_addr(1); a("s_mov_b32 s63, 0"); call("SUB_RESUME")
        stamp("s.P1b1")
    if cfg.pf0 < 8:
        nun = 36 * (8 - cfg.pf0)
        a(f"""v_lshlrev_b32 v4, 7, v0
        s_sub_u32 s70, s5, 9
        s_lshl_b32 s70, s70, 2
        s_add_u32 s70, s70, s3
        s_mov_b32 s71, {(1 << 32) // 36 + 1}""")
        for i in range((nun + 27) // 28):
            L = a.newlabel("Lpf")
            if (i + 1) * 28 > nun: a(f"s_cmp_ge_u32 s70, {nun}\ns_cbranch_scc1 {L}")
            a(f"""s_mul_hi_u32 s72, s70, s71
            s_mul_i32 s73, s72, 36
            s_sub_u32 s73, s70, s73
            s_lshr_b32 s74, s73, 2
            s_sub_u32 s74, s74, s4
            s_and_b32 s74, s74, 15
            s_lshl_b32 s75, s4, 4
            s_add_u32 s74, s74, s75
            s_lshl_b32 s74, s74, 18
            s_and_b32 s73, s73, 3
            s_lshl_b32 s73, s73, 16
            s_add_u32 s74, s74, s73
            s_lshl_b32 s72, s72, 13
            s_add_u32 s74, s74, s72
            s_add_u32 s74, s74, {0x4000000 + cfg.pf0 * 8192}
            buffer_load_dword a{i}, v4, s[12:15], s74 offen
            s_add_u32 s70, s70, 28""")
            a.label(L)
    if cfg.relfirst: s_reload()
    load_mixer(0)
    a(f"""s_mov_b32 s56, 0
    s_mov_b32 s70, {C_A(0)}
    v_lshlrev_b32 v13, 2, v0
    buffer_load_dwordx4 v[4:7], v2, s[16:19], s70 offen sc1
    buffer_load_dwordx4 v[8:11], v2, s[16:19], s70 offen offset:1024 sc1
    buffer_load_dword v12, v13, s[16:19], s70 offen offset:2048 sc1
    v_add_u32 v14, {LXB}, v2
    v_add_u32 v13, {LXB}, v13
    s_mul_i32 s7, s4, 7
    s_add_u32 s7, s7, s5
    s_sub_u32 s7, s7, 9
    s_waitcnt vmcnt(0)
    ds_write_b128 v14, v[4:7]
    ds_write_b128 v14, v[8:11] offset:1024
    ds_write_b32 v13, v12 offset:2048""")
    flagwait(3, cfg.sg)
    ch1(2, True, entry="SUB_CH1B")
    a("s_add_u32 s7, s7, 112\ns_cmp_ge_u32 s7, 144\ns_cbranch_scc1 L_s_nf")
    call("SUB_CH1B")
    a.label("L_s_nf")
    stamp("s.fin0")
    if not cfg.relfirst: s_reload()
else:
    flagwait(0, cfg.sh)
    qatt(2, 1, True)
    ln_until(10)
    a("s_mov_b32 s63, 0")
    att_p1(1, 2)
    stamp("s.P1b1")
flagwait(1, cfg.sh)
qatt(3, 2 if (cfg.roles and cfg.j0 < 64) else 3, False)
stamp("s.end")
if cfg.stamps: a("s_branch L_stamps")
a.label("L_fin")
a("s_waitcnt vmcnt(0)")
a.label("L_end")
a("s_endpgm")

def att_pre(zero=True):
    a(f"""
    v_bfe_u32 v15, v0, 1, 1
    v_lshlrev_b32 v12, 8, v15
    v_lshrrev_b32 v13, 4, v0
    v_lshl_add_u32 v12, v13, 5, v12
    v_and_b32 v14, 1, v0
    v_lshl_add_u32 v12, v14, 4, v12
    v_add_u32 v12, s65, v12
    v_xor_b32 v15, v15, v14
    v_lshlrev_b32 v47, 9, v15
    v_lshl_add_u32 v47, v13, 7, v47
    v_bfe_u32 v15, v0, 2, 2
    v_lshl_add_u32 v47, v15, 3, v47
    v_lshl_add_u32 v47, v14, 2, v47
    s_lshl_b32 s70, s3, 10
    s_add_u32 s70, s70, s64
    v_add_u32 v47, s70, v47
    """)
    if zero:
        for i in range(8): a(f"v_mov_b32 v{34+i}, 0")
def Dset(i): return 12 + 4 * (i % 3)
def adds(i):
    G, t = i >> 2, i & 3; d = Dset(i)
    a(f"v_add_f32_dpp v32, v{d+1}, v{d} quad_perm:[1,0,3,2] row_mask:{1<<t:#x} bank_mask:0xf")
    a(f"v_add_f32_dpp v33, v{d+2}, v{d+3} quad_perm:[1,0,3,2] row_mask:{1<<t:#x} bank_mask:0xf")
    if t == 3:
        a(f"v_cndmask_b32 v{24+G}, v32, v33, s[24:25]")
        if G == 1: a("v_max_f32 v46, v24, v25")
        elif G % 2 == 1: a(f"v_max3_f32 v46, v46, v{23+G}, v{24+G}")
def kmm(kt, src):
    d = Dset(kt >> 1)
    if kt & 1: a(f"v_mfma_f32_16x16x32_bf16 {R4(d)}, v[8:11], {src}, {R4(d)}")
    else: a(f"v_mfma_f32_16x16x32_bf16 {R4(d)}, v[4:7], {src}, 0")
def softmax():
    for ctl in ("quad_perm:[2,3,0,1]", "row_ror:4", "row_ror:8"):
        a(f"v_max_f32_dpp v46, v46, v46 {ctl} {DPPALL}")
    rows_reduce("v_max_f32", 46, 32)
    a("v_mul_f32 v32, s26, v46")
    for G in range(8): a(f"v_fma_f32 v{24+G}, v{24+G}, s26, -v32")
    for G in range(8): a(f"v_exp_f32 v{24+G}, v{24+G}")
    a("v_pk_add_f32 v[4:5], v[24:25], v[26:27]\nv_pk_add_f32 v[6:7], v[28:29], v[30:31]\nv_pk_add_f32 v[4:5], v[4:5], v[6:7]\nv_add_f32 v51, v4, v5")
    lctl = ["quad_perm:[2,3,0,1]", "row_ror:8", "row_ror:4"]
    for G in range(8):
        t = 32 + (G & 1)
        a(f"v_mov_b32_dpp v{t}, v{24+G} quad_perm:[1,0,3,2] {DPPALL}")
        if G in (1, 3, 5): a(f"v_add_f32_dpp v51, v51, v51 {lctl[G//2]} {DPPALL}")
        a(f"v_cvt_pk_bf16_f32 v{24+G}, v{24+G}, v{t}")
    rows_reduce("v_add_f32", 51, 32)
curG = [None]
def build(vt, par):
    G, kap = vt >> 3, vt & 7
    if G != curG[0]:
        for rot in (1, 2, 3): a(f"v_mov_b32_dpp v{47+rot}, v{24+G} row_ror:{4*rot} {DPPALL}")
        curG[0] = G
    bs = 34 + 4 * par; x = 2 * (kap & 1); hb = kap >> 1
    for rot in range(4):
        k = (hb + rot) % 4
        z = 24 + G if rot == 0 else 47 + rot
        a(f"v_and_b32_dpp v{bs+k}, v{z}, v3 quad_perm:[{x},{x},{x+1},{x+1}] row_mask:0xf bank_mask:{1<<k:#x}")
def vmm(src, par, first):
    a(f"v_mfma_f32_16x16x32_bf16 v[42:45], {src}, {R4(34+4*par)}, {'0' if first else 'v[42:45]'}")

a.hist = []
a.label("SUB_QATT")
att_pre()
a(f"""s_lshl_b32 s70, s3, 8
v_lshl_add_u32 v22, v0, 2, s70
s_mul_i32 s70, s4, 9216
s_add_u32 s70, s70, s62
s_add_u32 s71, s70, 4096
s_add_u32 s72, s70, 8192
v_lshrrev_b32 v24, 1, v22
v_add_u32 v24, s65, v24
s_cmp_eq_u32 s69, 0
s_cbranch_scc1 L_qatt_ns
s_sleep {max(1, cfg.s0['D'])}
L_qatt_ns:""")
poll(lambda: qg_issue(13, 70), lambda: check_sentinel(range(13, 22), 23))
qg_sum(13)
a("ds_write_b16 v24, v13\ns_cmp_eq_u32 s63, 2\ns_cselect_b32 s82, 0, s82\ns_mov_b64 vcc, 0\ns_waitcnt lgkmcnt(0)\ns_barrier")
stamp("q2b1", 1)
a.label("SUB_ATT2")
outofline = []
def site(fn):
    Lo = a.newlabel("Lo"); Lb = a.newlabel("Lb")
    a(f"s_cbranch_vccnz {Lo}"); a.label(Lb)
    outofline.append((Lo, Lb, fn))
def lnif():
    L = a.newlabel("Lki")
    a(f"s_cmp_ge_u32 s82, 16\ns_cbranch_scc1 {L}\ns_call_b64 s[80:81], SUB_LN"); a.label(L)
a("ds_read_b128 v[4:7], v12\nds_read_b128 v[8:11], v12 offset:128\ns_waitcnt vmcnt(16) lgkmcnt(0)")
for i in range(32):
    kmm(2*i, khome(2*i)); kmm(2*i+1, khome(2*i+1))
    if i >= 2: adds(i - 2)
    if cfg.ksites and i in (0, 15): site(lnif)
    if i in (3, 7):
        Lo = a.newlabel("Lo"); Lb = a.newlabel("Lb")
        a(f"s_cmp_lt_u32 s82, 2\ns_cbranch_scc1 {Lo}"); a.label(Lb)
        outofline.append((Lo, Lb, lambda: a("s_call_b64 s[80:81], SUB_LN")))
adds(30); adds(31)
if cfg.ksites: site(lnif)
softmax()
a("v_add_u32 v33, s29, v2")
sites = list(range(0, 60, 4)) + [60, 61, 62, 63]
def fetch(i):
    if i in sites:
        nxt = [s for s in sites if s > i]
        last = (nxt[0] if nxt else 64) - 1
        g = min(7, (i >> 3) + 2)
        def fn(i=i, g=g, last=last):
            if i % 8 == 0 and (i >> 3) + 2 <= 7:
                L = a.newlabel("Lsk")
                a(f"s_cmp_gt_u32 s82, {8+g}\ns_cbranch_scc1 {L}\ns_call_b64 s[80:81], SUB_LN"); a.label(L)
            a(f"s_waitcnt vmcnt({8*g + 7 - last})")
            for gi, code in ((cfg.go, 3), (cfg.go0, 4)):
              if i == gi:
                L = a.newlabel("Lsg")
                a(f"s_cmp_lg_u32 s63, {code}\ns_cbranch_scc1 {L}\ns_mov_b64 exec, 1\nbuffer_atomic_add v3, v2, s[16:19], s60 offen sc1\ns_mov_b64 exec, -1"); a.label(L)
            if i == cfg.hint:
                L = a.newlabel("Lsh")
                a(f"s_cmp_lg_u32 s3, 0\ns_cbranch_scc1 {L}\ns_mov_b64 exec, 1\nbuffer_atomic_add v3, v2, s[16:19], s62 offen sc1\ns_mov_b64 exec, -1"); a.label(L)
        site(fn)
    if i < NL:
        a(f"ds_read_b128 {R4(12 + 4*(i%3))}, v33 offset:{i*1024}")
curG[0] = None
for i in range(66):
    if i == cfg.j0 + 2: a.label("L_att_resume")
    if i < NL: fetch(i)
    if 1 <= i <= 64: build(i - 1, (i - 1) & 1)
    if i >= 2:
        j = i - 2
        if j >= NL: fetch(j); src = vhome(j)
        else:
            a(f"s_waitcnt lgkmcnt({min(NL - 1, j + 2) - j})"); src = R4(12 + 4*(j%3))
        vmm(src, j & 1, j == 0)
        if cfg.vsites and j in (2, 18, 34, 50):
            Lo = a.newlabel("Lo"); Lb = a.newlabel("Lb")
            a(f"s_cmp_lt_u32 s82, 8\ns_cbranch_scc1 {Lo}"); a.label(Lb)
            outofline.append((Lo, Lb, lambda: a("s_call_b64 s[80:81], SUB_LN")))
a.label("L_att_epi")
a(f"""
v_and_b32 v32, 1, v0
v_lshlrev_b32 v32, 5, v32
s_lshl_b32 s70, s3, 2
s_add_u32 s70, s70, s64
s_add_u32 s70, s70, 4096
v_add_u32 v32, s70, v32
ds_write2_b32 v32, v46, v51 offset0:0 offset1:4
v_add_u32 v32, s64, v2
v_lshrrev_b32 v33, 5, v0
v_lshlrev_b32 v34, 6, v33
v_lshlrev_b32 v33, 5, v33
v_add_u32 v33, s64, v33
ds_write2_b32 v47, v42, v43 offset0:0 offset1:8
ds_write2_b32 v47, v44, v45 offset0:16 offset1:24
s_lshl_b32 s70, s2, 10
s_add_u32 s70, s70, s58
s_lshl_b32 s71, s4, 7
s_add_u32 s71, s71, s59
s_lshl_b32 s72, s6, 2
s_add_u32 s71, s71, s72
s_cmp_lg_u32 s3, 0
s_waitcnt lgkmcnt(0)
s_barrier
s_cbranch_scc1 L_att_ret
ds_read_b128 v[20:23], v33 offset:4096
ds_read_b128 v[24:27], v33 offset:4112
ds_read_b128 v[4:7], v32
ds_read_b128 v[8:11], v32 offset:1024
ds_read_b128 v[12:15], v32 offset:2048
ds_read_b128 v[16:19], v32 offset:3072
s_waitcnt lgkmcnt(4)
v_max3_f32 v28, v20, v21, v22
v_max_f32 v28, v28, v23
v_mul_f32 v28, s26, v28
""")
for w in range(4): a(f"v_fma_f32 v{20+w}, v{20+w}, s26, -v28")
for w in range(4): a(f"v_exp_f32 v{20+w}, v{20+w}")
a("""v_mul_f32 v30, v20, v24
v_fmac_f32 v30, v21, v25
v_fmac_f32 v30, v22, v26
v_fmac_f32 v30, v23, v27
s_waitcnt lgkmcnt(0)
v_pk_mul_f32 v[4:5], v[4:5], v[20:21] op_sel:[0,0] op_sel_hi:[1,0]
v_log_f32 v29, v30
v_rcp_f32 v30, v30
v_pk_mul_f32 v[6:7], v[6:7], v[20:21] op_sel:[0,0] op_sel_hi:[1,0]
v_pk_fma_f32 v[4:5], v[8:9], v[20:21], v[4:5] op_sel:[0,1,0] op_sel_hi:[1,1,1]
v_pk_fma_f32 v[6:7], v[10:11], v[20:21], v[6:7] op_sel:[0,1,0] op_sel_hi:[1,1,1]
v_pk_fma_f32 v[4:5], v[12:13], v[22:23], v[4:5] op_sel:[0,0,0] op_sel_hi:[1,0,1]
v_pk_fma_f32 v[6:7], v[14:15], v[22:23], v[6:7] op_sel:[0,0,0] op_sel_hi:[1,0,1]
v_pk_fma_f32 v[4:5], v[16:17], v[22:23], v[4:5] op_sel:[0,1,0] op_sel_hi:[1,1,1]
v_pk_fma_f32 v[6:7], v[18:19], v[22:23], v[6:7] op_sel:[0,1,0] op_sel_hi:[1,1,1]
v_pk_mul_f32 v[4:5], v[4:5], v[30:31] op_sel:[0,0] op_sel_hi:[1,0]
v_pk_mul_f32 v[6:7], v[6:7], v[30:31] op_sel:[0,0] op_sel_hi:[1,0]
v_add_f32 v29, v29, v28
buffer_store_dwordx4 v[4:7], v2, s[16:19], s70 offen sc1
s_mov_b32 exec_lo, 1
s_mov_b32 exec_hi, 1
buffer_store_dword v29, v34, s[16:19], s71 offen sc1
s_mov_b64 exec, -1
L_att_ret:""")
ret()
a.hist = []
a.label("SUB_ATT")
att_pre()
a("s_branch SUB_ATT2")
for Lo, Lb, fn in outofline:
    a.hist = []
    a.label(Lo); fn(); a(f"s_branch {Lb}")

a.hist = []
a.label("SUB_LN")
if cfg.thr >= 0: a(f"s_cmp_eq_u32 s42, 0\ns_cbranch_scc1 L_ln_nt\ns_waitcnt vmcnt({cfg.thr})\nL_ln_nt:")
for k in range(15): a(f"s_cmp_eq_u32 s82, {k}\ns_cbranch_scc1 L_lnb{k}")
for k in [15] + list(range(15)):
    a.label(f"L_lnb{k}")
    for hlf in range(2):
        if hlf and cfg.thrm >= 0: a(f"s_cmp_eq_u32 s42, 0\ns_cbranch_scc1 L_lnm{k}\ns_waitcnt vmcnt({cfg.thrm})\nL_lnm{k}:")
        if k < 8: load_k(range(8*k+4*hlf, 8*k+4*hlf+4))
        else: load_v(range(8*(k-8)+4*hlf, 8*(k-8)+4*hlf+4))
    a("s_add_u32 s82, s82, 1\ns_setpc_b64 s[80:81]")

a.hist = []
a.label("SUB_CH1")
a(f"""
v_lshrrev_b32 v21, 4, v0
v_bfe_u32 v22, v0, 2, 2
v_lshl_add_u32 v23, v21, 3, v22
v_lshlrev_b32 v23, 7, v23
v_bfe_u32 v21, v0, 3, 2
v_xor_b32 v21, s3, v21
v_lshl_add_u32 v23, v21, 5, v23
v_and_b32 v21, 3, v0
v_lshl_add_u32 v23, v21, 3, v23
v_add_u32 v23, {LWO}, v23
""")
for ks in range(7):
    for jh in range(2):
        a(f"ds_read_b64_tr_b16 {R2(24 + 4*ks + 2*jh)}, v23 offset:{(32*ks+4*jh)*128}")
a(f"""
v_lshlrev_b32 v21, 2, v0
s_lshl_b32 s70, s4, 14
s_add_u32 s70, s70, s58
s_lshl_b32 s71, s3, 8
s_add_u32 s70, s70, s71
s_add_u32 s71, s70, 4096
s_add_u32 s72, s70, 8192
s_add_u32 s73, s70, 12288
s_lshl_b32 s74, s4, 7
s_add_u32 s74, s74, s59
s_lshr_b32 s75, s3, 1
s_lshl_b32 s75, s75, 6
s_add_u32 s74, s74, s75
s_lshl_b32 s75, s3, 7
s_add_u32 s75, s75, {LO}
""")
def issA():
    a("v_and_b32 v20, 60, v21\nbuffer_load_dword v20, v20, s[16:19], s74 offen sc1")
    for s in range(16):
        a(f"buffer_load_dword v{4+s}, v21, s[16:19], s{70+(s>>2)} offen offset:{(s&3)*1024} sc1")
TGT = 16 * 0xffff - 1
if cfg.hint >= 0:
    a(f"""s_cmp_lg_u32 s63, 0
    s_cbranch_scc1 L_ch1_sa
    s_lshl_b32 s76, s4, 7
    s_add_u32 s76, s76, s61
    s_add_u32 s76, s76, {0x8008}
    v_mov_b32 v4, 0
    s_mov_b32 s68, 0
    L_ch1_wa:
    buffer_load_dword v5, v4, s[16:19], s76 offen sc1
    s_waitcnt vmcnt(0)
    v_cmp_gt_i32 vcc, {TGT}, v5
    s_cbranch_vccz L_ch1_pa
    s_sleep {cfg.sh}
    s_add_u32 s68, s68, 1
    s_cmp_lt_u32 s68, {cfg.spin}
    s_cbranch_scc1 L_ch1_wa
    s_branch L_ch1_pa
    L_ch1_sa:
    s_sleep {cfg.s0['A']}
    L_ch1_pa:""")
    poll(issA, lambda: check_sentinel(range(4, 21), 22), s0=cfg.sA2)
else:
    poll(issA, lambda: check_sentinel(range(4, 21), 22), s0=cfg.s0["A"])
stamp("c.A", 1); stamp("f.A", 2)
a(f"v_max_f32_dpp v22, v20, v20 {CTL4[0]} {DPPALL}")
for c in CTL4[1:]: a(f"v_max_f32_dpp v22, v22, v22 {c} {DPPALL}")
a("v_sub_f32 v20, v20, v22\nv_exp_f32 v20, v20")
a(f"v_mul_f32_dpp v21, v20, v4 row_newbcast:0 {DPPALL}\nv_add_f32_dpp v22, v20, v20 {CTL4[0]} {DPPALL}")
for s in range(1, 16):
    a(f"v_fmac_f32_dpp v21, v20, v{4+s} row_newbcast:{s} {DPPALL}")
    if s in (2, 4, 6): a(f"v_add_f32_dpp v22, v22, v22 {CTL4[s//2]} {DPPALL}")
    if s == 4: a(f"ds_read_b64_tr_b16 v[4:5], v23 offset:{(32*7)*128}\nds_read_b64_tr_b16 v[6:7], v23 offset:{(32*7+4)*128}")
    if s == 8: a("v_rcp_f32 v22, v22")
    if s == 9: a("v_lshl_add_u32 v23, v0, 1, s75")
a(f"""
v_mul_f32 v21, v21, v22
v_cvt_pk_bf16_f32 v21, v21, v21
ds_write_b16 v23, v21
v_and_b32 v0, 48, v0
v_add_u32 v0, {LO}, v0
s_lshl_b32 s70, s7, 8
s_add_u32 s70, s70, s60
s_lshl_b32 s71, s3, 6
s_add_u32 s74, s70, s71
s_mul_i32 s70, s3, 9216
s_add_u32 s70, s70, s60
s_add_u32 s71, s70, 2304
s_add_u32 s72, s70, 4608
s_add_u32 s73, s70, 6912
s_waitcnt lgkmcnt(0)
s_barrier
""")
order = [7, 0, 1, 2, 3, 4, 5, 6]
def frag(ks): return "v[4:7]" if ks == 7 else R4(24 + 4*ks)
bufs = ["v[8:11]", "v[12:15]", "v[16:19]"]
for n in range(3): a(f"ds_read_b128 {bufs[n]}, v0 offset:{order[n]*64}")
for n, ks in enumerate(order):
    a(f"s_waitcnt lgkmcnt({len(bufs) - 1 - n})")
    a(f"v_mfma_f32_16x16x32_bf16 v[20:23], {bufs[n]}, {frag(ks)}, {'0' if n == 0 else 'v[20:23]'}")
    for fr in (frag(ks), bufs[n]):
        if len(bufs) < 8:
            a(f"ds_read_b128 {fr}, v0 offset:{order[len(bufs)]*64}"); bufs.append(fr)
a(f"""
v_lshrrev_b32 v0, 4, v2
v_lshlrev_b32 v49, 2, v0
s_mul_i32 s75, s3, 2304
s_add_u32 s75, s75, {LX}
v_add_u32 v51, s75, v2
s_mov_b64 exec, 0xffff
buffer_store_dword v20, v49, s[16:19], s74 offen sc1
s_mov_b64 exec, -1
""")
stamp("c.wo", 1)
a("s_cmp_eq_u32 s63, 2\ns_cbranch_scc1 L_ch1_ret")
a.label("L_ch1_b")
ln(False)
def issB():
    for r in range(4):
        a(f"buffer_load_dwordx4 {R4(4+8*r)}, v2, s[16:19], s{70+r} offen sc1")
        a(f"buffer_load_dwordx4 {R4(8+8*r)}, v2, s[16:19], s{70+r} offen offset:1024 sc1")
        a(f"buffer_load_dword v{36+r}, v49, s[16:19], s{70+r} offen offset:2048 sc1")
def chkB():
    for i in range(4): a(f"v_pk_add_f32 {R2(40+2*i)}, {R2(4+2*i)}, {R2(12+2*i)}")
    a("v_add_f32 v48, v36, v37")
    for r in (2, 3):
        for i in range(4): a(f"v_pk_add_f32 {R2(40+2*i)}, {R2(40+2*i)}, {R2(4+8*r+2*i)}")
        a(f"v_add_f32 v48, v48, v{36+r}")
    a("v_add_u32 v50, s75, v49\nds_write_b128 v51, v[40:43]\nds_write_b128 v51, v[44:47] offset:1024\nds_write_b32 v50, v48 offset:2048")
    check_sentinel(range(4, 40), 50)
if cfg.hint >= 0:
    a(f"""s_cmp_lg_u32 s63, 0
    s_cbranch_scc1 L_ch1_sb
    s_add_u32 s76, s61, {0x8008}
    v_and_b32 v4, 15, v0
    v_lshlrev_b32 v4, 7, v4
    buffer_load_dword v5, v4, s[16:19], s76 offen sc1
    s_waitcnt vmcnt(0)
    v_cmp_gt_i32 vcc, {TGT}, v5
    s_cbranch_vccz L_ch1_pb
    s_mov_b32 s68, 0
    L_ch1_wb:
    s_sleep {cfg.sh}
    buffer_load_dword v5, v4, s[16:19], s76 offen sc1
    s_waitcnt vmcnt(0)
    v_cmp_gt_i32 vcc, {TGT}, v5
    s_cbranch_vccz L_ch1_wb2
    s_add_u32 s68, s68, 1
    s_cmp_lt_u32 s68, {cfg.spin}
    s_cbranch_scc1 L_ch1_wb
    L_ch1_wb2:
    s_sleep {cfg.sB2}
    s_branch L_ch1_pb
    L_ch1_sb:
    s_sleep {cfg.s0['B']}
    L_ch1_pb:""")
    poll(issB, chkB)
else:
    poll(issB, chkB, s0=cfg.s0["B"])
stamp("c.B", 1); stamp("f.B", 2)
a(f"""
v_add_u32 v14, s64, v2
v_add_u32 v15, s64, v49
ds_read_b128 v[4:7], v14
ds_read_b128 v[8:11], v14 offset:1024
ds_read_b32 v12, v15 offset:2048
v_add_u32 v14, {LX}, v2
v_add_u32 v15, {LX+2048}, v49
s_waitcnt lgkmcnt(3)
s_barrier
""")
for r in range(4):
    a(f"ds_read_b128 {R4(16+8*r)}, v14 offset:{r*2304}\nds_read_b128 {R4(20+8*r)}, v14 offset:{r*2304+1024}")
    if r == 0: a("ds_read2st64_b32 v[48:49], v15 offset0:0 offset1:9\nds_read2st64_b32 v[50:51], v15 offset0:18 offset1:27")
a(f"""
v_lshlrev_b32 v13, 3, v0
v_add_u32 v13, {LLN}, v13
v_lshlrev_b32 v14, 1, v0
v_add_u32 v14, {LLN+1024}, v14
v_and_b32 v15, 3, v0
s_lshl_b32 s70, s7, 3
s_add_u32 s70, s70, {LLN}
v_lshl_add_u32 v15, v15, 1, s70
s_lshl_b32 s70, s3, 8
s_add_u32 s70, s70, s56
""")
for r in range(4):
    a(f"s_waitcnt lgkmcnt({6 - 2*r})")
    for i in range(4): a(f"v_pk_add_f32 {R2(4+2*i)}, {R2(4+2*i)}, {R2(16+8*r+2*i)}")
    a(f"v_add_f32 v12, v12, v{48+r}")
a("""v_cvt_pk_bf16_f32 v16, v4, v5
v_cvt_pk_bf16_f32 v17, v6, v7
v_cvt_pk_bf16_f32 v18, v8, v9
v_cvt_pk_bf16_f32 v19, v10, v11
v_cvt_pk_bf16_f32 v20, v12, 0
ds_write_b64 v13, v[16:17]
ds_write_b64 v13, v[18:19] offset:512
ds_write_b16 v14, v20
ds_read_u16 v27, v15
v_lshl_add_u32 v26, v0, 2, s70""")
fill = [f"ds_read2st64_b32 {R2(28+2*i)}, v26 offset0:{4*i} offset1:{36+4*i}" for i in range(8)]
fill += [f"ds_read2st64_b32 {R2(44+2*i)}, v26 offset0:{72+8*i} offset1:{76+8*i}" for i in range(4)]
fill = [fill[0], fill[8]] + fill[1:8] + fill[9:]
stats([16, 17, 18, 19, 20], 4, 5, fill)
ln_scalars(4, 5, 6, 7, 8)
a("s_waitcnt lgkmcnt(12)\nv_lshlrev_b32 v27, 16, v27\nv_sub_f32 v9, v27, v6\nv_sub_f32 v4, v4, v6\nv_mul_f32 v5, v5, v7\nv_mul_f32 v4, v4, v7\nv_mul_f32 v5, v5, v7")
rbf(9, 10); a("v_mul_f32 v9, v9, v7"); rbf(9, 10)
ln_scalars(4, 5, 6, 7, 8)
a("v_sub_f32 v9, v9, v6"); rbf(9, 10); a("v_mul_f32 v9, v9, v7"); rbf(9, 10)
a("v_mov_b32 v25, v26")
for e in range(4): a(f"v_readlane_b32 s{70+2*e}, v9, {60+e}")
stamp("c.ln", 1)
ln(False)
a(f"v_mov_b32 v26, {f32(C1)}\ns_mov_b32 s66, {f32(C2)}\ns_waitcnt lgkmcnt(0)")
for i in range(9):
    w1, b1, w2 = (28+2*i, 29+2*i, 44+i) if i < 8 else (28, 29, 44)
    if i == 8: a("s_waitcnt lgkmcnt(0)")
    for j, r in enumerate((w1, b1, w2)):
        a(f"v_lshlrev_b32 v{12+2*j}, 16, v{r}\nv_and_b32 v{13+2*j}, 0xffff0000, v{r}")
    if i == 0: a("ds_read2st64_b32 v[28:29], v25 offset0:32 offset1:68\nds_read_b32 v44, v25 offset:26624")
    for e0 in (0, 2):
        U = (18, 22); T = (20, 24); E = (e0, e0 + 1)
        for k in range(2): a(f"v_pk_fma_f32 {R2(U[k])}, v[12:13], s[{70+2*E[k]}:{71+2*E[k]}], v[14:15] op_sel_hi:[1,0,1]")
        for k in range(2): a(f"v_pk_mul_f32 {R2(T[k])}, {R2(U[k])}, {R2(U[k])}")
        for k in range(2): a(f"v_pk_fma_f32 {R2(T[k])}, {R2(T[k])}, s[66:67], v[26:27] op_sel_hi:[1,0,0]")
        for k in range(2): a(f"v_pk_mul_f32 {R2(T[k])}, {R2(U[k])}, {R2(T[k])}")
        for k in range(2): a(f"v_exp_f32 v{T[k]}, v{T[k]}\nv_exp_f32 v{T[k]+1}, v{T[k]+1}")
        for k in range(2): a(f"v_pk_mul_f32 {R2(U[k])}, {R2(U[k])}, v[16:17]")
        for k in range(2): a(f"v_pk_add_f32 {R2(T[k])}, {R2(T[k])}, 1.0 op_sel_hi:[1,0]")
        for k in range(2): a(f"v_rcp_f32 v{T[k]}, v{T[k]}\nv_rcp_f32 v{T[k]+1}, v{T[k]+1}")
        for k in range(2):
            acc = R2(4 + 2*E[k])
            a(f"v_pk_mul_f32 {acc}, {R2(U[k])}, {R2(T[k])}" if i == 0 else f"v_pk_fma_f32 {acc}, {R2(U[k])}, {R2(T[k])}, {acc}")
stamp("c.mix", 1); stamp("f.mix", 2)
for e in range(4): a(f"v_add_f32 v{4+2*e}, v{4+2*e}, v{5+2*e}")
a(f"""v_lshrrev_b32 v12, 4, v0
v_lshlrev_b32 v12, 2, v12
s_lshl_b32 s66, s3, 4
s_add_u32 s66, s66, {LRED}
v_add_u32 v12, s66, v12""")
row16_reduce("v_add_f32", [4, 6, 8, 10])
a(f"""
ds_write2_b32 v12, v4, v6 offset0:0 offset1:16
ds_write2_b32 v12, v8, v10 offset0:32 offset1:48
v_and_b32 v13, 3, v0
v_lshlrev_b32 v12, 6, v13
v_add_u32 v12, {LRED}, v12
s_mov_b32 s20, s52
s_mov_b32 s21, s53
s_mov_b32 s22, 2304
s_lshl_b32 s66, s7, 4
s_lshr_b32 s66, s66, s63
s_add_u32 s66, s66, s61
v_lshlrev_b32 v13, 2, v13
v_lshrrev_b32 v13, s63, v13
s_cmp_lg_u32 s3, 0
s_waitcnt lgkmcnt(0)
s_barrier
s_cbranch_scc1 L_ch1_ret
ds_read_b128 v[16:19], v12
ds_read_b128 v[20:23], v12 offset:16
ds_read_b128 v[28:31], v12 offset:32
ds_read_b128 v[32:35], v12 offset:48
s_cmp_eq_u32 s63, 1
s_mov_b64 exec, 15
s_waitcnt lgkmcnt(2)
v_pk_add_f32 v[16:17], v[16:17], v[18:19]
v_pk_add_f32 v[20:21], v[20:21], v[22:23]
s_waitcnt lgkmcnt(0)
v_pk_add_f32 v[28:29], v[28:29], v[30:31]
v_pk_add_f32 v[32:33], v[32:33], v[34:35]
v_pk_add_f32 v[16:17], v[16:17], v[20:21]
v_pk_add_f32 v[28:29], v[28:29], v[32:33]
v_pk_add_f32 v[16:17], v[16:17], v[28:29]
v_add_f32 v16, v16, v17
""")
rbf(16, 17); a("v_add_f32 v16, s78, v16"); rbf(16, 17); a("v_add_f32 v16, v16, v27"); rbf(16, 17)
a(f"""
s_cbranch_scc1 L_ch1_fin
buffer_store_dword v16, v13, s[16:19], s66 offen sc1
s_branch L_ch1_done
L_ch1_fin:
buffer_store_short v17, v13, s[20:23], s66 offen
L_ch1_done:
s_mov_b64 exec, -1
L_ch1_ret:
""")
ret()

a.hist = []
a.label("SUB_CH1B")
a(f"""s_mul_i32 s70, s3, 9216
s_add_u32 s70, s70, s60
s_add_u32 s71, s70, 2304
s_add_u32 s72, s70, 4608
s_add_u32 s73, s70, 6912
v_lshlrev_b32 v49, 2, v0
s_mul_i32 s75, s3, 2304
s_add_u32 s75, s75, {LX}
v_add_u32 v51, s75, v2
s_barrier
s_branch L_ch1_b""")

a.hist = []
a.label("SUB_CH2")
a(f"""
v_lshrrev_b32 v13, 4, v0
v_bfe_u32 v14, v0, 2, 2
v_lshl_add_u32 v15, v13, 3, v14
v_lshlrev_b32 v15, 9, v15
v_bfe_u32 v13, v0, 2, 3
s_lshl_b32 s70, s3, 2
v_xor_b32 v13, s70, v13
v_lshl_add_u32 v15, v13, 5, v15
v_and_b32 v13, 3, v0
v_lshl_add_u32 v15, v13, 3, v15
v_add_u32 v15, {LWQ}, v15
v_xor_b32 v16, 32, v15
v_xor_b32 v17, 64, v15
v_xor_b32 v18, 96, v15
""")
for cbk in range(4):
    for ks in range(2):
        for jh in range(2):
            a(f"ds_read_b64_tr_b16 {R2(20 + 8*cbk + 4*ks + 2*jh)}, v{15+cbk} offset:{(32*ks+4*jh)*512}")
a(f"""
v_lshlrev_b32 v19, 2, v0
v_add_u32 v15, s64, v2
v_add_u32 v16, s64, v19
s_lshl_b32 s72, s5, 8
s_lshl_b32 s74, s7, 10
s_add_u32 s74, s74, s62
s_lshl_b32 s71, s3, 8
s_add_u32 s74, s74, s71
s_cmp_eq_u32 s63, 1
s_cbranch_scc0 L_ch2_g
v_add_u32 v17, s72, v16
ds_read_b128 v[4:7], v15
ds_read_b128 v[8:11], v15 offset:1024
ds_read_b32 v12, v16 offset:2048
ds_read_b32 v13, v17
s_waitcnt lgkmcnt(0)
s_branch L_ch2_x
L_ch2_g:
s_add_u32 s72, s72, s61
s_lshl_b32 s73, s4, 7
s_add_u32 s73, s73, s61
s_add_u32 s73, s73, 0x8000
""")
def issC():
    a("""buffer_load_dwordx4 v[4:7], v2, s[16:19], s61 offen sc1
    buffer_load_dwordx4 v[8:11], v2, s[16:19], s61 offen offset:1024 sc1
    buffer_load_dword v12, v19, s[16:19], s61 offen offset:2048 sc1
    buffer_load_dword v13, v19, s[16:19], s72 offen sc1""")
poll(issC, lambda: check_sentinel(range(4, 14), 14), s0=cfg.s0["C"])
stamp("c.C", 1)
a("""s_or_b32 s70, s5, s3
s_cbranch_scc1 L_ch2_nh
s_mov_b64 exec, 1
buffer_store_dword v19, v19, s[16:19], s73 offen sc1
s_mov_b64 exec, -1
L_ch2_nh:
ds_write_b128 v15, v[4:7]
ds_write_b128 v15, v[8:11] offset:1024
ds_write_b32 v16, v12 offset:2048
L_ch2_x:
v_cvt_pk_bf16_f32 v14, v4, v5
v_cvt_pk_bf16_f32 v15, v6, v7
v_cvt_pk_bf16_f32 v16, v8, v9
v_cvt_pk_bf16_f32 v17, v10, v11
v_cvt_pk_bf16_f32 v18, v12, 0""")
stats([14, 15, 16, 17, 18], 4, 5, ["v_lshlrev_b32 v9, 1, v0", f"v_add_u32 v9, {LRED}, v9", "v_and_b32 v12, 48, v0", f"v_add_u32 v12, {LRED}, v12"])
ln_scalars(4, 5, 6, 7, 8)
a("v_readlane_b32 s70, v6, 63\nv_readlane_b32 s71, v7, 63\nv_subrev_f32 v13, s70, v13")
rbf(13, 8)
a("""v_mul_f32 v13, s71, v13
v_cvt_pk_bf16_f32 v13, v13, v13
ds_write_b16 v9, v13
ds_read_b128 v[4:7], v12
ds_read_b128 v[8:11], v12 offset:64
s_waitcnt lgkmcnt(0)""")
accs = [12, 20, 28, 36]
for cbk in range(4):
    d = accs[cbk]; f = 20 + 8 * cbk
    a(f"v_mfma_f32_16x16x32_bf16 {R4(d)}, v[4:7], {R4(f)}, 0")
    a(f"v_mfma_f32_16x16x32_bf16 {R4(d)}, v[8:11], {R4(f+4)}, {R4(d)}")
for cbk in range(1, 4):
    a(f"v_mov_b32_dpp v12, v{accs[cbk]} quad_perm:[0,1,2,3] row_mask:{1<<cbk:#x} bank_mask:0xf")
a("buffer_store_dword v12, v19, s[16:19], s74 offen sc1")
stamp("c.wq", 1)
ret()

if cfg.roles:
    a.hist = []
    a.label("SUB_RING")
    vts = list(range(NL, cfg.j0)) + list(range(NL))
    NT = 64 + len(vts)
    slot = lambda n: (n - (NT - NL)) % NS
    lastso = [None]
    def rload(n):
        if n >= NT: return
        if n < 64:
            so, imm, va, srd = ("k", (n >> 3) * 8192), ((n >> 1) & 3) * 256 + (n & 1) * 128, "v1", "s[8:11]"
        else:
            vt = vts[n - 64]
            so, imm, va, srd = ("v", (vt >> 2) * 4096), (vt & 3) * 1024, "v2", "s[12:15]"
        if so != lastso[0]:
            a(f"s_add_u32 s28, s27, {so[1]}"); lastso[0] = so
        a(f"s_add_u32 m0, s57, {slot(n)*1024 - imm}")
        a(f"buffer_load_dwordx4 {va}, {srd}, s28 offen offset:{imm}{'' if n < cfg.l2n else ' nt'} lds")
    for n in range(16): rload(n)
    att_pre(zero=False)
    a("ds_read_b128 v[4:7], v12\nds_read_b128 v[8:11], v12 offset:128\nv_add_u32 v48, s57, v2")
    KT = [34, 38, 42]
    for n in range(66):
        if n < 64:
            rload(n + 16)
            a(f"s_waitcnt vmcnt(16)\nds_read_b128 {R4(KT[n%3])}, v48 offset:{slot(n)*1024}")
        if n >= 2:
            kt = n - 2
            a(f"s_waitcnt lgkmcnt({min(63, n) - kt})")
            kmm(kt, R4(KT[kt % 3]))
            if kt & 1 and (kt >> 1) >= 2: adds((kt >> 1) - 2)
    adds(30); adds(31)
    softmax()
    for i in range(8): a(f"v_mov_b32 v{34+i}, 0")
    a("v_add_u32 v33, s57, v2")
    curG[0] = None
    NV = len(vts)
    for m in range(NV + 2):
        if m < NV:
            n = 64 + m
            rload(n + 16)
            a(f"s_waitcnt vmcnt({min(16, NT - 1 - n)})\nds_read_b128 {R4(12 + 4*(m%3))}, v33 offset:{slot(n)*1024}")
        if 1 <= m <= NV: build(vts[m - 1], (m - 1) & 1)
        if m >= 2:
            j = m - 2
            a(f"s_waitcnt lgkmcnt({min(NV - 1, m) - j})")
            vmm(R4(12 + 4*(j%3)), j & 1, j == 0)
    if cfg.j0 == 64:
        a("s_branch L_att_epi")
    else:
        a(f"""v_mov_b32 v47, v51
        ds_write_b128 v33, v[24:27] offset:{13*1024}
        ds_write_b128 v33, v[28:31] offset:{14*1024}
        ds_write_b64 v33, v[46:47] offset:{16*1024}
        ds_write_b128 v33, v[42:45] offset:{15*1024}
        s_waitcnt lgkmcnt(0)""")
        ret()
        a.hist = []
        a.label("SUB_RESUME")
        a(f"s_mov_b32 s82, {8 + cfg.j0//8}\ns_call_b64 s[80:81], SUB_LN\ns_call_b64 s[80:81], SUB_LN")
        att_pre()
        a(f"""v_add_u32 v33, s57, v2
        ds_read_b128 v[24:27], v33 offset:{13*1024}
        ds_read_b128 v[28:31], v33 offset:{14*1024}
        ds_read_b128 v[42:45], v33 offset:{15*1024}
        ds_read_b64 v[50:51], v33 offset:{16*1024}
        s_mov_b64 vcc, -1
        s_waitcnt lgkmcnt(0)
        v_mov_b32 v46, v50""")
        curG[0] = None
        build(cfg.j0, cfg.j0 & 1)
        a.flush()
        a("s_branch L_att_resume")

for Lo, Lb, wait, depth in tramps:
    a.hist = []
    a.label(Lo)
    for d in range(1, depth + 1):
        a("s_call_b64 s[80:81], SUB_LN")
        L2 = a.newlabel("Lt2")
        if d < depth: a(f"s_cmp_lt_u32 s82, 16\ns_cbranch_scc1 {L2}")
        if wait: a(f"s_waitcnt vmcnt({8*d})")
        a(f"s_branch {Lb}")
        if d < depth: a.label(L2)
for Rr, L, D, sl in retries:
    a.hist = []
    a.label(Rr)
    a(f"s_sleep {sl}\ns_add_u32 s68, s68, 1\ns_cmp_lt_u32 s68, {cfg.spin}\ns_cbranch_scc1 {L}\ns_branch {D}")
if cfg.stamps:
    n = len(stamp_names)
    a.hist = []
    a.label("L_stamps")
    if cfg.dbg:
        sel = ["start", "start", "q1", "P1b0", "wq0", "s.ring", "P2b0", "s.P1b1", "s.fin0", "P1b1", "c.B", "c.wq", "s.rel", "s.end", "f.B", "end"]
        a("v_mov_b32 v6, 0")
        a(f"s_not_b32 s70, s{POOL[0]}\nv_writelane_b32 v6, s70, 0")
        for i, nm in enumerate(sel):
            if i and nm in stamp_names: a(f"v_writelane_b32 v6, s{POOL[stamp_names.index(nm)]}, {i}")
        a("v_lshrrev_b32 v4, 2, v2\ns_mov_b64 exec, 0xffff\nglobal_atomic_umax v4, v6, s[54:55] sc1\ns_branch L_fin")
    a(f"""s_lshl_b32 s70, s2, 2
    s_add_u32 s70, s70, s3
    s_mul_i32 s70, s70, {8*n}
    s_add_u32 s70, s70, {STAMP}
    v_mov_b32 v4, 0
    v_mov_b32 v7, 0
    s_mov_b64 exec, 1""")
    for i in range(n):
        a(f"v_mov_b32 v6, s{POOL[i]}\nbuffer_store_dwordx2 v[6:7], v4, s[16:19], s70 offen offset:{8*i}\ns_nop 1")
    a("s_branch L_fin")
    open(sys.argv[1] + ".names", "w").write(" ".join(stamp_names))
    print("nstamps", n, file=sys.stderr)
hdr = open("cdna_kernels/" + NAME + ".s.ref").read().split("; Override launch")[0]
out = hdr + f"; @launch grid=(256,1,1) block=(256,1,1) lds={LDS_TOTAL}\n"
out += f""".amdgcn_target "amdgcn-amd-amdhsa--gfx950"
.text
.globl {NAME}_kernel
.p2align 8
.type {NAME}_kernel,@function
{NAME}_kernel:
""" + a.text() + f""".section .rodata,"a"
.p2align 6
.amdhsa_kernel {NAME}_kernel
  .amdhsa_next_free_vgpr 512
  .amdhsa_next_free_sgpr 102
  .amdhsa_accum_offset 256
  .amdhsa_group_segment_fixed_size 0
  .amdhsa_kernarg_size 104
  .amdhsa_user_sgpr_count 2
  .amdhsa_user_sgpr_kernarg_segment_ptr 1
  .amdhsa_system_sgpr_workgroup_id_x 1
.end_amdhsa_kernel
"""
open(sys.argv[1], "w").write(out)
print("nops added", a.nops_added, "lines", len(a.lines), file=sys.stderr)
```

```python
import sys, struct, math
sys.path.insert(0, "gen")
from asmlib import *

NAME = "interleave_layers__gqa_block_cached__mixer_token_mlp__decode"
def f32(x): return "0x%08x" % struct.unpack("<I", struct.pack("<f", x))[0]

class Cfg:
    stamps = 0
    spin = 20000
    s0 = dict(A=20, B=16, C=24, D=12)
    s1 = 2
    sh = 2
    sg = 8
    go = 24
    roles = 1
    latew = 0
    vsites = 1
    l2n = 128
    dbg = 0
    n0 = 16
    n1 = 5
    thr = -1
    hint = -1
    warm = 0
    relfirst = 0
    ksites = 1
    pf0 = 8
    nogo = 1
    xthr = 0
    thrm = -1
    sA2 = 0
    sB2 = 32
    aw = 0
    d0 = 1
    thrall = 0
    thr3 = 0
    go0 = -1
    j0 = 48
    fa = 3
    dw = 2
    pre = 8
    d1 = 3
    d2 = 2
    d3 = 3
    d4 = 3
cfg = Cfg()
for arg in sys.argv[2:]:
    k, v = arg.split("=")
    if k.startswith("s0"): cfg.s0[k[2]] = int(v)
    else: setattr(cfg, k, int(v))

W = 52; NL = 13; NS = 20
LV = 0; LWO = 53248; LWQ = 86016; LMX = 118784; LXB = 146432; LX = 151040; LQ = 160256; LLN = 162304; LRED = 163456
LO = LX + 8448
LDS_TOTAL = 163840
A_O = lambda i: i * 0x40000
A_L = lambda i: 0x100000 + i * 0x1000
B_A = lambda i: 0x110000 + i * 0x10000
C_A = lambda i: 0x150000 + i * 0x1000
H_A = lambda i: 0x158000 + i * 0x1000
D_A = lambda i: 0x160000 + i * 0x40000
STAMP = 0x10000000
CSM = math.log2(math.e) / math.sqrt(128.0)
C1 = -2.0 * math.sqrt(2.0 / math.pi) * math.log2(math.e)
C2 = C1 * 0.044715
DPPALL = "row_mask:0xf bank_mask:0xf"
CTL4 = ["quad_perm:[1,0,3,2]", "quad_perm:[2,3,0,1]", "row_half_mirror", "row_mirror"]

a = Asm()
POOL = list(range(83, 100)) + list(range(32, 40)) + [43, 50, 51]
stamp_names = []
def stamp(name, cond=None):
    if not cfg.stamps: return
    if name in stamp_names: r = POOL[stamp_names.index(name)]
    else:
        r = POOL[len(stamp_names)]; stamp_names.append(name)
    a("s_memrealtime s[100:101]\ns_waitcnt lgkmcnt(0)")
    if cond is None: a(f"s_mov_b32 s{r}, s100")
    else: a(f"s_cmp_eq_u32 s79, {cond}\ns_cselect_b32 s{r}, s100, s{r}")

def khome(kt): return f"a[{4*kt}:{4*kt+3}]"
def vhome(vt):
    r = W + 4 * (vt - NL); return f"v[{r}:{r+3}]"
def R4(r): return f"v[{r}:{r+3}]"
def R2(r): return f"v[{r}:{r+1}]"

def load_k(kts):
    lastG = None
    for kt in kts:
        G, t, half = kt >> 3, (kt >> 1) & 3, kt & 1
        if G != lastG:
            a(f"s_add_u32 s28, s27, {G*8192}"); lastG = G
        a(f"buffer_load_dwordx4 {khome(kt)}, v1, s[8:11], s28 offen offset:{t*256+half*128} nt")
def load_v(vts):
    lastQ = None
    for vt in vts:
        Q = vt >> 2
        if Q != lastQ:
            a(f"s_add_u32 s28, s27, {Q*4096}")
            if vt < NL: a(f"s_add_u32 m0, s29, {Q*4096}")
            lastQ = Q
        if vt < NL:
            a(f"buffer_load_dwordx4 v2, s[12:15], s28 offen offset:{(vt&3)*1024} nt lds")
        else:
            a(f"buffer_load_dwordx4 {vhome(vt)}, v2, s[12:15], s28 offen offset:{(vt&3)*1024} nt")

def rbf(v, t):
    a(f"v_cvt_pk_bf16_f32 v{t}, v{v}, v{v}\nv_lshlrev_b32 v{v}, 16, v{t}")
def rows_reduce(op, v, t):
    a(f"v_mov_b32 v{t}, v{v}\nv_permlane16_swap_b32 v{v}, v{t}\n{op} v{v}, v{v}, v{t}")
    a(f"v_mov_b32 v{t}, v{v}\nv_permlane32_swap_b32 v{v}, v{t}\n{op} v{v}, v{v}, v{t}")
def row16_reduce(op, vs):
    for ctl in CTL4:
        for v in vs: a(f"{op}_dpp v{v}, v{v}, v{v} {ctl} {DPPALL}")
def sum_to_row3(vs, fillers=()):
    fillers = list(fillers)
    steps = [f"{c} {DPPALL}" for c in CTL4] + ["row_bcast:15 row_mask:0xa bank_mask:0xf", "row_bcast:31 row_mask:0xc bank_mask:0xf"]
    per = (len(fillers) + 5) // 6
    for st in steps:
        for _ in range(per):
            if fillers: a(fillers.pop(0))
        for v in vs: a(f"v_add_f32_dpp v{v}, v{v}, v{v} {st}")
def stats(P, s1, s2, fillers=()):
    for i, p in enumerate(P):
        a(f"v_dot2_f32_bf16 v{s1}, v{p}, s67, {'0' if i == 0 else 'v%d' % s1}")
        a(f"v_dot2_f32_bf16 v{s2}, v{p}, v{p}, {'0' if i == 0 else 'v%d' % s2}")
    sum_to_row3([s1, s2], fillers)
    a(f"v_mul_f32 v{s1}, {f32(1.0/576)}, v{s1}\nv_mul_f32 v{s2}, {f32(1.0/576)}, v{s2}\nv_fma_f32 v{s2}, -v{s1}, v{s1}, v{s2}\nv_max_f32 v{s2}, 0, v{s2}")
def ln_scalars(m, q, mb, r, t):
    a(f"v_cvt_pk_bf16_f32 v{t}, v{m}, v{q}\nv_and_b32 v{r}, 0xffff0000, v{t}\nv_lshlrev_b32 v{mb}, 16, v{t}\nv_add_f32 v{r}, {f32(1e-5)}, v{r}")
    rbf(r, t); a(f"v_sqrt_f32 v{r}, v{r}"); rbf(r, t); a(f"v_rcp_f32 v{r}, v{r}")

def check_sentinel(regs, t):
    regs = list(regs)
    if len(regs) % 2 == 0:
        a(f"v_max_u32 v{t}, v{regs[0]}, v{regs[1]}"); regs = regs[2:]
    else:
        a(f"v_max3_u32 v{t}, v{regs[0]}, v{regs[1]}, v{regs[2]}"); regs = regs[3:]
    for i in range(0, len(regs), 2):
        a(f"v_max3_u32 v{t}, v{t}, v{regs[i]}, v{regs[i+1]}")
    a(f"v_cmp_eq_u32 vcc, -1, v{t}")

tramps = []
def ln(wait, depth=None):
    Lo = a.newlabel("Lt"); Lb = a.newlabel("Ltb")
    a(f"s_cmp_lt_u32 s82, 16\ns_cbranch_scc1 {Lo}")
    if wait: a("s_waitcnt vmcnt(0)")
    a.label(Lb)
    tramps.append((Lo, Lb, wait, depth or (cfg.dw if wait else 1)))
retries = []
def poll(issue, check, s0=0, depth=None):
    L = a.newlabel("Lpoll"); D = a.newlabel("Lpd"); Rr = a.newlabel("Lpr")
    a("s_mov_b32 s68, 0")
    if s0: a(f"s_sleep {s0}")
    a.label(L)
    issue(); ln(True, depth)
    check()
    a(f"s_cbranch_vccnz {Rr}")
    a.label(D)
    retries.append((Rr, L, D, cfg.s1))
def ln_until(n):
    L = a.newlabel("Lrest"); D = a.newlabel("Lrd")
    a.label(L); a(f"s_cmp_ge_u32 s82, {n}\ns_cbranch_scc1 {D}\ns_call_b64 s[80:81], SUB_LN\ns_branch {L}"); a.label(D)
def call(lbl):
    a.flush(); a(f"s_call_b64 s[30:31], {lbl}")
def ret():
    a.flush(); a("s_setpc_b64 s[30:31]")
def flagwait(inst, sl, off=0, count=0):
    a(f"s_lshl_b32 s70, s4, 7\ns_add_u32 s70, s70, {H_A(inst)+off}\nv_mov_b32 v4, 0")
    L = a.newlabel("Lh"); D = a.newlabel("Lhd")
    a(f"s_mov_b32 s68, 0\ns_cmp_lg_u32 s3, 0\ns_cbranch_scc1 {D}")
    a.label(L)
    a(f"buffer_load_dword v5, v4, s[16:19], s70 offen sc1\ns_waitcnt vmcnt(0)")
    a(f"v_cmp_gt_i32 vcc, {count*0xffff - 1}, v5" if count else "v_cmp_eq_u32 vcc, -1, v5")
    a(f"s_cbranch_vccz {D}")
    a(f"s_sleep {sl}\ns_add_u32 s68, s68, 1\ns_cmp_lt_u32 s68, {cfg.spin}\ns_cbranch_scc1 {L}")
    a.label(D)
    a("s_barrier")

def qg_issue(base, sb):
    for i in range(9):
        a(f"buffer_load_dword v{base+i}, v22, s[16:19], s{sb + (i>>2)} offen offset:{(i&3)*1024} sc1")
def qg_sum(base):
    b = base
    a(f"""v_add_f32 v{b}, v{b}, v{b+1}
    v_add_f32 v{b+2}, v{b+2}, v{b+3}
    v_add_f32 v{b+4}, v{b+4}, v{b+5}
    v_add_f32 v{b+6}, v{b+6}, v{b+7}
    v_add_f32 v{b}, v{b}, v{b+2}
    v_add_f32 v{b+4}, v{b+4}, v{b+6}
    v_add_f32 v{b}, v{b}, v{b+8}
    v_add_f32 v{b}, v{b}, v{b+4}
    v_cvt_pk_bf16_f32 v{b}, v{b}, v{b}""")

a(f"""
s_cmp_ge_u32 s2, 256
s_cbranch_scc1 L_end
s_load_dwordx16 s[32:47], s[0:1], 0
s_load_dwordx8 s[48:55], s[0:1], 64
s_load_dwordx2 s[56:57], s[0:1], 96
v_lshrrev_b32 v1, 6, v0
v_readfirstlane_b32 s3, v1
v_and_b32 v0, 63, v0
s_lshr_b32 s4, s2, 4
s_and_b32 s6, s2, 15
s_add_u32 s5, s6, s4
s_and_b32 s5, s5, 15
v_lshlrev_b32 v2, 4, v0
v_bfe_u32 v1, v0, 1, 3
v_lshlrev_b32 v1, 10, v1
v_lshrrev_b32 v3, 4, v0
v_lshl_add_u32 v1, v3, 5, v1
v_and_b32 v3, 1, v0
v_lshl_add_u32 v1, v3, 4, v1
s_lshl_b32 s27, s2, 18
s_lshl_b32 s28, s3, 16
s_add_u32 s27, s27, s28
s_mov_b32 s10, 0x8000000
s_mov_b32 s11, 0x20000
s_mov_b32 s14, 0x8000000
s_mov_b32 s15, 0x20000
s_mov_b32 s18, 0x20000000
s_mov_b32 s19, 0x20000
s_mov_b32 s23, 0x20000
s_waitcnt lgkmcnt(0)
s_mov_b32 s8, s34
s_mov_b32 s9, s35
""")
load_k(range(0, cfg.pre))
a(f"""
s_mov_b32 s12, s36
s_mov_b32 s13, s37
s_mov_b32 s16, s56
s_mov_b32 s17, s57
s_mov_b32 s82, {cfg.pre//8}
s_mov_b32 s79, 0
s_cmp_ge_u32 s5, 9
s_cselect_b32 s42, 1, {cfg.thrall}
""")
if cfg.xthr: a("s_getreg_b32 s42, hwreg(HW_REG_XCC_ID)\ns_andn2_b32 s42, 1, s42")
a(f"""
s_mov_b32 s24, 0xaaaaaaaa
s_mov_b32 s25, 0xaaaaaaaa
v_mov_b32 v3, 0xffff
v_mov_b32 v4, 0xffff0000
v_cndmask_b32 v3, v3, v4, s[24:25]
s_mov_b32 s26, {f32(CSM)}
s_mov_b32 s67, 0x3f803f80
s_mul_i32 s29, s3, {NL*1024}
""")
for r in POOL[:17]:
    if cfg.stamps: a(f"s_mov_b32 s{r}, 0")
stamp("start")
if cfg.warm:
    a("""s_add_u32 s70, s27, 0x4000000
    s_mov_b64 exec, 1
    buffer_load_dword v40, v2, s[12:15], s27 offen nt
    buffer_load_dword v41, v2, s[8:11], s70 offen nt
    buffer_load_dword v42, v2, s[12:15], s70 offen nt
    global_load_ushort v43, v2, s[52:53]
    global_load_dword v44, v2, s[54:55] offset:192
    s_mov_b64 exec, -1""")
a(f"""
v_mov_b32 v4, -1
v_mov_b32 v5, -1
v_mov_b32 v6, -1
v_mov_b32 v7, -1
s_lshl_b32 s70, s3, 18
s_lshl_b32 s71, s2, 10
s_add_u32 s70, s70, s71
buffer_store_dwordx4 v[4:7], v2, s[16:19], s70 offen sc1
s_lshl_b32 s70, s3, 12
s_lshl_b32 s71, s4, 7
s_add_u32 s70, s70, s71
s_lshl_b32 s71, s6, 2
s_add_u32 s70, s70, s71
s_add_u32 s70, s70, {A_L(0)}
v_lshlrev_b32 v8, 6, v0
s_mov_b64 exec, 3
buffer_store_dword v4, v8, s[16:19], s70 offen sc1
s_mov_b64 exec, -1
v_mov_b32 v11, 0
global_load_ushort v23, v11, s[50:51]
s_mul_i32 s7, s4, 9
s_add_u32 s7, s7, s5
s_cmp_ge_u32 s5, 9
s_cbranch_scc1 L_pro_s1
v_lshlrev_b32 v8, 2, v0
s_lshl_b32 s70, s3, 16
s_lshl_b32 s71, s7, 8
s_add_u32 s70, s70, s71
s_add_u32 s70, s70, {B_A(0)}
buffer_store_dword v4, v8, s[16:19], s70 offen sc1
s_lshl_b32 s70, s3, 18
s_lshl_b32 s71, s7, 10
s_add_u32 s70, s70, s71
s_add_u32 s70, s70, {D_A(0)}
buffer_store_dwordx4 v[4:7], v2, s[16:19], s70 offen sc1
s_lshl_b32 s70, s3, 12
s_lshl_b32 s71, s7, 4
s_add_u32 s70, s70, s71
s_add_u32 s70, s70, {C_A(0)}
s_mov_b64 exec, 15
buffer_store_dword v4, v8, s[16:19], s70 offen sc1
s_lshl_b32 s70, s3, 12
s_lshl_b32 s71, s4, 7
s_add_u32 s70, s70, s71
s_add_u32 s70, s70, {H_A(0)}
buffer_store_dword v4, v8, s[16:19], s70 offen sc1
s_mov_b64 exec, -1
s_mov_b32 s20, s32
s_mov_b32 s21, s33
s_mov_b32 s22, 2304
v_lshlrev_b32 v9, 3, v0
v_lshlrev_b32 v10, 1, v0
buffer_load_dwordx2 v[12:13], v9, s[20:23], 0 offen
buffer_load_dwordx2 v[14:15], v9, s[20:23], 0 offen offset:512
buffer_load_ushort v16, v10, s[20:23], 0 offen offset:1024
buffer_load_dwordx2 v[18:19], v9, s[20:23], 0 offen offset:1152
buffer_load_dwordx2 v[20:21], v9, s[20:23], 0 offen offset:1664
buffer_load_ushort v22, v10, s[20:23], 0 offen offset:2176
s_mov_b32 s20, s38
s_mov_b32 s21, s39
s_mov_b32 s22, {576*8192}
v_lshrrev_b32 v24, 5, v0
v_and_b32 v25, 31, v0
v_lshlrev_b32 v25, 4, v25
v_lshlrev_b32 v26, 5, v24
v_xor_b32 v25, v25, v26
v_lshl_add_u32 v24, v24, 13, v25
v_xor_b32 v25, 64, v24
v_xor_b32 v26, 128, v24
v_xor_b32 v27, 192, v24
s_lshl_b32 s70, s5, 19
s_lshl_b32 s71, s3, 17
s_add_u32 s70, s70, s71
s_lshl_b32 s71, s4, 9
s_add_u32 s70, s70, s71
s_lshl_b32 s71, s3, 13
s_add_u32 s71, s71, {LWQ}
""")
for i in range(8):
    fs = ((i >> 2) & 1) * 2 + (i & 1)
    a(f"s_add_u32 m0, s71, {i*1024}\nbuffer_load_dwordx4 v{24+fs}, s[20:23], s70 offen nt lds")
    if i < 7: a("s_add_u32 s70, s70, 16384")
a.label("L_pro_s1")
ln(True, cfg.d1)
pass
a(f"""
v_lshlrev_b32 v23, 16, v23
v_readfirstlane_b32 s78, v23
s_mov_b32 s56, {LMX}
s_cmp_ge_u32 s5, 9
s_cbranch_scc1 L_pro_s2
v_add_u32 v24, {LXB}, v2
v_lshlrev_b32 v25, 2, v0
v_add_u32 v25, {LXB+2048}, v25
""")
for b in range(2):
    r = 12 + 6 * b
    a(f"""v_lshlrev_b32 v28, 16, v{r}
    v_and_b32 v29, 0xffff0000, v{r}
    v_lshlrev_b32 v30, 16, v{r+1}
    v_and_b32 v31, 0xffff0000, v{r+1}
    v_lshlrev_b32 v32, 16, v{r+2}
    v_and_b32 v33, 0xffff0000, v{r+2}
    v_lshlrev_b32 v34, 16, v{r+3}
    v_and_b32 v35, 0xffff0000, v{r+3}
    v_lshlrev_b32 v36, 16, v{r+4}
    ds_write_b128 v24, v[28:31] offset:{b*2304}
    ds_write_b128 v24, v[32:35] offset:{b*2304+1024}
    ds_write_b32 v25, v36 offset:{b*2304}
    s_waitcnt lgkmcnt(0)""")
a.label("L_pro_s2")
a(f"""
s_barrier
s_cmp_lg_u32 s3, {cfg.aw}
s_cbranch_scc1 L_pro_arr
v_mov_b32 v4, 0
v_mov_b32 v5, 1
s_mov_b64 exec, 1
global_atomic_add v6, v4, v5, s[54:55] offset:64 sc0 sc1
s_mov_b64 exec, -1
""")
ln(True, cfg.d0)
a(f"""v_readfirstlane_b32 s70, v6
s_cmp_lg_u32 s70, 255
s_cbranch_scc1 L_pro_arr
s_mov_b64 exec, 1
global_store_dword v4, v5, s[54:55] offset:128 sc1
s_mov_b64 exec, -1
L_pro_arr:
s_cmp_ge_u32 s5, 9
s_cbranch_scc1 L_pro_s3
""")
for b in range(2):
    a(f"s_mov_b32 s63, 1\ns_mov_b32 s64, {LXB + b*2304}\ns_mov_b32 s62, {D_A(b)}")
    call("SUB_CH2")
    if b == 0: a("s_barrier")
def load_wo():
    a(f"""
    s_mov_b32 s20, s40
    s_mov_b32 s21, s41
    s_mov_b32 s22, {4096*1152}
    v_lshrrev_b32 v24, 3, v0
    v_mul_u32_u24 v24, 1152, v24
    v_and_b32 v25, 7, v0
    v_lshlrev_b32 v25, 4, v25
    v_bfe_u32 v26, v0, 4, 1
    v_lshlrev_b32 v26, 5, v26
    v_xor_b32 v25, v25, v26
    v_xor_b32 v26, 64, v25
    v_add_u32 v25, v25, v24
    v_add_u32 v26, v26, v24
    s_lshl_b32 s70, s4, 2
    s_add_u32 s70, s70, s3
    s_mul_i32 s70, s70, {64*1152}
    s_lshl_b32 s71, s5, 7
    s_add_u32 s70, s70, s71
    s_lshl_b32 s71, s3, 13
    s_add_u32 s71, s71, {LWO}
    """)
    for i in range(8):
        a(f"s_add_u32 m0, s71, {i*1024}\nbuffer_load_dwordx4 v{25+(i&1)}, s[20:23], s70 offen nt lds")
        if i < 7: a(f"s_add_u32 s70, s70, {8*1152}")
def load_mixer(base):
    a(f"""
    s_lshl_b32 s70, s3, 10
    v_add_u32 v24, s70, v2
    v_add_u32 v25, 4096, v24
    v_add_u32 v26, 8192, v2
    s_add_u32 s71, s70, {base}
    """)
    for j, p in enumerate((44, 46, 48)):
        a(f"""s_add_u32 m0, s71, {j*9216}
        global_load_lds_dwordx4 v24, s[{p}:{p+1}]
        s_add_u32 m0, s71, {j*9216+4096}
        global_load_lds_dwordx4 v25, s[{p}:{p+1}]
        s_mov_b32 m0, {base+j*9216+8192}
        global_load_lds_dwordx4 v26, s[{p}:{p+1}]""")
if not cfg.latew:
    load_wo(); load_mixer(LMX)
a.label("L_pro_s3")
for r in POOL[17:]:
    if cfg.stamps: a(f"s_mov_b32 s{r}, 0")
ln(False, cfg.d2)
a("v_mov_b32 v4, 0")
poll(lambda: a("global_load_dword v5, v4, s[54:55] offset:128 sc1"), lambda: a("v_cmp_eq_u32 vcc, 0, v5"), depth=cfg.d3)
stamp("cnt")
a(f"""s_lshl_b32 s70, s3, 8
v_lshl_add_u32 v22, v0, 2, s70
s_mul_i32 s69, s4, 9216
s_add_u32 s70, s69, {D_A(0)}
s_add_u32 s71, s70, 4096
s_add_u32 s72, s70, 8192
s_add_u32 s73, s69, {D_A(1)}
s_add_u32 s74, s73, 4096
s_add_u32 s75, s73, 8192
v_lshrrev_b32 v24, 1, v22
v_add_u32 v24, {LQ}, v24""")
poll(lambda: (qg_issue(4, 70), qg_issue(13, 73)), lambda: check_sentinel(range(4, 22), 23), depth=cfg.d4)
qg_sum(4); qg_sum(13)
a("ds_write_b16 v24, v4\nds_write_b16 v24, v13 offset:512")
stamp("q1")
ln_until(10)
a("s_waitcnt lgkmcnt(0)\ns_barrier")

def att_params(ai, seq):
    a(f"s_mov_b32 s58, {A_O(ai)}\ns_mov_b32 s59, {A_L(ai)}\ns_mov_b32 s65, {LQ + ai*512}\ns_mov_b32 s64, {LX + (seq&1)*4224}")
def hint_addr(ai):
    a(f"s_lshl_b32 s62, s4, 7\ns_add_u32 s62, s62, {H_A(ai)+8}")
def att_p1(ai, seq):
    att_params(ai, seq); hint_addr(ai); a("s_mov_b64 vcc, -1"); call("SUB_ATT")
def qatt(ai, seq, loadnext):
    att_params(ai, seq); a(f"s_mov_b32 s62, {D_A(ai)}\ns_mov_b32 s63, {2 if loadnext else 0}"); call("SUB_QATT")
def ch1(inst, final, entry="SUB_CH1", aonly=False):
    b = inst & 1
    a(f"s_mov_b32 s58, {A_O(inst)}\ns_mov_b32 s59, {A_L(inst)}\ns_mov_b32 s60, {B_A(inst)}\ns_mov_b32 s64, {LXB + b*2304}")
    a(f"s_mov_b32 s63, {2 if aonly else 1 if final else 0}\ns_mov_b32 s61, {b*1152 if final else C_A(inst)}")
    call(entry)
def ch2(inst):
    b = inst & 1
    a(f"s_mov_b32 s63, 0\ns_mov_b32 s61, {C_A(inst)}\ns_mov_b32 s64, {LXB + b*2304}\ns_mov_b32 s62, {D_A(2+inst)}")
    call("SUB_CH2")

a(f"s_cmp_eq_u32 s3, 0\ns_cselect_b32 s63, 4, 0\ns_lshl_b32 s60, s4, 7\ns_add_u32 s60, s60, {H_A(2)+4}")
att_p1(0, 0)
stamp("P1b0")
a("s_add_u32 s27, s27, 0x4000000\ns_cmp_ge_u32 s5, 9\ns_cbranch_scc1 L_srole")
a(f"s_mov_b32 s42, {cfg.thr3}")
if cfg.latew:
    load_wo(); load_mixer(LMX)
    a("s_waitcnt vmcnt(9)\ns_barrier")
ch1(0, False); ch2(0)
stamp("wq0")
a(f"s_mov_b32 s69, {cfg.s0['D']}")
qatt(2, 1, True)
stamp("P2b0")
if cfg.roles:
    ln_until(cfg.fa)
    ch1(2, True, aonly=True)
    a(f"""s_or_b32 s70, s5, s3
    s_cbranch_scc1 L_nf3
    s_lshl_b32 s70, s4, 7
    s_add_u32 s70, s70, {H_A(3)}
    s_mov_b64 exec, 1
    buffer_store_dword v2, v2, s[16:19], s70 offen sc1
    s_mov_b64 exec, -1
    L_nf3:""")
else:
    ch1(2, True)
stamp("fin0")
ln_until(10)
a(f"s_cmp_eq_u32 s3, 0\ns_cselect_b32 s63, 3, 0\ns_lshl_b32 s60, s4, 7\ns_add_u32 s60, s60, {H_A(2)}")
att_p1(1, 2)
stamp("P1b1")
a("s_mov_b32 s79, 1")
ch1(1, False); ch2(1)
qatt(3, 3, False)
stamp("P2b1")
a("s_mov_b32 s79, 2")
ch1(3, True)
stamp("end")
a("s_branch L_stamps" if cfg.stamps else "s_branch L_fin")
def s_reload():
    if not cfg.nogo: flagwait(2, cfg.sg, 0, cfg.n1)
    stamp("s.go")
    a("s_mov_b32 s82, 0")
    ln_until(8)
    load_v(range(13, 16))
    a("s_mov_b32 s82, 10\ns_mov_b32 s29, s57")
    ln_until(8 + cfg.j0 // 8)
    a("s_mov_b32 s82, 16")
    if cfg.stamps: a("s_waitcnt vmcnt(0)")
    stamp("s.rel")
a.label("L_srole")
a("s_mov_b32 s42, 0")
a(f"s_mov_b32 s69, 0")
if cfg.roles:
    a(f"s_mul_i32 s57, s3, {NS*1024}\ns_add_u32 s57, s57, {LWO}")
    if cfg.go0 >= 0: flagwait(2, cfg.sh, 4, cfg.n0)
    att_params(1, 1); call("SUB_RING")
    stamp("s.ring")
    flagwait(0, cfg.sh)
    qatt(2, 2, False)
    stamp("s.P2b0")
    if cfg.j0 < 64:
        att_params(1, 1); hint_addr(1); a("s_mov_b32 s63, 0"); call("SUB_RESUME")
        stamp("s.P1b1")
    if cfg.pf0 < 8:
        nun = 36 * (8 - cfg.pf0)
        a(f"""v_lshlrev_b32 v4, 7, v0
        s_sub_u32 s70, s5, 9
        s_lshl_b32 s70, s70, 2
        s_add_u32 s70, s70, s3
        s_mov_b32 s71, {(1 << 32) // 36 + 1}""")
        for i in range((nun + 27) // 28):
            L = a.newlabel("Lpf")
            if (i + 1) * 28 > nun: a(f"s_cmp_ge_u32 s70, {nun}\ns_cbranch_scc1 {L}")
            a(f"""s_mul_hi_u32 s72, s70, s71
            s_mul_i32 s73, s72, 36
            s_sub_u32 s73, s70, s73
            s_lshr_b32 s74, s73, 2
            s_sub_u32 s74, s74, s4
            s_and_b32 s74, s74, 15
            s_lshl_b32 s75, s4, 4
            s_add_u32 s74, s74, s75
            s_lshl_b32 s74, s74, 18
            s_and_b32 s73, s73, 3
            s_lshl_b32 s73, s73, 16
            s_add_u32 s74, s74, s73
            s_lshl_b32 s72, s72, 13
            s_add_u32 s74, s74, s72
            s_add_u32 s74, s74, {0x4000000 + cfg.pf0 * 8192}
            buffer_load_dword a{i}, v4, s[12:15], s74 offen
            s_add_u32 s70, s70, 28""")
            a.label(L)
    if cfg.relfirst: s_reload()
    load_mixer(0)
    a(f"""s_mov_b32 s56, 0
    s_mov_b32 s70, {C_A(0)}
    v_lshlrev_b32 v13, 2, v0
    buffer_load_dwordx4 v[4:7], v2, s[16:19], s70 offen sc1
    buffer_load_dwordx4 v[8:11], v2, s[16:19], s70 offen offset:1024 sc1
    buffer_load_dword v12, v13, s[16:19], s70 offen offset:2048 sc1
    v_add_u32 v14, {LXB}, v2
    v_add_u32 v13, {LXB}, v13
    s_mul_i32 s7, s4, 7
    s_add_u32 s7, s7, s5
    s_sub_u32 s7, s7, 9
    s_waitcnt vmcnt(0)
    ds_write_b128 v14, v[4:7]
    ds_write_b128 v14, v[8:11] offset:1024
    ds_write_b32 v13, v12 offset:2048""")
    flagwait(3, cfg.sg)
    ch1(2, True, entry="SUB_CH1B")
    a("s_add_u32 s7, s7, 112\ns_cmp_ge_u32 s7, 144\ns_cbranch_scc1 L_s_nf")
    call("SUB_CH1B")
    a.label("L_s_nf")
    stamp("s.fin0")
    if not cfg.relfirst: s_reload()
else:
    flagwait(0, cfg.sh)
    qatt(2, 1, True)
    ln_until(10)
    a("s_mov_b32 s63, 0")
    att_p1(1, 2)
    stamp("s.P1b1")
flagwait(1, cfg.sh)
qatt(3, 2 if (cfg.roles and cfg.j0 < 64) else 3, False)
stamp("s.end")
if cfg.stamps: a("s_branch L_stamps")
a.label("L_fin")
a("s_waitcnt vmcnt(0)")
a.label("L_end")
a("s_endpgm")

def att_pre(zero=True):
    a(f"""
    v_bfe_u32 v15, v0, 1, 1
    v_lshlrev_b32 v12, 8, v15
    v_lshrrev_b32 v13, 4, v0
    v_lshl_add_u32 v12, v13, 5, v12
    v_and_b32 v14, 1, v0
    v_lshl_add_u32 v12, v14, 4, v12
    v_add_u32 v12, s65, v12
    v_xor_b32 v15, v15, v14
    v_lshlrev_b32 v47, 9, v15
    v_lshl_add_u32 v47, v13, 7, v47
    v_bfe_u32 v15, v0, 2, 2
    v_lshl_add_u32 v47, v15, 3, v47
    v_lshl_add_u32 v47, v14, 2, v47
    s_lshl_b32 s70, s3, 10
    s_add_u32 s70, s70, s64
    v_add_u32 v47, s70, v47
    """)
    if zero:
        for i in range(8): a(f"v_mov_b32 v{34+i}, 0")
def Dset(i): return 12 + 4 * (i % 3)
def adds(i):
    G, t = i >> 2, i & 3; d = Dset(i)
    a(f"v_add_f32_dpp v32, v{d+1}, v{d} quad_perm:[1,0,3,2] row_mask:{1<<t:#x} bank_mask:0xf")
    a(f"v_add_f32_dpp v33, v{d+2}, v{d+3} quad_perm:[1,0,3,2] row_mask:{1<<t:#x} bank_mask:0xf")
    if t == 3:
        a(f"v_cndmask_b32 v{24+G}, v32, v33, s[24:25]")
        if G == 1: a("v_max_f32 v46, v24, v25")
        elif G % 2 == 1: a(f"v_max3_f32 v46, v46, v{23+G}, v{24+G}")
def kmm(kt, src):
    d = Dset(kt >> 1)
    if kt & 1: a(f"v_mfma_f32_16x16x32_bf16 {R4(d)}, v[8:11], {src}, {R4(d)}")
    else: a(f"v_mfma_f32_16x16x32_bf16 {R4(d)}, v[4:7], {src}, 0")
def softmax():
    for ctl in ("quad_perm:[2,3,0,1]", "row_ror:4", "row_ror:8"):
        a(f"v_max_f32_dpp v46, v46, v46 {ctl} {DPPALL}")
    rows_reduce("v_max_f32", 46, 32)
    a("v_mul_f32 v32, s26, v46")
    for G in range(8): a(f"v_fma_f32 v{24+G}, v{24+G}, s26, -v32")
    for G in range(8): a(f"v_exp_f32 v{24+G}, v{24+G}")
    a("v_pk_add_f32 v[4:5], v[24:25], v[26:27]\nv_pk_add_f32 v[6:7], v[28:29], v[30:31]\nv_pk_add_f32 v[4:5], v[4:5], v[6:7]\nv_add_f32 v51, v4, v5")
    lctl = ["quad_perm:[2,3,0,1]", "row_ror:8", "row_ror:4"]
    for G in range(8):
        t = 32 + (G & 1)
        a(f"v_mov_b32_dpp v{t}, v{24+G} quad_perm:[1,0,3,2] {DPPALL}")
        if G in (1, 3, 5): a(f"v_add_f32_dpp v51, v51, v51 {lctl[G//2]} {DPPALL}")
        a(f"v_cvt_pk_bf16_f32 v{24+G}, v{24+G}, v{t}")
    rows_reduce("v_add_f32", 51, 32)
curG = [None]
def build(vt, par):
    G, kap = vt >> 3, vt & 7
    if G != curG[0]:
        for rot in (1, 2, 3): a(f"v_mov_b32_dpp v{47+rot}, v{24+G} row_ror:{4*rot} {DPPALL}")
        curG[0] = G
    bs = 34 + 4 * par; x = 2 * (kap & 1); hb = kap >> 1
    for rot in range(4):
        k = (hb + rot) % 4
        z = 24 + G if rot == 0 else 47 + rot
        a(f"v_and_b32_dpp v{bs+k}, v{z}, v3 quad_perm:[{x},{x},{x+1},{x+1}] row_mask:0xf bank_mask:{1<<k:#x}")
def vmm(src, par, first):
    a(f"v_mfma_f32_16x16x32_bf16 v[42:45], {src}, {R4(34+4*par)}, {'0' if first else 'v[42:45]'}")

a.hist = []
a.label("SUB_QATT")
att_pre()
a(f"""s_lshl_b32 s70, s3, 8
v_lshl_add_u32 v22, v0, 2, s70
s_mul_i32 s70, s4, 9216
s_add_u32 s70, s70, s62
s_add_u32 s71, s70, 4096
s_add_u32 s72, s70, 8192
v_lshrrev_b32 v24, 1, v22
v_add_u32 v24, s65, v24
s_cmp_eq_u32 s69, 0
s_cbranch_scc1 L_qatt_ns
s_sleep {max(1, cfg.s0['D'])}
L_qatt_ns:""")
poll(lambda: qg_issue(13, 70), lambda: check_sentinel(range(13, 22), 23))
qg_sum(13)
a("ds_write_b16 v24, v13\ns_cmp_eq_u32 s63, 2\ns_cselect_b32 s82, 0, s82\ns_mov_b64 vcc, 0\ns_waitcnt lgkmcnt(0)\ns_barrier")
stamp("q2b1", 1)
a.label("SUB_ATT2")
outofline = []
def site(fn):
    Lo = a.newlabel("Lo"); Lb = a.newlabel("Lb")
    a(f"s_cbranch_vccnz {Lo}"); a.label(Lb)
    outofline.append((Lo, Lb, fn))
def lnif():
    L = a.newlabel("Lki")
    a(f"s_cmp_ge_u32 s82, 16\ns_cbranch_scc1 {L}\ns_call_b64 s[80:81], SUB_LN"); a.label(L)
a("ds_read_b128 v[4:7], v12\nds_read_b128 v[8:11], v12 offset:128\ns_waitcnt vmcnt(16) lgkmcnt(0)")
for i in range(32):
    kmm(2*i, khome(2*i)); kmm(2*i+1, khome(2*i+1))
    if i >= 2: adds(i - 2)
    if cfg.ksites and i in (0, 15): site(lnif)
    if i in (3, 7):
        Lo = a.newlabel("Lo"); Lb = a.newlabel("Lb")
        a(f"s_cmp_lt_u32 s82, 2\ns_cbranch_scc1 {Lo}"); a.label(Lb)
        outofline.append((Lo, Lb, lambda: a("s_call_b64 s[80:81], SUB_LN")))
adds(30); adds(31)
if cfg.ksites: site(lnif)
softmax()
a("v_add_u32 v33, s29, v2")
sites = list(range(0, 60, 4)) + [60, 61, 62, 63]
def fetch(i):
    if i in sites:
        nxt = [s for s in sites if s > i]
        last = (nxt[0] if nxt else 64) - 1
        g = min(7, (i >> 3) + 2)
        def fn(i=i, g=g, last=last):
            if i % 8 == 0 and (i >> 3) + 2 <= 7:
                L = a.newlabel("Lsk")
                a(f"s_cmp_gt_u32 s82, {8+g}\ns_cbranch_scc1 {L}\ns_call_b64 s[80:81], SUB_LN"); a.label(L)
            a(f"s_waitcnt vmcnt({8*g + 7 - last})")
            for gi, code in ((cfg.go, 3), (cfg.go0, 4)):
              if i == gi:
                L = a.newlabel("Lsg")
                a(f"s_cmp_lg_u32 s63, {code}\ns_cbranch_scc1 {L}\ns_mov_b64 exec, 1\nbuffer_atomic_add v3, v2, s[16:19], s60 offen sc1\ns_mov_b64 exec, -1"); a.label(L)
            if i == cfg.hint:
                L = a.newlabel("Lsh")
                a(f"s_cmp_lg_u32 s3, 0\ns_cbranch_scc1 {L}\ns_mov_b64 exec, 1\nbuffer_atomic_add v3, v2, s[16:19], s62 offen sc1\ns_mov_b64 exec, -1"); a.label(L)
        site(fn)
    if i < NL:
        a(f"ds_read_b128 {R4(12 + 4*(i%3))}, v33 offset:{i*1024}")
curG[0] = None
for i in range(66):
    if i == cfg.j0 + 2: a.label("L_att_resume")
    if i < NL: fetch(i)
    if 1 <= i <= 64: build(i - 1, (i - 1) & 1)
    if i >= 2:
        j = i - 2
        if j >= NL: fetch(j); src = vhome(j)
        else:
            a(f"s_waitcnt lgkmcnt({min(NL - 1, j + 2) - j})"); src = R4(12 + 4*(j%3))
        vmm(src, j & 1, j == 0)
        if cfg.vsites and j in (2, 18, 34, 50):
            Lo = a.newlabel("Lo"); Lb = a.newlabel("Lb")
            a(f"s_cmp_lt_u32 s82, 8\ns_cbranch_scc1 {Lo}"); a.label(Lb)
            outofline.append((Lo, Lb, lambda: a("s_call_b64 s[80:81], SUB_LN")))
a.label("L_att_epi")
a(f"""
v_and_b32 v32, 1, v0
v_lshlrev_b32 v32, 5, v32
s_lshl_b32 s70, s3, 2
s_add_u32 s70, s70, s64
s_add_u32 s70, s70, 4096
v_add_u32 v32, s70, v32
ds_write2_b32 v32, v46, v51 offset0:0 offset1:4
v_add_u32 v32, s64, v2
v_lshrrev_b32 v33, 5, v0
v_lshlrev_b32 v34, 6, v33
v_lshlrev_b32 v33, 5, v33
v_add_u32 v33, s64, v33
ds_write2_b32 v47, v42, v43 offset0:0 offset1:8
ds_write2_b32 v47, v44, v45 offset0:16 offset1:24
s_lshl_b32 s70, s2, 10
s_add_u32 s70, s70, s58
s_lshl_b32 s71, s4, 7
s_add_u32 s71, s71, s59
s_lshl_b32 s72, s6, 2
s_add_u32 s71, s71, s72
s_cmp_lg_u32 s3, 0
s_waitcnt lgkmcnt(0)
s_barrier
s_cbranch_scc1 L_att_ret
ds_read_b128 v[20:23], v33 offset:4096
ds_read_b128 v[24:27], v33 offset:4112
ds_read_b128 v[4:7], v32
ds_read_b128 v[8:11], v32 offset:1024
ds_read_b128 v[12:15], v32 offset:2048
ds_read_b128 v[16:19], v32 offset:3072
s_waitcnt lgkmcnt(4)
v_max3_f32 v28, v20, v21, v22
v_max_f32 v28, v28, v23
v_mul_f32 v28, s26, v28
""")
for w in range(4): a(f"v_fma_f32 v{20+w}, v{20+w}, s26, -v28")
for w in range(4): a(f"v_exp_f32 v{20+w}, v{20+w}")
a("""v_mul_f32 v30, v20, v24
v_fmac_f32 v30, v21, v25
v_fmac_f32 v30, v22, v26
v_fmac_f32 v30, v23, v27
s_waitcnt lgkmcnt(0)
v_pk_mul_f32 v[4:5], v[4:5], v[20:21] op_sel:[0,0] op_sel_hi:[1,0]
v_log_f32 v29, v30
v_rcp_f32 v30, v30
v_pk_mul_f32 v[6:7], v[6:7], v[20:21] op_sel:[0,0] op_sel_hi:[1,0]
v_pk_fma_f32 v[4:5], v[8:9], v[20:21], v[4:5] op_sel:[0,1,0] op_sel_hi:[1,1,1]
v_pk_fma_f32 v[6:7], v[10:11], v[20:21], v[6:7] op_sel:[0,1,0] op_sel_hi:[1,1,1]
v_pk_fma_f32 v[4:5], v[12:13], v[22:23], v[4:5] op_sel:[0,0,0] op_sel_hi:[1,0,1]
v_pk_fma_f32 v[6:7], v[14:15], v[22:23], v[6:7] op_sel:[0,0,0] op_sel_hi:[1,0,1]
v_pk_fma_f32 v[4:5], v[16:17], v[22:23], v[4:5] op_sel:[0,1,0] op_sel_hi:[1,1,1]
v_pk_fma_f32 v[6:7], v[18:19], v[22:23], v[6:7] op_sel:[0,1,0] op_sel_hi:[1,1,1]
v_pk_mul_f32 v[4:5], v[4:5], v[30:31] op_sel:[0,0] op_sel_hi:[1,0]
v_pk_mul_f32 v[6:7], v[6:7], v[30:31] op_sel:[0,0] op_sel_hi:[1,0]
v_add_f32 v29, v29, v28
buffer_store_dwordx4 v[4:7], v2, s[16:19], s70 offen sc1
s_mov_b32 exec_lo, 1
s_mov_b32 exec_hi, 1
buffer_store_dword v29, v34, s[16:19], s71 offen sc1
s_mov_b64 exec, -1
L_att_ret:""")
ret()
a.hist = []
a.label("SUB_ATT")
att_pre()
a("s_branch SUB_ATT2")
for Lo, Lb, fn in outofline:
    a.hist = []
    a.label(Lo); fn(); a(f"s_branch {Lb}")

a.hist = []
a.label("SUB_LN")
if cfg.thr >= 0: a(f"s_cmp_eq_u32 s42, 0\ns_cbranch_scc1 L_ln_nt\ns_waitcnt vmcnt({cfg.thr})\nL_ln_nt:")
for k in range(15): a(f"s_cmp_eq_u32 s82, {k}\ns_cbranch_scc1 L_lnb{k}")
for k in [15] + list(range(15)):
    a.label(f"L_lnb{k}")
    for hlf in range(2):
        if hlf and cfg.thrm >= 0: a(f"s_cmp_eq_u32 s42, 0\ns_cbranch_scc1 L_lnm{k}\ns_waitcnt vmcnt({cfg.thrm})\nL_lnm{k}:")
        if k < 8: load_k(range(8*k+4*hlf, 8*k+4*hlf+4))
        else: load_v(range(8*(k-8)+4*hlf, 8*(k-8)+4*hlf+4))
    a("s_add_u32 s82, s82, 1\ns_setpc_b64 s[80:81]")

a.hist = []
a.label("SUB_CH1")
a(f"""
v_lshrrev_b32 v21, 4, v0
v_bfe_u32 v22, v0, 2, 2
v_lshl_add_u32 v23, v21, 3, v22
v_lshlrev_b32 v23, 7, v23
v_bfe_u32 v21, v0, 3, 2
v_xor_b32 v21, s3, v21
v_lshl_add_u32 v23, v21, 5, v23
v_and_b32 v21, 3, v0
v_lshl_add_u32 v23, v21, 3, v23
v_add_u32 v23, {LWO}, v23
""")
for ks in range(7):
    for jh in range(2):
        a(f"ds_read_b64_tr_b16 {R2(24 + 4*ks + 2*jh)}, v23 offset:{(32*ks+4*jh)*128}")
a(f"""
v_lshlrev_b32 v21, 2, v0
s_lshl_b32 s70, s4, 14
s_add_u32 s70, s70, s58
s_lshl_b32 s71, s3, 8
s_add_u32 s70, s70, s71
s_add_u32 s71, s70, 4096
s_add_u32 s72, s70, 8192
s_add_u32 s73, s70, 12288
s_lshl_b32 s74, s4, 7
s_add_u32 s74, s74, s59
s_lshr_b32 s75, s3, 1
s_lshl_b32 s75, s75, 6
s_add_u32 s74, s74, s75
s_lshl_b32 s75, s3, 7
s_add_u32 s75, s75, {LO}
""")
def issA():
    a("v_and_b32 v20, 60, v21\nbuffer_load_dword v20, v20, s[16:19], s74 offen sc1")
    for s in range(16):
        a(f"buffer_load_dword v{4+s}, v21, s[16:19], s{70+(s>>2)} offen offset:{(s&3)*1024} sc1")
TGT = 16 * 0xffff - 1
if cfg.hint >= 0:
    a(f"""s_cmp_lg_u32 s63, 0
    s_cbranch_scc1 L_ch1_sa
    s_lshl_b32 s76, s4, 7
    s_add_u32 s76, s76, s61
    s_add_u32 s76, s76, {0x8008}
    v_mov_b32 v4, 0
    s_mov_b32 s68, 0
    L_ch1_wa:
    buffer_load_dword v5, v4, s[16:19], s76 offen sc1
    s_waitcnt vmcnt(0)
    v_cmp_gt_i32 vcc, {TGT}, v5
    s_cbranch_vccz L_ch1_pa
    s_sleep {cfg.sh}
    s_add_u32 s68, s68, 1
    s_cmp_lt_u32 s68, {cfg.spin}
    s_cbranch_scc1 L_ch1_wa
    s_branch L_ch1_pa
    L_ch1_sa:
    s_sleep {cfg.s0['A']}
    L_ch1_pa:""")
    poll(issA, lambda: check_sentinel(range(4, 21), 22), s0=cfg.sA2)
else:
    poll(issA, lambda: check_sentinel(range(4, 21), 22), s0=cfg.s0["A"])
stamp("c.A", 1); stamp("f.A", 2)
a(f"v_max_f32_dpp v22, v20, v20 {CTL4[0]} {DPPALL}")
for c in CTL4[1:]: a(f"v_max_f32_dpp v22, v22, v22 {c} {DPPALL}")
a("v_sub_f32 v20, v20, v22\nv_exp_f32 v20, v20")
a(f"v_mul_f32_dpp v21, v20, v4 row_newbcast:0 {DPPALL}\nv_add_f32_dpp v22, v20, v20 {CTL4[0]} {DPPALL}")
for s in range(1, 16):
    a(f"v_fmac_f32_dpp v21, v20, v{4+s} row_newbcast:{s} {DPPALL}")
    if s in (2, 4, 6): a(f"v_add_f32_dpp v22, v22, v22 {CTL4[s//2]} {DPPALL}")
    if s == 4: a(f"ds_read_b64_tr_b16 v[4:5], v23 offset:{(32*7)*128}\nds_read_b64_tr_b16 v[6:7], v23 offset:{(32*7+4)*128}")
    if s == 8: a("v_rcp_f32 v22, v22")
    if s == 9: a("v_lshl_add_u32 v23, v0, 1, s75")
a(f"""
v_mul_f32 v21, v21, v22
v_cvt_pk_bf16_f32 v21, v21, v21
ds_write_b16 v23, v21
v_and_b32 v0, 48, v0
v_add_u32 v0, {LO}, v0
s_lshl_b32 s70, s7, 8
s_add_u32 s70, s70, s60
s_lshl_b32 s71, s3, 6
s_add_u32 s74, s70, s71
s_mul_i32 s70, s3, 9216
s_add_u32 s70, s70, s60
s_add_u32 s71, s70, 2304
s_add_u32 s72, s70, 4608
s_add_u32 s73, s70, 6912
s_waitcnt lgkmcnt(0)
s_barrier
""")
order = [7, 0, 1, 2, 3, 4, 5, 6]
def frag(ks): return "v[4:7]" if ks == 7 else R4(24 + 4*ks)
bufs = ["v[8:11]", "v[12:15]", "v[16:19]"]
for n in range(3): a(f"ds_read_b128 {bufs[n]}, v0 offset:{order[n]*64}")
for n, ks in enumerate(order):
    a(f"s_waitcnt lgkmcnt({len(bufs) - 1 - n})")
    a(f"v_mfma_f32_16x16x32_bf16 v[20:23], {bufs[n]}, {frag(ks)}, {'0' if n == 0 else 'v[20:23]'}")
    for fr in (frag(ks), bufs[n]):
        if len(bufs) < 8:
            a(f"ds_read_b128 {fr}, v0 offset:{order[len(bufs)]*64}"); bufs.append(fr)
a(f"""
v_lshrrev_b32 v0, 4, v2
v_lshlrev_b32 v49, 2, v0
s_mul_i32 s75, s3, 2304
s_add_u32 s75, s75, {LX}
v_add_u32 v51, s75, v2
s_mov_b64 exec, 0xffff
buffer_store_dword v20, v49, s[16:19], s74 offen sc1
s_mov_b64 exec, -1
""")
stamp("c.wo", 1)
a("s_cmp_eq_u32 s63, 2\ns_cbranch_scc1 L_ch1_ret")
a.label("L_ch1_b")
ln(False)
def issB():
    for r in range(4):
        a(f"buffer_load_dwordx4 {R4(4+8*r)}, v2, s[16:19], s{70+r} offen sc1")
        a(f"buffer_load_dwordx4 {R4(8+8*r)}, v2, s[16:19], s{70+r} offen offset:1024 sc1")
        a(f"buffer_load_dword v{36+r}, v49, s[16:19], s{70+r} offen offset:2048 sc1")
def chkB():
    for i in range(4): a(f"v_pk_add_f32 {R2(40+2*i)}, {R2(4+2*i)}, {R2(12+2*i)}")
    a("v_add_f32 v48, v36, v37")
    for r in (2, 3):
        for i in range(4): a(f"v_pk_add_f32 {R2(40+2*i)}, {R2(40+2*i)}, {R2(4+8*r+2*i)}")
        a(f"v_add_f32 v48, v48, v{36+r}")
    a("v_add_u32 v50, s75, v49\nds_write_b128 v51, v[40:43]\nds_write_b128 v51, v[44:47] offset:1024\nds_write_b32 v50, v48 offset:2048")
    check_sentinel(range(4, 40), 50)
if cfg.hint >= 0:
    a(f"""s_cmp_lg_u32 s63, 0
    s_cbranch_scc1 L_ch1_sb
    s_add_u32 s76, s61, {0x8008}
    v_and_b32 v4, 15, v0
    v_lshlrev_b32 v4, 7, v4
    buffer_load_dword v5, v4, s[16:19], s76 offen sc1
    s_waitcnt vmcnt(0)
    v_cmp_gt_i32 vcc, {TGT}, v5
    s_cbranch_vccz L_ch1_pb
    s_mov_b32 s68, 0
    L_ch1_wb:
    s_sleep {cfg.sh}
    buffer_load_dword v5, v4, s[16:19], s76 offen sc1
    s_waitcnt vmcnt(0)
    v_cmp_gt_i32 vcc, {TGT}, v5
    s_cbranch_vccz L_ch1_wb2
    s_add_u32 s68, s68, 1
    s_cmp_lt_u32 s68, {cfg.spin}
    s_cbranch_scc1 L_ch1_wb
    L_ch1_wb2:
    s_sleep {cfg.sB2}
    s_branch L_ch1_pb
    L_ch1_sb:
    s_sleep {cfg.s0['B']}
    L_ch1_pb:""")
    poll(issB, chkB)
else:
    poll(issB, chkB, s0=cfg.s0["B"])
stamp("c.B", 1); stamp("f.B", 2)
a(f"""
v_add_u32 v14, s64, v2
v_add_u32 v15, s64, v49
ds_read_b128 v[4:7], v14
ds_read_b128 v[8:11], v14 offset:1024
ds_read_b32 v12, v15 offset:2048
v_add_u32 v14, {LX}, v2
v_add_u32 v15, {LX+2048}, v49
s_waitcnt lgkmcnt(3)
s_barrier
""")
for r in range(4):
    a(f"ds_read_b128 {R4(16+8*r)}, v14 offset:{r*2304}\nds_read_b128 {R4(20+8*r)}, v14 offset:{r*2304+1024}")
    if r == 0: a("ds_read2st64_b32 v[48:49], v15 offset0:0 offset1:9\nds_read2st64_b32 v[50:51], v15 offset0:18 offset1:27")
a(f"""
v_lshlrev_b32 v13, 3, v0
v_add_u32 v13, {LLN}, v13
v_lshlrev_b32 v14, 1, v0
v_add_u32 v14, {LLN+1024}, v14
v_and_b32 v15, 3, v0
s_lshl_b32 s70, s7, 3
s_add_u32 s70, s70, {LLN}
v_lshl_add_u32 v15, v15, 1, s70
s_lshl_b32 s70, s3, 8
s_add_u32 s70, s70, s56
""")
for r in range(4):
    a(f"s_waitcnt lgkmcnt({6 - 2*r})")
    for i in range(4): a(f"v_pk_add_f32 {R2(4+2*i)}, {R2(4+2*i)}, {R2(16+8*r+2*i)}")
    a(f"v_add_f32 v12, v12, v{48+r}")
a("""v_cvt_pk_bf16_f32 v16, v4, v5
v_cvt_pk_bf16_f32 v17, v6, v7
v_cvt_pk_bf16_f32 v18, v8, v9
v_cvt_pk_bf16_f32 v19, v10, v11
v_cvt_pk_bf16_f32 v20, v12, 0
ds_write_b64 v13, v[16:17]
ds_write_b64 v13, v[18:19] offset:512
ds_write_b16 v14, v20
ds_read_u16 v27, v15
v_lshl_add_u32 v26, v0, 2, s70""")
fill = [f"ds_read2st64_b32 {R2(28+2*i)}, v26 offset0:{4*i} offset1:{36+4*i}" for i in range(8)]
fill += [f"ds_read2st64_b32 {R2(44+2*i)}, v26 offset0:{72+8*i} offset1:{76+8*i}" for i in range(4)]
fill = [fill[0], fill[8]] + fill[1:8] + fill[9:]
stats([16, 17, 18, 19, 20], 4, 5, fill)
ln_scalars(4, 5, 6, 7, 8)
a("s_waitcnt lgkmcnt(12)\nv_lshlrev_b32 v27, 16, v27\nv_sub_f32 v9, v27, v6\nv_sub_f32 v4, v4, v6\nv_mul_f32 v5, v5, v7\nv_mul_f32 v4, v4, v7\nv_mul_f32 v5, v5, v7")
rbf(9, 10); a("v_mul_f32 v9, v9, v7"); rbf(9, 10)
ln_scalars(4, 5, 6, 7, 8)
a("v_sub_f32 v9, v9, v6"); rbf(9, 10); a("v_mul_f32 v9, v9, v7"); rbf(9, 10)
a("v_mov_b32 v25, v26")
for e in range(4): a(f"v_readlane_b32 s{70+2*e}, v9, {60+e}")
stamp("c.ln", 1)
ln(False)
a(f"v_mov_b32 v26, {f32(C1)}\ns_mov_b32 s66, {f32(C2)}\ns_waitcnt lgkmcnt(0)")
for i in range(9):
    w1, b1, w2 = (28+2*i, 29+2*i, 44+i) if i < 8 else (28, 29, 44)
    if i == 8: a("s_waitcnt lgkmcnt(0)")
    for j, r in enumerate((w1, b1, w2)):
        a(f"v_lshlrev_b32 v{12+2*j}, 16, v{r}\nv_and_b32 v{13+2*j}, 0xffff0000, v{r}")
    if i == 0: a("ds_read2st64_b32 v[28:29], v25 offset0:32 offset1:68\nds_read_b32 v44, v25 offset:26624")
    for e0 in (0, 2):
        U = (18, 22); T = (20, 24); E = (e0, e0 + 1)
        for k in range(2): a(f"v_pk_fma_f32 {R2(U[k])}, v[12:13], s[{70+2*E[k]}:{71+2*E[k]}], v[14:15] op_sel_hi:[1,0,1]")
        for k in range(2): a(f"v_pk_mul_f32 {R2(T[k])}, {R2(U[k])}, {R2(U[k])}")
        for k in range(2): a(f"v_pk_fma_f32 {R2(T[k])}, {R2(T[k])}, s[66:67], v[26:27] op_sel_hi:[1,0,0]")
        for k in range(2): a(f"v_pk_mul_f32 {R2(T[k])}, {R2(U[k])}, {R2(T[k])}")
        for k in range(2): a(f"v_exp_f32 v{T[k]}, v{T[k]}\nv_exp_f32 v{T[k]+1}, v{T[k]+1}")
        for k in range(2): a(f"v_pk_mul_f32 {R2(U[k])}, {R2(U[k])}, v[16:17]")
        for k in range(2): a(f"v_pk_add_f32 {R2(T[k])}, {R2(T[k])}, 1.0 op_sel_hi:[1,0]")
        for k in range(2): a(f"v_rcp_f32 v{T[k]}, v{T[k]}\nv_rcp_f32 v{T[k]+1}, v{T[k]+1}")
        for k in range(2):
            acc = R2(4 + 2*E[k])
            a(f"v_pk_mul_f32 {acc}, {R2(U[k])}, {R2(T[k])}" if i == 0 else f"v_pk_fma_f32 {acc}, {R2(U[k])}, {R2(T[k])}, {acc}")
stamp("c.mix", 1); stamp("f.mix", 2)
for e in range(4): a(f"v_add_f32 v{4+2*e}, v{4+2*e}, v{5+2*e}")
a(f"""v_lshrrev_b32 v12, 4, v0
v_lshlrev_b32 v12, 2, v12
s_lshl_b32 s66, s3, 4
s_add_u32 s66, s66, {LRED}
v_add_u32 v12, s66, v12""")
row16_reduce("v_add_f32", [4, 6, 8, 10])
a(f"""
ds_write2_b32 v12, v4, v6 offset0:0 offset1:16
ds_write2_b32 v12, v8, v10 offset0:32 offset1:48
v_and_b32 v13, 3, v0
v_lshlrev_b32 v12, 6, v13
v_add_u32 v12, {LRED}, v12
s_mov_b32 s20, s52
s_mov_b32 s21, s53
s_mov_b32 s22, 2304
s_lshl_b32 s66, s7, 4
s_lshr_b32 s66, s66, s63
s_add_u32 s66, s66, s61
v_lshlrev_b32 v13, 2, v13
v_lshrrev_b32 v13, s63, v13
s_cmp_lg_u32 s3, 0
s_waitcnt lgkmcnt(0)
s_barrier
s_cbranch_scc1 L_ch1_ret
ds_read_b128 v[16:19], v12
ds_read_b128 v[20:23], v12 offset:16
ds_read_b128 v[28:31], v12 offset:32
ds_read_b128 v[32:35], v12 offset:48
s_cmp_eq_u32 s63, 1
s_mov_b64 exec, 15
s_waitcnt lgkmcnt(2)
v_pk_add_f32 v[16:17], v[16:17], v[18:19]
v_pk_add_f32 v[20:21], v[20:21], v[22:23]
s_waitcnt lgkmcnt(0)
v_pk_add_f32 v[28:29], v[28:29], v[30:31]
v_pk_add_f32 v[32:33], v[32:33], v[34:35]
v_pk_add_f32 v[16:17], v[16:17], v[20:21]
v_pk_add_f32 v[28:29], v[28:29], v[32:33]
v_pk_add_f32 v[16:17], v[16:17], v[28:29]
v_add_f32 v16, v16, v17
""")
rbf(16, 17); a("v_add_f32 v16, s78, v16"); rbf(16, 17); a("v_add_f32 v16, v16, v27"); rbf(16, 17)
a(f"""
s_cbranch_scc1 L_ch1_fin
buffer_store_dword v16, v13, s[16:19], s66 offen sc1
s_branch L_ch1_done
L_ch1_fin:
buffer_store_short v17, v13, s[20:23], s66 offen
L_ch1_done:
s_mov_b64 exec, -1
L_ch1_ret:
""")
ret()

a.hist = []
a.label("SUB_CH1B")
a(f"""s_mul_i32 s70, s3, 9216
s_add_u32 s70, s70, s60
s_add_u32 s71, s70, 2304
s_add_u32 s72, s70, 4608
s_add_u32 s73, s70, 6912
v_lshlrev_b32 v49, 2, v0
s_mul_i32 s75, s3, 2304
s_add_u32 s75, s75, {LX}
v_add_u32 v51, s75, v2
s_barrier
s_branch L_ch1_b""")

a.hist = []
a.label("SUB_CH2")
a(f"""
v_lshrrev_b32 v13, 4, v0
v_bfe_u32 v14, v0, 2, 2
v_lshl_add_u32 v15, v13, 3, v14
v_lshlrev_b32 v15, 9, v15
v_bfe_u32 v13, v0, 2, 3
s_lshl_b32 s70, s3, 2
v_xor_b32 v13, s70, v13
v_lshl_add_u32 v15, v13, 5, v15
v_and_b32 v13, 3, v0
v_lshl_add_u32 v15, v13, 3, v15
v_add_u32 v15, {LWQ}, v15
v_xor_b32 v16, 32, v15
v_xor_b32 v17, 64, v15
v_xor_b32 v18, 96, v15
""")
for cbk in range(4):
    for ks in range(2):
        for jh in range(2):
            a(f"ds_read_b64_tr_b16 {R2(20 + 8*cbk + 4*ks + 2*jh)}, v{15+cbk} offset:{(32*ks+4*jh)*512}")
a(f"""
v_lshlrev_b32 v19, 2, v0
v_add_u32 v15, s64, v2
v_add_u32 v16, s64, v19
s_lshl_b32 s72, s5, 8
s_lshl_b32 s74, s7, 10
s_add_u32 s74, s74, s62
s_lshl_b32 s71, s3, 8
s_add_u32 s74, s74, s71
s_cmp_eq_u32 s63, 1
s_cbranch_scc0 L_ch2_g
v_add_u32 v17, s72, v16
ds_read_b128 v[4:7], v15
ds_read_b128 v[8:11], v15 offset:1024
ds_read_b32 v12, v16 offset:2048
ds_read_b32 v13, v17
s_waitcnt lgkmcnt(0)
s_branch L_ch2_x
L_ch2_g:
s_add_u32 s72, s72, s61
s_lshl_b32 s73, s4, 7
s_add_u32 s73, s73, s61
s_add_u32 s73, s73, 0x8000
""")
def issC():
    a("""buffer_load_dwordx4 v[4:7], v2, s[16:19], s61 offen sc1
    buffer_load_dwordx4 v[8:11], v2, s[16:19], s61 offen offset:1024 sc1
    buffer_load_dword v12, v19, s[16:19], s61 offen offset:2048 sc1
    buffer_load_dword v13, v19, s[16:19], s72 offen sc1""")
poll(issC, lambda: check_sentinel(range(4, 14), 14), s0=cfg.s0["C"])
stamp("c.C", 1)
a("""s_or_b32 s70, s5, s3
s_cbranch_scc1 L_ch2_nh
s_mov_b64 exec, 1
buffer_store_dword v19, v19, s[16:19], s73 offen sc1
s_mov_b64 exec, -1
L_ch2_nh:
ds_write_b128 v15, v[4:7]
ds_write_b128 v15, v[8:11] offset:1024
ds_write_b32 v16, v12 offset:2048
L_ch2_x:
v_cvt_pk_bf16_f32 v14, v4, v5
v_cvt_pk_bf16_f32 v15, v6, v7
v_cvt_pk_bf16_f32 v16, v8, v9
v_cvt_pk_bf16_f32 v17, v10, v11
v_cvt_pk_bf16_f32 v18, v12, 0""")
stats([14, 15, 16, 17, 18], 4, 5, ["v_lshlrev_b32 v9, 1, v0", f"v_add_u32 v9, {LRED}, v9", "v_and_b32 v12, 48, v0", f"v_add_u32 v12, {LRED}, v12"])
ln_scalars(4, 5, 6, 7, 8)
a("v_readlane_b32 s70, v6, 63\nv_readlane_b32 s71, v7, 63\nv_subrev_f32 v13, s70, v13")
rbf(13, 8)
a("""v_mul_f32 v13, s71, v13
v_cvt_pk_bf16_f32 v13, v13, v13
ds_write_b16 v9, v13
ds_read_b128 v[4:7], v12
ds_read_b128 v[8:11], v12 offset:64
s_waitcnt lgkmcnt(0)""")
accs = [12, 20, 28, 36]
for cbk in range(4):
    d = accs[cbk]; f = 20 + 8 * cbk
    a(f"v_mfma_f32_16x16x32_bf16 {R4(d)}, v[4:7], {R4(f)}, 0")
    a(f"v_mfma_f32_16x16x32_bf16 {R4(d)}, v[8:11], {R4(f+4)}, {R4(d)}")
for cbk in range(1, 4):
    a(f"v_mov_b32_dpp v12, v{accs[cbk]} quad_perm:[0,1,2,3] row_mask:{1<<cbk:#x} bank_mask:0xf")
a("buffer_store_dword v12, v19, s[16:19], s74 offen sc1")
stamp("c.wq", 1)
ret()

if cfg.roles:
    a.hist = []
    a.label("SUB_RING")
    vts = list(range(NL, cfg.j0)) + list(range(NL))
    NT = 64 + len(vts)
    slot = lambda n: (n - (NT - NL)) % NS
    lastso = [None]
    def rload(n):
        if n >= NT: return
        if n < 64:
            so, imm, va, srd = ("k", (n >> 3) * 8192), ((n >> 1) & 3) * 256 + (n & 1) * 128, "v1", "s[8:11]"
        else:
            vt = vts[n - 64]
            so, imm, va, srd = ("v", (vt >> 2) * 4096), (vt & 3) * 1024, "v2", "s[12:15]"
        if so != lastso[0]:
            a(f"s_add_u32 s28, s27, {so[1]}"); lastso[0] = so
        a(f"s_add_u32 m0, s57, {slot(n)*1024 - imm}")
        a(f"buffer_load_dwordx4 {va}, {srd}, s28 offen offset:{imm}{'' if n < cfg.l2n else ' nt'} lds")
    for n in range(16): rload(n)
    att_pre(zero=False)
    a("ds_read_b128 v[4:7], v12\nds_read_b128 v[8:11], v12 offset:128\nv_add_u32 v48, s57, v2")
    KT = [34, 38, 42]
    for n in range(66):
        if n < 64:
            rload(n + 16)
            a(f"s_waitcnt vmcnt(16)\nds_read_b128 {R4(KT[n%3])}, v48 offset:{slot(n)*1024}")
        if n >= 2:
            kt = n - 2
            a(f"s_waitcnt lgkmcnt({min(63, n) - kt})")
            kmm(kt, R4(KT[kt % 3]))
            if kt & 1 and (kt >> 1) >= 2: adds((kt >> 1) - 2)
    adds(30); adds(31)
    softmax()
    for i in range(8): a(f"v_mov_b32 v{34+i}, 0")
    a("v_add_u32 v33, s57, v2")
    curG[0] = None
    NV = len(vts)
    for m in range(NV + 2):
        if m < NV:
            n = 64 + m
            rload(n + 16)
            a(f"s_waitcnt vmcnt({min(16, NT - 1 - n)})\nds_read_b128 {R4(12 + 4*(m%3))}, v33 offset:{slot(n)*1024}")
        if 1 <= m <= NV: build(vts[m - 1], (m - 1) & 1)
        if m >= 2:
            j = m - 2
            a(f"s_waitcnt lgkmcnt({min(NV - 1, m) - j})")
            vmm(R4(12 + 4*(j%3)), j & 1, j == 0)
    if cfg.j0 == 64:
        a("s_branch L_att_epi")
    else:
        a(f"""v_mov_b32 v47, v51
        ds_write_b128 v33, v[24:27] offset:{13*1024}
        ds_write_b128 v33, v[28:31] offset:{14*1024}
        ds_write_b64 v33, v[46:47] offset:{16*1024}
        ds_write_b128 v33, v[42:45] offset:{15*1024}
        s_waitcnt lgkmcnt(0)""")
        ret()
        a.hist = []
        a.label("SUB_RESUME")
        a(f"s_mov_b32 s82, {8 + cfg.j0//8}\ns_call_b64 s[80:81], SUB_LN\ns_call_b64 s[80:81], SUB_LN")
        att_pre()
        a(f"""v_add_u32 v33, s57, v2
        ds_read_b128 v[24:27], v33 offset:{13*1024}
        ds_read_b128 v[28:31], v33 offset:{14*1024}
        ds_read_b128 v[42:45], v33 offset:{15*1024}
        ds_read_b64 v[50:51], v33 offset:{16*1024}
        s_mov_b64 vcc, -1
        s_waitcnt lgkmcnt(0)
        v_mov_b32 v46, v50""")
        curG[0] = None
        build(cfg.j0, cfg.j0 & 1)
        a.flush()
        a("s_branch L_att_resume")

for Lo, Lb, wait, depth in tramps:
    a.hist = []
    a.label(Lo)
    for d in range(1, depth + 1):
        a("s_call_b64 s[80:81], SUB_LN")
        L2 = a.newlabel("Lt2")
        if d < depth: a(f"s_cmp_lt_u32 s82, 16\ns_cbranch_scc1 {L2}")
        if wait: a(f"s_waitcnt vmcnt({8*d})")
        a(f"s_branch {Lb}")
        if d < depth: a.label(L2)
for Rr, L, D, sl in retries:
    a.hist = []
    a.label(Rr)
    a(f"s_sleep {sl}\ns_add_u32 s68, s68, 1\ns_cmp_lt_u32 s68, {cfg.spin}\ns_cbranch_scc1 {L}\ns_branch {D}")
if cfg.stamps:
    n = len(stamp_names)
    a.hist = []
    a.label("L_stamps")
    if cfg.dbg:
        sel = ["start", "start", "q1", "P1b0", "wq0", "s.ring", "P2b0", "s.P1b1", "s.fin0", "P1b1", "c.B", "c.wq", "s.rel", "s.end", "f.B", "end"]
        a("v_mov_b32 v6, 0")
        a(f"s_not_b32 s70, s{POOL[0]}\nv_writelane_b32 v6, s70, 0")
        for i, nm in enumerate(sel):
            if i and nm in stamp_names: a(f"v_writelane_b32 v6, s{POOL[stamp_names.index(nm)]}, {i}")
        a("v_lshrrev_b32 v4, 2, v2\ns_mov_b64 exec, 0xffff\nglobal_atomic_umax v4, v6, s[54:55] sc1\ns_branch L_fin")
    a(f"""s_lshl_b32 s70, s2, 2
    s_add_u32 s70, s70, s3
    s_mul_i32 s70, s70, {8*n}
    s_add_u32 s70, s70, {STAMP}
    v_mov_b32 v4, 0
    v_mov_b32 v7, 0
    s_mov_b64 exec, 1""")
    for i in range(n):
        a(f"v_mov_b32 v6, s{POOL[i]}\nbuffer_store_dwordx2 v[6:7], v4, s[16:19], s70 offen offset:{8*i}\ns_nop 1")
    a("s_branch L_fin")
    open(sys.argv[1] + ".names", "w").write(" ".join(stamp_names))
    print("nstamps", n, file=sys.stderr)
hdr = open("cdna_kernels/" + NAME + ".s.ref").read().split("; Override launch")[0]
out = hdr + f"; @launch grid=(256,1,1) block=(256,1,1) lds={LDS_TOTAL}\n"
out += f""".amdgcn_target "amdgcn-amd-amdhsa--gfx950"
.text
.globl {NAME}_kernel
.p2align 8
.type {NAME}_kernel,@function
{NAME}_kernel:
""" + a.text() + f""".section .rodata,"a"
.p2align 6
.amdhsa_kernel {NAME}_kernel
  .amdhsa_next_free_vgpr 512
  .amdhsa_next_free_sgpr 102
  .amdhsa_accum_offset 256
  .amdhsa_group_segment_fixed_size 0
  .amdhsa_kernarg_size 104
  .amdhsa_user_sgpr_count 2
  .amdhsa_user_sgpr_kernarg_segment_ptr 1
  .amdhsa_system_sgpr_workgroup_id_x 1
.end_amdhsa_kernel
"""
open(sys.argv[1], "w").write(out)
print("nops added", a.nops_added, "lines", len(a.lines), file=sys.stderr)
```

```python
import sys, struct, math
sys.path.insert(0, "gen")
from asmlib import *

NAME = "interleave_layers__gqa_block_cached__mixer_token_mlp__decode"
def f32(x): return "0x%08x" % struct.unpack("<I", struct.pack("<f", x))[0]

class Cfg:
    stamps = 0
    spin = 20000
    s0 = dict(A=20, B=16, C=24, D=12)
    s1 = 2
    sh = 2
    sg = 8
    go = 24
    roles = 1
    latew = 0
    vsites = 1
    l2n = 128
    dbg = 0
    n0 = 16
    n1 = 5
    thr = -1
    hint = -1
    late2 = 1
    adapt = 1
    warm = 0
    relfirst = 0
    ksites = 1
    pf0 = 8
    nogo = 1
    xthr = 0
    thrm = -1
    sA2 = 0
    sB2 = 32
    aw = 0
    d0 = 2
    thrall = 0
    thr3 = 0
    go0 = -1
    j0 = 48
    fa = 3
    dw = 2
    pre = 8
    d1 = 3
    d2 = 2
    d3 = 4
    d4 = 3
cfg = Cfg()
for arg in sys.argv[2:]:
    k, v = arg.split("=")
    if k.startswith("s0"): cfg.s0[k[2]] = int(v)
    else: setattr(cfg, k, int(v))

W = 52; NL = 13; NS = 20
LV = 0; LWO = 53248; LWQ = 86016; LMX = 118784; LXB = 146432; LX = 151040; LQ = 160256; LLN = 162304; LRED = 163456
LO = LX + 8448
LDS_TOTAL = 163840
A_O = lambda i: i * 0x40000
A_L = lambda i: 0x100000 + i * 0x1000
B_A = lambda i: 0x110000 + i * 0x10000
C_A = lambda i: 0x150000 + i * 0x1000
H_A = lambda i: 0x158000 + i * 0x1000
D_A = lambda i: 0x160000 + i * 0x40000
STAMP = 0x10000000
CSM = math.log2(math.e) / math.sqrt(128.0)
C1 = -2.0 * math.sqrt(2.0 / math.pi) * math.log2(math.e)
C2 = C1 * 0.044715
DPPALL = "row_mask:0xf bank_mask:0xf"
CTL4 = ["quad_perm:[1,0,3,2]", "quad_perm:[2,3,0,1]", "row_half_mirror", "row_mirror"]

a = Asm()
POOL = list(range(83, 100)) + [32, 33, 38, 39, 43, 50, 51]
stamp_names = []
def stamp(name, cond=None):
    if not cfg.stamps: return
    if name in stamp_names: r = POOL[stamp_names.index(name)]
    else:
        r = POOL[len(stamp_names)]; stamp_names.append(name)
    a("s_memrealtime s[100:101]\ns_waitcnt lgkmcnt(0)")
    if cond is None: a(f"s_mov_b32 s{r}, s100")
    else: a(f"s_cmp_eq_u32 s79, {cond}\ns_cselect_b32 s{r}, s100, s{r}")

def khome(kt): return f"a[{4*kt}:{4*kt+3}]"
def vhome(vt):
    r = W + 4 * (vt - NL); return f"v[{r}:{r+3}]"
def R4(r): return f"v[{r}:{r+3}]"
def R2(r): return f"v[{r}:{r+1}]"

def load_k(kts):
    lastG = None
    for kt in kts:
        G, t, half = kt >> 3, (kt >> 1) & 3, kt & 1
        if G != lastG:
            a(f"s_add_u32 s28, s27, {G*8192}"); lastG = G
        a(f"buffer_load_dwordx4 {khome(kt)}, v1, s[8:11], s28 offen offset:{t*256+half*128} nt")
def load_v(vts):
    lastQ = None
    for vt in vts:
        Q = vt >> 2
        if Q != lastQ:
            a(f"s_add_u32 s28, s27, {Q*4096}")
            if vt < NL: a(f"s_add_u32 m0, s29, {Q*4096}")
            lastQ = Q
        if vt < NL:
            a(f"buffer_load_dwordx4 v2, s[12:15], s28 offen offset:{(vt&3)*1024} nt lds")
        else:
            a(f"buffer_load_dwordx4 {vhome(vt)}, v2, s[12:15], s28 offen offset:{(vt&3)*1024} nt")

def rbf(v, t):
    a(f"v_cvt_pk_bf16_f32 v{t}, v{v}, v{v}\nv_lshlrev_b32 v{v}, 16, v{t}")
def rows_reduce(op, v, t):
    a(f"v_mov_b32 v{t}, v{v}\nv_permlane16_swap_b32 v{v}, v{t}\n{op} v{v}, v{v}, v{t}")
    a(f"v_mov_b32 v{t}, v{v}\nv_permlane32_swap_b32 v{v}, v{t}\n{op} v{v}, v{v}, v{t}")
def row16_reduce(op, vs):
    for ctl in CTL4:
        for v in vs: a(f"{op}_dpp v{v}, v{v}, v{v} {ctl} {DPPALL}")
def sum_to_row3(vs, fillers=()):
    fillers = list(fillers)
    steps = [f"{c} {DPPALL}" for c in CTL4] + ["row_bcast:15 row_mask:0xa bank_mask:0xf", "row_bcast:31 row_mask:0xc bank_mask:0xf"]
    per = (len(fillers) + 5) // 6
    for st in steps:
        for _ in range(per):
            if fillers: a(fillers.pop(0))
        for v in vs: a(f"v_add_f32_dpp v{v}, v{v}, v{v} {st}")
def stats(P, s1, s2, fillers=()):
    for i, p in enumerate(P):
        a(f"v_dot2_f32_bf16 v{s1}, v{p}, s67, {'0' if i == 0 else 'v%d' % s1}")
        a(f"v_dot2_f32_bf16 v{s2}, v{p}, v{p}, {'0' if i == 0 else 'v%d' % s2}")
    sum_to_row3([s1, s2], fillers)
    a(f"v_mul_f32 v{s1}, {f32(1.0/576)}, v{s1}\nv_mul_f32 v{s2}, {f32(1.0/576)}, v{s2}\nv_fma_f32 v{s2}, -v{s1}, v{s1}, v{s2}\nv_max_f32 v{s2}, 0, v{s2}")
def ln_scalars(m, q, mb, r, t):
    a(f"v_cvt_pk_bf16_f32 v{t}, v{m}, v{q}\nv_and_b32 v{r}, 0xffff0000, v{t}\nv_lshlrev_b32 v{mb}, 16, v{t}\nv_add_f32 v{r}, {f32(1e-5)}, v{r}")
    rbf(r, t); a(f"v_sqrt_f32 v{r}, v{r}"); rbf(r, t); a(f"v_rcp_f32 v{r}, v{r}")

def check_sentinel(regs, t):
    regs = list(regs)
    if len(regs) % 2 == 0:
        a(f"v_max_u32 v{t}, v{regs[0]}, v{regs[1]}"); regs = regs[2:]
    else:
        a(f"v_max3_u32 v{t}, v{regs[0]}, v{regs[1]}, v{regs[2]}"); regs = regs[3:]
    for i in range(0, len(regs), 2):
        a(f"v_max3_u32 v{t}, v{t}, v{regs[i]}, v{regs[i+1]}")
    a(f"v_cmp_eq_u32 vcc, -1, v{t}")

tramps = []
def ln(wait, depth=None):
    Lo = a.newlabel("Lt"); Lb = a.newlabel("Ltb")
    a(f"s_cmp_lt_u32 s82, 16\ns_cbranch_scc1 {Lo}")
    if wait: a("s_waitcnt vmcnt(0)")
    a.label(Lb)
    tramps.append((Lo, Lb, wait, depth or (cfg.dw if wait else 1)))
retries = []
def poll(issue, check, s0=0, depth=None):
    L = a.newlabel("Lpoll"); D = a.newlabel("Lpd"); Rr = a.newlabel("Lpr")
    a("s_mov_b32 s68, 0")
    if s0: a(f"s_sleep {s0}")
    a.label(L)
    issue(); ln(True, depth)
    check()
    a(f"s_cbranch_vccnz {Rr}")
    a.label(D)
    retries.append((Rr, L, D, cfg.s1))
def ln_until(n):
    L = a.newlabel("Lrest"); D = a.newlabel("Lrd")
    a.label(L); a(f"s_cmp_ge_u32 s82, {n}\ns_cbranch_scc1 {D}\ns_call_b64 s[80:81], SUB_LN\ns_branch {L}"); a.label(D)
def call(lbl):
    a.flush(); a(f"s_call_b64 s[30:31], {lbl}")
def ret():
    a.flush(); a("s_setpc_b64 s[30:31]")
def flagwait(inst, sl, off=0, count=0):
    a(f"s_lshl_b32 s70, s4, 7\ns_add_u32 s70, s70, {H_A(inst)+off}\nv_mov_b32 v4, 0")
    L = a.newlabel("Lh"); D = a.newlabel("Lhd")
    a(f"s_mov_b32 s68, 0\ns_cmp_lg_u32 s3, 0\ns_cbranch_scc1 {D}")
    a.label(L)
    a(f"buffer_load_dword v5, v4, s[16:19], s70 offen sc1\ns_waitcnt vmcnt(0)")
    a(f"v_cmp_gt_i32 vcc, {count*0xffff - 1}, v5" if count else "v_cmp_eq_u32 vcc, -1, v5")
    a(f"s_cbranch_vccz {D}")
    a(f"s_sleep {sl}\ns_add_u32 s68, s68, 1\ns_cmp_lt_u32 s68, {cfg.spin}\ns_cbranch_scc1 {L}")
    a.label(D)
    a("s_barrier")

def qg_issue(base, sb):
    for i in range(9):
        a(f"buffer_load_dword v{base+i}, v22, s[16:19], s{sb + (i>>2)} offen offset:{(i&3)*1024} sc1")
def qg_sum(base):
    b = base
    a(f"""v_add_f32 v{b}, v{b}, v{b+1}
    v_add_f32 v{b+2}, v{b+2}, v{b+3}
    v_add_f32 v{b+4}, v{b+4}, v{b+5}
    v_add_f32 v{b+6}, v{b+6}, v{b+7}
    v_add_f32 v{b}, v{b}, v{b+2}
    v_add_f32 v{b+4}, v{b+4}, v{b+6}
    v_add_f32 v{b}, v{b}, v{b+8}
    v_add_f32 v{b}, v{b}, v{b+4}
    v_cvt_pk_bf16_f32 v{b}, v{b}, v{b}""")

a(f"""
s_cmp_ge_u32 s2, 256
s_cbranch_scc1 L_end
s_load_dwordx16 s[32:47], s[0:1], 0
s_load_dwordx8 s[48:55], s[0:1], 64
s_load_dwordx2 s[56:57], s[0:1], 96
v_lshrrev_b32 v1, 6, v0
v_readfirstlane_b32 s3, v1
v_and_b32 v0, 63, v0
s_lshr_b32 s4, s2, 4
s_and_b32 s6, s2, 15
s_add_u32 s5, s6, s4
s_and_b32 s5, s5, 15
v_lshlrev_b32 v2, 4, v0
v_bfe_u32 v1, v0, 1, 3
v_lshlrev_b32 v1, 10, v1
v_lshrrev_b32 v3, 4, v0
v_lshl_add_u32 v1, v3, 5, v1
v_and_b32 v3, 1, v0
v_lshl_add_u32 v1, v3, 4, v1
s_lshl_b32 s27, s2, 18
s_lshl_b32 s28, s3, 16
s_add_u32 s27, s27, s28
s_mov_b32 s10, 0x8000000
s_mov_b32 s11, 0x20000
s_mov_b32 s14, 0x8000000
s_mov_b32 s15, 0x20000
s_mov_b32 s18, 0x20000000
s_mov_b32 s19, 0x20000
s_mov_b32 s23, 0x20000
s_waitcnt lgkmcnt(0)
s_mov_b32 s8, s34
s_mov_b32 s9, s35
""")
load_k(range(0, cfg.pre))
a(f"""
s_mov_b32 s12, s36
s_mov_b32 s13, s37
s_mov_b32 s16, s56
s_mov_b32 s17, s57
s_mov_b32 s82, {cfg.pre//8}
s_mov_b32 s79, 0
s_cmp_ge_u32 s5, 9
s_cselect_b32 s42, 1, {cfg.thrall}
""")
if cfg.xthr: a("s_getreg_b32 s42, hwreg(HW_REG_XCC_ID)\ns_andn2_b32 s42, 1, s42")
a(f"""
s_mov_b32 s24, 0xaaaaaaaa
s_mov_b32 s25, 0xaaaaaaaa
v_mov_b32 v3, 0xffff
v_mov_b32 v4, 0xffff0000
v_cndmask_b32 v3, v3, v4, s[24:25]
s_mov_b32 s26, {f32(CSM)}
s_mov_b32 s67, 0x3f803f80
s_mul_i32 s29, s3, {NL*1024}
""")
for r in POOL[:17]:
    if cfg.stamps: a(f"s_mov_b32 s{r}, 0")
stamp("start")
if cfg.warm:
    a("""s_add_u32 s70, s27, 0x4000000
    s_mov_b64 exec, 1
    buffer_load_dword v40, v2, s[12:15], s27 offen nt
    buffer_load_dword v41, v2, s[8:11], s70 offen nt
    buffer_load_dword v42, v2, s[12:15], s70 offen nt
    global_load_ushort v43, v2, s[52:53]
    global_load_dword v44, v2, s[54:55] offset:192
    s_mov_b64 exec, -1""")
a(f"""
v_mov_b32 v4, -1
v_mov_b32 v5, -1
v_mov_b32 v6, -1
v_mov_b32 v7, -1
s_lshl_b32 s70, s3, 18
s_lshl_b32 s71, s2, 10
s_add_u32 s70, s70, s71
buffer_store_dwordx4 v[4:7], v2, s[16:19], s70 offen sc1
s_lshl_b32 s70, s3, 12
s_lshl_b32 s71, s4, 7
s_add_u32 s70, s70, s71
s_lshl_b32 s71, s6, 2
s_add_u32 s70, s70, s71
s_add_u32 s70, s70, {A_L(0)}
v_lshlrev_b32 v8, 6, v0
s_mov_b64 exec, 3
buffer_store_dword v4, v8, s[16:19], s70 offen sc1
s_mov_b64 exec, -1
v_mov_b32 v11, 0
global_load_ushort v23, v11, s[50:51]
s_mul_i32 s7, s4, 9
s_add_u32 s7, s7, s5
s_cmp_ge_u32 s5, 9
s_cbranch_scc1 L_pro_s1
v_lshlrev_b32 v8, 2, v0
s_lshl_b32 s70, s3, 16
s_lshl_b32 s71, s7, 8
s_add_u32 s70, s70, s71
s_add_u32 s70, s70, {B_A(0)}
buffer_store_dword v4, v8, s[16:19], s70 offen sc1
s_lshl_b32 s70, s3, 18
s_lshl_b32 s71, s7, 10
s_add_u32 s70, s70, s71
s_add_u32 s70, s70, {D_A(0)}
buffer_store_dwordx4 v[4:7], v2, s[16:19], s70 offen sc1
s_lshl_b32 s70, s3, 12
s_lshl_b32 s71, s7, 4
s_add_u32 s70, s70, s71
s_add_u32 s70, s70, {C_A(0)}
s_mov_b64 exec, 15
buffer_store_dword v4, v8, s[16:19], s70 offen sc1
s_lshl_b32 s70, s3, 12
s_lshl_b32 s71, s4, 7
s_add_u32 s70, s70, s71
s_add_u32 s70, s70, {H_A(0)}
buffer_store_dword v4, v8, s[16:19], s70 offen sc1
s_mov_b64 exec, -1
s_mov_b32 s20, s32
s_mov_b32 s21, s33
s_mov_b32 s22, 2304
v_lshlrev_b32 v9, 3, v0
v_lshlrev_b32 v10, 1, v0
buffer_load_dwordx2 v[12:13], v9, s[20:23], 0 offen
buffer_load_dwordx2 v[14:15], v9, s[20:23], 0 offen offset:512
buffer_load_ushort v16, v10, s[20:23], 0 offen offset:1024
buffer_load_dwordx2 v[18:19], v9, s[20:23], 0 offen offset:1152
buffer_load_dwordx2 v[20:21], v9, s[20:23], 0 offen offset:1664
buffer_load_ushort v22, v10, s[20:23], 0 offen offset:2176
s_mov_b32 s20, s38
s_mov_b32 s21, s39
s_mov_b32 s22, {576*8192}
v_lshrrev_b32 v24, 5, v0
v_and_b32 v25, 31, v0
v_lshlrev_b32 v25, 4, v25
v_lshlrev_b32 v26, 5, v24
v_xor_b32 v25, v25, v26
v_lshl_add_u32 v24, v24, 13, v25
v_xor_b32 v25, 64, v24
v_xor_b32 v26, 128, v24
v_xor_b32 v27, 192, v24
s_lshl_b32 s70, s5, 19
s_lshl_b32 s71, s3, 17
s_add_u32 s70, s70, s71
s_lshl_b32 s71, s4, 9
s_add_u32 s70, s70, s71
s_lshl_b32 s71, s3, 13
s_add_u32 s71, s71, {LWQ}
""")
for i in range(8):
    fs = ((i >> 2) & 1) * 2 + (i & 1)
    a(f"s_add_u32 m0, s71, {i*1024}\nbuffer_load_dwordx4 v{24+fs}, s[20:23], s70 offen nt lds")
    if i < 7: a("s_add_u32 s70, s70, 16384")
a.label("L_pro_s1")
ln(True, cfg.d1)
pass
a(f"""
v_lshlrev_b32 v23, 16, v23
v_readfirstlane_b32 s78, v23
s_mov_b32 s56, {LMX}
s_cmp_ge_u32 s5, 9
s_cbranch_scc1 L_pro_s2
v_add_u32 v24, {LXB}, v2
v_lshlrev_b32 v25, 2, v0
v_add_u32 v25, {LXB+2048}, v25
""")
for b in range(2):
    r = 12 + 6 * b
    a(f"""v_lshlrev_b32 v28, 16, v{r}
    v_and_b32 v29, 0xffff0000, v{r}
    v_lshlrev_b32 v30, 16, v{r+1}
    v_and_b32 v31, 0xffff0000, v{r+1}
    v_lshlrev_b32 v32, 16, v{r+2}
    v_and_b32 v33, 0xffff0000, v{r+2}
    v_lshlrev_b32 v34, 16, v{r+3}
    v_and_b32 v35, 0xffff0000, v{r+3}
    v_lshlrev_b32 v36, 16, v{r+4}
    ds_write_b128 v24, v[28:31] offset:{b*2304}
    ds_write_b128 v24, v[32:35] offset:{b*2304+1024}
    ds_write_b32 v25, v36 offset:{b*2304}
    s_waitcnt lgkmcnt(0)""")
a.label("L_pro_s2")
a(f"""
s_barrier
s_cmp_lg_u32 s3, {cfg.aw}
s_cbranch_scc1 L_pro_arr
v_mov_b32 v4, 0
v_mov_b32 v5, 1
s_mov_b64 exec, 1
global_atomic_add v6, v4, v5, s[54:55] offset:64 sc0 sc1
s_mov_b64 exec, -1
""")
ln(True, cfg.d0)
a(f"""v_readfirstlane_b32 s70, v6
s_cmp_lg_u32 s70, 255
s_cbranch_scc1 L_pro_arr
s_mov_b64 exec, 1
global_store_dword v4, v5, s[54:55] offset:128 sc1
s_mov_b64 exec, -1
L_pro_arr:
s_cmp_ge_u32 s5, 9
s_cbranch_scc1 L_pro_s3
""")
for b in range(2):
    a(f"s_mov_b32 s63, 1\ns_mov_b32 s64, {LXB + b*2304}\ns_mov_b32 s62, {D_A(b)}")
    call("SUB_CH2")
    if b == 0: a("s_barrier")
def load_wo():
    a(f"""
    s_mov_b32 s20, s40
    s_mov_b32 s21, s41
    s_mov_b32 s22, {4096*1152}
    v_lshrrev_b32 v24, 3, v0
    v_mul_u32_u24 v24, 1152, v24
    v_and_b32 v25, 7, v0
    v_lshlrev_b32 v25, 4, v25
    v_bfe_u32 v26, v0, 4, 1
    v_lshlrev_b32 v26, 5, v26
    v_xor_b32 v25, v25, v26
    v_xor_b32 v26, 64, v25
    v_add_u32 v25, v25, v24
    v_add_u32 v26, v26, v24
    s_lshl_b32 s70, s4, 2
    s_add_u32 s70, s70, s3
    s_mul_i32 s70, s70, {64*1152}
    s_lshl_b32 s71, s5, 7
    s_add_u32 s70, s70, s71
    s_lshl_b32 s71, s3, 13
    s_add_u32 s71, s71, {LWO}
    """)
    for i in range(8):
        a(f"s_add_u32 m0, s71, {i*1024}\nbuffer_load_dwordx4 v{25+(i&1)}, s[20:23], s70 offen nt lds")
        if i < 7: a(f"s_add_u32 s70, s70, {8*1152}")
def load_mixer(base):
    a(f"""
    s_lshl_b32 s70, s3, 10
    v_add_u32 v24, s70, v2
    v_add_u32 v25, 4096, v24
    v_add_u32 v26, 8192, v2
    s_add_u32 s71, s70, {base}
    """)
    for j, p in enumerate((44, 46, 48)):
        a(f"""s_add_u32 m0, s71, {j*9216}
        global_load_lds_dwordx4 v24, s[{p}:{p+1}]
        s_add_u32 m0, s71, {j*9216+4096}
        global_load_lds_dwordx4 v25, s[{p}:{p+1}]
        s_mov_b32 m0, {base+j*9216+8192}
        global_load_lds_dwordx4 v26, s[{p}:{p+1}]""")
if not cfg.latew:
    load_wo(); load_mixer(LMX)
a.label("L_pro_s3")
for r in POOL[17:]:
    if cfg.stamps: a(f"s_mov_b32 s{r}, 0")
ln(False, cfg.d2)
a("v_mov_b32 v4, 0")
poll(lambda: a("global_load_dword v5, v4, s[54:55] offset:128 sc1"), lambda: a("v_cmp_eq_u32 vcc, 0, v5"), depth=cfg.d3)
stamp("cnt")
a(f"""s_lshl_b32 s70, s3, 8
v_lshl_add_u32 v22, v0, 2, s70
s_mul_i32 s69, s4, 9216
s_add_u32 s70, s69, {D_A(0)}
s_add_u32 s71, s70, 4096
s_add_u32 s72, s70, 8192
s_add_u32 s73, s69, {D_A(1)}
s_add_u32 s74, s73, 4096
s_add_u32 s75, s73, 8192
v_lshrrev_b32 v24, 1, v22
v_add_u32 v24, {LQ}, v24""")
poll(lambda: (qg_issue(4, 70), qg_issue(13, 73)), lambda: check_sentinel(range(4, 22), 23), depth=cfg.d4)
qg_sum(4); qg_sum(13)
a("ds_write_b16 v24, v4\nds_write_b16 v24, v13 offset:512")
stamp("q1")
ln_until(10)
a("s_waitcnt lgkmcnt(0)\ns_barrier")

def att_params(ai, seq):
    a(f"s_mov_b32 s58, {A_O(ai)}\ns_mov_b32 s59, {A_L(ai)}\ns_mov_b32 s65, {LQ + ai*512}\ns_mov_b32 s64, {LX + (seq&1)*4224}")
def hint_addr(ai):
    a(f"s_lshl_b32 s62, s4, 7\ns_add_u32 s62, s62, {H_A(ai)+8}")
def att_p1(ai, seq):
    att_params(ai, seq); hint_addr(ai); a("s_mov_b64 vcc, -1"); call("SUB_ATT")
def qatt(ai, seq, loadnext):
    att_params(ai, seq); a(f"s_mov_b32 s62, {D_A(ai)}\ns_mov_b32 s63, {2 if loadnext else 0}"); call("SUB_QATT")
def ch1(inst, final, entry="SUB_CH1", aonly=False):
    b = inst & 1
    a(f"s_mov_b32 s58, {A_O(inst)}\ns_mov_b32 s59, {A_L(inst)}\ns_mov_b32 s60, {B_A(inst)}\ns_mov_b32 s64, {LXB + b*2304}")
    a(f"s_mov_b32 s63, {2 if aonly else 1 if final else 0}\ns_mov_b32 s61, {b*1152 if final else C_A(inst)}")
    call(entry)
def ch2(inst):
    b = inst & 1
    a(f"s_mov_b32 s63, 0\ns_mov_b32 s61, {C_A(inst)}\ns_mov_b32 s64, {LXB + b*2304}\ns_mov_b32 s62, {D_A(2+inst)}")
    call("SUB_CH2")

a(f"s_cmp_eq_u32 s3, 0\ns_cselect_b32 s63, 4, 0\ns_lshl_b32 s60, s4, 7\ns_add_u32 s60, s60, {H_A(2)+4}")
att_p1(0, 0)
stamp("P1b0")
a("s_add_u32 s27, s27, 0x4000000\ns_cmp_ge_u32 s5, 9\ns_cbranch_scc1 L_srole")
a(f"s_mov_b32 s42, {cfg.thr3}")
if cfg.latew:
    load_wo(); load_mixer(LMX)
    a("s_waitcnt vmcnt(9)\ns_barrier")
ch1(0, False); ch2(0)
stamp("wq0")
a(f"s_mov_b32 s69, {cfg.s0['D']}")
qatt(2, 1, True)
stamp("P2b0")
if cfg.roles:
    ln_until(cfg.fa)
    ch1(2, True, aonly=True)
    a(f"""s_or_b32 s70, s5, s3
    s_cbranch_scc1 L_nf3
    s_lshl_b32 s70, s4, 7
    s_add_u32 s70, s70, {H_A(3)}
    s_mov_b64 exec, 1
    buffer_store_dword v2, v2, s[16:19], s70 offen sc1
    s_mov_b64 exec, -1
    L_nf3:""")
else:
    ch1(2, True)
stamp("fin0")
ln_until(10)
a(f"s_cmp_eq_u32 s3, 0\ns_cselect_b32 s63, 3, 0\ns_lshl_b32 s60, s4, 7\ns_add_u32 s60, s60, {H_A(2)}")
att_p1(1, 2)
stamp("P1b1")
a("s_mov_b32 s79, 1")
ch1(1, False); ch2(1)
qatt(3, 3, False)
stamp("P2b1")
a("s_mov_b32 s79, 2")
ch1(3, True)
stamp("end")
a("s_branch L_stamps" if cfg.stamps else "s_branch L_fin")
def s_reload():
    if not cfg.nogo: flagwait(2, cfg.sg, 0, cfg.n1)
    stamp("s.go")
    a("s_mov_b32 s82, 0")
    ln_until(8)
    load_v(range(13, 16))
    a("s_mov_b32 s82, 10\ns_mov_b32 s29, s57")
    ln_until(8 + cfg.j0 // 8)
    a("s_mov_b32 s82, 16")
    if cfg.stamps: a("s_waitcnt vmcnt(0)")
    stamp("s.rel")
a.label("L_srole")
a("s_mov_b32 s42, 0")
a(f"s_mov_b32 s69, 0")
if cfg.roles:
    a(f"s_mul_i32 s57, s3, {NS*1024}\ns_add_u32 s57, s57, {LWO}")
    if cfg.go0 >= 0: flagwait(2, cfg.sh, 4, cfg.n0)
    att_params(1, 1); call("SUB_RING")
    stamp("s.ring")
    flagwait(0, cfg.sh)
    qatt(2, 2, False)
    stamp("s.P2b0")
    if cfg.j0 < 64:
        att_params(1, 1); hint_addr(1); a("s_mov_b32 s63, 0"); call("SUB_RESUME")
        stamp("s.P1b1")
    if cfg.pf0 < 8:
        nun = 36 * (8 - cfg.pf0)
        a(f"""v_lshlrev_b32 v4, 7, v0
        s_sub_u32 s70, s5, 9
        s_lshl_b32 s70, s70, 2
        s_add_u32 s70, s70, s3
        s_mov_b32 s71, {(1 << 32) // 36 + 1}""")
        for i in range((nun + 27) // 28):
            L = a.newlabel("Lpf")
            if (i + 1) * 28 > nun: a(f"s_cmp_ge_u32 s70, {nun}\ns_cbranch_scc1 {L}")
            a(f"""s_mul_hi_u32 s72, s70, s71
            s_mul_i32 s73, s72, 36
            s_sub_u32 s73, s70, s73
            s_lshr_b32 s74, s73, 2
            s_sub_u32 s74, s74, s4
            s_and_b32 s74, s74, 15
            s_lshl_b32 s75, s4, 4
            s_add_u32 s74, s74, s75
            s_lshl_b32 s74, s74, 18
            s_and_b32 s73, s73, 3
            s_lshl_b32 s73, s73, 16
            s_add_u32 s74, s74, s73
            s_lshl_b32 s72, s72, 13
            s_add_u32 s74, s74, s72
            s_add_u32 s74, s74, {0x4000000 + cfg.pf0 * 8192}
            buffer_load_dword a{i}, v4, s[12:15], s74 offen
            s_add_u32 s70, s70, 28""")
            a.label(L)
    if cfg.relfirst: s_reload()
    load_mixer(0)
    a(f"""s_mov_b32 s56, 0
    s_mov_b32 s70, {C_A(0)}
    v_lshlrev_b32 v13, 2, v0
    buffer_load_dwordx4 v[4:7], v2, s[16:19], s70 offen sc1
    buffer_load_dwordx4 v[8:11], v2, s[16:19], s70 offen offset:1024 sc1
    buffer_load_dword v12, v13, s[16:19], s70 offen offset:2048 sc1
    v_add_u32 v14, {LXB}, v2
    v_add_u32 v13, {LXB}, v13
    s_mul_i32 s7, s4, 7
    s_add_u32 s7, s7, s5
    s_sub_u32 s7, s7, 9
    s_waitcnt vmcnt(0)
    ds_write_b128 v14, v[4:7]
    ds_write_b128 v14, v[8:11] offset:1024
    ds_write_b32 v13, v12 offset:2048""")
    flagwait(3, cfg.sg)
    ch1(2, True, entry="SUB_CH1B")
    if not cfg.late2:
        a("s_add_u32 s7, s7, 112\ns_cmp_ge_u32 s7, 144\ns_cbranch_scc1 L_s_nf")
        call("SUB_CH1B")
        a.label("L_s_nf")
    stamp("s.fin0")
    if not cfg.relfirst: s_reload()
else:
    flagwait(0, cfg.sh)
    qatt(2, 1, True)
    ln_until(10)
    a("s_mov_b32 s63, 0")
    att_p1(1, 2)
    stamp("s.P1b1")
flagwait(1, cfg.sh)
qatt(3, 2 if (cfg.roles and cfg.j0 < 64) else 3, False)
stamp("s.end")
if cfg.roles and cfg.late2:
    a("s_add_u32 s7, s7, 112\ns_cmp_ge_u32 s7, 144\ns_cbranch_scc1 L_s_nf")
    ch1(2, True, entry="SUB_CH1B")
    stamp("end")
    a.label("L_s_nf")
if cfg.stamps: a("s_branch L_stamps")
a.label("L_fin")
a("s_waitcnt vmcnt(0)")
a.label("L_end")
a("s_endpgm")

def att_pre(zero=True):
    a(f"""
    v_bfe_u32 v15, v0, 1, 1
    v_lshlrev_b32 v12, 8, v15
    v_lshrrev_b32 v13, 4, v0
    v_lshl_add_u32 v12, v13, 5, v12
    v_and_b32 v14, 1, v0
    v_lshl_add_u32 v12, v14, 4, v12
    v_add_u32 v12, s65, v12
    v_xor_b32 v15, v15, v14
    v_lshlrev_b32 v47, 9, v15
    v_lshl_add_u32 v47, v13, 7, v47
    v_bfe_u32 v15, v0, 2, 2
    v_lshl_add_u32 v47, v15, 3, v47
    v_lshl_add_u32 v47, v14, 2, v47
    s_lshl_b32 s70, s3, 10
    s_add_u32 s70, s70, s64
    v_add_u32 v47, s70, v47
    """)
    if zero:
        for i in range(8): a(f"v_mov_b32 v{34+i}, 0")
def Dset(i): return 12 + 4 * (i % 3)
def adds(i):
    G, t = i >> 2, i & 3; d = Dset(i)
    a(f"v_add_f32_dpp v32, v{d+1}, v{d} quad_perm:[1,0,3,2] row_mask:{1<<t:#x} bank_mask:0xf")
    a(f"v_add_f32_dpp v33, v{d+2}, v{d+3} quad_perm:[1,0,3,2] row_mask:{1<<t:#x} bank_mask:0xf")
    if t == 3:
        a(f"v_cndmask_b32 v{24+G}, v32, v33, s[24:25]")
        if G == 1: a("v_max_f32 v46, v24, v25")
        elif G % 2 == 1: a(f"v_max3_f32 v46, v46, v{23+G}, v{24+G}")
def kmm(kt, src):
    d = Dset(kt >> 1)
    if kt & 1: a(f"v_mfma_f32_16x16x32_bf16 {R4(d)}, v[8:11], {src}, {R4(d)}")
    else: a(f"v_mfma_f32_16x16x32_bf16 {R4(d)}, v[4:7], {src}, 0")
def softmax():
    for ctl in ("quad_perm:[2,3,0,1]", "row_ror:4", "row_ror:8"):
        a(f"v_max_f32_dpp v46, v46, v46 {ctl} {DPPALL}")
    rows_reduce("v_max_f32", 46, 32)
    a("v_mul_f32 v32, s26, v46")
    for G in range(8): a(f"v_fma_f32 v{24+G}, v{24+G}, s26, -v32")
    for G in range(8): a(f"v_exp_f32 v{24+G}, v{24+G}")
    a("v_pk_add_f32 v[4:5], v[24:25], v[26:27]\nv_pk_add_f32 v[6:7], v[28:29], v[30:31]\nv_pk_add_f32 v[4:5], v[4:5], v[6:7]\nv_add_f32 v51, v4, v5")
    lctl = ["quad_perm:[2,3,0,1]", "row_ror:8", "row_ror:4"]
    for G in range(8):
        t = 32 + (G & 1)
        a(f"v_mov_b32_dpp v{t}, v{24+G} quad_perm:[1,0,3,2] {DPPALL}")
        if G in (1, 3, 5): a(f"v_add_f32_dpp v51, v51, v51 {lctl[G//2]} {DPPALL}")
        a(f"v_cvt_pk_bf16_f32 v{24+G}, v{24+G}, v{t}")
    rows_reduce("v_add_f32", 51, 32)
curG = [None]
def build(vt, par):
    G, kap = vt >> 3, vt & 7
    if G != curG[0]:
        for rot in (1, 2, 3): a(f"v_mov_b32_dpp v{47+rot}, v{24+G} row_ror:{4*rot} {DPPALL}")
        curG[0] = G
    bs = 34 + 4 * par; x = 2 * (kap & 1); hb = kap >> 1
    for rot in range(4):
        k = (hb + rot) % 4
        z = 24 + G if rot == 0 else 47 + rot
        a(f"v_and_b32_dpp v{bs+k}, v{z}, v3 quad_perm:[{x},{x},{x+1},{x+1}] row_mask:0xf bank_mask:{1<<k:#x}")
def vmm(src, par, first):
    a(f"v_mfma_f32_16x16x32_bf16 v[42:45], {src}, {R4(34+4*par)}, {'0' if first else 'v[42:45]'}")

a.hist = []
a.label("SUB_QATT")
att_pre()
a(f"""s_lshl_b32 s70, s3, 8
v_lshl_add_u32 v22, v0, 2, s70
s_mul_i32 s70, s4, 9216
s_add_u32 s70, s70, s62
s_add_u32 s71, s70, 4096
s_add_u32 s72, s70, 8192
v_lshrrev_b32 v24, 1, v22
v_add_u32 v24, s65, v24
s_cmp_eq_u32 s69, 0
s_cbranch_scc1 L_qatt_ns
s_sleep {max(1, cfg.s0['D'])}
L_qatt_ns:""")
poll(lambda: qg_issue(13, 70), lambda: check_sentinel(range(13, 22), 23))
qg_sum(13)
a("ds_write_b16 v24, v13\ns_cmp_eq_u32 s63, 2\ns_cselect_b32 s82, 0, s82\ns_mov_b64 vcc, 0\ns_waitcnt lgkmcnt(0)\ns_barrier")
stamp("q2b1", 1)
a.label("SUB_ATT2")
outofline = []
def site(fn):
    Lo = a.newlabel("Lo"); Lb = a.newlabel("Lb")
    a(f"s_cbranch_vccnz {Lo}"); a.label(Lb)
    outofline.append((Lo, Lb, fn))
def lnif():
    L = a.newlabel("Lki")
    a(f"s_cmp_ge_u32 s82, 16\ns_cbranch_scc1 {L}\ns_call_b64 s[80:81], SUB_LN"); a.label(L)
a("ds_read_b128 v[4:7], v12\nds_read_b128 v[8:11], v12 offset:128\ns_waitcnt vmcnt(16) lgkmcnt(0)")
for i in range(32):
    kmm(2*i, khome(2*i)); kmm(2*i+1, khome(2*i+1))
    if i >= 2: adds(i - 2)
    if cfg.ksites and i in (0, 15): site(lnif)
    if i in (3, 7):
        Lo = a.newlabel("Lo"); Lb = a.newlabel("Lb")
        a(f"s_cmp_lt_u32 s82, 2\ns_cbranch_scc1 {Lo}"); a.label(Lb)
        outofline.append((Lo, Lb, lambda: a("s_call_b64 s[80:81], SUB_LN")))
adds(30); adds(31)
if cfg.ksites: site(lnif)
softmax()
a("v_add_u32 v33, s29, v2")
sites = list(range(0, 60, 4)) + [60, 61, 62, 63]
def fetch(i):
    if i in sites:
        nxt = [s for s in sites if s > i]
        last = (nxt[0] if nxt else 64) - 1
        g = min(7, (i >> 3) + 2)
        def fn(i=i, g=g, last=last):
            if i % 8 == 0 and (i >> 3) + 2 <= 7:
                L = a.newlabel("Lsk")
                a(f"s_cmp_gt_u32 s82, {8+g}\ns_cbranch_scc1 {L}\ns_call_b64 s[80:81], SUB_LN"); a.label(L)
            a(f"s_waitcnt vmcnt({8*g + 7 - last})")
            for gi, code in ((cfg.go, 3), (cfg.go0, 4)):
              if i == gi:
                L = a.newlabel("Lsg")
                a(f"s_cmp_lg_u32 s63, {code}\ns_cbranch_scc1 {L}\ns_mov_b64 exec, 1\nbuffer_atomic_add v3, v2, s[16:19], s60 offen sc1\ns_mov_b64 exec, -1"); a.label(L)
            if i == cfg.hint:
                L = a.newlabel("Lsh")
                a(f"s_cmp_lg_u32 s3, 0\ns_cbranch_scc1 {L}\ns_mov_b64 exec, 1\nbuffer_atomic_add v3, v2, s[16:19], s62 offen sc1\ns_mov_b64 exec, -1"); a.label(L)
        site(fn)
    if i < NL:
        a(f"ds_read_b128 {R4(12 + 4*(i%3))}, v33 offset:{i*1024}")
curG[0] = None
for i in range(66):
    if i == cfg.j0 + 2: a.label("L_att_resume")
    if i < NL: fetch(i)
    if 1 <= i <= 64: build(i - 1, (i - 1) & 1)
    if i >= 2:
        j = i - 2
        if j >= NL: fetch(j); src = vhome(j)
        else:
            a(f"s_waitcnt lgkmcnt({min(NL - 1, j + 2) - j})"); src = R4(12 + 4*(j%3))
        vmm(src, j & 1, j == 0)
        if cfg.vsites and j in (2, 18, 34, 50):
            Lo = a.newlabel("Lo"); Lb = a.newlabel("Lb")
            a(f"s_cmp_lt_u32 s82, 8\ns_cbranch_scc1 {Lo}"); a.label(Lb)
            outofline.append((Lo, Lb, lambda: a("s_call_b64 s[80:81], SUB_LN")))
a.label("L_att_epi")
a(f"""
v_and_b32 v32, 1, v0
v_lshlrev_b32 v32, 5, v32
s_lshl_b32 s70, s3, 2
s_add_u32 s70, s70, s64
s_add_u32 s70, s70, 4096
v_add_u32 v32, s70, v32
ds_write2_b32 v32, v46, v51 offset0:0 offset1:4
v_add_u32 v32, s64, v2
v_lshrrev_b32 v33, 5, v0
v_lshlrev_b32 v34, 6, v33
v_lshlrev_b32 v33, 5, v33
v_add_u32 v33, s64, v33
ds_write2_b32 v47, v42, v43 offset0:0 offset1:8
ds_write2_b32 v47, v44, v45 offset0:16 offset1:24
s_lshl_b32 s70, s2, 10
s_add_u32 s70, s70, s58
s_lshl_b32 s71, s4, 7
s_add_u32 s71, s71, s59
s_lshl_b32 s72, s6, 2
s_add_u32 s71, s71, s72
s_cmp_lg_u32 s3, 0
s_waitcnt lgkmcnt(0)
s_barrier
s_cbranch_scc1 L_att_ret
ds_read_b128 v[20:23], v33 offset:4096
ds_read_b128 v[24:27], v33 offset:4112
ds_read_b128 v[4:7], v32
ds_read_b128 v[8:11], v32 offset:1024
ds_read_b128 v[12:15], v32 offset:2048
ds_read_b128 v[16:19], v32 offset:3072
s_waitcnt lgkmcnt(4)
v_max3_f32 v28, v20, v21, v22
v_max_f32 v28, v28, v23
v_mul_f32 v28, s26, v28
""")
for w in range(4): a(f"v_fma_f32 v{20+w}, v{20+w}, s26, -v28")
for w in range(4): a(f"v_exp_f32 v{20+w}, v{20+w}")
a("""v_mul_f32 v30, v20, v24
v_fmac_f32 v30, v21, v25
v_fmac_f32 v30, v22, v26
v_fmac_f32 v30, v23, v27
s_waitcnt lgkmcnt(0)
v_pk_mul_f32 v[4:5], v[4:5], v[20:21] op_sel:[0,0] op_sel_hi:[1,0]
v_log_f32 v29, v30
v_rcp_f32 v30, v30
v_pk_mul_f32 v[6:7], v[6:7], v[20:21] op_sel:[0,0] op_sel_hi:[1,0]
v_pk_fma_f32 v[4:5], v[8:9], v[20:21], v[4:5] op_sel:[0,1,0] op_sel_hi:[1,1,1]
v_pk_fma_f32 v[6:7], v[10:11], v[20:21], v[6:7] op_sel:[0,1,0] op_sel_hi:[1,1,1]
v_pk_fma_f32 v[4:5], v[12:13], v[22:23], v[4:5] op_sel:[0,0,0] op_sel_hi:[1,0,1]
v_pk_fma_f32 v[6:7], v[14:15], v[22:23], v[6:7] op_sel:[0,0,0] op_sel_hi:[1,0,1]
v_pk_fma_f32 v[4:5], v[16:17], v[22:23], v[4:5] op_sel:[0,1,0] op_sel_hi:[1,1,1]
v_pk_fma_f32 v[6:7], v[18:19], v[22:23], v[6:7] op_sel:[0,1,0] op_sel_hi:[1,1,1]
v_pk_mul_f32 v[4:5], v[4:5], v[30:31] op_sel:[0,0] op_sel_hi:[1,0]
v_pk_mul_f32 v[6:7], v[6:7], v[30:31] op_sel:[0,0] op_sel_hi:[1,0]
v_add_f32 v29, v29, v28
buffer_store_dwordx4 v[4:7], v2, s[16:19], s70 offen sc1
s_mov_b32 exec_lo, 1
s_mov_b32 exec_hi, 1
buffer_store_dword v29, v34, s[16:19], s71 offen sc1
s_mov_b64 exec, -1
L_att_ret:""")
ret()
a.hist = []
a.label("SUB_ATT")
att_pre()
a("s_branch SUB_ATT2")
for Lo, Lb, fn in outofline:
    a.hist = []
    a.label(Lo); fn(); a(f"s_branch {Lb}")

a.hist = []
a.label("SUB_LN")
if cfg.thr >= 0: a(f"s_cmp_eq_u32 s42, 0\ns_cbranch_scc1 L_ln_nt\ns_waitcnt vmcnt({cfg.thr})\nL_ln_nt:")
for k in range(15): a(f"s_cmp_eq_u32 s82, {k}\ns_cbranch_scc1 L_lnb{k}")
for k in [15] + list(range(15)):
    a.label(f"L_lnb{k}")
    for hlf in range(2):
        if hlf and cfg.thrm >= 0: a(f"s_cmp_eq_u32 s42, 0\ns_cbranch_scc1 L_lnm{k}\ns_waitcnt vmcnt({cfg.thrm})\nL_lnm{k}:")
        if k < 8: load_k(range(8*k+4*hlf, 8*k+4*hlf+4))
        else: load_v(range(8*(k-8)+4*hlf, 8*(k-8)+4*hlf+4))
    a("s_add_u32 s82, s82, 1\ns_setpc_b64 s[80:81]")

a.hist = []
a.label("SUB_LNW")
a(f"""s_mov_b32 s36, 0
L_lnw_i:
s_call_b64 s[80:81], SUB_LN
s_add_u32 s36, s36, 8
L_lnw_c:
s_getreg_b32 s37, hwreg(HW_REG_IB_STS)
s_and_b32 s28, s37, 15
s_lshr_b32 s37, s37, 18
s_and_b32 s37, s37, 0x30
s_or_b32 s37, s37, s28
s_cmp_le_u32 s37, s36
s_cbranch_scc1 L_lnw_r
s_cmp_ge_u32 s82, 16
s_cbranch_scc1 L_lnw_s
s_cmp_lt_u32 s37, 40
s_cbranch_scc1 L_lnw_i
L_lnw_s:
s_sleep 1
s_branch L_lnw_c
L_lnw_r:
s_setpc_b64 s[34:35]""")

a.hist = []
a.label("SUB_CH1")
a(f"""
v_lshrrev_b32 v21, 4, v0
v_bfe_u32 v22, v0, 2, 2
v_lshl_add_u32 v23, v21, 3, v22
v_lshlrev_b32 v23, 7, v23
v_bfe_u32 v21, v0, 3, 2
v_xor_b32 v21, s3, v21
v_lshl_add_u32 v23, v21, 5, v23
v_and_b32 v21, 3, v0
v_lshl_add_u32 v23, v21, 3, v23
v_add_u32 v23, {LWO}, v23
""")
for ks in range(7):
    for jh in range(2):
        a(f"ds_read_b64_tr_b16 {R2(24 + 4*ks + 2*jh)}, v23 offset:{(32*ks+4*jh)*128}")
a(f"""
v_lshlrev_b32 v21, 2, v0
s_lshl_b32 s70, s4, 14
s_add_u32 s70, s70, s58
s_lshl_b32 s71, s3, 8
s_add_u32 s70, s70, s71
s_add_u32 s71, s70, 4096
s_add_u32 s72, s70, 8192
s_add_u32 s73, s70, 12288
s_lshl_b32 s74, s4, 7
s_add_u32 s74, s74, s59
s_lshr_b32 s75, s3, 1
s_lshl_b32 s75, s75, 6
s_add_u32 s74, s74, s75
s_lshl_b32 s75, s3, 7
s_add_u32 s75, s75, {LO}
""")
def issA():
    a("v_and_b32 v20, 60, v21\nbuffer_load_dword v20, v20, s[16:19], s74 offen sc1")
    for s in range(16):
        a(f"buffer_load_dword v{4+s}, v21, s[16:19], s{70+(s>>2)} offen offset:{(s&3)*1024} sc1")
TGT = 16 * 0xffff - 1
if cfg.hint >= 0:
    a(f"""s_cmp_lg_u32 s63, 0
    s_cbranch_scc1 L_ch1_sa
    s_lshl_b32 s76, s4, 7
    s_add_u32 s76, s76, s61
    s_add_u32 s76, s76, {0x8008}
    v_mov_b32 v4, 0
    s_mov_b32 s68, 0
    L_ch1_wa:
    buffer_load_dword v5, v4, s[16:19], s76 offen sc1
    s_waitcnt vmcnt(0)
    v_cmp_gt_i32 vcc, {TGT}, v5
    s_cbranch_vccz L_ch1_pa
    s_sleep {cfg.sh}
    s_add_u32 s68, s68, 1
    s_cmp_lt_u32 s68, {cfg.spin}
    s_cbranch_scc1 L_ch1_wa
    s_branch L_ch1_pa
    L_ch1_sa:
    s_sleep {cfg.s0['A']}
    L_ch1_pa:""")
    poll(issA, lambda: check_sentinel(range(4, 21), 22), s0=cfg.sA2)
else:
    poll(issA, lambda: check_sentinel(range(4, 21), 22), s0=cfg.s0["A"])
stamp("c.A", 1); stamp("f.A", 2)
a(f"v_max_f32_dpp v22, v20, v20 {CTL4[0]} {DPPALL}")
for c in CTL4[1:]: a(f"v_max_f32_dpp v22, v22, v22 {c} {DPPALL}")
a("v_sub_f32 v20, v20, v22\nv_exp_f32 v20, v20")
a(f"v_mul_f32_dpp v21, v20, v4 row_newbcast:0 {DPPALL}\nv_add_f32_dpp v22, v20, v20 {CTL4[0]} {DPPALL}")
for s in range(1, 16):
    a(f"v_fmac_f32_dpp v21, v20, v{4+s} row_newbcast:{s} {DPPALL}")
    if s in (2, 4, 6): a(f"v_add_f32_dpp v22, v22, v22 {CTL4[s//2]} {DPPALL}")
    if s == 4: a(f"ds_read_b64_tr_b16 v[4:5], v23 offset:{(32*7)*128}\nds_read_b64_tr_b16 v[6:7], v23 offset:{(32*7+4)*128}")
    if s == 8: a("v_rcp_f32 v22, v22")
    if s == 9: a("v_lshl_add_u32 v23, v0, 1, s75")
a(f"""
v_mul_f32 v21, v21, v22
v_cvt_pk_bf16_f32 v21, v21, v21
ds_write_b16 v23, v21
v_and_b32 v0, 48, v0
v_add_u32 v0, {LO}, v0
s_lshl_b32 s70, s7, 8
s_add_u32 s70, s70, s60
s_lshl_b32 s71, s3, 6
s_add_u32 s74, s70, s71
s_mul_i32 s70, s3, 9216
s_add_u32 s70, s70, s60
s_add_u32 s71, s70, 2304
s_add_u32 s72, s70, 4608
s_add_u32 s73, s70, 6912
s_waitcnt lgkmcnt(0)
s_barrier
""")
order = [7, 0, 1, 2, 3, 4, 5, 6]
def frag(ks): return "v[4:7]" if ks == 7 else R4(24 + 4*ks)
bufs = ["v[8:11]", "v[12:15]", "v[16:19]"]
for n in range(3): a(f"ds_read_b128 {bufs[n]}, v0 offset:{order[n]*64}")
for n, ks in enumerate(order):
    a(f"s_waitcnt lgkmcnt({len(bufs) - 1 - n})")
    a(f"v_mfma_f32_16x16x32_bf16 v[20:23], {bufs[n]}, {frag(ks)}, {'0' if n == 0 else 'v[20:23]'}")
    for fr in (frag(ks), bufs[n]):
        if len(bufs) < 8:
            a(f"ds_read_b128 {fr}, v0 offset:{order[len(bufs)]*64}"); bufs.append(fr)
a(f"""
v_lshrrev_b32 v0, 4, v2
v_lshlrev_b32 v49, 2, v0
s_mul_i32 s75, s3, 2304
s_add_u32 s75, s75, {LX}
v_add_u32 v51, s75, v2
s_mov_b64 exec, 0xffff
buffer_store_dword v20, v49, s[16:19], s74 offen sc1
s_mov_b64 exec, -1
""")
a("s_cmp_eq_u32 s63, 2\ns_cbranch_scc1 L_ch1_ret")
a.label("L_ch1_b")
ln(False)
def issB():
    for r in range(4):
        a(f"buffer_load_dwordx4 {R4(4+8*r)}, v2, s[16:19], s{70+r} offen sc1")
        a(f"buffer_load_dwordx4 {R4(8+8*r)}, v2, s[16:19], s{70+r} offen offset:1024 sc1")
        a(f"buffer_load_dword v{36+r}, v49, s[16:19], s{70+r} offen offset:2048 sc1")
def chkB():
    for i in range(4): a(f"v_pk_add_f32 {R2(40+2*i)}, {R2(4+2*i)}, {R2(12+2*i)}")
    a("v_add_f32 v48, v36, v37")
    for r in (2, 3):
        for i in range(4): a(f"v_pk_add_f32 {R2(40+2*i)}, {R2(40+2*i)}, {R2(4+8*r+2*i)}")
        a(f"v_add_f32 v48, v48, v{36+r}")
    a("v_add_u32 v50, s75, v49\nds_write_b128 v51, v[40:43]\nds_write_b128 v51, v[44:47] offset:1024\nds_write_b32 v50, v48 offset:2048")
    check_sentinel(range(4, 40), 50)
if cfg.hint >= 0:
    a(f"""s_cmp_lg_u32 s63, 0
    s_cbranch_scc1 L_ch1_sb
    s_add_u32 s76, s61, {0x8008}
    v_and_b32 v4, 15, v0
    v_lshlrev_b32 v4, 7, v4
    buffer_load_dword v5, v4, s[16:19], s76 offen sc1
    s_waitcnt vmcnt(0)
    v_cmp_gt_i32 vcc, {TGT}, v5
    s_cbranch_vccz L_ch1_pb
    s_mov_b32 s68, 0
    L_ch1_wb:
    s_sleep {cfg.sh}
    buffer_load_dword v5, v4, s[16:19], s76 offen sc1
    s_waitcnt vmcnt(0)
    v_cmp_gt_i32 vcc, {TGT}, v5
    s_cbranch_vccz L_ch1_wb2
    s_add_u32 s68, s68, 1
    s_cmp_lt_u32 s68, {cfg.spin}
    s_cbranch_scc1 L_ch1_wb
    L_ch1_wb2:
    s_sleep {cfg.sB2}
    s_branch L_ch1_pb
    L_ch1_sb:
    s_sleep {cfg.s0['B']}
    L_ch1_pb:""")
    poll(issB, chkB)
else:
    poll(issB, chkB, s0=cfg.s0["B"])
stamp("c.B", 1); stamp("f.B", 2)
a(f"""
v_add_u32 v14, s64, v2
v_add_u32 v15, s64, v49
ds_read_b128 v[4:7], v14
ds_read_b128 v[8:11], v14 offset:1024
ds_read_b32 v12, v15 offset:2048
v_add_u32 v14, {LX}, v2
v_add_u32 v15, {LX+2048}, v49
s_waitcnt lgkmcnt(3)
s_barrier
""")
for r in range(4):
    a(f"ds_read_b128 {R4(16+8*r)}, v14 offset:{r*2304}\nds_read_b128 {R4(20+8*r)}, v14 offset:{r*2304+1024}")
    if r == 0: a("ds_read2st64_b32 v[48:49], v15 offset0:0 offset1:9\nds_read2st64_b32 v[50:51], v15 offset0:18 offset1:27")
a(f"""
v_lshlrev_b32 v13, 3, v0
v_add_u32 v13, {LLN}, v13
v_lshlrev_b32 v14, 1, v0
v_add_u32 v14, {LLN+1024}, v14
v_and_b32 v15, 3, v0
s_lshl_b32 s70, s7, 3
s_add_u32 s70, s70, {LLN}
v_lshl_add_u32 v15, v15, 1, s70
s_lshl_b32 s70, s3, 8
s_add_u32 s70, s70, s56
""")
for r in range(4):
    a(f"s_waitcnt lgkmcnt({6 - 2*r})")
    for i in range(4): a(f"v_pk_add_f32 {R2(4+2*i)}, {R2(4+2*i)}, {R2(16+8*r+2*i)}")
    a(f"v_add_f32 v12, v12, v{48+r}")
a("""v_cvt_pk_bf16_f32 v16, v4, v5
v_cvt_pk_bf16_f32 v17, v6, v7
v_cvt_pk_bf16_f32 v18, v8, v9
v_cvt_pk_bf16_f32 v19, v10, v11
v_cvt_pk_bf16_f32 v20, v12, 0
ds_write_b64 v13, v[16:17]
ds_write_b64 v13, v[18:19] offset:512
ds_write_b16 v14, v20
ds_read_u16 v27, v15
v_lshl_add_u32 v26, v0, 2, s70""")
fill = [f"ds_read2st64_b32 {R2(28+2*i)}, v26 offset0:{4*i} offset1:{36+4*i}" for i in range(8)]
fill += [f"ds_read2st64_b32 {R2(44+2*i)}, v26 offset0:{72+8*i} offset1:{76+8*i}" for i in range(4)]
fill = [fill[0], fill[8]] + fill[1:8] + fill[9:]
stats([16, 17, 18, 19, 20], 4, 5, fill)
ln_scalars(4, 5, 6, 7, 8)
a("s_waitcnt lgkmcnt(12)\nv_lshlrev_b32 v27, 16, v27\nv_sub_f32 v9, v27, v6\nv_sub_f32 v4, v4, v6\nv_mul_f32 v5, v5, v7\nv_mul_f32 v4, v4, v7\nv_mul_f32 v5, v5, v7")
rbf(9, 10); a("v_mul_f32 v9, v9, v7"); rbf(9, 10)
ln_scalars(4, 5, 6, 7, 8)
a("v_sub_f32 v9, v9, v6"); rbf(9, 10); a("v_mul_f32 v9, v9, v7"); rbf(9, 10)
a("v_mov_b32 v25, v26")
for e in range(4): a(f"v_readlane_b32 s{70+2*e}, v9, {60+e}")
ln(False)
a(f"v_mov_b32 v26, {f32(C1)}\ns_mov_b32 s66, {f32(C2)}\ns_waitcnt lgkmcnt(0)")
for i in range(9):
    w1, b1, w2 = (28+2*i, 29+2*i, 44+i) if i < 8 else (28, 29, 44)
    if i == 8: a("s_waitcnt lgkmcnt(0)")
    for j, r in enumerate((w1, b1, w2)):
        a(f"v_lshlrev_b32 v{12+2*j}, 16, v{r}\nv_and_b32 v{13+2*j}, 0xffff0000, v{r}")
    if i == 0: a("ds_read2st64_b32 v[28:29], v25 offset0:32 offset1:68\nds_read_b32 v44, v25 offset:26624")
    for e0 in (0, 2):
        U = (18, 22); T = (20, 24); E = (e0, e0 + 1)
        for k in range(2): a(f"v_pk_fma_f32 {R2(U[k])}, v[12:13], s[{70+2*E[k]}:{71+2*E[k]}], v[14:15] op_sel_hi:[1,0,1]")
        for k in range(2): a(f"v_pk_mul_f32 {R2(T[k])}, {R2(U[k])}, {R2(U[k])}")
        for k in range(2): a(f"v_pk_fma_f32 {R2(T[k])}, {R2(T[k])}, s[66:67], v[26:27] op_sel_hi:[1,0,0]")
        for k in range(2): a(f"v_pk_mul_f32 {R2(T[k])}, {R2(U[k])}, {R2(T[k])}")
        for k in range(2): a(f"v_exp_f32 v{T[k]}, v{T[k]}\nv_exp_f32 v{T[k]+1}, v{T[k]+1}")
        for k in range(2): a(f"v_pk_mul_f32 {R2(U[k])}, {R2(U[k])}, v[16:17]")
        for k in range(2): a(f"v_pk_add_f32 {R2(T[k])}, {R2(T[k])}, 1.0 op_sel_hi:[1,0]")
        for k in range(2): a(f"v_rcp_f32 v{T[k]}, v{T[k]}\nv_rcp_f32 v{T[k]+1}, v{T[k]+1}")
        for k in range(2):
            acc = R2(4 + 2*E[k])
            a(f"v_pk_mul_f32 {acc}, {R2(U[k])}, {R2(T[k])}" if i == 0 else f"v_pk_fma_f32 {acc}, {R2(U[k])}, {R2(T[k])}, {acc}")
stamp("c.mix", 1)
for e in range(4): a(f"v_add_f32 v{4+2*e}, v{4+2*e}, v{5+2*e}")
a(f"""v_lshrrev_b32 v12, 4, v0
v_lshlrev_b32 v12, 2, v12
s_lshl_b32 s66, s3, 4
s_add_u32 s66, s66, {LRED}
v_add_u32 v12, s66, v12""")
row16_reduce("v_add_f32", [4, 6, 8, 10])
a(f"""
ds_write2_b32 v12, v4, v6 offset0:0 offset1:16
ds_write2_b32 v12, v8, v10 offset0:32 offset1:48
v_and_b32 v13, 3, v0
v_lshlrev_b32 v12, 6, v13
v_add_u32 v12, {LRED}, v12
s_mov_b32 s20, s52
s_mov_b32 s21, s53
s_mov_b32 s22, 2304
s_lshl_b32 s66, s7, 4
s_lshr_b32 s66, s66, s63
s_add_u32 s66, s66, s61
v_lshlrev_b32 v13, 2, v13
v_lshrrev_b32 v13, s63, v13
s_cmp_lg_u32 s3, 0
s_waitcnt lgkmcnt(0)
s_barrier
s_cbranch_scc1 L_ch1_ret
ds_read_b128 v[16:19], v12
ds_read_b128 v[20:23], v12 offset:16
ds_read_b128 v[28:31], v12 offset:32
ds_read_b128 v[32:35], v12 offset:48
s_cmp_eq_u32 s63, 1
s_mov_b64 exec, 15
s_waitcnt lgkmcnt(2)
v_pk_add_f32 v[16:17], v[16:17], v[18:19]
v_pk_add_f32 v[20:21], v[20:21], v[22:23]
s_waitcnt lgkmcnt(0)
v_pk_add_f32 v[28:29], v[28:29], v[30:31]
v_pk_add_f32 v[32:33], v[32:33], v[34:35]
v_pk_add_f32 v[16:17], v[16:17], v[20:21]
v_pk_add_f32 v[28:29], v[28:29], v[32:33]
v_pk_add_f32 v[16:17], v[16:17], v[28:29]
v_add_f32 v16, v16, v17
""")
rbf(16, 17); a("v_add_f32 v16, s78, v16"); rbf(16, 17); a("v_add_f32 v16, v16, v27"); rbf(16, 17)
a(f"""
s_cbranch_scc1 L_ch1_fin
buffer_store_dword v16, v13, s[16:19], s66 offen sc1
s_branch L_ch1_done
L_ch1_fin:
buffer_store_short v17, v13, s[20:23], s66 offen
L_ch1_done:
s_mov_b64 exec, -1
L_ch1_ret:
""")
ret()

a.hist = []
a.label("SUB_CH1B")
a(f"""s_mul_i32 s70, s3, 9216
s_add_u32 s70, s70, s60
s_add_u32 s71, s70, 2304
s_add_u32 s72, s70, 4608
s_add_u32 s73, s70, 6912
v_lshlrev_b32 v49, 2, v0
s_mul_i32 s75, s3, 2304
s_add_u32 s75, s75, {LX}
v_add_u32 v51, s75, v2
s_barrier
s_branch L_ch1_b""")

a.hist = []
a.label("SUB_CH2")
a(f"""
v_lshrrev_b32 v13, 4, v0
v_bfe_u32 v14, v0, 2, 2
v_lshl_add_u32 v15, v13, 3, v14
v_lshlrev_b32 v15, 9, v15
v_bfe_u32 v13, v0, 2, 3
s_lshl_b32 s70, s3, 2
v_xor_b32 v13, s70, v13
v_lshl_add_u32 v15, v13, 5, v15
v_and_b32 v13, 3, v0
v_lshl_add_u32 v15, v13, 3, v15
v_add_u32 v15, {LWQ}, v15
v_xor_b32 v16, 32, v15
v_xor_b32 v17, 64, v15
v_xor_b32 v18, 96, v15
""")
for cbk in range(4):
    for ks in range(2):
        for jh in range(2):
            a(f"ds_read_b64_tr_b16 {R2(20 + 8*cbk + 4*ks + 2*jh)}, v{15+cbk} offset:{(32*ks+4*jh)*512}")
a(f"""
v_lshlrev_b32 v19, 2, v0
v_add_u32 v15, s64, v2
v_add_u32 v16, s64, v19
s_lshl_b32 s72, s5, 8
s_lshl_b32 s74, s7, 10
s_add_u32 s74, s74, s62
s_lshl_b32 s71, s3, 8
s_add_u32 s74, s74, s71
s_cmp_eq_u32 s63, 1
s_cbranch_scc0 L_ch2_g
v_add_u32 v17, s72, v16
ds_read_b128 v[4:7], v15
ds_read_b128 v[8:11], v15 offset:1024
ds_read_b32 v12, v16 offset:2048
ds_read_b32 v13, v17
s_waitcnt lgkmcnt(0)
s_branch L_ch2_x
L_ch2_g:
s_add_u32 s72, s72, s61
s_lshl_b32 s73, s4, 7
s_add_u32 s73, s73, s61
s_add_u32 s73, s73, 0x8000
""")
def issC():
    a("""buffer_load_dwordx4 v[4:7], v2, s[16:19], s61 offen sc1
    buffer_load_dwordx4 v[8:11], v2, s[16:19], s61 offen offset:1024 sc1
    buffer_load_dword v12, v19, s[16:19], s61 offen offset:2048 sc1
    buffer_load_dword v13, v19, s[16:19], s72 offen sc1""")
poll(issC, lambda: check_sentinel(range(4, 14), 14), s0=cfg.s0["C"])
a("""s_or_b32 s70, s5, s3
s_cbranch_scc1 L_ch2_nh
s_mov_b64 exec, 1
buffer_store_dword v19, v19, s[16:19], s73 offen sc1
s_mov_b64 exec, -1
L_ch2_nh:
ds_write_b128 v15, v[4:7]
ds_write_b128 v15, v[8:11] offset:1024
ds_write_b32 v16, v12 offset:2048
L_ch2_x:
v_cvt_pk_bf16_f32 v14, v4, v5
v_cvt_pk_bf16_f32 v15, v6, v7
v_cvt_pk_bf16_f32 v16, v8, v9
v_cvt_pk_bf16_f32 v17, v10, v11
v_cvt_pk_bf16_f32 v18, v12, 0""")
stats([14, 15, 16, 17, 18], 4, 5, ["v_lshlrev_b32 v9, 1, v0", f"v_add_u32 v9, {LRED}, v9", "v_and_b32 v12, 48, v0", f"v_add_u32 v12, {LRED}, v12"])
ln_scalars(4, 5, 6, 7, 8)
a("v_readlane_b32 s70, v6, 63\nv_readlane_b32 s71, v7, 63\nv_subrev_f32 v13, s70, v13")
rbf(13, 8)
a("""v_mul_f32 v13, s71, v13
v_cvt_pk_bf16_f32 v13, v13, v13
ds_write_b16 v9, v13
ds_read_b128 v[4:7], v12
ds_read_b128 v[8:11], v12 offset:64
s_waitcnt lgkmcnt(0)""")
accs = [12, 20, 28, 36]
for cbk in range(4):
    d = accs[cbk]; f = 20 + 8 * cbk
    a(f"v_mfma_f32_16x16x32_bf16 {R4(d)}, v[4:7], {R4(f)}, 0")
    a(f"v_mfma_f32_16x16x32_bf16 {R4(d)}, v[8:11], {R4(f+4)}, {R4(d)}")
for cbk in range(1, 4):
    a(f"v_mov_b32_dpp v12, v{accs[cbk]} quad_perm:[0,1,2,3] row_mask:{1<<cbk:#x} bank_mask:0xf")
a("buffer_store_dword v12, v19, s[16:19], s74 offen sc1")
stamp("c.wq", 1)
ret()

if cfg.roles:
    a.hist = []
    a.label("SUB_RING")
    vts = list(range(NL, cfg.j0)) + list(range(NL))
    NT = 64 + len(vts)
    slot = lambda n: (n - (NT - NL)) % NS
    lastso = [None]
    def rload(n):
        if n >= NT: return
        if n < 64:
            so, imm, va, srd = ("k", (n >> 3) * 8192), ((n >> 1) & 3) * 256 + (n & 1) * 128, "v1", "s[8:11]"
        else:
            vt = vts[n - 64]
            so, imm, va, srd = ("v", (vt >> 2) * 4096), (vt & 3) * 1024, "v2", "s[12:15]"
        if so != lastso[0]:
            a(f"s_add_u32 s28, s27, {so[1]}"); lastso[0] = so
        a(f"s_add_u32 m0, s57, {slot(n)*1024 - imm}")
        a(f"buffer_load_dwordx4 {va}, {srd}, s28 offen offset:{imm}{'' if n < cfg.l2n else ' nt'} lds")
    for n in range(16): rload(n)
    att_pre(zero=False)
    a("ds_read_b128 v[4:7], v12\nds_read_b128 v[8:11], v12 offset:128\nv_add_u32 v48, s57, v2")
    KT = [34, 38, 42]
    for n in range(66):
        if n < 64:
            rload(n + 16)
            a(f"s_waitcnt vmcnt(16)\nds_read_b128 {R4(KT[n%3])}, v48 offset:{slot(n)*1024}")
        if n >= 2:
            kt = n - 2
            a(f"s_waitcnt lgkmcnt({min(63, n) - kt})")
            kmm(kt, R4(KT[kt % 3]))
            if kt & 1 and (kt >> 1) >= 2: adds((kt >> 1) - 2)
    adds(30); adds(31)
    softmax()
    for i in range(8): a(f"v_mov_b32 v{34+i}, 0")
    a("v_add_u32 v33, s57, v2")
    curG[0] = None
    NV = len(vts)
    for m in range(NV + 2):
        if m < NV:
            n = 64 + m
            rload(n + 16)
            a(f"s_waitcnt vmcnt({min(16, NT - 1 - n)})\nds_read_b128 {R4(12 + 4*(m%3))}, v33 offset:{slot(n)*1024}")
        if 1 <= m <= NV: build(vts[m - 1], (m - 1) & 1)
        if m >= 2:
            j = m - 2
            a(f"s_waitcnt lgkmcnt({min(NV - 1, m) - j})")
            vmm(R4(12 + 4*(j%3)), j & 1, j == 0)
    if cfg.j0 == 64:
        a("s_branch L_att_epi")
    else:
        a(f"""v_mov_b32 v47, v51
        ds_write_b128 v33, v[24:27] offset:{13*1024}
        ds_write_b128 v33, v[28:31] offset:{14*1024}
        ds_write_b64 v33, v[46:47] offset:{16*1024}
        ds_write_b128 v33, v[42:45] offset:{15*1024}
        s_waitcnt lgkmcnt(0)""")
        ret()
        a.hist = []
        a.label("SUB_RESUME")
        a(f"s_mov_b32 s82, {8 + cfg.j0//8}\ns_call_b64 s[80:81], SUB_LN\ns_call_b64 s[80:81], SUB_LN")
        att_pre()
        a(f"""v_add_u32 v33, s57, v2
        ds_read_b128 v[24:27], v33 offset:{13*1024}
        ds_read_b128 v[28:31], v33 offset:{14*1024}
        ds_read_b128 v[42:45], v33 offset:{15*1024}
        ds_read_b64 v[50:51], v33 offset:{16*1024}
        s_mov_b64 vcc, -1
        s_waitcnt lgkmcnt(0)
        v_mov_b32 v46, v50""")
        curG[0] = None
        build(cfg.j0, cfg.j0 & 1)
        a.flush()
        a("s_branch L_att_resume")

for Lo, Lb, wait, depth in tramps:
    a.hist = []
    a.label(Lo)
    if wait and cfg.adapt:
        a(f"s_call_b64 s[34:35], SUB_LNW\ns_branch {Lb}")
        continue
    for d in range(1, depth + 1):
        a("s_call_b64 s[80:81], SUB_LN")
        L2 = a.newlabel("Lt2")
        if d < depth: a(f"s_cmp_lt_u32 s82, 16\ns_cbranch_scc1 {L2}")
        if wait: a(f"s_waitcnt vmcnt({8*d})")
        a(f"s_branch {Lb}")
        if d < depth: a.label(L2)
for Rr, L, D, sl in retries:
    a.hist = []
    a.label(Rr)
    a(f"s_sleep {sl}\ns_add_u32 s68, s68, 1\ns_cmp_lt_u32 s68, {cfg.spin}\ns_cbranch_scc1 {L}\ns_branch {D}")
if cfg.stamps:
    n = len(stamp_names)
    a.hist = []
    a.label("L_stamps")
    if cfg.dbg:
        sel = ["start", "start", "q1", "P1b0", "wq0", "s.ring", "P2b0", "s.P1b1", "s.fin0", "P1b1", "c.B", "c.wq", "s.rel", "s.end", "f.B", "end"]
        a("v_mov_b32 v6, 0")
        a(f"s_not_b32 s70, s{POOL[0]}\nv_writelane_b32 v6, s70, 0")
        for i, nm in enumerate(sel):
            if i and nm in stamp_names: a(f"v_writelane_b32 v6, s{POOL[stamp_names.index(nm)]}, {i}")
        a("v_lshrrev_b32 v4, 2, v2\ns_mov_b64 exec, 0xffff\nglobal_atomic_umax v4, v6, s[54:55] sc1\ns_branch L_fin")
    a(f"""s_lshl_b32 s70, s2, 2
    s_add_u32 s70, s70, s3
    s_mul_i32 s70, s70, {8*n}
    s_add_u32 s70, s70, {STAMP}
    v_mov_b32 v4, 0
    v_mov_b32 v7, 0
    s_mov_b64 exec, 1""")
    for i in range(n):
        a(f"v_mov_b32 v6, s{POOL[i]}\nbuffer_store_dwordx2 v[6:7], v4, s[16:19], s70 offen offset:{8*i}\ns_nop 1")
    a("s_branch L_fin")
    open(sys.argv[1] + ".names", "w").write(" ".join(stamp_names))
    print("nstamps", n, file=sys.stderr)
hdr = open("cdna_kernels/" + NAME + ".s.ref").read().split("; Override launch")[0]
out = hdr + f"; @launch grid=(256,1,1) block=(256,1,1) lds={LDS_TOTAL}\n"
out += f""".amdgcn_target "amdgcn-amd-amdhsa--gfx950"
.text
.globl {NAME}_kernel
.p2align 8
.type {NAME}_kernel,@function
{NAME}_kernel:
""" + a.text() + f""".section .rodata,"a"
.p2align 6
.amdhsa_kernel {NAME}_kernel
  .amdhsa_next_free_vgpr 512
  .amdhsa_next_free_sgpr 102
  .amdhsa_accum_offset 256
  .amdhsa_group_segment_fixed_size 0
  .amdhsa_kernarg_size 104
  .amdhsa_user_sgpr_count 2
  .amdhsa_user_sgpr_kernarg_segment_ptr 1
  .amdhsa_system_sgpr_workgroup_id_x 1
.end_amdhsa_kernel
"""
open(sys.argv[1], "w").write(out)
print("nops added", a.nops_added, "lines", len(a.lines), file=sys.stderr)
```

```python
import sys, struct, math
sys.path.insert(0, "gen")
from asmlib import *

NAME = "interleave_layers__gqa_block_cached__mixer_token_mlp__decode"
def f32(x): return "0x%08x" % struct.unpack("<I", struct.pack("<f", x))[0]

class Cfg:
    stamps = 0
    spin = 20000
    s0 = dict(A=18, B=17, C=18, D=8, X=18, Y=18)
    s1 = 2
    sh = 2
    sg = 8
    go = 24
    roles = 1
    latew = 0
    vsites = 1
    l2n = 128
    dbg = 0
    n0 = 16
    n1 = 5
    thr = 3
    hint = -1
    hwid = 0
    late2 = 1
    adapt = 1
    warm = 0
    relfirst = 0
    ksites = 1
    pf0 = 8
    nogo = 1
    xthr = 0
    thrm = 4
    sA2 = 0
    sB2 = 32
    aw = 0
    d0 = 2
    thrall = 0
    thr3 = 0
    go0 = 40
    j0 = 40
    fa = 3
    dw = 2
    pre = 8
    d1 = 3
    d2 = 1
    d3 = 4
    d4 = 3
cfg = Cfg()
for arg in sys.argv[2:]:
    k, v = arg.split("=")
    if k.startswith("s0"): cfg.s0[k[2]] = int(v)
    else: setattr(cfg, k, int(v))

W = 52; NL = 13; NS = 20
LV = 0; LWO = 53248; LWQ = 86016; LMX = 118784; LXB = 146432; LX = 151040; LQ = 160256; LLN = 162304; LRED = 163456
LO = LX + 8448
LDS_TOTAL = 163840
A_O = lambda i: i * 0x40000
A_L = lambda i: 0x100000 + i * 0x1000
B_A = lambda i: 0x110000 + i * 0x10000
C_A = lambda i: 0x150000 + i * 0x1000
H_A = lambda i: 0x158000 + i * 0x1000
D_A = lambda i: 0x160000 + i * 0x40000
STAMP = 0x10000000
CSM = math.log2(math.e) / math.sqrt(128.0)
C1 = -2.0 * math.sqrt(2.0 / math.pi) * math.log2(math.e)
C2 = C1 * 0.044715
DPPALL = "row_mask:0xf bank_mask:0xf"
CTL4 = ["quad_perm:[1,0,3,2]", "quad_perm:[2,3,0,1]", "row_half_mirror", "row_mirror"]

a = Asm()
POOL = list(range(83, 100)) + [32, 33, 38, 39, 43, 50, 51]
stamp_names = []
def stamp(name, cond=None):
    if not cfg.stamps: return
    if name in stamp_names: r = POOL[stamp_names.index(name)]
    else:
        r = POOL[len(stamp_names)]; stamp_names.append(name)
    a("s_memrealtime s[100:101]\ns_waitcnt lgkmcnt(0)")
    if cond is None: a(f"s_mov_b32 s{r}, s100")
    else: a(f"s_cmp_eq_u32 s79, {cond}\ns_cselect_b32 s{r}, s100, s{r}")

def khome(kt): return f"a[{4*kt}:{4*kt+3}]"
LDS_T = [0, 1, 4, 5, 8, 9, 12, 13, 16, 17, 20, 21, 24]
REG_T = [25] + [t for t in range(64) if t not in LDS_T and t != 25]
def vreg(vt): return W + 4 * REG_T.index(vt)
def vhome(vt):
    r = vreg(vt); return f"v[{r}:{r+3}]"
def R8(r): return f"v[{r}:{r+7}]"
def R4(r): return f"v[{r}:{r+3}]"
def R2(r): return f"v[{r}:{r+1}]"

def load_k(kts):
    lastG = None
    for kt in kts:
        G, t, half = kt >> 3, (kt >> 1) & 3, kt & 1
        if G != lastG:
            a(f"s_add_u32 s28, s27, {G*8192}"); lastG = G
        a(f"buffer_load_dwordx4 {khome(kt)}, v1, s[8:11], s28 offen offset:{t*512+half*128} nt")
def load_v(vts):
    lastQ = None
    for vt in vts:
        Q = vt >> 2
        if Q != lastQ:
            a(f"s_add_u32 s28, s27, {Q*4096}")
            if vt in LDS_T: a(f"s_add_u32 m0, s29, {LDS_T.index(vt)*1024 - (vt&3)*1024}")
            lastQ = Q
        if vt in LDS_T:
            a(f"buffer_load_dwordx4 v2, s[12:15], s28 offen offset:{(vt&3)*1024} nt lds")
        else:
            a(f"buffer_load_dwordx4 {vhome(vt)}, v2, s[12:15], s28 offen offset:{(vt&3)*1024} nt")

def rbf(v, t):
    a(f"v_cvt_pk_bf16_f32 v{t}, v{v}, v{v}\nv_lshlrev_b32 v{v}, 16, v{t}")
def rows_reduce(op, v, t):
    a(f"v_mov_b32 v{t}, v{v}\nv_permlane16_swap_b32 v{v}, v{t}\n{op} v{v}, v{v}, v{t}")
    a(f"v_mov_b32 v{t}, v{v}\nv_permlane32_swap_b32 v{v}, v{t}\n{op} v{v}, v{v}, v{t}")
def row16_reduce(op, vs):
    for ctl in CTL4:
        for v in vs: a(f"{op}_dpp v{v}, v{v}, v{v} {ctl} {DPPALL}")
def sum_to_row3(vs, fillers=()):
    fillers = list(fillers)
    steps = [f"{c} {DPPALL}" for c in CTL4] + ["row_bcast:15 row_mask:0xa bank_mask:0xf", "row_bcast:31 row_mask:0xc bank_mask:0xf"]
    per = (len(fillers) + 5) // 6
    for st in steps:
        for _ in range(per):
            if fillers: a(fillers.pop(0))
        for v in vs: a(f"v_add_f32_dpp v{v}, v{v}, v{v} {st}")
def stats(P, s1, s2, fillers=()):
    for i, p in enumerate(P):
        a(f"v_dot2_f32_bf16 v{s1}, v{p}, s67, {'0' if i == 0 else 'v%d' % s1}")
        a(f"v_dot2_f32_bf16 v{s2}, v{p}, v{p}, {'0' if i == 0 else 'v%d' % s2}")
    sum_to_row3([s1, s2], fillers)
    a(f"v_mul_f32 v{s1}, {f32(1.0/576)}, v{s1}\nv_mul_f32 v{s2}, {f32(1.0/576)}, v{s2}\nv_fma_f32 v{s2}, -v{s1}, v{s1}, v{s2}\nv_max_f32 v{s2}, 0, v{s2}")
def ln_scalars(m, q, mb, r, t):
    a(f"v_cvt_pk_bf16_f32 v{t}, v{m}, v{q}\nv_and_b32 v{r}, 0xffff0000, v{t}\nv_lshlrev_b32 v{mb}, 16, v{t}\nv_add_f32 v{r}, {f32(1e-5)}, v{r}")
    rbf(r, t); a(f"v_sqrt_f32 v{r}, v{r}"); rbf(r, t); a(f"v_rcp_f32 v{r}, v{r}")

def check_sentinel(regs, t):
    regs = list(regs)
    if len(regs) % 2 == 0:
        a(f"v_max_u32 v{t}, v{regs[0]}, v{regs[1]}"); regs = regs[2:]
    else:
        a(f"v_max3_u32 v{t}, v{regs[0]}, v{regs[1]}, v{regs[2]}"); regs = regs[3:]
    for i in range(0, len(regs), 2):
        a(f"v_max3_u32 v{t}, v{t}, v{regs[i]}, v{regs[i+1]}")
    a(f"v_cmp_eq_u32 vcc, -1, v{t}")

tramps = []
def ln(wait, depth=None):
    Lo = a.newlabel("Lt"); Lb = a.newlabel("Ltb")
    a(f"s_cmp_lt_u32 s82, 16\ns_cbranch_scc1 {Lo}")
    if wait: a("s_waitcnt vmcnt(0)")
    a.label(Lb)
    tramps.append((Lo, Lb, wait, depth or (cfg.dw if wait else 1)))
retries = []
def poll(issue, check, s0=0, depth=None, s0w=None):
    L = a.newlabel("Lpoll"); D = a.newlabel("Lpd"); Rr = a.newlabel("Lpr")
    a("s_mov_b32 s68, 0")
    if s0 and s0w is not None and s0w < s0:
        Ls = a.newlabel("Lsl")
        a(f"s_cmp_eq_u32 s3, 0\ns_cbranch_scc1 {Ls}\ns_sleep {s0 - s0w}"); a.label(Ls)
        if s0w: a(f"s_sleep {s0w}")
    elif s0: a(f"s_sleep {s0}")
    a.label(L)
    issue(); ln(True, depth)
    check()
    a(f"s_cbranch_vccnz {Rr}")
    a.label(D)
    retries.append((Rr, L, D, cfg.s1))
def ln_until(n):
    L = a.newlabel("Lrest"); D = a.newlabel("Lrd")
    a.label(L); a(f"s_cmp_ge_u32 s82, {n}\ns_cbranch_scc1 {D}\ns_call_b64 s[80:81], SUB_LN\ns_branch {L}"); a.label(D)
def call(lbl):
    a.flush(); a(f"s_call_b64 s[30:31], {lbl}")
def ret():
    a.flush(); a("s_setpc_b64 s[30:31]")
def flagwait(inst, sl, off=0, count=0):
    a(f"s_lshl_b32 s70, s4, 7\ns_add_u32 s70, s70, {H_A(inst)+off}\nv_mov_b32 v4, 0")
    L = a.newlabel("Lh"); D = a.newlabel("Lhd")
    a(f"s_mov_b32 s68, 0\ns_cmp_lg_u32 s3, 0\ns_cbranch_scc1 {D}")
    a.label(L)
    a(f"buffer_load_dword v5, v4, s[16:19], s70 offen sc1\ns_waitcnt vmcnt(0)")
    a(f"v_cmp_gt_i32 vcc, {count*0xffff - 1}, v5" if count else "v_cmp_eq_u32 vcc, -1, v5")
    a(f"s_cbranch_vccz {D}")
    a(f"s_sleep {sl}\ns_add_u32 s68, s68, 1\ns_cmp_lt_u32 s68, {cfg.spin}\ns_cbranch_scc1 {L}")
    a.label(D)
    a("s_barrier")

def qg_issue(base, sb):
    for i in range(9):
        a(f"buffer_load_dword v{base+i}, v22, s[16:19], s{sb + (i>>2)} offen offset:{(i&3)*1024} sc1")
def qg_sum(base):
    b = base
    a(f"""v_add_f32 v{b}, v{b}, v{b+1}
    v_add_f32 v{b+2}, v{b+2}, v{b+3}
    v_add_f32 v{b+4}, v{b+4}, v{b+5}
    v_add_f32 v{b+6}, v{b+6}, v{b+7}
    v_add_f32 v{b}, v{b}, v{b+2}
    v_add_f32 v{b+4}, v{b+4}, v{b+6}
    v_add_f32 v{b}, v{b}, v{b+8}
    v_add_f32 v{b}, v{b}, v{b+4}
    v_cvt_pk_bf16_f32 v{b}, v{b}, v{b}""")

a(f"""
s_cmp_ge_u32 s2, 256
s_cbranch_scc1 L_end
s_load_dwordx16 s[32:47], s[0:1], 0
s_load_dwordx8 s[48:55], s[0:1], 64
s_load_dwordx2 s[56:57], s[0:1], 96
v_lshrrev_b32 v1, 6, v0
v_readfirstlane_b32 s3, v1
v_and_b32 v0, 63, v0
s_lshr_b32 s4, s2, 4
s_and_b32 s6, s2, 15
s_add_u32 s5, s6, s4
s_and_b32 s5, s5, 15
v_lshlrev_b32 v2, 4, v0
v_bfe_u32 v1, v0, 2, 2
v_lshlrev_b32 v1, 11, v1
v_bfe_u32 v3, v0, 1, 1
v_lshl_add_u32 v1, v3, 8, v1
v_lshrrev_b32 v3, 4, v0
v_lshl_add_u32 v1, v3, 5, v1
v_and_b32 v3, 1, v0
v_lshl_add_u32 v1, v3, 4, v1
s_lshl_b32 s27, s2, 18
s_lshl_b32 s28, s3, 16
s_add_u32 s27, s27, s28
s_mov_b32 s10, 0x8000000
s_mov_b32 s11, 0x20000
s_mov_b32 s14, 0x8000000
s_mov_b32 s15, 0x20000
s_mov_b32 s18, 0x20000000
s_mov_b32 s19, 0x20000
s_mov_b32 s23, 0x20000
s_waitcnt lgkmcnt(0)
s_mov_b32 s8, s34
s_mov_b32 s9, s35
""")
load_k(range(0, cfg.pre))
a(f"""
s_mov_b32 s12, s36
s_mov_b32 s13, s37
s_mov_b32 s16, s56
s_mov_b32 s17, s57
s_mov_b32 s82, {cfg.pre//8}
s_mov_b32 s79, 0
s_cmp_ge_u32 s5, 9
s_cselect_b32 s42, 1, {cfg.thrall}
""")
if cfg.xthr: a("s_getreg_b32 s42, hwreg(HW_REG_XCC_ID)\ns_andn2_b32 s42, 1, s42")
a(f"""
s_mov_b32 s24, 0xaaaaaaaa
s_mov_b32 s25, 0xaaaaaaaa
v_and_b32 v4, 4, v0
v_lshlrev_b32 v4, 2, v4
v_mov_b32 v3, 0xffff
v_lshlrev_b32 v3, v4, v3
s_mov_b32 s26, {f32(CSM)}
s_mov_b32 s67, 0x3f803f80
s_mul_i32 s29, s3, {NL*1024}
""")
for r in POOL[:17]:
    if cfg.stamps: a(f"s_mov_b32 s{r}, 0")
stamp("start")
if cfg.warm:
    a("""s_add_u32 s70, s27, 0x4000000
    s_mov_b64 exec, 1
    buffer_load_dword v40, v2, s[12:15], s27 offen nt
    buffer_load_dword v41, v2, s[8:11], s70 offen nt
    buffer_load_dword v42, v2, s[12:15], s70 offen nt
    global_load_ushort v43, v2, s[52:53]
    global_load_dword v44, v2, s[54:55] offset:192
    s_mov_b64 exec, -1""")
a(f"""
v_mov_b32 v4, -1
v_mov_b32 v5, -1
v_mov_b32 v6, -1
v_mov_b32 v7, -1
s_lshl_b32 s70, s3, 18
s_lshl_b32 s71, s2, 10
s_add_u32 s70, s70, s71
buffer_store_dwordx4 v[4:7], v2, s[16:19], s70 offen sc1
s_lshl_b32 s70, s3, 12
s_lshl_b32 s71, s4, 7
s_add_u32 s70, s70, s71
s_lshl_b32 s71, s6, 2
s_add_u32 s70, s70, s71
s_add_u32 s70, s70, {A_L(0)}
v_lshlrev_b32 v8, 6, v0
s_mov_b64 exec, 3
buffer_store_dword v4, v8, s[16:19], s70 offen sc1
s_mov_b64 exec, -1
v_mov_b32 v11, 0
global_load_ushort v23, v11, s[50:51]
s_mul_i32 s7, s4, 9
s_add_u32 s7, s7, s5
s_cmp_ge_u32 s5, 9
s_cbranch_scc1 L_pro_s1
v_lshlrev_b32 v8, 2, v0
s_lshl_b32 s70, s3, 16
s_lshl_b32 s71, s7, 8
s_add_u32 s70, s70, s71
s_add_u32 s70, s70, {B_A(0)}
buffer_store_dword v4, v8, s[16:19], s70 offen sc1
s_lshl_b32 s70, s3, 18
s_lshl_b32 s71, s7, 10
s_add_u32 s70, s70, s71
s_add_u32 s70, s70, {D_A(0)}
buffer_store_dwordx4 v[4:7], v2, s[16:19], s70 offen sc1
s_lshl_b32 s70, s3, 12
s_lshl_b32 s71, s7, 4
s_add_u32 s70, s70, s71
s_add_u32 s70, s70, {C_A(0)}
s_mov_b64 exec, 15
buffer_store_dword v4, v8, s[16:19], s70 offen sc1
s_lshl_b32 s70, s3, 12
s_lshl_b32 s71, s4, 7
s_add_u32 s70, s70, s71
s_add_u32 s70, s70, {H_A(0)}
buffer_store_dword v4, v8, s[16:19], s70 offen sc1
s_mov_b64 exec, -1
s_mov_b32 s20, s32
s_mov_b32 s21, s33
s_mov_b32 s22, 2304
v_lshlrev_b32 v9, 3, v0
v_lshlrev_b32 v10, 1, v0
buffer_load_dwordx2 v[12:13], v9, s[20:23], 0 offen
buffer_load_dwordx2 v[14:15], v9, s[20:23], 0 offen offset:512
buffer_load_ushort v16, v10, s[20:23], 0 offen offset:1024
buffer_load_dwordx2 v[18:19], v9, s[20:23], 0 offen offset:1152
buffer_load_dwordx2 v[20:21], v9, s[20:23], 0 offen offset:1664
buffer_load_ushort v22, v10, s[20:23], 0 offen offset:2176
s_mov_b32 s20, s38
s_mov_b32 s21, s39
s_mov_b32 s22, {576*8192}
v_lshrrev_b32 v24, 5, v0
v_and_b32 v25, 31, v0
v_lshlrev_b32 v25, 4, v25
v_lshlrev_b32 v26, 5, v24
v_xor_b32 v25, v25, v26
v_lshl_add_u32 v24, v24, 13, v25
v_xor_b32 v25, 64, v24
v_xor_b32 v26, 128, v24
v_xor_b32 v27, 192, v24
s_lshl_b32 s70, s5, 19
s_lshl_b32 s71, s3, 17
s_add_u32 s70, s70, s71
s_lshl_b32 s71, s4, 9
s_add_u32 s70, s70, s71
s_lshl_b32 s71, s3, 13
s_add_u32 s71, s71, {LWQ}
""")
for i in range(8):
    fs = ((i >> 2) & 1) * 2 + (i & 1)
    a(f"s_add_u32 m0, s71, {i*1024}\nbuffer_load_dwordx4 v{24+fs}, s[20:23], s70 offen nt lds")
    if i < 7: a("s_add_u32 s70, s70, 16384")
a.label("L_pro_s1")
ln(True, cfg.d1)
pass
a(f"""
v_lshlrev_b32 v23, 16, v23
v_readfirstlane_b32 s78, v23
s_mov_b32 s56, {LMX}
s_cmp_ge_u32 s5, 9
s_cbranch_scc1 L_pro_s2
v_add_u32 v24, {LXB}, v2
v_lshlrev_b32 v25, 2, v0
v_add_u32 v25, {LXB+2048}, v25
""")
for b in range(2):
    r = 12 + 6 * b
    a(f"""v_lshlrev_b32 v28, 16, v{r}
    v_and_b32 v29, 0xffff0000, v{r}
    v_lshlrev_b32 v30, 16, v{r+1}
    v_and_b32 v31, 0xffff0000, v{r+1}
    v_lshlrev_b32 v32, 16, v{r+2}
    v_and_b32 v33, 0xffff0000, v{r+2}
    v_lshlrev_b32 v34, 16, v{r+3}
    v_and_b32 v35, 0xffff0000, v{r+3}
    v_lshlrev_b32 v36, 16, v{r+4}
    ds_write_b128 v24, v[28:31] offset:{b*2304}
    ds_write_b128 v24, v[32:35] offset:{b*2304+1024}
    ds_write_b32 v25, v36 offset:{b*2304}
    s_waitcnt lgkmcnt(0)""")
a.label("L_pro_s2")
a(f"""
s_barrier
s_cmp_lg_u32 s3, {cfg.aw}
s_cbranch_scc1 L_pro_arr
v_mov_b32 v4, 0
v_mov_b32 v5, 1
s_mov_b64 exec, 1
global_atomic_add v6, v4, v5, s[54:55] offset:64 sc0 sc1
s_mov_b64 exec, -1
""")
ln(True, cfg.d0)
a(f"""v_readfirstlane_b32 s70, v6
s_cmp_lg_u32 s70, 255
s_cbranch_scc1 L_pro_arr
s_mov_b64 exec, 1
global_store_dword v4, v5, s[54:55] offset:128 sc1
s_mov_b64 exec, -1
L_pro_arr:
s_cmp_ge_u32 s5, 9
s_cbranch_scc1 L_pro_s3
""")
for b in range(2):
    a(f"s_mov_b32 s63, 1\ns_mov_b32 s64, {LXB + b*2304}\ns_mov_b32 s62, {D_A(b)}")
    call("SUB_CH2")
    if b == 0: a("s_barrier")
def load_wo():
    a(f"""
    s_mov_b32 s20, s40
    s_mov_b32 s21, s41
    s_mov_b32 s22, {4096*1152}
    v_lshrrev_b32 v24, 3, v0
    v_mul_u32_u24 v24, 1152, v24
    v_and_b32 v25, 7, v0
    v_lshlrev_b32 v25, 4, v25
    v_bfe_u32 v26, v0, 4, 1
    v_lshlrev_b32 v26, 5, v26
    v_xor_b32 v25, v25, v26
    v_xor_b32 v26, 64, v25
    v_add_u32 v25, v25, v24
    v_add_u32 v26, v26, v24
    s_lshl_b32 s70, s4, 2
    s_add_u32 s70, s70, s3
    s_mul_i32 s70, s70, {64*1152}
    s_lshl_b32 s71, s5, 7
    s_add_u32 s70, s70, s71
    s_lshl_b32 s71, s3, 13
    s_add_u32 s71, s71, {LWO}
    """)
    for i in range(8):
        a(f"s_add_u32 m0, s71, {i*1024}\nbuffer_load_dwordx4 v{25+(i&1)}, s[20:23], s70 offen nt lds")
        if i < 7: a(f"s_add_u32 s70, s70, {8*1152}")
def load_mixer(base):
    a(f"""
    s_lshl_b32 s70, s3, 10
    v_add_u32 v24, s70, v2
    v_add_u32 v25, 4096, v24
    v_add_u32 v26, 8192, v2
    s_add_u32 s71, s70, {base}
    """)
    for j, p in enumerate((44, 46, 48)):
        a(f"""s_add_u32 m0, s71, {j*9216}
        global_load_lds_dwordx4 v24, s[{p}:{p+1}]
        s_add_u32 m0, s71, {j*9216+4096}
        global_load_lds_dwordx4 v25, s[{p}:{p+1}]
        s_mov_b32 m0, {base+j*9216+8192}
        global_load_lds_dwordx4 v26, s[{p}:{p+1}]""")
if not cfg.latew:
    load_wo(); load_mixer(LMX)
a.label("L_pro_s3")
for r in POOL[17:]:
    if cfg.stamps: a(f"s_mov_b32 s{r}, 0")
ln(False, cfg.d2)
a("v_mov_b32 v4, 0")
poll(lambda: a("global_load_dword v5, v4, s[54:55] offset:128 sc1"), lambda: a("v_cmp_eq_u32 vcc, 0, v5"), depth=cfg.d3)
stamp("cnt")
a(f"""s_lshl_b32 s70, s3, 8
v_lshl_add_u32 v22, v0, 2, s70
s_mul_i32 s69, s4, 9216
s_add_u32 s70, s69, {D_A(0)}
s_add_u32 s71, s70, 4096
s_add_u32 s72, s70, 8192
s_add_u32 s73, s69, {D_A(1)}
s_add_u32 s74, s73, 4096
s_add_u32 s75, s73, 8192
v_lshrrev_b32 v24, 1, v22
v_add_u32 v24, {LQ}, v24""")
poll(lambda: (qg_issue(4, 70), qg_issue(13, 73)), lambda: check_sentinel(range(4, 22), 23), depth=cfg.d4)
qg_sum(4); qg_sum(13)
a("ds_write_b16 v24, v4\nds_write_b16 v24, v13 offset:512")
stamp("q1")
ln_until(10)
a("s_waitcnt lgkmcnt(0)\ns_barrier")

def att_params(ai, seq):
    a(f"s_mov_b32 s58, {A_O(ai)}\ns_mov_b32 s59, {A_L(ai)}\ns_mov_b32 s65, {LQ + ai*512}\ns_mov_b32 s64, {LX + (seq&1)*4224}")
def hint_addr(ai):
    a(f"s_lshl_b32 s62, s4, 7\ns_add_u32 s62, s62, {H_A(ai)+8}")
def att_p1(ai, seq):
    att_params(ai, seq); hint_addr(ai); a("s_mov_b64 vcc, -1"); call("SUB_ATT")
def qatt(ai, seq, loadnext):
    att_params(ai, seq); a(f"s_mov_b32 s62, {D_A(ai)}\ns_mov_b32 s63, {2 if loadnext else 0}"); call("SUB_QATT")
def ch1(inst, final, entry="SUB_CH1", aonly=False):
    b = inst & 1
    a(f"s_mov_b32 s58, {A_O(inst)}\ns_mov_b32 s59, {A_L(inst)}\ns_mov_b32 s60, {B_A(inst)}\ns_mov_b32 s64, {LXB + b*2304}")
    a(f"s_mov_b32 s63, {2 if aonly else 1 if final else 0}\ns_mov_b32 s61, {b*1152 if final else C_A(inst)}")
    call(entry)
def ch2(inst):
    b = inst & 1
    a(f"s_mov_b32 s63, 0\ns_mov_b32 s61, {C_A(inst)}\ns_mov_b32 s64, {LXB + b*2304}\ns_mov_b32 s62, {D_A(2+inst)}")
    call("SUB_CH2")

a(f"s_cmp_eq_u32 s3, 0\ns_cselect_b32 s63, 4, 0\ns_lshl_b32 s60, s4, 7\ns_add_u32 s60, s60, {H_A(2)+4}")
att_p1(0, 0)
stamp("P1b0")
a("s_add_u32 s27, s27, 0x4000000\ns_cmp_ge_u32 s5, 9\ns_cbranch_scc1 L_srole")
a(f"s_mov_b32 s42, {cfg.thr3}")
if cfg.latew:
    load_wo(); load_mixer(LMX)
    a("s_waitcnt vmcnt(9)\ns_barrier")
ch1(0, False); ch2(0)
stamp("wq0")
a(f"s_mov_b32 s69, {cfg.s0['D']}")
qatt(2, 1, True)
stamp("P2b0")
if cfg.roles:
    ln_until(cfg.fa)
    ch1(2, True, aonly=True)
    a(f"""s_or_b32 s70, s5, s3
    s_cbranch_scc1 L_nf3
    s_lshl_b32 s70, s4, 7
    s_add_u32 s70, s70, {H_A(3)}
    s_mov_b64 exec, 1
    buffer_store_dword v2, v2, s[16:19], s70 offen sc1
    s_mov_b64 exec, -1
    L_nf3:""")
else:
    ch1(2, True)
stamp("fin0")
ln_until(10)
a(f"s_cmp_eq_u32 s3, 0\ns_cselect_b32 s63, 3, 0\ns_lshl_b32 s60, s4, 7\ns_add_u32 s60, s60, {H_A(2)}")
att_p1(1, 2)
stamp("P1b1")
a("s_mov_b32 s79, 1")
ch1(1, False); ch2(1)
qatt(3, 3, False)
stamp("P2b1")
a("s_mov_b32 s79, 2")
ch1(3, True)
stamp("end")
a("s_branch L_stamps" if cfg.stamps else "s_branch L_fin")
def s_reload():
    if not cfg.nogo: flagwait(2, cfg.sg, 0, cfg.n1)
    stamp("s.go")
    a("s_mov_b32 s82, 0")
    ln_until(8)
    load_v([t for t in range(cfg.j0) if t not in LDS_T])
    a("s_mov_b32 s29, s57")
    a("s_mov_b32 s82, 16")
    if cfg.stamps: a("s_waitcnt vmcnt(0)")
    stamp("s.rel")
a.label("L_srole")
a("s_mov_b32 s42, 0")
a(f"s_mov_b32 s69, 0")
if cfg.roles:
    a(f"s_mul_i32 s57, s3, {NS*1024}\ns_add_u32 s57, s57, {LWO}")
    if cfg.go0 >= 0: flagwait(2, cfg.sh, 4, cfg.n0)
    att_params(1, 1); call("SUB_RING")
    stamp("s.ring")
    flagwait(0, cfg.sh)
    qatt(2, 2, False)
    stamp("s.P2b0")
    if cfg.j0 < 64:
        att_params(1, 1); hint_addr(1); a("s_mov_b32 s63, 0"); call("SUB_RESUME")
        stamp("s.P1b1")
    if cfg.pf0 < 8:
        nun = 36 * (8 - cfg.pf0)
        a(f"""v_lshlrev_b32 v4, 7, v0
        s_sub_u32 s70, s5, 9
        s_lshl_b32 s70, s70, 2
        s_add_u32 s70, s70, s3
        s_mov_b32 s71, {(1 << 32) // 36 + 1}""")
        for i in range((nun + 27) // 28):
            L = a.newlabel("Lpf")
            if (i + 1) * 28 > nun: a(f"s_cmp_ge_u32 s70, {nun}\ns_cbranch_scc1 {L}")
            a(f"""s_mul_hi_u32 s72, s70, s71
            s_mul_i32 s73, s72, 36
            s_sub_u32 s73, s70, s73
            s_lshr_b32 s74, s73, 2
            s_sub_u32 s74, s74, s4
            s_and_b32 s74, s74, 15
            s_lshl_b32 s75, s4, 4
            s_add_u32 s74, s74, s75
            s_lshl_b32 s74, s74, 18
            s_and_b32 s73, s73, 3
            s_lshl_b32 s73, s73, 16
            s_add_u32 s74, s74, s73
            s_lshl_b32 s72, s72, 13
            s_add_u32 s74, s74, s72
            s_add_u32 s74, s74, {0x4000000 + cfg.pf0 * 8192}
            buffer_load_dword a{i}, v4, s[12:15], s74 offen
            s_add_u32 s70, s70, 28""")
            a.label(L)
    if cfg.relfirst: s_reload()
    load_mixer(0)
    a(f"""s_mov_b32 s56, 0
    s_mov_b32 s70, {C_A(0)}
    v_lshlrev_b32 v13, 2, v0
    buffer_load_dwordx4 v[4:7], v2, s[16:19], s70 offen sc1
    buffer_load_dwordx4 v[8:11], v2, s[16:19], s70 offen offset:1024 sc1
    buffer_load_dword v12, v13, s[16:19], s70 offen offset:2048 sc1
    v_add_u32 v14, {LXB}, v2
    v_add_u32 v13, {LXB}, v13
    s_mul_i32 s7, s4, 7
    s_add_u32 s7, s7, s5
    s_sub_u32 s7, s7, 9
    s_waitcnt vmcnt(0)
    ds_write_b128 v14, v[4:7]
    ds_write_b128 v14, v[8:11] offset:1024
    ds_write_b32 v13, v12 offset:2048""")
    flagwait(3, cfg.sg)
    ch1(2, True, entry="SUB_CH1B")
    if not cfg.late2:
        a("s_add_u32 s7, s7, 112\ns_cmp_ge_u32 s7, 144\ns_cbranch_scc1 L_s_nf")
        call("SUB_CH1B")
        a.label("L_s_nf")
    stamp("s.fin0")
    if not cfg.relfirst: s_reload()
else:
    flagwait(0, cfg.sh)
    qatt(2, 1, True)
    ln_until(10)
    a("s_mov_b32 s63, 0")
    att_p1(1, 2)
    stamp("s.P1b1")
flagwait(1, cfg.sh)
qatt(3, 2 if (cfg.roles and cfg.j0 < 64) else 3, False)
stamp("s.end")
if cfg.roles and cfg.late2:
    a("s_add_u32 s7, s7, 112\ns_cmp_ge_u32 s7, 144\ns_cbranch_scc1 L_s_nf")
    ch1(2, True, entry="SUB_CH1B")
    stamp("end")
    a.label("L_s_nf")
if cfg.stamps: a("s_branch L_stamps")
a.label("L_fin")
a("s_waitcnt vmcnt(0)")
a.label("L_end")
a("s_endpgm")

def att_pre(zero=True):
    a(f"""
    v_bfe_u32 v15, v0, 1, 1
    v_lshlrev_b32 v12, 8, v15
    v_lshrrev_b32 v13, 4, v0
    v_lshl_add_u32 v12, v13, 5, v12
    v_and_b32 v14, 1, v0
    v_lshl_add_u32 v12, v14, 4, v12
    v_add_u32 v12, s65, v12
    v_bfe_u32 v15, v0, 4, 1
    v_lshlrev_b32 v47, 9, v15
    v_and_b32 v15, 15, v0
    v_lshl_add_u32 v47, v15, 5, v47
    v_lshrrev_b32 v15, 5, v0
    v_lshl_add_u32 v47, v15, 4, v47
    s_lshl_b32 s70, s3, 10
    s_add_u32 s70, s70, s64
    v_add_u32 v47, s70, v47
    """)
    if zero: zero_a()
def zero_a():
    for i in range(12): a(f"v_mov_b32 v{34+i}, 0")
def Dset(i): return 12 + 4 * (i % 3)
def adds(i):
    G, t = i >> 2, i & 3; d = Dset(i)
    a(f"v_add_f32_dpp v32, v{d+1}, v{d} quad_perm:[1,0,3,2] row_mask:{1<<t:#x} bank_mask:0xf")
    a(f"v_add_f32_dpp v33, v{d+2}, v{d+3} quad_perm:[1,0,3,2] row_mask:{1<<t:#x} bank_mask:0xf")
    if t == 3:
        a(f"v_cndmask_b32 v{24+G}, v32, v33, s[24:25]")
        if G == 1: a("v_max_f32 v46, v24, v25")
        elif G % 2 == 1: a(f"v_max3_f32 v46, v46, v{23+G}, v{24+G}")
def kmm(kt, src):
    d = Dset(kt >> 1)
    if kt & 1: a(f"v_mfma_f32_16x16x32_bf16 {R4(d)}, v[8:11], {src}, {R4(d)}")
    else: a(f"v_mfma_f32_16x16x32_bf16 {R4(d)}, v[4:7], {src}, 0")
def softmax():
    for ctl in ("quad_perm:[2,3,0,1]", "row_ror:4", "row_ror:8"):
        a(f"v_max_f32_dpp v46, v46, v46 {ctl} {DPPALL}")
    rows_reduce("v_max_f32", 46, 32)
    a("v_mul_f32 v32, s26, v46")
    for G in range(8): a(f"v_fma_f32 v{24+G}, v{24+G}, s26, -v32")
    for G in range(8): a(f"v_exp_f32 v{24+G}, v{24+G}")
    a("v_pk_add_f32 v[4:5], v[24:25], v[26:27]\nv_pk_add_f32 v[6:7], v[28:29], v[30:31]\nv_pk_add_f32 v[4:5], v[4:5], v[6:7]\nv_add_f32 v20, v4, v5")
    lctl = ["quad_perm:[2,3,0,1]", "row_ror:8", "row_ror:4"]
    for G in range(8):
        t = 21 + (G & 1)
        a(f"v_mov_b32_dpp v{t}, v{24+G} quad_perm:[1,0,3,2] {DPPALL}")
        if G in (1, 3, 5): a(f"v_add_f32_dpp v20, v20, v20 {lctl[G//2]} {DPPALL}")
        a(f"v_cvt_pk_bf16_f32 v{24+G}, v{24+G}, v{t}")
    rows_reduce("v_add_f32", 20, 21)
    a("v_and_b32 v32, 3, v0\nv_mul_u32_u24 v32, 0x5555, v32")
def build(p, par):
    G, pi = p >> 2, p & 3
    bs = 34 + 4 * par
    for k in range(4):
        a(f"v_and_b32_dpp v{bs+k}, v{24+G}, v3 row_newbcast:{4*pi + 2*(k>>1)} row_mask:0xf bank_mask:{0xc if k & 1 else 0x3:#x}")
def vmm(src, par):
    a(f"v_smfmac_f32_16x16x64_bf16 v[42:45], {R4(34+4*par)}, {src}, v32")

a.hist = []
a.label("SUB_QATT")
att_pre()
a(f"""s_lshl_b32 s70, s3, 8
v_lshl_add_u32 v22, v0, 2, s70
s_mul_i32 s70, s4, 9216
s_add_u32 s70, s70, s62
s_add_u32 s71, s70, 4096
s_add_u32 s72, s70, 8192
v_lshrrev_b32 v24, 1, v22
v_add_u32 v24, s65, v24
s_cmp_eq_u32 s69, 0
s_cbranch_scc1 L_qatt_ns
s_sleep {max(1, cfg.s0['D'])}
L_qatt_ns:""")
poll(lambda: qg_issue(13, 70), lambda: check_sentinel(range(13, 22), 23))
qg_sum(13)
a("ds_write_b16 v24, v13\ns_cmp_eq_u32 s63, 2\ns_cselect_b32 s82, 0, s82\ns_mov_b64 vcc, 0\ns_waitcnt lgkmcnt(0)\ns_barrier")
stamp("q2b1", 1)
a.label("SUB_ATT2")
outofline = []
def site(fn):
    Lo = a.newlabel("Lo"); Lb = a.newlabel("Lb")
    a(f"s_cbranch_vccnz {Lo}"); a.label(Lb)
    outofline.append((Lo, Lb, fn))
def lnif():
    L = a.newlabel("Lki")
    a(f"s_cmp_ge_u32 s82, 16\ns_cbranch_scc1 {L}\ns_call_b64 s[80:81], SUB_LN"); a.label(L)
a("ds_read_b128 v[4:7], v12\nds_read_b128 v[8:11], v12 offset:128\ns_waitcnt vmcnt(16) lgkmcnt(0)")
for i in range(32):
    kmm(2*i, khome(2*i)); kmm(2*i+1, khome(2*i+1))
    if i >= 2: adds(i - 2)
    if cfg.ksites and i in (0, 15): site(lnif)
    if i in (3, 7):
        Lo = a.newlabel("Lo"); Lb = a.newlabel("Lb")
        a(f"s_cmp_lt_u32 s82, 2\ns_cbranch_scc1 {Lo}"); a.label(Lb)
        outofline.append((Lo, Lb, lambda: a("s_call_b64 s[80:81], SUB_LN")))
adds(30); adds(31)
if cfg.ksites: site(lnif)
softmax()
a("v_add_u32 v33, s29, v2")
sites = list(range(0, 60, 4)) + [60, 62]
done_sites = []
def arrived(t):
    for i in sites:
        if i > t or i in done_sites: continue
        done_sites.append(i)
        nxt = [x for x in sites if x > i]
        last = (nxt[0] if nxt else 64) - 1
        g = min(7, (i >> 3) + 2)
        def fn(i=i, g=g, last=last):
            if i % 8 == 0 and (i >> 3) + 2 <= 7:
                L = a.newlabel("Lsk")
                a(f"s_cmp_gt_u32 s82, {8+g}\ns_cbranch_scc1 {L}\ns_call_b64 s[80:81], SUB_LN"); a.label(L)
            a(f"s_waitcnt vmcnt({8*g + 7 - last})")
            for gi, code in ((cfg.go, 3), (cfg.go0, 4)):
              if i == gi:
                L = a.newlabel("Lsg")
                a(f"s_cmp_lg_u32 s63, {code}\ns_cbranch_scc1 {L}\ns_mov_b64 exec, 1\nbuffer_atomic_add v3, v2, s[16:19], s60 offen sc1\ns_mov_b64 exec, -1"); a.label(L)
        site(fn)
def lbuf(p): return 48 if p == 12 else (4 if (p >> 1) % 2 == 0 else 12)
nread = [0]; readpos = {}
def fetch(p):
    if p > 12 or p & 1: return
    arrived(2*p + 1)
    b = lbuf(p)
    a(f"ds_read_b128 {R4(b)}, v33 offset:{p*1024}"); nread[0] += 1
    if p < 12: a(f"ds_read_b128 {R4(b+4)}, v33 offset:{p*1024+1024}"); nread[0] += 1
    readpos[p] = nread[0]
fetch(0); fetch(2); build(0, 0)
for p in range(32):
    if p == cfg.j0 // 2: a.label("L_att_resume")
    if p + 1 < 32: build(p + 1, (p + 1) & 1)
    arrived(2*p + 1)
    if p in readpos:
        a(f"s_waitcnt lgkmcnt({nread[0] - readpos[p]})"); src = R8(lbuf(p))
    else: src = R8(vreg(2*p))
    vmm(src, p & 1)
    fetch(p + 4)
    if cfg.vsites and p in (1, 9, 17, 25):
        Lo = a.newlabel("Lo"); Lb = a.newlabel("Lb")
        a(f"s_cmp_lt_u32 s82, 8\ns_cbranch_scc1 {Lo}"); a.label(Lb)
        outofline.append((Lo, Lb, lambda: a("s_call_b64 s[80:81], SUB_LN")))
a.label("L_att_epi")
a(f"""
s_nop 3
v_and_b32 v32, 1, v0
v_lshlrev_b32 v32, 5, v32
s_lshl_b32 s70, s3, 2
s_add_u32 s70, s70, s64
s_add_u32 s70, s70, 4096
v_add_u32 v32, s70, v32
ds_write2_b32 v32, v46, v20 offset0:0 offset1:4
v_add_u32 v32, s64, v2
v_lshrrev_b32 v33, 5, v0
v_lshlrev_b32 v34, 6, v33
v_lshlrev_b32 v33, 5, v33
v_add_u32 v33, s64, v33
ds_write_b128 v47, v[42:45]
s_lshl_b32 s70, s2, 10
s_add_u32 s70, s70, s58
s_lshl_b32 s71, s4, 7
s_add_u32 s71, s71, s59
s_lshl_b32 s72, s6, 2
s_add_u32 s71, s71, s72
s_cmp_lg_u32 s3, 0
s_waitcnt lgkmcnt(0)
s_barrier
s_cbranch_scc1 L_att_ret
ds_read_b128 v[20:23], v33 offset:4096
ds_read_b128 v[24:27], v33 offset:4112
ds_read_b128 v[4:7], v32
ds_read_b128 v[8:11], v32 offset:1024
ds_read_b128 v[12:15], v32 offset:2048
ds_read_b128 v[16:19], v32 offset:3072
s_waitcnt lgkmcnt(4)
v_max3_f32 v28, v20, v21, v22
v_max_f32 v28, v28, v23
v_mul_f32 v28, s26, v28
""")
for w in range(4): a(f"v_fma_f32 v{20+w}, v{20+w}, s26, -v28")
for w in range(4): a(f"v_exp_f32 v{20+w}, v{20+w}")
a("""v_mul_f32 v30, v20, v24
v_fmac_f32 v30, v21, v25
v_fmac_f32 v30, v22, v26
v_fmac_f32 v30, v23, v27
s_waitcnt lgkmcnt(0)
v_pk_mul_f32 v[4:5], v[4:5], v[20:21] op_sel:[0,0] op_sel_hi:[1,0]
v_log_f32 v29, v30
v_rcp_f32 v30, v30
v_pk_mul_f32 v[6:7], v[6:7], v[20:21] op_sel:[0,0] op_sel_hi:[1,0]
v_pk_fma_f32 v[4:5], v[8:9], v[20:21], v[4:5] op_sel:[0,1,0] op_sel_hi:[1,1,1]
v_pk_fma_f32 v[6:7], v[10:11], v[20:21], v[6:7] op_sel:[0,1,0] op_sel_hi:[1,1,1]
v_pk_fma_f32 v[4:5], v[12:13], v[22:23], v[4:5] op_sel:[0,0,0] op_sel_hi:[1,0,1]
v_pk_fma_f32 v[6:7], v[14:15], v[22:23], v[6:7] op_sel:[0,0,0] op_sel_hi:[1,0,1]
v_pk_fma_f32 v[4:5], v[16:17], v[22:23], v[4:5] op_sel:[0,1,0] op_sel_hi:[1,1,1]
v_pk_fma_f32 v[6:7], v[18:19], v[22:23], v[6:7] op_sel:[0,1,0] op_sel_hi:[1,1,1]
v_pk_mul_f32 v[4:5], v[4:5], v[30:31] op_sel:[0,0] op_sel_hi:[1,0]
v_pk_mul_f32 v[6:7], v[6:7], v[30:31] op_sel:[0,0] op_sel_hi:[1,0]
v_add_f32 v29, v29, v28
buffer_store_dwordx4 v[4:7], v2, s[16:19], s70 offen sc1
s_mov_b32 exec_lo, 1
s_mov_b32 exec_hi, 1
buffer_store_dword v29, v34, s[16:19], s71 offen sc1
s_mov_b64 exec, -1
L_att_ret:""")
ret()
a.hist = []
a.label("SUB_ATT")
att_pre()
a("s_branch SUB_ATT2")
for Lo, Lb, fn in outofline:
    a.hist = []
    a.label(Lo); fn(); a(f"s_branch {Lb}")

a.hist = []
a.label("SUB_LN")
if cfg.thr >= 0: a(f"s_cmp_eq_u32 s42, 0\ns_cbranch_scc1 L_ln_nt\ns_waitcnt vmcnt({cfg.thr})\nL_ln_nt:")
for k in range(15): a(f"s_cmp_eq_u32 s82, {k}\ns_cbranch_scc1 L_lnb{k}")
for k in [15] + list(range(15)):
    a.label(f"L_lnb{k}")
    for hlf in range(2):
        if hlf and cfg.thrm >= 0: a(f"s_cmp_eq_u32 s42, 0\ns_cbranch_scc1 L_lnm{k}\ns_waitcnt vmcnt({cfg.thrm})\nL_lnm{k}:")
        if k < 8: load_k(range(8*k+4*hlf, 8*k+4*hlf+4))
        else: load_v(range(8*(k-8)+4*hlf, 8*(k-8)+4*hlf+4))
    a("s_add_u32 s82, s82, 1\ns_setpc_b64 s[80:81]")

a.hist = []
a.label("SUB_LNW")
a(f"""s_mov_b32 s36, 0
L_lnw_i:
s_call_b64 s[80:81], SUB_LN
s_add_u32 s36, s36, 8
L_lnw_c:
s_getreg_b32 s37, hwreg(HW_REG_IB_STS)
s_and_b32 s28, s37, 15
s_lshr_b32 s37, s37, 18
s_and_b32 s37, s37, 0x30
s_or_b32 s37, s37, s28
s_cmp_le_u32 s37, s36
s_cbranch_scc1 L_lnw_r
s_cmp_ge_u32 s82, 16
s_cbranch_scc1 L_lnw_s
s_cmp_lt_u32 s37, 40
s_cbranch_scc1 L_lnw_i
L_lnw_s:
s_sleep 1
s_branch L_lnw_c
L_lnw_r:""")
for n in (8, 16, 24, 32, 40):
    a(f"s_cmp_gt_u32 s36, {n}\ns_cbranch_scc1 L_lnw_r{n}\ns_waitcnt vmcnt({n})\ns_setpc_b64 s[34:35]\nL_lnw_r{n}:")
a("s_waitcnt vmcnt(48)\ns_setpc_b64 s[34:35]")

a.hist = []
a.label("SUB_CH1")
a(f"""
v_lshrrev_b32 v21, 4, v0
v_bfe_u32 v22, v0, 2, 2
v_lshl_add_u32 v23, v21, 3, v22
v_lshlrev_b32 v23, 7, v23
v_bfe_u32 v21, v0, 3, 2
v_xor_b32 v21, s3, v21
v_lshl_add_u32 v23, v21, 5, v23
v_and_b32 v21, 3, v0
v_lshl_add_u32 v23, v21, 3, v23
v_add_u32 v23, {LWO}, v23
""")
for ks in range(7):
    for jh in range(2):
        a(f"ds_read_b64_tr_b16 {R2(24 + 4*ks + 2*jh)}, v23 offset:{(32*ks+4*jh)*128}")
a(f"""
v_lshlrev_b32 v21, 2, v0
s_lshl_b32 s70, s4, 14
s_add_u32 s70, s70, s58
s_lshl_b32 s71, s3, 8
s_add_u32 s70, s70, s71
s_add_u32 s71, s70, 4096
s_add_u32 s72, s70, 8192
s_add_u32 s73, s70, 12288
s_lshl_b32 s74, s4, 7
s_add_u32 s74, s74, s59
s_lshr_b32 s75, s3, 1
s_lshl_b32 s75, s75, 6
s_add_u32 s74, s74, s75
s_lshl_b32 s75, s3, 7
s_add_u32 s75, s75, {LO}
""")
def issA():
    a("v_and_b32 v20, 60, v21\nbuffer_load_dword v20, v20, s[16:19], s74 offen sc1")
    for s in range(16):
        a(f"buffer_load_dword v{4+s}, v21, s[16:19], s{70+(s>>2)} offen offset:{(s&3)*1024} sc1")
TGT = 16 * 0xffff - 1
if cfg.hint >= 0:
    a(f"""s_cmp_lg_u32 s63, 0
    s_cbranch_scc1 L_ch1_sa
    s_lshl_b32 s76, s4, 7
    s_add_u32 s76, s76, s61
    s_add_u32 s76, s76, {0x8008}
    v_mov_b32 v4, 0
    s_mov_b32 s68, 0
    L_ch1_wa:
    buffer_load_dword v5, v4, s[16:19], s76 offen sc1
    s_waitcnt vmcnt(0)
    v_cmp_gt_i32 vcc, {TGT}, v5
    s_cbranch_vccz L_ch1_pa
    s_sleep {cfg.sh}
    s_add_u32 s68, s68, 1
    s_cmp_lt_u32 s68, {cfg.spin}
    s_cbranch_scc1 L_ch1_wa
    s_branch L_ch1_pa
    L_ch1_sa:
    s_sleep {cfg.s0['A']}
    L_ch1_pa:""")
    poll(issA, lambda: check_sentinel(range(4, 21), 22), s0=cfg.sA2)
else:
    poll(issA, lambda: check_sentinel(range(4, 21), 22), s0=cfg.s0["A"], s0w=cfg.s0["X"])
stamp("c.A", 1); stamp("f.A", 2)
a(f"v_max_f32_dpp v22, v20, v20 {CTL4[0]} {DPPALL}")
for c in CTL4[1:]: a(f"v_max_f32_dpp v22, v22, v22 {c} {DPPALL}")
a("v_sub_f32 v20, v20, v22\nv_exp_f32 v20, v20")
a(f"v_mul_f32_dpp v21, v20, v4 row_newbcast:0 {DPPALL}\nv_add_f32_dpp v22, v20, v20 {CTL4[0]} {DPPALL}")
for s in range(1, 16):
    a(f"v_fmac_f32_dpp v21, v20, v{4+s} row_newbcast:{s} {DPPALL}")
    if s in (2, 4, 6): a(f"v_add_f32_dpp v22, v22, v22 {CTL4[s//2]} {DPPALL}")
    if s == 4: a(f"ds_read_b64_tr_b16 v[4:5], v23 offset:{(32*7)*128}\nds_read_b64_tr_b16 v[6:7], v23 offset:{(32*7+4)*128}")
    if s == 8: a("v_rcp_f32 v22, v22")
    if s == 9: a("v_lshl_add_u32 v23, v0, 1, s75")
a(f"""
v_mul_f32 v21, v21, v22
v_cvt_pk_bf16_f32 v21, v21, v21
ds_write_b16 v23, v21
v_and_b32 v0, 48, v0
v_add_u32 v0, {LO}, v0
s_lshl_b32 s70, s7, 8
s_add_u32 s70, s70, s60
s_lshl_b32 s71, s3, 6
s_add_u32 s74, s70, s71
s_mul_i32 s70, s3, 9216
s_add_u32 s70, s70, s60
s_add_u32 s71, s70, 2304
s_add_u32 s72, s70, 4608
s_add_u32 s73, s70, 6912
s_waitcnt lgkmcnt(0)
s_barrier
""")
order = [7, 0, 1, 2, 3, 4, 5, 6]
def frag(ks): return "v[4:7]" if ks == 7 else R4(24 + 4*ks)
bufs = ["v[8:11]", "v[12:15]", "v[16:19]"]
for n in range(3): a(f"ds_read_b128 {bufs[n]}, v0 offset:{order[n]*64}")
for n, ks in enumerate(order):
    a(f"s_waitcnt lgkmcnt({len(bufs) - 1 - n})")
    a(f"v_mfma_f32_16x16x32_bf16 v[20:23], {bufs[n]}, {frag(ks)}, {'0' if n == 0 else 'v[20:23]'}")
    for fr in (frag(ks), bufs[n]):
        if len(bufs) < 8:
            a(f"ds_read_b128 {fr}, v0 offset:{order[len(bufs)]*64}"); bufs.append(fr)
a(f"""
v_lshrrev_b32 v0, 4, v2
v_lshlrev_b32 v49, 2, v0
s_mul_i32 s75, s3, 2304
s_add_u32 s75, s75, {LX}
v_add_u32 v51, s75, v2
s_mov_b64 exec, 0xffff
buffer_store_dword v20, v49, s[16:19], s74 offen sc1
s_mov_b64 exec, -1
""")
a("s_cmp_eq_u32 s63, 2\ns_cbranch_scc1 L_ch1_ret")
a.label("L_ch1_b")
ln(False)
def issB():
    for r in range(4):
        a(f"buffer_load_dwordx4 {R4(4+8*r)}, v2, s[16:19], s{70+r} offen sc1")
        a(f"buffer_load_dwordx4 {R4(8+8*r)}, v2, s[16:19], s{70+r} offen offset:1024 sc1")
        a(f"buffer_load_dword v{36+r}, v49, s[16:19], s{70+r} offen offset:2048 sc1")
def chkB():
    for i in range(4): a(f"v_pk_add_f32 {R2(40+2*i)}, {R2(4+2*i)}, {R2(12+2*i)}")
    a("v_add_f32 v48, v36, v37")
    for r in (2, 3):
        for i in range(4): a(f"v_pk_add_f32 {R2(40+2*i)}, {R2(40+2*i)}, {R2(4+8*r+2*i)}")
        a(f"v_add_f32 v48, v48, v{36+r}")
    a("v_add_u32 v50, s75, v49\nds_write_b128 v51, v[40:43]\nds_write_b128 v51, v[44:47] offset:1024\nds_write_b32 v50, v48 offset:2048")
    check_sentinel(range(4, 40), 50)
if cfg.hint >= 0:
    a(f"""s_cmp_lg_u32 s63, 0
    s_cbranch_scc1 L_ch1_sb
    s_add_u32 s76, s61, {0x8008}
    v_and_b32 v4, 15, v0
    v_lshlrev_b32 v4, 7, v4
    buffer_load_dword v5, v4, s[16:19], s76 offen sc1
    s_waitcnt vmcnt(0)
    v_cmp_gt_i32 vcc, {TGT}, v5
    s_cbranch_vccz L_ch1_pb
    s_mov_b32 s68, 0
    L_ch1_wb:
    s_sleep {cfg.sh}
    buffer_load_dword v5, v4, s[16:19], s76 offen sc1
    s_waitcnt vmcnt(0)
    v_cmp_gt_i32 vcc, {TGT}, v5
    s_cbranch_vccz L_ch1_wb2
    s_add_u32 s68, s68, 1
    s_cmp_lt_u32 s68, {cfg.spin}
    s_cbranch_scc1 L_ch1_wb
    L_ch1_wb2:
    s_sleep {cfg.sB2}
    s_branch L_ch1_pb
    L_ch1_sb:
    s_sleep {cfg.s0['B']}
    L_ch1_pb:""")
    poll(issB, chkB)
else:
    poll(issB, chkB, s0=cfg.s0["B"])
stamp("c.B", 1); stamp("f.B", 2)
a(f"""
v_add_u32 v14, s64, v2
v_add_u32 v15, s64, v49
ds_read_b128 v[4:7], v14
ds_read_b128 v[8:11], v14 offset:1024
ds_read_b32 v12, v15 offset:2048
v_add_u32 v14, {LX}, v2
v_add_u32 v15, {LX+2048}, v49
s_waitcnt lgkmcnt(3)
s_barrier
""")
for r in range(4):
    a(f"ds_read_b128 {R4(16+8*r)}, v14 offset:{r*2304}\nds_read_b128 {R4(20+8*r)}, v14 offset:{r*2304+1024}")
    if r == 0: a("ds_read2st64_b32 v[48:49], v15 offset0:0 offset1:9\nds_read2st64_b32 v[50:51], v15 offset0:18 offset1:27")
a(f"""
v_lshlrev_b32 v13, 3, v0
v_add_u32 v13, {LLN}, v13
v_lshlrev_b32 v14, 1, v0
v_add_u32 v14, {LLN+1024}, v14
v_and_b32 v15, 3, v0
s_lshl_b32 s70, s7, 3
s_add_u32 s70, s70, {LLN}
v_lshl_add_u32 v15, v15, 1, s70
s_lshl_b32 s70, s3, 8
s_add_u32 s70, s70, s56
""")
for r in range(4):
    a(f"s_waitcnt lgkmcnt({6 - 2*r})")
    for i in range(4): a(f"v_pk_add_f32 {R2(4+2*i)}, {R2(4+2*i)}, {R2(16+8*r+2*i)}")
    a(f"v_add_f32 v12, v12, v{48+r}")
a("""v_cvt_pk_bf16_f32 v16, v4, v5
v_cvt_pk_bf16_f32 v17, v6, v7
v_cvt_pk_bf16_f32 v18, v8, v9
v_cvt_pk_bf16_f32 v19, v10, v11
v_cvt_pk_bf16_f32 v20, v12, 0
ds_write_b64 v13, v[16:17]
ds_write_b64 v13, v[18:19] offset:512
ds_write_b16 v14, v20
ds_read_u16 v27, v15
v_lshl_add_u32 v26, v0, 2, s70""")
fill = [f"ds_read2st64_b32 {R2(28+2*i)}, v26 offset0:{4*i} offset1:{36+4*i}" for i in range(8)]
fill += [f"ds_read2st64_b32 {R2(44+2*i)}, v26 offset0:{72+8*i} offset1:{76+8*i}" for i in range(4)]
fill = [fill[0], fill[8]] + fill[1:8] + fill[9:]
stats([16, 17, 18, 19, 20], 4, 5, fill)
ln_scalars(4, 5, 6, 7, 8)
a("s_waitcnt lgkmcnt(12)\nv_lshlrev_b32 v27, 16, v27\nv_sub_f32 v9, v27, v6\nv_sub_f32 v4, v4, v6\nv_mul_f32 v5, v5, v7\nv_mul_f32 v4, v4, v7\nv_mul_f32 v5, v5, v7")
rbf(9, 10); a("v_mul_f32 v9, v9, v7"); rbf(9, 10)
ln_scalars(4, 5, 6, 7, 8)
a("v_sub_f32 v9, v9, v6"); rbf(9, 10); a("v_mul_f32 v9, v9, v7"); rbf(9, 10)
a("v_mov_b32 v25, v26")
for e in range(4): a(f"v_readlane_b32 s{70+2*e}, v9, {60+e}")
ln(False)
a(f"v_mov_b32 v26, {f32(C1)}\ns_mov_b32 s66, {f32(C2)}\ns_waitcnt lgkmcnt(0)")
for i in range(9):
    w1, b1, w2 = (28+2*i, 29+2*i, 44+i) if i < 8 else (28, 29, 44)
    if i == 8: a("s_waitcnt lgkmcnt(0)")
    for j, r in enumerate((w1, b1, w2)):
        a(f"v_lshlrev_b32 v{12+2*j}, 16, v{r}\nv_and_b32 v{13+2*j}, 0xffff0000, v{r}")
    if i == 0: a("ds_read2st64_b32 v[28:29], v25 offset0:32 offset1:68\nds_read_b32 v44, v25 offset:26624")
    for e0 in (0, 2):
        U = (18, 22); T = (20, 24); E = (e0, e0 + 1)
        for k in range(2): a(f"v_pk_fma_f32 {R2(U[k])}, v[12:13], s[{70+2*E[k]}:{71+2*E[k]}], v[14:15] op_sel_hi:[1,0,1]")
        for k in range(2): a(f"v_pk_mul_f32 {R2(T[k])}, {R2(U[k])}, {R2(U[k])}")
        for k in range(2): a(f"v_pk_fma_f32 {R2(T[k])}, {R2(T[k])}, s[66:67], v[26:27] op_sel_hi:[1,0,0]")
        for k in range(2): a(f"v_pk_mul_f32 {R2(T[k])}, {R2(U[k])}, {R2(T[k])}")
        for k in range(2): a(f"v_exp_f32 v{T[k]}, v{T[k]}\nv_exp_f32 v{T[k]+1}, v{T[k]+1}")
        for k in range(2): a(f"v_pk_mul_f32 {R2(U[k])}, {R2(U[k])}, v[16:17]")
        for k in range(2): a(f"v_pk_add_f32 {R2(T[k])}, {R2(T[k])}, 1.0 op_sel_hi:[1,0]")
        for k in range(2): a(f"v_rcp_f32 v{T[k]}, v{T[k]}\nv_rcp_f32 v{T[k]+1}, v{T[k]+1}")
        for k in range(2):
            acc = R2(4 + 2*E[k])
            a(f"v_pk_mul_f32 {acc}, {R2(U[k])}, {R2(T[k])}" if i == 0 else f"v_pk_fma_f32 {acc}, {R2(U[k])}, {R2(T[k])}, {acc}")
stamp("c.mix", 1)
for e in range(4): a(f"v_add_f32 v{4+2*e}, v{4+2*e}, v{5+2*e}")
a(f"""v_lshrrev_b32 v12, 4, v0
v_lshlrev_b32 v12, 2, v12
s_lshl_b32 s66, s3, 4
s_add_u32 s66, s66, {LRED}
v_add_u32 v12, s66, v12""")
row16_reduce("v_add_f32", [4, 6, 8, 10])
a(f"""
ds_write2_b32 v12, v4, v6 offset0:0 offset1:16
ds_write2_b32 v12, v8, v10 offset0:32 offset1:48
v_and_b32 v13, 3, v0
v_lshlrev_b32 v12, 6, v13
v_add_u32 v12, {LRED}, v12
s_mov_b32 s20, s52
s_mov_b32 s21, s53
s_mov_b32 s22, 2304
s_lshl_b32 s66, s7, 4
s_lshr_b32 s66, s66, s63
s_add_u32 s66, s66, s61
v_lshlrev_b32 v13, 2, v13
v_lshrrev_b32 v13, s63, v13
s_cmp_lg_u32 s3, 0
s_waitcnt lgkmcnt(0)
s_barrier
s_cbranch_scc1 L_ch1_ret
ds_read_b128 v[16:19], v12
ds_read_b128 v[20:23], v12 offset:16
ds_read_b128 v[28:31], v12 offset:32
ds_read_b128 v[32:35], v12 offset:48
s_cmp_eq_u32 s63, 1
s_mov_b64 exec, 15
s_waitcnt lgkmcnt(2)
v_pk_add_f32 v[16:17], v[16:17], v[18:19]
v_pk_add_f32 v[20:21], v[20:21], v[22:23]
s_waitcnt lgkmcnt(0)
v_pk_add_f32 v[28:29], v[28:29], v[30:31]
v_pk_add_f32 v[32:33], v[32:33], v[34:35]
v_pk_add_f32 v[16:17], v[16:17], v[20:21]
v_pk_add_f32 v[28:29], v[28:29], v[32:33]
v_pk_add_f32 v[16:17], v[16:17], v[28:29]
v_add_f32 v16, v16, v17
""")
rbf(16, 17); a("v_add_f32 v16, s78, v16"); rbf(16, 17); a("v_add_f32 v16, v16, v27"); rbf(16, 17)
a(f"""
s_cbranch_scc1 L_ch1_fin
buffer_store_dword v16, v13, s[16:19], s66 offen sc1
s_branch L_ch1_done
L_ch1_fin:
buffer_store_short v17, v13, s[20:23], s66 offen
L_ch1_done:
s_mov_b64 exec, -1
L_ch1_ret:
""")
ret()

a.hist = []
a.label("SUB_CH1B")
a(f"""s_mul_i32 s70, s3, 9216
s_add_u32 s70, s70, s60
s_add_u32 s71, s70, 2304
s_add_u32 s72, s70, 4608
s_add_u32 s73, s70, 6912
v_lshlrev_b32 v49, 2, v0
s_mul_i32 s75, s3, 2304
s_add_u32 s75, s75, {LX}
v_add_u32 v51, s75, v2
s_barrier
s_branch L_ch1_b""")

a.hist = []
a.label("SUB_CH2")
a(f"""
v_lshrrev_b32 v13, 4, v0
v_bfe_u32 v14, v0, 2, 2
v_lshl_add_u32 v15, v13, 3, v14
v_lshlrev_b32 v15, 9, v15
v_bfe_u32 v13, v0, 2, 3
s_lshl_b32 s70, s3, 2
v_xor_b32 v13, s70, v13
v_lshl_add_u32 v15, v13, 5, v15
v_and_b32 v13, 3, v0
v_lshl_add_u32 v15, v13, 3, v15
v_add_u32 v15, {LWQ}, v15
v_xor_b32 v16, 32, v15
v_xor_b32 v17, 64, v15
v_xor_b32 v18, 96, v15
""")
for cbk in range(4):
    for ks in range(2):
        for jh in range(2):
            a(f"ds_read_b64_tr_b16 {R2(20 + 8*cbk + 4*ks + 2*jh)}, v{15+cbk} offset:{(32*ks+4*jh)*512}")
a(f"""
v_lshlrev_b32 v19, 2, v0
v_add_u32 v15, s64, v2
v_add_u32 v16, s64, v19
s_lshl_b32 s72, s5, 8
s_lshl_b32 s74, s7, 10
s_add_u32 s74, s74, s62
s_lshl_b32 s71, s3, 8
s_add_u32 s74, s74, s71
s_cmp_eq_u32 s63, 1
s_cbranch_scc0 L_ch2_g
v_add_u32 v17, s72, v16
ds_read_b128 v[4:7], v15
ds_read_b128 v[8:11], v15 offset:1024
ds_read_b32 v12, v16 offset:2048
ds_read_b32 v13, v17
s_waitcnt lgkmcnt(0)
s_branch L_ch2_x
L_ch2_g:
s_add_u32 s72, s72, s61
s_lshl_b32 s73, s4, 7
s_add_u32 s73, s73, s61
s_add_u32 s73, s73, 0x8000
""")
def issC():
    a("""buffer_load_dwordx4 v[4:7], v2, s[16:19], s61 offen sc1
    buffer_load_dwordx4 v[8:11], v2, s[16:19], s61 offen offset:1024 sc1
    buffer_load_dword v12, v19, s[16:19], s61 offen offset:2048 sc1
    buffer_load_dword v13, v19, s[16:19], s72 offen sc1""")
poll(issC, lambda: check_sentinel(range(4, 14), 14), s0=cfg.s0["C"], s0w=cfg.s0["Y"])
a("""s_or_b32 s70, s5, s3
s_cbranch_scc1 L_ch2_nh
s_mov_b64 exec, 1
buffer_store_dword v19, v19, s[16:19], s73 offen sc1
s_mov_b64 exec, -1
L_ch2_nh:
ds_write_b128 v15, v[4:7]
ds_write_b128 v15, v[8:11] offset:1024
ds_write_b32 v16, v12 offset:2048
L_ch2_x:
v_cvt_pk_bf16_f32 v14, v4, v5
v_cvt_pk_bf16_f32 v15, v6, v7
v_cvt_pk_bf16_f32 v16, v8, v9
v_cvt_pk_bf16_f32 v17, v10, v11
v_cvt_pk_bf16_f32 v18, v12, 0""")
stats([14, 15, 16, 17, 18], 4, 5, ["v_lshlrev_b32 v9, 1, v0", f"v_add_u32 v9, {LRED}, v9", "v_and_b32 v12, 48, v0", f"v_add_u32 v12, {LRED}, v12"])
ln_scalars(4, 5, 6, 7, 8)
a("v_readlane_b32 s70, v6, 63\nv_readlane_b32 s71, v7, 63\nv_subrev_f32 v13, s70, v13")
rbf(13, 8)
a("""v_mul_f32 v13, s71, v13
v_cvt_pk_bf16_f32 v13, v13, v13
ds_write_b16 v9, v13
ds_read_b128 v[4:7], v12
ds_read_b128 v[8:11], v12 offset:64
s_waitcnt lgkmcnt(0)""")
accs = [12, 20, 28, 36]
for cbk in range(4):
    d = accs[cbk]; f = 20 + 8 * cbk
    a(f"v_mfma_f32_16x16x32_bf16 {R4(d)}, v[4:7], {R4(f)}, 0")
    a(f"v_mfma_f32_16x16x32_bf16 {R4(d)}, v[8:11], {R4(f+4)}, {R4(d)}")
for cbk in range(1, 4):
    a(f"v_mov_b32_dpp v12, v{accs[cbk]} quad_perm:[0,1,2,3] row_mask:{1<<cbk:#x} bank_mask:0xf")
a("buffer_store_dword v12, v19, s[16:19], s74 offen sc1")
stamp("c.wq", 1)
ret()

if cfg.roles:
    a.hist = []
    a.label("SUB_RING")
    keep = LDS_T + [25]
    vts = [t for t in range(cfg.j0) if t not in keep] + keep
    NT = 64 + len(vts)
    slot = lambda n: (n - (NT - len(keep))) % NS
    lastso = [None]
    def rload(n):
        if n >= NT: return
        if n < 64:
            so, imm, va, srd = ("k", (n >> 3) * 8192), ((n >> 1) & 3) * 512 + (n & 1) * 128, "v1", "s[8:11]"
        else:
            vt = vts[n - 64]
            so, imm, va, srd = ("v", (vt >> 2) * 4096), (vt & 3) * 1024, "v2", "s[12:15]"
        if so != lastso[0]:
            a(f"s_add_u32 s28, s27, {so[1]}"); lastso[0] = so
        a(f"s_add_u32 m0, s57, {slot(n)*1024 - imm}")
        a(f"buffer_load_dwordx4 {va}, {srd}, s28 offen offset:{imm}{'' if n < cfg.l2n else ' nt'} lds")
    for n in range(16): rload(n)
    att_pre(zero=False)
    a("ds_read_b128 v[4:7], v12\nds_read_b128 v[8:11], v12 offset:128\nv_add_u32 v48, s57, v2")
    KT = [34, 38, 42]
    for n in range(66):
        if n < 64:
            rload(n + 16)
            a(f"s_waitcnt vmcnt(16)\nds_read_b128 {R4(KT[n%3])}, v48 offset:{slot(n)*1024}")
        if n >= 2:
            kt = n - 2
            a(f"s_waitcnt lgkmcnt({min(63, n) - kt})")
            kmm(kt, R4(KT[kt % 3]))
            if kt & 1 and (kt >> 1) >= 2: adds((kt >> 1) - 2)
    adds(30); adds(31)
    softmax()
    zero_a()
    a("v_add_u32 v33, s57, v2")
    NP = len(vts) // 2
    def rfetch(m):
        if m >= NP: return
        for h in range(2):
            n = 64 + 2*m + h
            rload(n + 16)
            a(f"s_waitcnt vmcnt({min(16, NT - 1 - n)})\nds_read_b128 {R4(4 + 8*(m&1) + 4*h)}, v33 offset:{slot(n)*1024}")
    rfetch(0)
    for m in range(NP):
        build(vts[2*m] >> 1, m & 1)
        rfetch(m + 1)
        a(f"s_waitcnt lgkmcnt({2 if m + 1 < NP else 0})")
        vmm(R8(4 + 8*(m&1)), m & 1)
    if cfg.j0 == 64:
        a("s_branch L_att_epi")
    else:
        a(f"""v_mov_b32 v47, v20
        ds_write_b128 v33, v[24:27] offset:{14*1024}
        ds_write_b128 v33, v[28:31] offset:{15*1024}
        ds_write_b64 v33, v[46:47] offset:{17*1024}
        ds_write_b128 v33, v[42:45] offset:{16*1024}
        s_waitcnt lgkmcnt(0)""")
        ret()
        a.hist = []
        a.label("SUB_RESUME")
        a(f"s_mov_b32 s82, {8 + cfg.j0//8}\ns_call_b64 s[80:81], SUB_LN\ns_call_b64 s[80:81], SUB_LN")
        att_pre()
        a(f"""v_add_u32 v33, s57, v2
        ds_read_b128 v[24:27], v33 offset:{14*1024}
        ds_read_b128 v[28:31], v33 offset:{15*1024}
        ds_read_b128 v[42:45], v33 offset:{16*1024}
        ds_read_b64 v[22:23], v33 offset:{17*1024}
        v_and_b32 v32, 3, v0
        v_mul_u32_u24 v32, 0x5555, v32
        s_mov_b64 vcc, -1
        s_waitcnt lgkmcnt(0)
        v_mov_b32 v46, v22
        v_mov_b32 v20, v23""")
        build(cfg.j0 // 2, (cfg.j0 // 2) & 1)
        a.flush()
        a("s_branch L_att_resume")

for Lo, Lb, wait, depth in tramps:
    a.hist = []
    a.label(Lo)
    if wait and cfg.adapt:
        a(f"s_call_b64 s[34:35], SUB_LNW\ns_branch {Lb}")
        continue
    for d in range(1, depth + 1):
        a("s_call_b64 s[80:81], SUB_LN")
        L2 = a.newlabel("Lt2")
        if d < depth: a(f"s_cmp_lt_u32 s82, 16\ns_cbranch_scc1 {L2}")
        if wait: a(f"s_waitcnt vmcnt({8*d})")
        a(f"s_branch {Lb}")
        if d < depth: a.label(L2)
for Rr, L, D, sl in retries:
    a.hist = []
    a.label(Rr)
    a(f"s_sleep {sl}\ns_add_u32 s68, s68, 1\ns_cmp_lt_u32 s68, {cfg.spin}\ns_cbranch_scc1 {L}\ns_branch {D}")
if cfg.stamps:
    n = len(stamp_names)
    a.hist = []
    a.label("L_stamps")
    if cfg.dbg:
        sel = ["start", "start", "q1", "P1b0", "wq0", "s.ring", "P2b0", "s.P1b1", "s.fin0", "P1b1", "c.B", "c.wq", "s.rel", "s.end", "f.B", "end"]
        a("v_mov_b32 v6, 0")
        a(f"s_not_b32 s70, s{POOL[0]}\nv_writelane_b32 v6, s70, 0")
        for i, nm in enumerate(sel):
            if i and nm in stamp_names: a(f"v_writelane_b32 v6, s{POOL[stamp_names.index(nm)]}, {i}")
        a("v_lshrrev_b32 v4, 2, v2\ns_mov_b64 exec, 0xffff\nglobal_atomic_umax v4, v6, s[54:55] sc1\ns_branch L_fin")
    a(f"""s_lshl_b32 s70, s2, 2
    s_add_u32 s70, s70, s3
    s_mul_i32 s70, s70, {8*n}
    s_add_u32 s70, s70, {STAMP}
    v_mov_b32 v4, 0
    v_mov_b32 v7, 0
    s_mov_b64 exec, 1""")
    if cfg.hwid:
        a(f"s_getreg_b32 s71, hwreg(HW_REG_HW_ID)\ns_getreg_b32 s72, hwreg(HW_REG_XCC_ID)\ns_and_b32 s71, s71, 0xffff\ns_and_b32 s72, s72, 15\ns_lshl_b32 s72, s72, 16\ns_or_b32 s71, s71, s72\ns_add_u32 s{POOL[1]}, s{POOL[0]}, s71")
    for i in range(n):
        a(f"v_mov_b32 v6, s{POOL[i]}\nbuffer_store_dwordx2 v[6:7], v4, s[16:19], s70 offen offset:{8*i}\ns_nop 1")
    a("s_branch L_fin")
    open(sys.argv[1] + ".names", "w").write(" ".join(stamp_names))
    print("nstamps", n, file=sys.stderr)
hdr = open("cdna_kernels/" + NAME + ".s.ref").read().split("; Override launch")[0]
out = hdr + f"; @launch grid=(256,1,1) block=(256,1,1) lds={LDS_TOTAL}\n"
out += f""".amdgcn_target "amdgcn-amd-amdhsa--gfx950"
.text
.globl {NAME}_kernel
.p2align 8
.type {NAME}_kernel,@function
{NAME}_kernel:
""" + a.text() + f""".section .rodata,"a"
.p2align 6
.amdhsa_kernel {NAME}_kernel
  .amdhsa_next_free_vgpr 512
  .amdhsa_next_free_sgpr 102
  .amdhsa_accum_offset 256
  .amdhsa_group_segment_fixed_size 0
  .amdhsa_kernarg_size 104
  .amdhsa_user_sgpr_count 2
  .amdhsa_user_sgpr_kernarg_segment_ptr 1
  .amdhsa_system_sgpr_workgroup_id_x 1
.end_amdhsa_kernel
"""
open(sys.argv[1], "w").write(out)
print("nops added", a.nops_added, "lines", len(a.lines), file=sys.stderr)
```

```python
import sys, struct, math
sys.path.insert(0, "gen")
from asmlib import *

NAME = "interleave_layers__gqa_block_cached__mixer_token_mlp__decode"
def f32(x): return "0x%08x" % struct.unpack("<I", struct.pack("<f", x))[0]

class Cfg:
    stamps = 0
    spin = 20000
    s0 = dict(A=18, B=17, C=18, D=8, X=18, Y=18)
    s1 = 2
    sh = 2
    sg = 8
    go = 24
    roles = 1
    latew = 0
    vsites = 1
    l2n = 128
    dbg = 0
    n0 = 16
    n1 = 5
    thr = 3
    hint = -1
    cpf = 1
    hwid = 0
    late2 = 1
    adapt = 1
    warm = 0
    relfirst = 0
    ksites = 1
    pf0 = 8
    nogo = 1
    xthr = 0
    thrm = 4
    sA2 = 0
    sB2 = 32
    aw = 0
    d0 = 2
    thrall = 0
    thr3 = 0
    go0 = 40
    j0 = 40
    fa = 3
    dw = 2
    pre = 8
    d1 = 3
    d2 = 1
    d3 = 4
    d4 = 3
cfg = Cfg()
for arg in sys.argv[2:]:
    k, v = arg.split("=")
    if k.startswith("s0"): cfg.s0[k[2]] = int(v)
    else: setattr(cfg, k, int(v))

W = 52; NL = 13; NS = 20
LV = 0; LWO = 53248; LWQ = 86016; LMX = 118784; LXB = 146432; LX = 151040; LQ = 160256; LLN = 162304; LRED = 163456
LO = LX + 8448
LDS_TOTAL = 163840
A_O = lambda i: i * 0x40000
A_L = lambda i: 0x100000 + i * 0x1000
B_A = lambda i: 0x110000 + i * 0x10000
C_A = lambda i: 0x150000 + i * 0x1000
H_A = lambda i: 0x158000 + i * 0x1000
D_A = lambda i: 0x160000 + i * 0x40000
STAMP = 0x10000000
CSM = math.log2(math.e) / math.sqrt(128.0)
C1 = -2.0 * math.sqrt(2.0 / math.pi) * math.log2(math.e)
C2 = C1 * 0.044715
DPPALL = "row_mask:0xf bank_mask:0xf"
CTL4 = ["quad_perm:[1,0,3,2]", "quad_perm:[2,3,0,1]", "row_half_mirror", "row_mirror"]

a = Asm()
POOL = list(range(83, 100)) + [32, 33, 38, 39, 43, 50, 51]
stamp_names = []
def stamp(name, cond=None):
    if not cfg.stamps: return
    if name in stamp_names: r = POOL[stamp_names.index(name)]
    else:
        r = POOL[len(stamp_names)]; stamp_names.append(name)
    a("s_memrealtime s[100:101]\ns_waitcnt lgkmcnt(0)")
    if cond is None: a(f"s_mov_b32 s{r}, s100")
    else: a(f"s_cmp_eq_u32 s79, {cond}\ns_cselect_b32 s{r}, s100, s{r}")

def khome(kt): return f"a[{4*kt}:{4*kt+3}]"
LDS_T = [0, 1, 4, 5, 8, 9, 12, 13, 16, 17, 20, 21, 24]
REG_T = [25] + [t for t in range(64) if t not in LDS_T and t != 25]
def vreg(vt): return W + 4 * REG_T.index(vt)
def vhome(vt):
    r = vreg(vt); return f"v[{r}:{r+3}]"
def R8(r): return f"v[{r}:{r+7}]"
def R4(r): return f"v[{r}:{r+3}]"
def R2(r): return f"v[{r}:{r+1}]"

def load_k(kts):
    lastG = None
    for kt in kts:
        G, t, half = kt >> 3, (kt >> 1) & 3, kt & 1
        if G != lastG:
            a(f"s_add_u32 s28, s27, {G*8192}"); lastG = G
        a(f"buffer_load_dwordx4 {khome(kt)}, v1, s[8:11], s28 offen offset:{t*512+half*128} nt")
def load_v(vts):
    lastQ = None
    for vt in vts:
        Q = vt >> 2
        if Q != lastQ:
            a(f"s_add_u32 s28, s27, {Q*4096}")
            if vt in LDS_T: a(f"s_add_u32 m0, s29, {LDS_T.index(vt)*1024 - (vt&3)*1024}")
            lastQ = Q
        if vt in LDS_T:
            a(f"buffer_load_dwordx4 v2, s[12:15], s28 offen offset:{(vt&3)*1024} nt lds")
        else:
            a(f"buffer_load_dwordx4 {vhome(vt)}, v2, s[12:15], s28 offen offset:{(vt&3)*1024} nt")

def rbf(v, t):
    a(f"v_cvt_pk_bf16_f32 v{t}, v{v}, v{v}\nv_lshlrev_b32 v{v}, 16, v{t}")
def rows_reduce(op, v, t):
    a(f"v_mov_b32 v{t}, v{v}\nv_permlane16_swap_b32 v{v}, v{t}\n{op} v{v}, v{v}, v{t}")
    a(f"v_mov_b32 v{t}, v{v}\nv_permlane32_swap_b32 v{v}, v{t}\n{op} v{v}, v{v}, v{t}")
def row16_reduce(op, vs):
    for ctl in CTL4:
        for v in vs: a(f"{op}_dpp v{v}, v{v}, v{v} {ctl} {DPPALL}")
def sum_to_row3(vs, fillers=()):
    fillers = list(fillers)
    steps = [f"{c} {DPPALL}" for c in CTL4] + ["row_bcast:15 row_mask:0xa bank_mask:0xf", "row_bcast:31 row_mask:0xc bank_mask:0xf"]
    per = (len(fillers) + 5) // 6
    for st in steps:
        for _ in range(per):
            if fillers: a(fillers.pop(0))
        for v in vs: a(f"v_add_f32_dpp v{v}, v{v}, v{v} {st}")
def stats(P, s1, s2, fillers=()):
    for i, p in enumerate(P):
        a(f"v_dot2_f32_bf16 v{s1}, v{p}, s67, {'0' if i == 0 else 'v%d' % s1}")
        a(f"v_dot2_f32_bf16 v{s2}, v{p}, v{p}, {'0' if i == 0 else 'v%d' % s2}")
    sum_to_row3([s1, s2], fillers)
    a(f"v_mul_f32 v{s1}, {f32(1.0/576)}, v{s1}\nv_mul_f32 v{s2}, {f32(1.0/576)}, v{s2}\nv_fma_f32 v{s2}, -v{s1}, v{s1}, v{s2}\nv_max_f32 v{s2}, 0, v{s2}")
def ln_scalars(m, q, mb, r, t):
    a(f"v_cvt_pk_bf16_f32 v{t}, v{m}, v{q}\nv_and_b32 v{r}, 0xffff0000, v{t}\nv_lshlrev_b32 v{mb}, 16, v{t}\nv_add_f32 v{r}, {f32(1e-5)}, v{r}")
    rbf(r, t); a(f"v_sqrt_f32 v{r}, v{r}"); rbf(r, t); a(f"v_rcp_f32 v{r}, v{r}")

def check_sentinel(regs, t):
    regs = list(regs)
    if len(regs) % 2 == 0:
        a(f"v_max_u32 v{t}, v{regs[0]}, v{regs[1]}"); regs = regs[2:]
    else:
        a(f"v_max3_u32 v{t}, v{regs[0]}, v{regs[1]}, v{regs[2]}"); regs = regs[3:]
    for i in range(0, len(regs), 2):
        a(f"v_max3_u32 v{t}, v{t}, v{regs[i]}, v{regs[i+1]}")
    a(f"v_cmp_eq_u32 vcc, -1, v{t}")

tramps = []
def ln(wait, depth=None):
    Lo = a.newlabel("Lt"); Lb = a.newlabel("Ltb")
    a(f"s_cmp_lt_u32 s82, 16\ns_cbranch_scc1 {Lo}")
    if wait: a("s_waitcnt vmcnt(0)")
    a.label(Lb)
    tramps.append((Lo, Lb, wait, depth or (cfg.dw if wait else 1)))
retries = []
def poll(issue, check, s0=0, depth=None, s0w=None):
    L = a.newlabel("Lpoll"); D = a.newlabel("Lpd"); Rr = a.newlabel("Lpr")
    a("s_mov_b32 s68, 0")
    if s0 and s0w is not None and s0w < s0:
        Ls = a.newlabel("Lsl")
        a(f"s_cmp_eq_u32 s3, 0\ns_cbranch_scc1 {Ls}\ns_sleep {s0 - s0w}"); a.label(Ls)
        if s0w: a(f"s_sleep {s0w}")
    elif s0: a(f"s_sleep {s0}")
    a.label(L)
    issue(); ln(True, depth)
    check()
    a(f"s_cbranch_vccnz {Rr}")
    a.label(D)
    retries.append((Rr, L, D, cfg.s1))
def ln_until(n):
    L = a.newlabel("Lrest"); D = a.newlabel("Lrd")
    a.label(L); a(f"s_cmp_ge_u32 s82, {n}\ns_cbranch_scc1 {D}\ns_call_b64 s[80:81], SUB_LN\ns_branch {L}"); a.label(D)
def call(lbl):
    a.flush(); a(f"s_call_b64 s[30:31], {lbl}")
def ret():
    a.flush(); a("s_setpc_b64 s[30:31]")
def flagwait(inst, sl, off=0, count=0):
    a(f"s_lshl_b32 s70, s4, 7\ns_add_u32 s70, s70, {H_A(inst)+off}\nv_mov_b32 v4, 0")
    L = a.newlabel("Lh"); D = a.newlabel("Lhd")
    a(f"s_mov_b32 s68, 0\ns_cmp_lg_u32 s3, 0\ns_cbranch_scc1 {D}")
    a.label(L)
    a(f"buffer_load_dword v5, v4, s[16:19], s70 offen sc1\ns_waitcnt vmcnt(0)")
    a(f"v_cmp_gt_i32 vcc, {count*0xffff - 1}, v5" if count else "v_cmp_eq_u32 vcc, -1, v5")
    a(f"s_cbranch_vccz {D}")
    a(f"s_sleep {sl}\ns_add_u32 s68, s68, 1\ns_cmp_lt_u32 s68, {cfg.spin}\ns_cbranch_scc1 {L}")
    a.label(D)
    a("s_barrier")

def qg_issue(base, sb):
    for i in range(9):
        a(f"buffer_load_dword v{base+i}, v22, s[16:19], s{sb + (i>>2)} offen offset:{(i&3)*1024} sc1")
def qg_sum(base):
    b = base
    a(f"""v_add_f32 v{b}, v{b}, v{b+1}
    v_add_f32 v{b+2}, v{b+2}, v{b+3}
    v_add_f32 v{b+4}, v{b+4}, v{b+5}
    v_add_f32 v{b+6}, v{b+6}, v{b+7}
    v_add_f32 v{b}, v{b}, v{b+2}
    v_add_f32 v{b+4}, v{b+4}, v{b+6}
    v_add_f32 v{b}, v{b}, v{b+8}
    v_add_f32 v{b}, v{b}, v{b+4}
    v_cvt_pk_bf16_f32 v{b}, v{b}, v{b}""")

a(f"""
s_cmp_ge_u32 s2, 256
s_cbranch_scc1 L_end
s_load_dwordx16 s[32:47], s[0:1], 0
s_load_dwordx8 s[48:55], s[0:1], 64
s_load_dwordx2 s[56:57], s[0:1], 96
v_lshrrev_b32 v1, 6, v0
v_readfirstlane_b32 s3, v1
v_and_b32 v0, 63, v0
s_lshr_b32 s4, s2, 4
s_and_b32 s6, s2, 15
s_add_u32 s5, s6, s4
s_and_b32 s5, s5, 15
v_lshlrev_b32 v2, 4, v0
v_bfe_u32 v1, v0, 2, 2
v_lshlrev_b32 v1, 11, v1
v_bfe_u32 v3, v0, 1, 1
v_lshl_add_u32 v1, v3, 8, v1
v_lshrrev_b32 v3, 4, v0
v_lshl_add_u32 v1, v3, 5, v1
v_and_b32 v3, 1, v0
v_lshl_add_u32 v1, v3, 4, v1
s_lshl_b32 s27, s2, 18
s_lshl_b32 s28, s3, 16
s_add_u32 s27, s27, s28
s_mov_b32 s10, 0x8000000
s_mov_b32 s11, 0x20000
s_mov_b32 s14, 0x8000000
s_mov_b32 s15, 0x20000
s_mov_b32 s18, 0x20000000
s_mov_b32 s19, 0x20000
s_mov_b32 s23, 0x20000
s_waitcnt lgkmcnt(0)
s_mov_b32 s8, s34
s_mov_b32 s9, s35
""")
load_k(range(0, cfg.pre))
a(f"""
s_mov_b32 s12, s36
s_mov_b32 s13, s37
s_mov_b32 s16, s56
s_mov_b32 s17, s57
s_mov_b32 s82, {cfg.pre//8}
s_mov_b32 s79, 0
s_cmp_ge_u32 s5, 9
s_cselect_b32 s42, 1, {cfg.thrall}
""")
if cfg.xthr: a("s_getreg_b32 s42, hwreg(HW_REG_XCC_ID)\ns_andn2_b32 s42, 1, s42")
a(f"""
s_mov_b32 s24, 0xaaaaaaaa
s_mov_b32 s25, 0xaaaaaaaa
v_and_b32 v4, 4, v0
v_lshlrev_b32 v4, 2, v4
v_mov_b32 v3, 0xffff
v_lshlrev_b32 v3, v4, v3
s_mov_b32 s26, {f32(CSM)}
s_mov_b32 s67, 0x3f803f80
s_mul_i32 s29, s3, {NL*1024}
""")
for r in POOL[:17]:
    if cfg.stamps: a(f"s_mov_b32 s{r}, 0")
stamp("start")
if cfg.cpf:
    a(f"""s_cmp_ge_u32 s2, {32*cfg.cpf}
    s_cbranch_scc1 L_nocpf
    s_getpc_b64 s[70:71]
    L_cpf_pc:
    s_lshr_b32 s72, s2, 3
    s_and_b32 s72, s72, 3
    s_lshl_b32 s72, s72, 2
    s_add_u32 s72, s72, s3
    s_lshl_b32 s72, s72, 10
    v_add_u32 v42, s72, v2
    v_add_u32 v43, 0x4000, v42""")
    a.raw("    v_min_u32 v42, L_code_end-L_cpf_pc-16, v42")
    a.raw("    v_min_u32 v43, L_code_end-L_cpf_pc-16, v43")
    a("""global_load_dwordx4 v[44:47], v42, s[70:71]
    global_load_dwordx4 v[48:51], v43, s[70:71]
    L_nocpf:""")
if cfg.warm:
    a("""s_add_u32 s70, s27, 0x4000000
    s_mov_b64 exec, 1
    buffer_load_dword v40, v2, s[12:15], s27 offen nt
    buffer_load_dword v41, v2, s[8:11], s70 offen nt
    buffer_load_dword v42, v2, s[12:15], s70 offen nt
    global_load_ushort v43, v2, s[52:53]
    global_load_dword v44, v2, s[54:55] offset:192
    s_mov_b64 exec, -1""")
a(f"""
v_mov_b32 v4, -1
v_mov_b32 v5, -1
v_mov_b32 v6, -1
v_mov_b32 v7, -1
s_lshl_b32 s70, s3, 18
s_lshl_b32 s71, s2, 10
s_add_u32 s70, s70, s71
buffer_store_dwordx4 v[4:7], v2, s[16:19], s70 offen sc1
s_lshl_b32 s70, s3, 12
s_lshl_b32 s71, s4, 7
s_add_u32 s70, s70, s71
s_lshl_b32 s71, s6, 2
s_add_u32 s70, s70, s71
s_add_u32 s70, s70, {A_L(0)}
v_lshlrev_b32 v8, 6, v0
s_mov_b64 exec, 3
buffer_store_dword v4, v8, s[16:19], s70 offen sc1
s_mov_b64 exec, -1
v_mov_b32 v11, 0
global_load_ushort v23, v11, s[50:51]
s_mul_i32 s7, s4, 9
s_add_u32 s7, s7, s5
s_cmp_ge_u32 s5, 9
s_cbranch_scc1 L_pro_s1
v_lshlrev_b32 v8, 2, v0
s_lshl_b32 s70, s3, 16
s_lshl_b32 s71, s7, 8
s_add_u32 s70, s70, s71
s_add_u32 s70, s70, {B_A(0)}
buffer_store_dword v4, v8, s[16:19], s70 offen sc1
s_lshl_b32 s70, s3, 18
s_lshl_b32 s71, s7, 10
s_add_u32 s70, s70, s71
s_add_u32 s70, s70, {D_A(0)}
buffer_store_dwordx4 v[4:7], v2, s[16:19], s70 offen sc1
s_lshl_b32 s70, s3, 12
s_lshl_b32 s71, s7, 4
s_add_u32 s70, s70, s71
s_add_u32 s70, s70, {C_A(0)}
s_mov_b64 exec, 15
buffer_store_dword v4, v8, s[16:19], s70 offen sc1
s_lshl_b32 s70, s3, 12
s_lshl_b32 s71, s4, 7
s_add_u32 s70, s70, s71
s_add_u32 s70, s70, {H_A(0)}
buffer_store_dword v4, v8, s[16:19], s70 offen sc1
s_mov_b64 exec, -1
s_mov_b32 s20, s32
s_mov_b32 s21, s33
s_mov_b32 s22, 2304
v_lshlrev_b32 v9, 3, v0
v_lshlrev_b32 v10, 1, v0
buffer_load_dwordx2 v[12:13], v9, s[20:23], 0 offen
buffer_load_dwordx2 v[14:15], v9, s[20:23], 0 offen offset:512
buffer_load_ushort v16, v10, s[20:23], 0 offen offset:1024
buffer_load_dwordx2 v[18:19], v9, s[20:23], 0 offen offset:1152
buffer_load_dwordx2 v[20:21], v9, s[20:23], 0 offen offset:1664
buffer_load_ushort v22, v10, s[20:23], 0 offen offset:2176
s_mov_b32 s20, s38
s_mov_b32 s21, s39
s_mov_b32 s22, {576*8192}
v_lshrrev_b32 v24, 5, v0
v_and_b32 v25, 31, v0
v_lshlrev_b32 v25, 4, v25
v_lshlrev_b32 v26, 5, v24
v_xor_b32 v25, v25, v26
v_lshl_add_u32 v24, v24, 13, v25
v_xor_b32 v25, 64, v24
v_xor_b32 v26, 128, v24
v_xor_b32 v27, 192, v24
s_lshl_b32 s70, s5, 19
s_lshl_b32 s71, s3, 17
s_add_u32 s70, s70, s71
s_lshl_b32 s71, s4, 9
s_add_u32 s70, s70, s71
s_lshl_b32 s71, s3, 13
s_add_u32 s71, s71, {LWQ}
""")
for i in range(8):
    fs = ((i >> 2) & 1) * 2 + (i & 1)
    a(f"s_add_u32 m0, s71, {i*1024}\nbuffer_load_dwordx4 v{24+fs}, s[20:23], s70 offen nt lds")
    if i < 7: a("s_add_u32 s70, s70, 16384")
a.label("L_pro_s1")
ln(True, cfg.d1)
pass
a(f"""
v_lshlrev_b32 v23, 16, v23
v_readfirstlane_b32 s78, v23
s_mov_b32 s56, {LMX}
s_cmp_ge_u32 s5, 9
s_cbranch_scc1 L_pro_s2
v_add_u32 v24, {LXB}, v2
v_lshlrev_b32 v25, 2, v0
v_add_u32 v25, {LXB+2048}, v25
""")
for b in range(2):
    r = 12 + 6 * b
    a(f"""v_lshlrev_b32 v28, 16, v{r}
    v_and_b32 v29, 0xffff0000, v{r}
    v_lshlrev_b32 v30, 16, v{r+1}
    v_and_b32 v31, 0xffff0000, v{r+1}
    v_lshlrev_b32 v32, 16, v{r+2}
    v_and_b32 v33, 0xffff0000, v{r+2}
    v_lshlrev_b32 v34, 16, v{r+3}
    v_and_b32 v35, 0xffff0000, v{r+3}
    v_lshlrev_b32 v36, 16, v{r+4}
    ds_write_b128 v24, v[28:31] offset:{b*2304}
    ds_write_b128 v24, v[32:35] offset:{b*2304+1024}
    ds_write_b32 v25, v36 offset:{b*2304}
    s_waitcnt lgkmcnt(0)""")
a.label("L_pro_s2")
a(f"""
s_barrier
s_cmp_lg_u32 s3, {cfg.aw}
s_cbranch_scc1 L_pro_arr
v_mov_b32 v4, 0
v_mov_b32 v5, 1
s_mov_b64 exec, 1
global_atomic_add v6, v4, v5, s[54:55] offset:64 sc0 sc1
s_mov_b64 exec, -1
""")
ln(True, cfg.d0)
a(f"""v_readfirstlane_b32 s70, v6
s_cmp_lg_u32 s70, 255
s_cbranch_scc1 L_pro_arr
s_mov_b64 exec, 1
global_store_dword v4, v5, s[54:55] offset:128 sc1
s_mov_b64 exec, -1
L_pro_arr:
s_cmp_ge_u32 s5, 9
s_cbranch_scc1 L_pro_s3
""")
for b in range(2):
    a(f"s_mov_b32 s63, 1\ns_mov_b32 s64, {LXB + b*2304}\ns_mov_b32 s62, {D_A(b)}")
    call("SUB_CH2")
    if b == 0: a("s_barrier")
def load_wo():
    a(f"""
    s_mov_b32 s20, s40
    s_mov_b32 s21, s41
    s_mov_b32 s22, {4096*1152}
    v_lshrrev_b32 v24, 3, v0
    v_mul_u32_u24 v24, 1152, v24
    v_and_b32 v25, 7, v0
    v_lshlrev_b32 v25, 4, v25
    v_bfe_u32 v26, v0, 4, 1
    v_lshlrev_b32 v26, 5, v26
    v_xor_b32 v25, v25, v26
    v_xor_b32 v26, 64, v25
    v_add_u32 v25, v25, v24
    v_add_u32 v26, v26, v24
    s_lshl_b32 s70, s4, 2
    s_add_u32 s70, s70, s3
    s_mul_i32 s70, s70, {64*1152}
    s_lshl_b32 s71, s5, 7
    s_add_u32 s70, s70, s71
    s_lshl_b32 s71, s3, 13
    s_add_u32 s71, s71, {LWO}
    """)
    for i in range(8):
        a(f"s_add_u32 m0, s71, {i*1024}\nbuffer_load_dwordx4 v{25+(i&1)}, s[20:23], s70 offen nt lds")
        if i < 7: a(f"s_add_u32 s70, s70, {8*1152}")
def load_mixer(base):
    a(f"""
    s_lshl_b32 s70, s3, 10
    v_add_u32 v24, s70, v2
    v_add_u32 v25, 4096, v24
    v_add_u32 v26, 8192, v2
    s_add_u32 s71, s70, {base}
    """)
    for j, p in enumerate((44, 46, 48)):
        a(f"""s_add_u32 m0, s71, {j*9216}
        global_load_lds_dwordx4 v24, s[{p}:{p+1}]
        s_add_u32 m0, s71, {j*9216+4096}
        global_load_lds_dwordx4 v25, s[{p}:{p+1}]
        s_mov_b32 m0, {base+j*9216+8192}
        global_load_lds_dwordx4 v26, s[{p}:{p+1}]""")
if not cfg.latew:
    load_wo(); load_mixer(LMX)
a.label("L_pro_s3")
for r in POOL[17:]:
    if cfg.stamps: a(f"s_mov_b32 s{r}, 0")
ln(False, cfg.d2)
a("v_mov_b32 v4, 0")
poll(lambda: a("global_load_dword v5, v4, s[54:55] offset:128 sc1"), lambda: a("v_cmp_eq_u32 vcc, 0, v5"), depth=cfg.d3)
stamp("cnt")
a(f"""s_lshl_b32 s70, s3, 8
v_lshl_add_u32 v22, v0, 2, s70
s_mul_i32 s69, s4, 9216
s_add_u32 s70, s69, {D_A(0)}
s_add_u32 s71, s70, 4096
s_add_u32 s72, s70, 8192
s_add_u32 s73, s69, {D_A(1)}
s_add_u32 s74, s73, 4096
s_add_u32 s75, s73, 8192
v_lshrrev_b32 v24, 1, v22
v_add_u32 v24, {LQ}, v24""")
poll(lambda: (qg_issue(4, 70), qg_issue(13, 73)), lambda: check_sentinel(range(4, 22), 23), depth=cfg.d4)
qg_sum(4); qg_sum(13)
a("ds_write_b16 v24, v4\nds_write_b16 v24, v13 offset:512")
stamp("q1")
ln_until(10)
a("s_waitcnt lgkmcnt(0)\ns_barrier")

def att_params(ai, seq):
    a(f"s_mov_b32 s58, {A_O(ai)}\ns_mov_b32 s59, {A_L(ai)}\ns_mov_b32 s65, {LQ + ai*512}\ns_mov_b32 s64, {LX + (seq&1)*4224}")
def hint_addr(ai):
    a(f"s_lshl_b32 s62, s4, 7\ns_add_u32 s62, s62, {H_A(ai)+8}")
def att_p1(ai, seq):
    att_params(ai, seq); hint_addr(ai); a("s_mov_b64 vcc, -1"); call("SUB_ATT")
def qatt(ai, seq, loadnext):
    att_params(ai, seq); a(f"s_mov_b32 s62, {D_A(ai)}\ns_mov_b32 s63, {2 if loadnext else 0}"); call("SUB_QATT")
def ch1(inst, final, entry="SUB_CH1", aonly=False):
    b = inst & 1
    a(f"s_mov_b32 s58, {A_O(inst)}\ns_mov_b32 s59, {A_L(inst)}\ns_mov_b32 s60, {B_A(inst)}\ns_mov_b32 s64, {LXB + b*2304}")
    a(f"s_mov_b32 s63, {2 if aonly else 1 if final else 0}\ns_mov_b32 s61, {b*1152 if final else C_A(inst)}")
    call(entry)
def ch2(inst):
    b = inst & 1
    a(f"s_mov_b32 s63, 0\ns_mov_b32 s61, {C_A(inst)}\ns_mov_b32 s64, {LXB + b*2304}\ns_mov_b32 s62, {D_A(2+inst)}")
    call("SUB_CH2")

a(f"s_cmp_eq_u32 s3, 0\ns_cselect_b32 s63, 4, 0\ns_lshl_b32 s60, s4, 7\ns_add_u32 s60, s60, {H_A(2)+4}")
att_p1(0, 0)
stamp("P1b0")
a("s_add_u32 s27, s27, 0x4000000\ns_cmp_ge_u32 s5, 9\ns_cbranch_scc1 L_srole")
a(f"s_mov_b32 s42, {cfg.thr3}")
if cfg.latew:
    load_wo(); load_mixer(LMX)
    a("s_waitcnt vmcnt(9)\ns_barrier")
ch1(0, False); ch2(0)
stamp("wq0")
a(f"s_mov_b32 s69, {cfg.s0['D']}")
qatt(2, 1, True)
stamp("P2b0")
if cfg.roles:
    ln_until(cfg.fa)
    ch1(2, True, aonly=True)
    a(f"""s_or_b32 s70, s5, s3
    s_cbranch_scc1 L_nf3
    s_lshl_b32 s70, s4, 7
    s_add_u32 s70, s70, {H_A(3)}
    s_mov_b64 exec, 1
    buffer_store_dword v2, v2, s[16:19], s70 offen sc1
    s_mov_b64 exec, -1
    L_nf3:""")
else:
    ch1(2, True)
stamp("fin0")
ln_until(10)
a(f"s_cmp_eq_u32 s3, 0\ns_cselect_b32 s63, 3, 0\ns_lshl_b32 s60, s4, 7\ns_add_u32 s60, s60, {H_A(2)}")
att_p1(1, 2)
stamp("P1b1")
a("s_mov_b32 s79, 1")
ch1(1, False); ch2(1)
qatt(3, 3, False)
stamp("P2b1")
a("s_mov_b32 s79, 2")
ch1(3, True)
stamp("end")
a("s_branch L_stamps" if cfg.stamps else "s_branch L_fin")
def s_reload():
    if not cfg.nogo: flagwait(2, cfg.sg, 0, cfg.n1)
    stamp("s.go")
    a("s_mov_b32 s82, 0")
    ln_until(8)
    load_v([t for t in range(cfg.j0) if t not in LDS_T])
    a("s_mov_b32 s29, s57")
    a("s_mov_b32 s82, 16")
    if cfg.stamps: a("s_waitcnt vmcnt(0)")
    stamp("s.rel")
a.label("L_srole")
a("s_mov_b32 s42, 0")
a(f"s_mov_b32 s69, 0")
if cfg.roles:
    a(f"s_mul_i32 s57, s3, {NS*1024}\ns_add_u32 s57, s57, {LWO}")
    if cfg.go0 >= 0: flagwait(2, cfg.sh, 4, cfg.n0)
    att_params(1, 1); call("SUB_RING")
    stamp("s.ring")
    flagwait(0, cfg.sh)
    qatt(2, 2, False)
    stamp("s.P2b0")
    if cfg.j0 < 64:
        att_params(1, 1); hint_addr(1); a("s_mov_b32 s63, 0"); call("SUB_RESUME")
        stamp("s.P1b1")
    if cfg.pf0 < 8:
        nun = 36 * (8 - cfg.pf0)
        a(f"""v_lshlrev_b32 v4, 7, v0
        s_sub_u32 s70, s5, 9
        s_lshl_b32 s70, s70, 2
        s_add_u32 s70, s70, s3
        s_mov_b32 s71, {(1 << 32) // 36 + 1}""")
        for i in range((nun + 27) // 28):
            L = a.newlabel("Lpf")
            if (i + 1) * 28 > nun: a(f"s_cmp_ge_u32 s70, {nun}\ns_cbranch_scc1 {L}")
            a(f"""s_mul_hi_u32 s72, s70, s71
            s_mul_i32 s73, s72, 36
            s_sub_u32 s73, s70, s73
            s_lshr_b32 s74, s73, 2
            s_sub_u32 s74, s74, s4
            s_and_b32 s74, s74, 15
            s_lshl_b32 s75, s4, 4
            s_add_u32 s74, s74, s75
            s_lshl_b32 s74, s74, 18
            s_and_b32 s73, s73, 3
            s_lshl_b32 s73, s73, 16
            s_add_u32 s74, s74, s73
            s_lshl_b32 s72, s72, 13
            s_add_u32 s74, s74, s72
            s_add_u32 s74, s74, {0x4000000 + cfg.pf0 * 8192}
            buffer_load_dword a{i}, v4, s[12:15], s74 offen
            s_add_u32 s70, s70, 28""")
            a.label(L)
    if cfg.relfirst: s_reload()
    load_mixer(0)
    a(f"""s_mov_b32 s56, 0
    s_mov_b32 s70, {C_A(0)}
    v_lshlrev_b32 v13, 2, v0
    buffer_load_dwordx4 v[4:7], v2, s[16:19], s70 offen sc1
    buffer_load_dwordx4 v[8:11], v2, s[16:19], s70 offen offset:1024 sc1
    buffer_load_dword v12, v13, s[16:19], s70 offen offset:2048 sc1
    v_add_u32 v14, {LXB}, v2
    v_add_u32 v13, {LXB}, v13
    s_mul_i32 s7, s4, 7
    s_add_u32 s7, s7, s5
    s_sub_u32 s7, s7, 9
    s_waitcnt vmcnt(0)
    ds_write_b128 v14, v[4:7]
    ds_write_b128 v14, v[8:11] offset:1024
    ds_write_b32 v13, v12 offset:2048""")
    flagwait(3, cfg.sg)
    ch1(2, True, entry="SUB_CH1B")
    if not cfg.late2:
        a("s_add_u32 s7, s7, 112\ns_cmp_ge_u32 s7, 144\ns_cbranch_scc1 L_s_nf")
        call("SUB_CH1B")
        a.label("L_s_nf")
    stamp("s.fin0")
    if not cfg.relfirst: s_reload()
else:
    flagwait(0, cfg.sh)
    qatt(2, 1, True)
    ln_until(10)
    a("s_mov_b32 s63, 0")
    att_p1(1, 2)
    stamp("s.P1b1")
flagwait(1, cfg.sh)
qatt(3, 2 if (cfg.roles and cfg.j0 < 64) else 3, False)
stamp("s.end")
if cfg.roles and cfg.late2:
    a("s_add_u32 s7, s7, 112\ns_cmp_ge_u32 s7, 144\ns_cbranch_scc1 L_s_nf")
    ch1(2, True, entry="SUB_CH1B")
    stamp("end")
    a.label("L_s_nf")
if cfg.stamps: a("s_branch L_stamps")
a.label("L_fin")
a("s_waitcnt vmcnt(0)")
a.label("L_end")
a("s_endpgm")

def att_pre(zero=True):
    a(f"""
    v_bfe_u32 v15, v0, 1, 1
    v_lshlrev_b32 v12, 8, v15
    v_lshrrev_b32 v13, 4, v0
    v_lshl_add_u32 v12, v13, 5, v12
    v_and_b32 v14, 1, v0
    v_lshl_add_u32 v12, v14, 4, v12
    v_add_u32 v12, s65, v12
    v_bfe_u32 v15, v0, 4, 1
    v_lshlrev_b32 v47, 9, v15
    v_and_b32 v15, 15, v0
    v_lshl_add_u32 v47, v15, 5, v47
    v_lshrrev_b32 v15, 5, v0
    v_lshl_add_u32 v47, v15, 4, v47
    s_lshl_b32 s70, s3, 10
    s_add_u32 s70, s70, s64
    v_add_u32 v47, s70, v47
    """)
    if zero: zero_a()
def zero_a():
    for i in range(12): a(f"v_mov_b32 v{34+i}, 0")
def Dset(i): return 12 + 4 * (i % 3)
def adds(i):
    G, t = i >> 2, i & 3; d = Dset(i)
    a(f"v_add_f32_dpp v32, v{d+1}, v{d} quad_perm:[1,0,3,2] row_mask:{1<<t:#x} bank_mask:0xf")
    a(f"v_add_f32_dpp v33, v{d+2}, v{d+3} quad_perm:[1,0,3,2] row_mask:{1<<t:#x} bank_mask:0xf")
    if t == 3:
        a(f"v_cndmask_b32 v{24+G}, v32, v33, s[24:25]")
        if G == 1: a("v_max_f32 v46, v24, v25")
        elif G % 2 == 1: a(f"v_max3_f32 v46, v46, v{23+G}, v{24+G}")
def kmm(kt, src):
    d = Dset(kt >> 1)
    if kt & 1: a(f"v_mfma_f32_16x16x32_bf16 {R4(d)}, v[8:11], {src}, {R4(d)}")
    else: a(f"v_mfma_f32_16x16x32_bf16 {R4(d)}, v[4:7], {src}, 0")
def softmax():
    for ctl in ("quad_perm:[2,3,0,1]", "row_ror:4", "row_ror:8"):
        a(f"v_max_f32_dpp v46, v46, v46 {ctl} {DPPALL}")
    rows_reduce("v_max_f32", 46, 32)
    a("v_mul_f32 v32, s26, v46")
    for G in range(8): a(f"v_fma_f32 v{24+G}, v{24+G}, s26, -v32")
    for G in range(8): a(f"v_exp_f32 v{24+G}, v{24+G}")
    a("v_pk_add_f32 v[4:5], v[24:25], v[26:27]\nv_pk_add_f32 v[6:7], v[28:29], v[30:31]\nv_pk_add_f32 v[4:5], v[4:5], v[6:7]\nv_add_f32 v20, v4, v5")
    lctl = ["quad_perm:[2,3,0,1]", "row_ror:8", "row_ror:4"]
    for G in range(8):
        t = 21 + (G & 1)
        a(f"v_mov_b32_dpp v{t}, v{24+G} quad_perm:[1,0,3,2] {DPPALL}")
        if G in (1, 3, 5): a(f"v_add_f32_dpp v20, v20, v20 {lctl[G//2]} {DPPALL}")
        a(f"v_cvt_pk_bf16_f32 v{24+G}, v{24+G}, v{t}")
    rows_reduce("v_add_f32", 20, 21)
    a("v_and_b32 v32, 3, v0\nv_mul_u32_u24 v32, 0x5555, v32")
def build(p, par):
    G, pi = p >> 2, p & 3
    bs = 34 + 4 * par
    for k in range(4):
        a(f"v_and_b32_dpp v{bs+k}, v{24+G}, v3 row_newbcast:{4*pi + 2*(k>>1)} row_mask:0xf bank_mask:{0xc if k & 1 else 0x3:#x}")
def vmm(src, par):
    a(f"v_smfmac_f32_16x16x64_bf16 v[42:45], {R4(34+4*par)}, {src}, v32")

a.hist = []
a.label("SUB_QATT")
att_pre()
a(f"""s_lshl_b32 s70, s3, 8
v_lshl_add_u32 v22, v0, 2, s70
s_mul_i32 s70, s4, 9216
s_add_u32 s70, s70, s62
s_add_u32 s71, s70, 4096
s_add_u32 s72, s70, 8192
v_lshrrev_b32 v24, 1, v22
v_add_u32 v24, s65, v24
s_cmp_eq_u32 s69, 0
s_cbranch_scc1 L_qatt_ns
s_sleep {max(1, cfg.s0['D'])}
L_qatt_ns:""")
poll(lambda: qg_issue(13, 70), lambda: check_sentinel(range(13, 22), 23))
qg_sum(13)
a("ds_write_b16 v24, v13\ns_cmp_eq_u32 s63, 2\ns_cselect_b32 s82, 0, s82\ns_mov_b64 vcc, 0\ns_waitcnt lgkmcnt(0)\ns_barrier")
stamp("q2b1", 1)
a.label("SUB_ATT2")
outofline = []
def site(fn):
    Lo = a.newlabel("Lo"); Lb = a.newlabel("Lb")
    a(f"s_cbranch_vccnz {Lo}"); a.label(Lb)
    outofline.append((Lo, Lb, fn))
def lnif():
    L = a.newlabel("Lki")
    a(f"s_cmp_ge_u32 s82, 16\ns_cbranch_scc1 {L}\ns_call_b64 s[80:81], SUB_LN"); a.label(L)
a("ds_read_b128 v[4:7], v12\nds_read_b128 v[8:11], v12 offset:128\ns_waitcnt vmcnt(16) lgkmcnt(0)")
for i in range(32):
    kmm(2*i, khome(2*i)); kmm(2*i+1, khome(2*i+1))
    if i >= 2: adds(i - 2)
    if cfg.ksites and i in (0, 15): site(lnif)
    if i in (3, 7):
        Lo = a.newlabel("Lo"); Lb = a.newlabel("Lb")
        a(f"s_cmp_lt_u32 s82, 2\ns_cbranch_scc1 {Lo}"); a.label(Lb)
        outofline.append((Lo, Lb, lambda: a("s_call_b64 s[80:81], SUB_LN")))
adds(30); adds(31)
if cfg.ksites: site(lnif)
softmax()
a("v_add_u32 v33, s29, v2")
sites = list(range(0, 60, 4)) + [60, 62]
done_sites = []
def arrived(t):
    for i in sites:
        if i > t or i in done_sites: continue
        done_sites.append(i)
        nxt = [x for x in sites if x > i]
        last = (nxt[0] if nxt else 64) - 1
        g = min(7, (i >> 3) + 2)
        def fn(i=i, g=g, last=last):
            if i % 8 == 0 and (i >> 3) + 2 <= 7:
                L = a.newlabel("Lsk")
                a(f"s_cmp_gt_u32 s82, {8+g}\ns_cbranch_scc1 {L}\ns_call_b64 s[80:81], SUB_LN"); a.label(L)
            a(f"s_waitcnt vmcnt({8*g + 7 - last})")
            for gi, code in ((cfg.go, 3), (cfg.go0, 4)):
              if i == gi:
                L = a.newlabel("Lsg")
                a(f"s_cmp_lg_u32 s63, {code}\ns_cbranch_scc1 {L}\ns_mov_b64 exec, 1\nbuffer_atomic_add v3, v2, s[16:19], s60 offen sc1\ns_mov_b64 exec, -1"); a.label(L)
        site(fn)
def lbuf(p): return 48 if p == 12 else (4 if (p >> 1) % 2 == 0 else 12)
nread = [0]; readpos = {}
def fetch(p):
    if p > 12 or p & 1: return
    arrived(2*p + 1)
    b = lbuf(p)
    a(f"ds_read_b128 {R4(b)}, v33 offset:{p*1024}"); nread[0] += 1
    if p < 12: a(f"ds_read_b128 {R4(b+4)}, v33 offset:{p*1024+1024}"); nread[0] += 1
    readpos[p] = nread[0]
fetch(0); fetch(2); build(0, 0)
for p in range(32):
    if p == cfg.j0 // 2: a.label("L_att_resume")
    if p + 1 < 32: build(p + 1, (p + 1) & 1)
    arrived(2*p + 1)
    if p in readpos:
        a(f"s_waitcnt lgkmcnt({nread[0] - readpos[p]})"); src = R8(lbuf(p))
    else: src = R8(vreg(2*p))
    vmm(src, p & 1)
    fetch(p + 4)
    if cfg.vsites and p in (1, 9, 17, 25):
        Lo = a.newlabel("Lo"); Lb = a.newlabel("Lb")
        a(f"s_cmp_lt_u32 s82, 8\ns_cbranch_scc1 {Lo}"); a.label(Lb)
        outofline.append((Lo, Lb, lambda: a("s_call_b64 s[80:81], SUB_LN")))
a.label("L_att_epi")
a(f"""
s_nop 3
v_and_b32 v32, 1, v0
v_lshlrev_b32 v32, 5, v32
s_lshl_b32 s70, s3, 2
s_add_u32 s70, s70, s64
s_add_u32 s70, s70, 4096
v_add_u32 v32, s70, v32
ds_write2_b32 v32, v46, v20 offset0:0 offset1:4
v_add_u32 v32, s64, v2
v_lshrrev_b32 v33, 5, v0
v_lshlrev_b32 v34, 6, v33
v_lshlrev_b32 v33, 5, v33
v_add_u32 v33, s64, v33
ds_write_b128 v47, v[42:45]
s_lshl_b32 s70, s2, 10
s_add_u32 s70, s70, s58
s_lshl_b32 s71, s4, 7
s_add_u32 s71, s71, s59
s_lshl_b32 s72, s6, 2
s_add_u32 s71, s71, s72
s_cmp_lg_u32 s3, 0
s_waitcnt lgkmcnt(0)
s_barrier
s_cbranch_scc1 L_att_ret
ds_read_b128 v[20:23], v33 offset:4096
ds_read_b128 v[24:27], v33 offset:4112
ds_read_b128 v[4:7], v32
ds_read_b128 v[8:11], v32 offset:1024
ds_read_b128 v[12:15], v32 offset:2048
ds_read_b128 v[16:19], v32 offset:3072
s_waitcnt lgkmcnt(4)
v_max3_f32 v28, v20, v21, v22
v_max_f32 v28, v28, v23
v_mul_f32 v28, s26, v28
""")
for w in range(4): a(f"v_fma_f32 v{20+w}, v{20+w}, s26, -v28")
for w in range(4): a(f"v_exp_f32 v{20+w}, v{20+w}")
a("""v_mul_f32 v30, v20, v24
v_fmac_f32 v30, v21, v25
v_fmac_f32 v30, v22, v26
v_fmac_f32 v30, v23, v27
s_waitcnt lgkmcnt(0)
v_pk_mul_f32 v[4:5], v[4:5], v[20:21] op_sel:[0,0] op_sel_hi:[1,0]
v_log_f32 v29, v30
v_rcp_f32 v30, v30
v_pk_mul_f32 v[6:7], v[6:7], v[20:21] op_sel:[0,0] op_sel_hi:[1,0]
v_pk_fma_f32 v[4:5], v[8:9], v[20:21], v[4:5] op_sel:[0,1,0] op_sel_hi:[1,1,1]
v_pk_fma_f32 v[6:7], v[10:11], v[20:21], v[6:7] op_sel:[0,1,0] op_sel_hi:[1,1,1]
v_pk_fma_f32 v[4:5], v[12:13], v[22:23], v[4:5] op_sel:[0,0,0] op_sel_hi:[1,0,1]
v_pk_fma_f32 v[6:7], v[14:15], v[22:23], v[6:7] op_sel:[0,0,0] op_sel_hi:[1,0,1]
v_pk_fma_f32 v[4:5], v[16:17], v[22:23], v[4:5] op_sel:[0,1,0] op_sel_hi:[1,1,1]
v_pk_fma_f32 v[6:7], v[18:19], v[22:23], v[6:7] op_sel:[0,1,0] op_sel_hi:[1,1,1]
v_pk_mul_f32 v[4:5], v[4:5], v[30:31] op_sel:[0,0] op_sel_hi:[1,0]
v_pk_mul_f32 v[6:7], v[6:7], v[30:31] op_sel:[0,0] op_sel_hi:[1,0]
v_add_f32 v29, v29, v28
buffer_store_dwordx4 v[4:7], v2, s[16:19], s70 offen sc1
s_mov_b32 exec_lo, 1
s_mov_b32 exec_hi, 1
buffer_store_dword v29, v34, s[16:19], s71 offen sc1
s_mov_b64 exec, -1
L_att_ret:""")
ret()
a.hist = []
a.label("SUB_ATT")
att_pre()
a("s_branch SUB_ATT2")
for Lo, Lb, fn in outofline:
    a.hist = []
    a.label(Lo); fn(); a(f"s_branch {Lb}")

a.hist = []
a.label("SUB_LN")
if cfg.thr >= 0: a(f"s_cmp_eq_u32 s42, 0\ns_cbranch_scc1 L_ln_nt\ns_waitcnt vmcnt({cfg.thr})\nL_ln_nt:")
for k in range(15): a(f"s_cmp_eq_u32 s82, {k}\ns_cbranch_scc1 L_lnb{k}")
for k in [15] + list(range(15)):
    a.label(f"L_lnb{k}")
    for hlf in range(2):
        if hlf and cfg.thrm >= 0: a(f"s_cmp_eq_u32 s42, 0\ns_cbranch_scc1 L_lnm{k}\ns_waitcnt vmcnt({cfg.thrm})\nL_lnm{k}:")
        if k < 8: load_k(range(8*k+4*hlf, 8*k+4*hlf+4))
        else: load_v(range(8*(k-8)+4*hlf, 8*(k-8)+4*hlf+4))
    a("s_add_u32 s82, s82, 1\ns_setpc_b64 s[80:81]")

a.hist = []
a.label("SUB_LNW")
a(f"""s_mov_b32 s36, 0
L_lnw_i:
s_call_b64 s[80:81], SUB_LN
s_add_u32 s36, s36, 8
L_lnw_c:
s_getreg_b32 s37, hwreg(HW_REG_IB_STS)
s_and_b32 s28, s37, 15
s_lshr_b32 s37, s37, 18
s_and_b32 s37, s37, 0x30
s_or_b32 s37, s37, s28
s_cmp_le_u32 s37, s36
s_cbranch_scc1 L_lnw_r
s_cmp_ge_u32 s82, 16
s_cbranch_scc1 L_lnw_s
s_cmp_lt_u32 s37, 40
s_cbranch_scc1 L_lnw_i
L_lnw_s:
s_sleep 1
s_branch L_lnw_c
L_lnw_r:""")
for n in (8, 16, 24, 32, 40):
    a(f"s_cmp_gt_u32 s36, {n}\ns_cbranch_scc1 L_lnw_r{n}\ns_waitcnt vmcnt({n})\ns_setpc_b64 s[34:35]\nL_lnw_r{n}:")
a("s_waitcnt vmcnt(48)\ns_setpc_b64 s[34:35]")

a.hist = []
a.label("SUB_CH1")
a(f"""
v_lshrrev_b32 v21, 4, v0
v_bfe_u32 v22, v0, 2, 2
v_lshl_add_u32 v23, v21, 3, v22
v_lshlrev_b32 v23, 7, v23
v_bfe_u32 v21, v0, 3, 2
v_xor_b32 v21, s3, v21
v_lshl_add_u32 v23, v21, 5, v23
v_and_b32 v21, 3, v0
v_lshl_add_u32 v23, v21, 3, v23
v_add_u32 v23, {LWO}, v23
""")
for ks in range(7):
    for jh in range(2):
        a(f"ds_read_b64_tr_b16 {R2(24 + 4*ks + 2*jh)}, v23 offset:{(32*ks+4*jh)*128}")
a(f"""
v_lshlrev_b32 v21, 2, v0
s_lshl_b32 s70, s4, 14
s_add_u32 s70, s70, s58
s_lshl_b32 s71, s3, 8
s_add_u32 s70, s70, s71
s_add_u32 s71, s70, 4096
s_add_u32 s72, s70, 8192
s_add_u32 s73, s70, 12288
s_lshl_b32 s74, s4, 7
s_add_u32 s74, s74, s59
s_lshr_b32 s75, s3, 1
s_lshl_b32 s75, s75, 6
s_add_u32 s74, s74, s75
s_lshl_b32 s75, s3, 7
s_add_u32 s75, s75, {LO}
""")
def issA():
    a("v_and_b32 v20, 60, v21\nbuffer_load_dword v20, v20, s[16:19], s74 offen sc1")
    for s in range(16):
        a(f"buffer_load_dword v{4+s}, v21, s[16:19], s{70+(s>>2)} offen offset:{(s&3)*1024} sc1")
TGT = 16 * 0xffff - 1
if cfg.hint >= 0:
    a(f"""s_cmp_lg_u32 s63, 0
    s_cbranch_scc1 L_ch1_sa
    s_lshl_b32 s76, s4, 7
    s_add_u32 s76, s76, s61
    s_add_u32 s76, s76, {0x8008}
    v_mov_b32 v4, 0
    s_mov_b32 s68, 0
    L_ch1_wa:
    buffer_load_dword v5, v4, s[16:19], s76 offen sc1
    s_waitcnt vmcnt(0)
    v_cmp_gt_i32 vcc, {TGT}, v5
    s_cbranch_vccz L_ch1_pa
    s_sleep {cfg.sh}
    s_add_u32 s68, s68, 1
    s_cmp_lt_u32 s68, {cfg.spin}
    s_cbranch_scc1 L_ch1_wa
    s_branch L_ch1_pa
    L_ch1_sa:
    s_sleep {cfg.s0['A']}
    L_ch1_pa:""")
    poll(issA, lambda: check_sentinel(range(4, 21), 22), s0=cfg.sA2)
else:
    poll(issA, lambda: check_sentinel(range(4, 21), 22), s0=cfg.s0["A"], s0w=cfg.s0["X"])
stamp("c.A", 1); stamp("f.A", 2)
a(f"v_max_f32_dpp v22, v20, v20 {CTL4[0]} {DPPALL}")
for c in CTL4[1:]: a(f"v_max_f32_dpp v22, v22, v22 {c} {DPPALL}")
a("v_sub_f32 v20, v20, v22\nv_exp_f32 v20, v20")
a(f"v_mul_f32_dpp v21, v20, v4 row_newbcast:0 {DPPALL}\nv_add_f32_dpp v22, v20, v20 {CTL4[0]} {DPPALL}")
for s in range(1, 16):
    a(f"v_fmac_f32_dpp v21, v20, v{4+s} row_newbcast:{s} {DPPALL}")
    if s in (2, 4, 6): a(f"v_add_f32_dpp v22, v22, v22 {CTL4[s//2]} {DPPALL}")
    if s == 4: a(f"ds_read_b64_tr_b16 v[4:5], v23 offset:{(32*7)*128}\nds_read_b64_tr_b16 v[6:7], v23 offset:{(32*7+4)*128}")
    if s == 8: a("v_rcp_f32 v22, v22")
    if s == 9: a("v_lshl_add_u32 v23, v0, 1, s75")
a(f"""
v_mul_f32 v21, v21, v22
v_cvt_pk_bf16_f32 v21, v21, v21
ds_write_b16 v23, v21
v_and_b32 v0, 48, v0
v_add_u32 v0, {LO}, v0
s_lshl_b32 s70, s7, 8
s_add_u32 s70, s70, s60
s_lshl_b32 s71, s3, 6
s_add_u32 s74, s70, s71
s_mul_i32 s70, s3, 9216
s_add_u32 s70, s70, s60
s_add_u32 s71, s70, 2304
s_add_u32 s72, s70, 4608
s_add_u32 s73, s70, 6912
s_waitcnt lgkmcnt(0)
s_barrier
""")
order = [7, 0, 1, 2, 3, 4, 5, 6]
def frag(ks): return "v[4:7]" if ks == 7 else R4(24 + 4*ks)
bufs = ["v[8:11]", "v[12:15]", "v[16:19]"]
for n in range(3): a(f"ds_read_b128 {bufs[n]}, v0 offset:{order[n]*64}")
for n, ks in enumerate(order):
    a(f"s_waitcnt lgkmcnt({len(bufs) - 1 - n})")
    a(f"v_mfma_f32_16x16x32_bf16 v[20:23], {bufs[n]}, {frag(ks)}, {'0' if n == 0 else 'v[20:23]'}")
    for fr in (frag(ks), bufs[n]):
        if len(bufs) < 8:
            a(f"ds_read_b128 {fr}, v0 offset:{order[len(bufs)]*64}"); bufs.append(fr)
a(f"""
v_lshrrev_b32 v0, 4, v2
v_lshlrev_b32 v49, 2, v0
s_mul_i32 s75, s3, 2304
s_add_u32 s75, s75, {LX}
v_add_u32 v51, s75, v2
s_mov_b64 exec, 0xffff
buffer_store_dword v20, v49, s[16:19], s74 offen sc1
s_mov_b64 exec, -1
""")
a("s_cmp_eq_u32 s63, 2\ns_cbranch_scc1 L_ch1_ret")
a.label("L_ch1_b")
ln(False)
def issB():
    for r in range(4):
        a(f"buffer_load_dwordx4 {R4(4+8*r)}, v2, s[16:19], s{70+r} offen sc1")
        a(f"buffer_load_dwordx4 {R4(8+8*r)}, v2, s[16:19], s{70+r} offen offset:1024 sc1")
        a(f"buffer_load_dword v{36+r}, v49, s[16:19], s{70+r} offen offset:2048 sc1")
def chkB():
    for i in range(4): a(f"v_pk_add_f32 {R2(40+2*i)}, {R2(4+2*i)}, {R2(12+2*i)}")
    a("v_add_f32 v48, v36, v37")
    for r in (2, 3):
        for i in range(4): a(f"v_pk_add_f32 {R2(40+2*i)}, {R2(40+2*i)}, {R2(4+8*r+2*i)}")
        a(f"v_add_f32 v48, v48, v{36+r}")
    a("v_add_u32 v50, s75, v49\nds_write_b128 v51, v[40:43]\nds_write_b128 v51, v[44:47] offset:1024\nds_write_b32 v50, v48 offset:2048")
    check_sentinel(range(4, 40), 50)
if cfg.hint >= 0:
    a(f"""s_cmp_lg_u32 s63, 0
    s_cbranch_scc1 L_ch1_sb
    s_add_u32 s76, s61, {0x8008}
    v_and_b32 v4, 15, v0
    v_lshlrev_b32 v4, 7, v4
    buffer_load_dword v5, v4, s[16:19], s76 offen sc1
    s_waitcnt vmcnt(0)
    v_cmp_gt_i32 vcc, {TGT}, v5
    s_cbranch_vccz L_ch1_pb
    s_mov_b32 s68, 0
    L_ch1_wb:
    s_sleep {cfg.sh}
    buffer_load_dword v5, v4, s[16:19], s76 offen sc1
    s_waitcnt vmcnt(0)
    v_cmp_gt_i32 vcc, {TGT}, v5
    s_cbranch_vccz L_ch1_wb2
    s_add_u32 s68, s68, 1
    s_cmp_lt_u32 s68, {cfg.spin}
    s_cbranch_scc1 L_ch1_wb
    L_ch1_wb2:
    s_sleep {cfg.sB2}
    s_branch L_ch1_pb
    L_ch1_sb:
    s_sleep {cfg.s0['B']}
    L_ch1_pb:""")
    poll(issB, chkB)
else:
    poll(issB, chkB, s0=cfg.s0["B"])
stamp("c.B", 1); stamp("f.B", 2)
a(f"""
v_add_u32 v14, s64, v2
v_add_u32 v15, s64, v49
ds_read_b128 v[4:7], v14
ds_read_b128 v[8:11], v14 offset:1024
ds_read_b32 v12, v15 offset:2048
v_add_u32 v14, {LX}, v2
v_add_u32 v15, {LX+2048}, v49
s_waitcnt lgkmcnt(3)
s_barrier
""")
for r in range(4):
    a(f"ds_read_b128 {R4(16+8*r)}, v14 offset:{r*2304}\nds_read_b128 {R4(20+8*r)}, v14 offset:{r*2304+1024}")
    if r == 0: a("ds_read2st64_b32 v[48:49], v15 offset0:0 offset1:9\nds_read2st64_b32 v[50:51], v15 offset0:18 offset1:27")
a(f"""
v_lshlrev_b32 v13, 3, v0
v_add_u32 v13, {LLN}, v13
v_lshlrev_b32 v14, 1, v0
v_add_u32 v14, {LLN+1024}, v14
v_and_b32 v15, 3, v0
s_lshl_b32 s70, s7, 3
s_add_u32 s70, s70, {LLN}
v_lshl_add_u32 v15, v15, 1, s70
s_lshl_b32 s70, s3, 8
s_add_u32 s70, s70, s56
""")
for r in range(4):
    a(f"s_waitcnt lgkmcnt({6 - 2*r})")
    for i in range(4): a(f"v_pk_add_f32 {R2(4+2*i)}, {R2(4+2*i)}, {R2(16+8*r+2*i)}")
    a(f"v_add_f32 v12, v12, v{48+r}")
a("""v_cvt_pk_bf16_f32 v16, v4, v5
v_cvt_pk_bf16_f32 v17, v6, v7
v_cvt_pk_bf16_f32 v18, v8, v9
v_cvt_pk_bf16_f32 v19, v10, v11
v_cvt_pk_bf16_f32 v20, v12, 0
ds_write_b64 v13, v[16:17]
ds_write_b64 v13, v[18:19] offset:512
ds_write_b16 v14, v20
ds_read_u16 v27, v15
v_lshl_add_u32 v26, v0, 2, s70""")
fill = [f"ds_read2st64_b32 {R2(28+2*i)}, v26 offset0:{4*i} offset1:{36+4*i}" for i in range(8)]
fill += [f"ds_read2st64_b32 {R2(44+2*i)}, v26 offset0:{72+8*i} offset1:{76+8*i}" for i in range(4)]
fill = [fill[0], fill[8]] + fill[1:8] + fill[9:]
stats([16, 17, 18, 19, 20], 4, 5, fill)
ln_scalars(4, 5, 6, 7, 8)
a("s_waitcnt lgkmcnt(12)\nv_lshlrev_b32 v27, 16, v27\nv_sub_f32 v9, v27, v6\nv_sub_f32 v4, v4, v6\nv_mul_f32 v5, v5, v7\nv_mul_f32 v4, v4, v7\nv_mul_f32 v5, v5, v7")
rbf(9, 10); a("v_mul_f32 v9, v9, v7"); rbf(9, 10)
ln_scalars(4, 5, 6, 7, 8)
a("v_sub_f32 v9, v9, v6"); rbf(9, 10); a("v_mul_f32 v9, v9, v7"); rbf(9, 10)
a("v_mov_b32 v25, v26")
for e in range(4): a(f"v_readlane_b32 s{70+2*e}, v9, {60+e}")
ln(False)
a(f"v_mov_b32 v26, {f32(C1)}\ns_mov_b32 s66, {f32(C2)}\ns_waitcnt lgkmcnt(0)")
for i in range(9):
    w1, b1, w2 = (28+2*i, 29+2*i, 44+i) if i < 8 else (28, 29, 44)
    if i == 8: a("s_waitcnt lgkmcnt(0)")
    for j, r in enumerate((w1, b1, w2)):
        a(f"v_lshlrev_b32 v{12+2*j}, 16, v{r}\nv_and_b32 v{13+2*j}, 0xffff0000, v{r}")
    if i == 0: a("ds_read2st64_b32 v[28:29], v25 offset0:32 offset1:68\nds_read_b32 v44, v25 offset:26624")
    for e0 in (0, 2):
        U = (18, 22); T = (20, 24); E = (e0, e0 + 1)
        for k in range(2): a(f"v_pk_fma_f32 {R2(U[k])}, v[12:13], s[{70+2*E[k]}:{71+2*E[k]}], v[14:15] op_sel_hi:[1,0,1]")
        for k in range(2): a(f"v_pk_mul_f32 {R2(T[k])}, {R2(U[k])}, {R2(U[k])}")
        for k in range(2): a(f"v_pk_fma_f32 {R2(T[k])}, {R2(T[k])}, s[66:67], v[26:27] op_sel_hi:[1,0,0]")
        for k in range(2): a(f"v_pk_mul_f32 {R2(T[k])}, {R2(U[k])}, {R2(T[k])}")
        for k in range(2): a(f"v_exp_f32 v{T[k]}, v{T[k]}\nv_exp_f32 v{T[k]+1}, v{T[k]+1}")
        for k in range(2): a(f"v_pk_mul_f32 {R2(U[k])}, {R2(U[k])}, v[16:17]")
        for k in range(2): a(f"v_pk_add_f32 {R2(T[k])}, {R2(T[k])}, 1.0 op_sel_hi:[1,0]")
        for k in range(2): a(f"v_rcp_f32 v{T[k]}, v{T[k]}\nv_rcp_f32 v{T[k]+1}, v{T[k]+1}")
        for k in range(2):
            acc = R2(4 + 2*E[k])
            a(f"v_pk_mul_f32 {acc}, {R2(U[k])}, {R2(T[k])}" if i == 0 else f"v_pk_fma_f32 {acc}, {R2(U[k])}, {R2(T[k])}, {acc}")
stamp("c.mix", 1)
for e in range(4): a(f"v_add_f32 v{4+2*e}, v{4+2*e}, v{5+2*e}")
a(f"""v_lshrrev_b32 v12, 4, v0
v_lshlrev_b32 v12, 2, v12
s_lshl_b32 s66, s3, 4
s_add_u32 s66, s66, {LRED}
v_add_u32 v12, s66, v12""")
row16_reduce("v_add_f32", [4, 6, 8, 10])
a(f"""
ds_write2_b32 v12, v4, v6 offset0:0 offset1:16
ds_write2_b32 v12, v8, v10 offset0:32 offset1:48
v_and_b32 v13, 3, v0
v_lshlrev_b32 v12, 6, v13
v_add_u32 v12, {LRED}, v12
s_mov_b32 s20, s52
s_mov_b32 s21, s53
s_mov_b32 s22, 2304
s_lshl_b32 s66, s7, 4
s_lshr_b32 s66, s66, s63
s_add_u32 s66, s66, s61
v_lshlrev_b32 v13, 2, v13
v_lshrrev_b32 v13, s63, v13
s_cmp_lg_u32 s3, 0
s_waitcnt lgkmcnt(0)
s_barrier
s_cbranch_scc1 L_ch1_ret
ds_read_b128 v[16:19], v12
ds_read_b128 v[20:23], v12 offset:16
ds_read_b128 v[28:31], v12 offset:32
ds_read_b128 v[32:35], v12 offset:48
s_cmp_eq_u32 s63, 1
s_mov_b64 exec, 15
s_waitcnt lgkmcnt(2)
v_pk_add_f32 v[16:17], v[16:17], v[18:19]
v_pk_add_f32 v[20:21], v[20:21], v[22:23]
s_waitcnt lgkmcnt(0)
v_pk_add_f32 v[28:29], v[28:29], v[30:31]
v_pk_add_f32 v[32:33], v[32:33], v[34:35]
v_pk_add_f32 v[16:17], v[16:17], v[20:21]
v_pk_add_f32 v[28:29], v[28:29], v[32:33]
v_pk_add_f32 v[16:17], v[16:17], v[28:29]
v_add_f32 v16, v16, v17
""")
rbf(16, 17); a("v_add_f32 v16, s78, v16"); rbf(16, 17); a("v_add_f32 v16, v16, v27"); rbf(16, 17)
a(f"""
s_cbranch_scc1 L_ch1_fin
buffer_store_dword v16, v13, s[16:19], s66 offen sc1
s_branch L_ch1_done
L_ch1_fin:
buffer_store_short v17, v13, s[20:23], s66 offen
L_ch1_done:
s_mov_b64 exec, -1
L_ch1_ret:
""")
ret()

a.hist = []
a.label("SUB_CH1B")
a(f"""s_mul_i32 s70, s3, 9216
s_add_u32 s70, s70, s60
s_add_u32 s71, s70, 2304
s_add_u32 s72, s70, 4608
s_add_u32 s73, s70, 6912
v_lshlrev_b32 v49, 2, v0
s_mul_i32 s75, s3, 2304
s_add_u32 s75, s75, {LX}
v_add_u32 v51, s75, v2
s_barrier
s_branch L_ch1_b""")

a.hist = []
a.label("SUB_CH2")
a(f"""
v_lshrrev_b32 v13, 4, v0
v_bfe_u32 v14, v0, 2, 2
v_lshl_add_u32 v15, v13, 3, v14
v_lshlrev_b32 v15, 9, v15
v_bfe_u32 v13, v0, 2, 3
s_lshl_b32 s70, s3, 2
v_xor_b32 v13, s70, v13
v_lshl_add_u32 v15, v13, 5, v15
v_and_b32 v13, 3, v0
v_lshl_add_u32 v15, v13, 3, v15
v_add_u32 v15, {LWQ}, v15
v_xor_b32 v16, 32, v15
v_xor_b32 v17, 64, v15
v_xor_b32 v18, 96, v15
""")
for cbk in range(4):
    for ks in range(2):
        for jh in range(2):
            a(f"ds_read_b64_tr_b16 {R2(20 + 8*cbk + 4*ks + 2*jh)}, v{15+cbk} offset:{(32*ks+4*jh)*512}")
a(f"""
v_lshlrev_b32 v19, 2, v0
v_add_u32 v15, s64, v2
v_add_u32 v16, s64, v19
s_lshl_b32 s72, s5, 8
s_lshl_b32 s74, s7, 10
s_add_u32 s74, s74, s62
s_lshl_b32 s71, s3, 8
s_add_u32 s74, s74, s71
s_cmp_eq_u32 s63, 1
s_cbranch_scc0 L_ch2_g
v_add_u32 v17, s72, v16
ds_read_b128 v[4:7], v15
ds_read_b128 v[8:11], v15 offset:1024
ds_read_b32 v12, v16 offset:2048
ds_read_b32 v13, v17
s_waitcnt lgkmcnt(0)
s_branch L_ch2_x
L_ch2_g:
s_add_u32 s72, s72, s61
s_lshl_b32 s73, s4, 7
s_add_u32 s73, s73, s61
s_add_u32 s73, s73, 0x8000
""")
def issC():
    a("""buffer_load_dwordx4 v[4:7], v2, s[16:19], s61 offen sc1
    buffer_load_dwordx4 v[8:11], v2, s[16:19], s61 offen offset:1024 sc1
    buffer_load_dword v12, v19, s[16:19], s61 offen offset:2048 sc1
    buffer_load_dword v13, v19, s[16:19], s72 offen sc1""")
poll(issC, lambda: check_sentinel(range(4, 14), 14), s0=cfg.s0["C"], s0w=cfg.s0["Y"])
a("""s_or_b32 s70, s5, s3
s_cbranch_scc1 L_ch2_nh
s_mov_b64 exec, 1
buffer_store_dword v19, v19, s[16:19], s73 offen sc1
s_mov_b64 exec, -1
L_ch2_nh:
ds_write_b128 v15, v[4:7]
ds_write_b128 v15, v[8:11] offset:1024
ds_write_b32 v16, v12 offset:2048
L_ch2_x:
v_cvt_pk_bf16_f32 v14, v4, v5
v_cvt_pk_bf16_f32 v15, v6, v7
v_cvt_pk_bf16_f32 v16, v8, v9
v_cvt_pk_bf16_f32 v17, v10, v11
v_cvt_pk_bf16_f32 v18, v12, 0""")
stats([14, 15, 16, 17, 18], 4, 5, ["v_lshlrev_b32 v9, 1, v0", f"v_add_u32 v9, {LRED}, v9", "v_and_b32 v12, 48, v0", f"v_add_u32 v12, {LRED}, v12"])
ln_scalars(4, 5, 6, 7, 8)
a("v_readlane_b32 s70, v6, 63\nv_readlane_b32 s71, v7, 63\nv_subrev_f32 v13, s70, v13")
rbf(13, 8)
a("""v_mul_f32 v13, s71, v13
v_cvt_pk_bf16_f32 v13, v13, v13
ds_write_b16 v9, v13
ds_read_b128 v[4:7], v12
ds_read_b128 v[8:11], v12 offset:64
s_waitcnt lgkmcnt(0)""")
accs = [12, 20, 28, 36]
for cbk in range(4):
    d = accs[cbk]; f = 20 + 8 * cbk
    a(f"v_mfma_f32_16x16x32_bf16 {R4(d)}, v[4:7], {R4(f)}, 0")
    a(f"v_mfma_f32_16x16x32_bf16 {R4(d)}, v[8:11], {R4(f+4)}, {R4(d)}")
for cbk in range(1, 4):
    a(f"v_mov_b32_dpp v12, v{accs[cbk]} quad_perm:[0,1,2,3] row_mask:{1<<cbk:#x} bank_mask:0xf")
a("buffer_store_dword v12, v19, s[16:19], s74 offen sc1")
stamp("c.wq", 1)
ret()

if cfg.roles:
    a.hist = []
    a.label("SUB_RING")
    keep = LDS_T + [25]
    vts = [t for t in range(cfg.j0) if t not in keep] + keep
    NT = 64 + len(vts)
    slot = lambda n: (n - (NT - len(keep))) % NS
    lastso = [None]
    def rload(n):
        if n >= NT: return
        if n < 64:
            so, imm, va, srd = ("k", (n >> 3) * 8192), ((n >> 1) & 3) * 512 + (n & 1) * 128, "v1", "s[8:11]"
        else:
            vt = vts[n - 64]
            so, imm, va, srd = ("v", (vt >> 2) * 4096), (vt & 3) * 1024, "v2", "s[12:15]"
        if so != lastso[0]:
            a(f"s_add_u32 s28, s27, {so[1]}"); lastso[0] = so
        a(f"s_add_u32 m0, s57, {slot(n)*1024 - imm}")
        a(f"buffer_load_dwordx4 {va}, {srd}, s28 offen offset:{imm}{'' if n < cfg.l2n else ' nt'} lds")
    for n in range(16): rload(n)
    att_pre(zero=False)
    a("ds_read_b128 v[4:7], v12\nds_read_b128 v[8:11], v12 offset:128\nv_add_u32 v48, s57, v2")
    KT = [34, 38, 42]
    for n in range(66):
        if n < 64:
            rload(n + 16)
            a(f"s_waitcnt vmcnt(16)\nds_read_b128 {R4(KT[n%3])}, v48 offset:{slot(n)*1024}")
        if n >= 2:
            kt = n - 2
            a(f"s_waitcnt lgkmcnt({min(63, n) - kt})")
            kmm(kt, R4(KT[kt % 3]))
            if kt & 1 and (kt >> 1) >= 2: adds((kt >> 1) - 2)
    adds(30); adds(31)
    softmax()
    zero_a()
    a("v_add_u32 v33, s57, v2")
    NP = len(vts) // 2
    def rfetch(m):
        if m >= NP: return
        for h in range(2):
            n = 64 + 2*m + h
            rload(n + 16)
            a(f"s_waitcnt vmcnt({min(16, NT - 1 - n)})\nds_read_b128 {R4(4 + 8*(m&1) + 4*h)}, v33 offset:{slot(n)*1024}")
    rfetch(0)
    for m in range(NP):
        build(vts[2*m] >> 1, m & 1)
        rfetch(m + 1)
        a(f"s_waitcnt lgkmcnt({2 if m + 1 < NP else 0})")
        vmm(R8(4 + 8*(m&1)), m & 1)
    if cfg.j0 == 64:
        a("s_branch L_att_epi")
    else:
        a(f"""v_mov_b32 v47, v20
        ds_write_b128 v33, v[24:27] offset:{14*1024}
        ds_write_b128 v33, v[28:31] offset:{15*1024}
        ds_write_b64 v33, v[46:47] offset:{17*1024}
        ds_write_b128 v33, v[42:45] offset:{16*1024}
        s_waitcnt lgkmcnt(0)""")
        ret()
        a.hist = []
        a.label("SUB_RESUME")
        a(f"s_mov_b32 s82, {8 + cfg.j0//8}\ns_call_b64 s[80:81], SUB_LN\ns_call_b64 s[80:81], SUB_LN")
        att_pre()
        a(f"""v_add_u32 v33, s57, v2
        ds_read_b128 v[24:27], v33 offset:{14*1024}
        ds_read_b128 v[28:31], v33 offset:{15*1024}
        ds_read_b128 v[42:45], v33 offset:{16*1024}
        ds_read_b64 v[22:23], v33 offset:{17*1024}
        v_and_b32 v32, 3, v0
        v_mul_u32_u24 v32, 0x5555, v32
        s_mov_b64 vcc, -1
        s_waitcnt lgkmcnt(0)
        v_mov_b32 v46, v22
        v_mov_b32 v20, v23""")
        build(cfg.j0 // 2, (cfg.j0 // 2) & 1)
        a.flush()
        a("s_branch L_att_resume")

for Lo, Lb, wait, depth in tramps:
    a.hist = []
    a.label(Lo)
    if wait and cfg.adapt:
        a(f"s_call_b64 s[34:35], SUB_LNW\ns_branch {Lb}")
        continue
    for d in range(1, depth + 1):
        a("s_call_b64 s[80:81], SUB_LN")
        L2 = a.newlabel("Lt2")
        if d < depth: a(f"s_cmp_lt_u32 s82, 16\ns_cbranch_scc1 {L2}")
        if wait: a(f"s_waitcnt vmcnt({8*d})")
        a(f"s_branch {Lb}")
        if d < depth: a.label(L2)
for Rr, L, D, sl in retries:
    a.hist = []
    a.label(Rr)
    a(f"s_sleep {sl}\ns_add_u32 s68, s68, 1\ns_cmp_lt_u32 s68, {cfg.spin}\ns_cbranch_scc1 {L}\ns_branch {D}")
if cfg.stamps:
    n = len(stamp_names)
    a.hist = []
    a.label("L_stamps")
    if cfg.dbg:
        sel = ["start", "start", "q1", "P1b0", "wq0", "s.ring", "P2b0", "s.P1b1", "s.fin0", "P1b1", "c.B", "c.wq", "s.rel", "s.end", "f.B", "end"]
        a("v_mov_b32 v6, 0")
        a(f"s_not_b32 s70, s{POOL[0]}\nv_writelane_b32 v6, s70, 0")
        for i, nm in enumerate(sel):
            if i and nm in stamp_names: a(f"v_writelane_b32 v6, s{POOL[stamp_names.index(nm)]}, {i}")
        a("v_lshrrev_b32 v4, 2, v2\ns_mov_b64 exec, 0xffff\nglobal_atomic_umax v4, v6, s[54:55] sc1\ns_branch L_fin")
    a(f"""s_lshl_b32 s70, s2, 2
    s_add_u32 s70, s70, s3
    s_mul_i32 s70, s70, {8*n}
    s_add_u32 s70, s70, {STAMP}
    v_mov_b32 v4, 0
    v_mov_b32 v7, 0
    s_mov_b64 exec, 1""")
    if cfg.hwid:
        a(f"s_getreg_b32 s71, hwreg(HW_REG_HW_ID)\ns_getreg_b32 s72, hwreg(HW_REG_XCC_ID)\ns_and_b32 s71, s71, 0xffff\ns_and_b32 s72, s72, 15\ns_lshl_b32 s72, s72, 16\ns_or_b32 s71, s71, s72\ns_add_u32 s{POOL[1]}, s{POOL[0]}, s71")
    for i in range(n):
        a(f"v_mov_b32 v6, s{POOL[i]}\nbuffer_store_dwordx2 v[6:7], v4, s[16:19], s70 offen offset:{8*i}\ns_nop 1")
    a("s_branch L_fin")
    open(sys.argv[1] + ".names", "w").write(" ".join(stamp_names))
    print("nstamps", n, file=sys.stderr)
a.label("L_code_end")
hdr = open("cdna_kernels/" + NAME + ".s.ref").read().split("; Override launch")[0]
out = hdr + f"; @launch grid=(256,1,1) block=(256,1,1) lds={LDS_TOTAL}\n"
out += f""".amdgcn_target "amdgcn-amd-amdhsa--gfx950"
.text
.globl {NAME}_kernel
.p2align 8
.type {NAME}_kernel,@function
{NAME}_kernel:
""" + a.text() + f""".section .rodata,"a"
.p2align 6
.amdhsa_kernel {NAME}_kernel
  .amdhsa_next_free_vgpr 512
  .amdhsa_next_free_sgpr 102
  .amdhsa_accum_offset 256
  .amdhsa_group_segment_fixed_size 0
  .amdhsa_kernarg_size 104
  .amdhsa_user_sgpr_count 2
  .amdhsa_user_sgpr_kernarg_segment_ptr 1
  .amdhsa_system_sgpr_workgroup_id_x 1
.end_amdhsa_kernel
"""
open(sys.argv[1], "w").write(out)
print("nops added", a.nops_added, "lines", len(a.lines), file=sys.stderr)
```

```python
import sys, struct, math
sys.path.insert(0, "gen")
from asmlib import *

NAME = "interleave_layers__gqa_block_cached__mixer_token_mlp__decode"
def f32(x): return "0x%08x" % struct.unpack("<I", struct.pack("<f", x))[0]

class Cfg:
    stamps = 0
    spin = 20000
    s0 = dict(A=18, B=17, C=18, D=8, X=18, Y=18)
    s1 = 2
    sh = 2
    sg = 8
    go = 24
    roles = 1
    latew = 0
    vsites = 1
    l2n = 128
    dbg = 0
    n0 = 16
    n1 = 5
    thr = 3
    hint = -1
    pfc = 0
    pfi = 3
    cpf = 1
    hwid = 0
    late2 = 1
    adapt = 1
    warm = 0
    relfirst = 0
    ksites = 1
    pf0 = 8
    nogo = 1
    xthr = 0
    thrm = 4
    sA2 = 0
    sB2 = 32
    aw = 0
    d0 = 2
    thrall = 0
    thr3 = 0
    go0 = -1
    j0 = 48
    fa = 3
    dw = 2
    pre = 8
    d1 = 3
    d2 = 1
    d3 = 4
    d4 = 3
cfg = Cfg()
for arg in sys.argv[2:]:
    k, v = arg.split("=")
    if k.startswith("s0"): cfg.s0[k[2]] = int(v)
    else: setattr(cfg, k, int(v))

W = 52; NL = 13; NS = 20
LV = 0; LWO = 53248; LWQ = 86016; LMX = 118784; LXB = 146432; LX = 151040; LQ = 160256; LLN = 162304; LRED = 163456
LO = LX + 8448
LDS_TOTAL = 163840
A_O = lambda i: i * 0x40000
A_L = lambda i: 0x100000 + i * 0x1000
B_A = lambda i: 0x110000 + i * 0x10000
C_A = lambda i: 0x150000 + i * 0x1000
H_A = lambda i: 0x158000 + i * 0x1000
D_A = lambda i: 0x160000 + i * 0x40000
STAMP = 0x10000000
CSM = math.log2(math.e) / math.sqrt(128.0)
C1 = -2.0 * math.sqrt(2.0 / math.pi) * math.log2(math.e)
C2 = C1 * 0.044715
DPPALL = "row_mask:0xf bank_mask:0xf"
CTL4 = ["quad_perm:[1,0,3,2]", "quad_perm:[2,3,0,1]", "row_half_mirror", "row_mirror"]

a = Asm()
POOL = list(range(83, 100)) + [32, 33, 38, 39, 43, 50, 51]
stamp_names = []
def stamp(name, cond=None):
    if not cfg.stamps: return
    if name in stamp_names: r = POOL[stamp_names.index(name)]
    else:
        r = POOL[len(stamp_names)]; stamp_names.append(name)
    a("s_memrealtime s[100:101]\ns_waitcnt lgkmcnt(0)")
    if cond is None: a(f"s_mov_b32 s{r}, s100")
    else: a(f"s_cmp_eq_u32 s79, {cond}\ns_cselect_b32 s{r}, s100, s{r}")

def khome(kt): return f"a[{4*kt}:{4*kt+3}]"
LDS_T = [0, 1, 4, 5, 8, 9, 12, 13, 16, 17, 20, 21, 24]
REG_T = [25] + [t for t in range(64) if t not in LDS_T and t != 25]
def vreg(vt): return W + 4 * REG_T.index(vt)
def vhome(vt):
    r = vreg(vt); return f"v[{r}:{r+3}]"
def R8(r): return f"v[{r}:{r+7}]"
def R4(r): return f"v[{r}:{r+3}]"
def R2(r): return f"v[{r}:{r+1}]"

def load_k(kts):
    lastG = None
    for kt in kts:
        G, t, half = kt >> 3, (kt >> 1) & 3, kt & 1
        if G != lastG:
            a(f"s_add_u32 s28, s27, {G*8192}"); lastG = G
        a(f"buffer_load_dwordx4 {khome(kt)}, v1, s[8:11], s28 offen offset:{t*512+half*128} nt")
def load_v(vts):
    lastQ = None
    for vt in vts:
        Q = vt >> 2
        if Q != lastQ:
            a(f"s_add_u32 s28, s27, {Q*4096}")
            if vt in LDS_T: a(f"s_add_u32 m0, s29, {LDS_T.index(vt)*1024 - (vt&3)*1024}")
            lastQ = Q
        if vt in LDS_T:
            a(f"buffer_load_dwordx4 v2, s[12:15], s28 offen offset:{(vt&3)*1024} nt lds")
        else:
            a(f"buffer_load_dwordx4 {vhome(vt)}, v2, s[12:15], s28 offen offset:{(vt&3)*1024} nt")

def rbf(v, t):
    a(f"v_cvt_pk_bf16_f32 v{t}, v{v}, v{v}\nv_lshlrev_b32 v{v}, 16, v{t}")
def rows_reduce(op, v, t):
    a(f"v_mov_b32 v{t}, v{v}\nv_permlane16_swap_b32 v{v}, v{t}\n{op} v{v}, v{v}, v{t}")
    a(f"v_mov_b32 v{t}, v{v}\nv_permlane32_swap_b32 v{v}, v{t}\n{op} v{v}, v{v}, v{t}")
def row16_reduce(op, vs):
    for ctl in CTL4:
        for v in vs: a(f"{op}_dpp v{v}, v{v}, v{v} {ctl} {DPPALL}")
def sum_to_row3(vs, fillers=()):
    fillers = list(fillers)
    steps = [f"{c} {DPPALL}" for c in CTL4] + ["row_bcast:15 row_mask:0xa bank_mask:0xf", "row_bcast:31 row_mask:0xc bank_mask:0xf"]
    per = (len(fillers) + 5) // 6
    for st in steps:
        for _ in range(per):
            if fillers: a(fillers.pop(0))
        for v in vs: a(f"v_add_f32_dpp v{v}, v{v}, v{v} {st}")
def stats(P, s1, s2, fillers=()):
    for i, p in enumerate(P):
        a(f"v_dot2_f32_bf16 v{s1}, v{p}, s67, {'0' if i == 0 else 'v%d' % s1}")
        a(f"v_dot2_f32_bf16 v{s2}, v{p}, v{p}, {'0' if i == 0 else 'v%d' % s2}")
    sum_to_row3([s1, s2], fillers)
    a(f"v_mul_f32 v{s1}, {f32(1.0/576)}, v{s1}\nv_mul_f32 v{s2}, {f32(1.0/576)}, v{s2}\nv_fma_f32 v{s2}, -v{s1}, v{s1}, v{s2}\nv_max_f32 v{s2}, 0, v{s2}")
def ln_scalars(m, q, mb, r, t):
    a(f"v_cvt_pk_bf16_f32 v{t}, v{m}, v{q}\nv_and_b32 v{r}, 0xffff0000, v{t}\nv_lshlrev_b32 v{mb}, 16, v{t}\nv_add_f32 v{r}, {f32(1e-5)}, v{r}")
    rbf(r, t); a(f"v_sqrt_f32 v{r}, v{r}"); rbf(r, t); a(f"v_rcp_f32 v{r}, v{r}")

def check_sentinel(regs, t):
    regs = list(regs)
    if len(regs) % 2 == 0:
        a(f"v_max_u32 v{t}, v{regs[0]}, v{regs[1]}"); regs = regs[2:]
    else:
        a(f"v_max3_u32 v{t}, v{regs[0]}, v{regs[1]}, v{regs[2]}"); regs = regs[3:]
    for i in range(0, len(regs), 2):
        a(f"v_max3_u32 v{t}, v{t}, v{regs[i]}, v{regs[i+1]}")
    a(f"v_cmp_eq_u32 vcc, -1, v{t}")

tramps = []
def ln(wait, depth=None):
    Lo = a.newlabel("Lt"); Lb = a.newlabel("Ltb")
    a(f"s_cmp_lt_u32 s82, 16\ns_cbranch_scc1 {Lo}")
    if wait: a("s_waitcnt vmcnt(0)")
    a.label(Lb)
    tramps.append((Lo, Lb, wait, depth or (cfg.dw if wait else 1)))
retries = []
def poll(issue, check, s0=0, depth=None, s0w=None):
    L = a.newlabel("Lpoll"); D = a.newlabel("Lpd"); Rr = a.newlabel("Lpr")
    a("s_mov_b32 s68, 0")
    if s0 and s0w is not None and s0w < s0:
        Ls = a.newlabel("Lsl")
        a(f"s_cmp_eq_u32 s3, 0\ns_cbranch_scc1 {Ls}\ns_sleep {s0 - s0w}"); a.label(Ls)
        if s0w: a(f"s_sleep {s0w}")
    elif s0: a(f"s_sleep {s0}")
    a.label(L)
    issue(); ln(True, depth)
    check()
    a(f"s_cbranch_vccnz {Rr}")
    a.label(D)
    retries.append((Rr, L, D, cfg.s1))
def ln_until(n):
    L = a.newlabel("Lrest"); D = a.newlabel("Lrd")
    a.label(L); a(f"s_cmp_ge_u32 s82, {n}\ns_cbranch_scc1 {D}\ns_call_b64 s[80:81], SUB_LN\ns_branch {L}"); a.label(D)
def call(lbl):
    a.flush(); a(f"s_call_b64 s[30:31], {lbl}")
def ret():
    a.flush(); a("s_setpc_b64 s[30:31]")
def flagwait(inst, sl, off=0, count=0):
    a(f"s_lshl_b32 s70, s4, 7\ns_add_u32 s70, s70, {H_A(inst)+off}\nv_mov_b32 v4, 0")
    L = a.newlabel("Lh"); D = a.newlabel("Lhd")
    a(f"s_mov_b32 s68, 0\ns_cmp_lg_u32 s3, 0\ns_cbranch_scc1 {D}")
    a.label(L)
    a(f"buffer_load_dword v5, v4, s[16:19], s70 offen sc1\ns_waitcnt vmcnt(0)")
    a(f"v_cmp_gt_i32 vcc, {count*0xffff - 1}, v5" if count else "v_cmp_eq_u32 vcc, -1, v5")
    a(f"s_cbranch_vccz {D}")
    a(f"s_sleep {sl}\ns_add_u32 s68, s68, 1\ns_cmp_lt_u32 s68, {cfg.spin}\ns_cbranch_scc1 {L}")
    a.label(D)
    a("s_barrier")

def qg_issue(base, sb):
    for i in range(9):
        a(f"buffer_load_dword v{base+i}, v22, s[16:19], s{sb + (i>>2)} offen offset:{(i&3)*1024} sc1")
def qg_sum(base):
    b = base
    a(f"""v_add_f32 v{b}, v{b}, v{b+1}
    v_add_f32 v{b+2}, v{b+2}, v{b+3}
    v_add_f32 v{b+4}, v{b+4}, v{b+5}
    v_add_f32 v{b+6}, v{b+6}, v{b+7}
    v_add_f32 v{b}, v{b}, v{b+2}
    v_add_f32 v{b+4}, v{b+4}, v{b+6}
    v_add_f32 v{b}, v{b}, v{b+8}
    v_add_f32 v{b}, v{b}, v{b+4}
    v_cvt_pk_bf16_f32 v{b}, v{b}, v{b}""")

a(f"""
s_cmp_ge_u32 s2, 256
s_cbranch_scc1 L_end
s_load_dwordx16 s[32:47], s[0:1], 0
s_load_dwordx8 s[48:55], s[0:1], 64
s_load_dwordx2 s[56:57], s[0:1], 96
v_lshrrev_b32 v1, 6, v0
v_readfirstlane_b32 s3, v1
v_and_b32 v0, 63, v0
s_lshr_b32 s4, s2, 4
s_and_b32 s6, s2, 15
s_add_u32 s5, s6, s4
s_and_b32 s5, s5, 15
v_lshlrev_b32 v2, 4, v0
v_bfe_u32 v1, v0, 2, 2
v_lshlrev_b32 v1, 11, v1
v_bfe_u32 v3, v0, 1, 1
v_lshl_add_u32 v1, v3, 8, v1
v_lshrrev_b32 v3, 4, v0
v_lshl_add_u32 v1, v3, 5, v1
v_and_b32 v3, 1, v0
v_lshl_add_u32 v1, v3, 4, v1
s_lshl_b32 s27, s2, 18
s_lshl_b32 s28, s3, 16
s_add_u32 s27, s27, s28
s_mov_b32 s10, 0x8000000
s_mov_b32 s11, 0x20000
s_mov_b32 s14, 0x8000000
s_mov_b32 s15, 0x20000
s_mov_b32 s18, 0x20000000
s_mov_b32 s19, 0x20000
s_mov_b32 s23, 0x20000
s_waitcnt lgkmcnt(0)
s_mov_b32 s8, s34
s_mov_b32 s9, s35
""")
load_k(range(0, cfg.pre))
a(f"""
s_mov_b32 s12, s36
s_mov_b32 s13, s37
s_mov_b32 s16, s56
s_mov_b32 s17, s57
s_mov_b32 s82, {cfg.pre//8}
s_mov_b32 s79, 0
s_cmp_ge_u32 s5, 9
s_cselect_b32 s42, 1, {cfg.thrall}
""")
if cfg.xthr: a("s_getreg_b32 s42, hwreg(HW_REG_XCC_ID)\ns_andn2_b32 s42, 1, s42")
a(f"""
s_mov_b32 s24, 0xaaaaaaaa
s_mov_b32 s25, 0xaaaaaaaa
v_and_b32 v4, 4, v0
v_lshlrev_b32 v4, 2, v4
v_mov_b32 v3, 0xffff
v_lshlrev_b32 v3, v4, v3
s_mov_b32 s26, {f32(CSM)}
s_mov_b32 s67, 0x3f803f80
s_mul_i32 s29, s3, {NL*1024}
""")
for r in POOL[:17]:
    if cfg.stamps: a(f"s_mov_b32 s{r}, 0")
stamp("start")
if cfg.cpf:
    a(f"""s_cmp_ge_u32 s2, {32*cfg.cpf}
    s_cbranch_scc1 L_nocpf
    s_getpc_b64 s[70:71]
    L_cpf_pc:
    s_lshr_b32 s72, s2, 3
    s_and_b32 s72, s72, 3
    s_lshl_b32 s72, s72, 2
    s_add_u32 s72, s72, s3
    s_lshl_b32 s72, s72, 10
    v_add_u32 v42, s72, v2
    v_add_u32 v43, 0x4000, v42""")
    a.raw("    v_min_u32 v42, L_code_end-L_cpf_pc-16, v42")
    a.raw("    v_min_u32 v43, L_code_end-L_cpf_pc-16, v43")
    a("""global_load_dwordx4 v[44:47], v42, s[70:71]
    global_load_dwordx4 v[48:51], v43, s[70:71]
    L_nocpf:""")
if cfg.warm:
    a("""s_add_u32 s70, s27, 0x4000000
    s_mov_b64 exec, 1
    buffer_load_dword v40, v2, s[12:15], s27 offen nt
    buffer_load_dword v41, v2, s[8:11], s70 offen nt
    buffer_load_dword v42, v2, s[12:15], s70 offen nt
    global_load_ushort v43, v2, s[52:53]
    global_load_dword v44, v2, s[54:55] offset:192
    s_mov_b64 exec, -1""")
a(f"""
v_mov_b32 v4, -1
v_mov_b32 v5, -1
v_mov_b32 v6, -1
v_mov_b32 v7, -1
s_lshl_b32 s70, s3, 18
s_lshl_b32 s71, s2, 10
s_add_u32 s70, s70, s71
buffer_store_dwordx4 v[4:7], v2, s[16:19], s70 offen sc1
s_lshl_b32 s70, s3, 12
s_lshl_b32 s71, s4, 7
s_add_u32 s70, s70, s71
s_lshl_b32 s71, s6, 2
s_add_u32 s70, s70, s71
s_add_u32 s70, s70, {A_L(0)}
v_lshlrev_b32 v8, 6, v0
s_mov_b64 exec, 3
buffer_store_dword v4, v8, s[16:19], s70 offen sc1
s_mov_b64 exec, -1
v_mov_b32 v11, 0
global_load_ushort v23, v11, s[50:51]
s_mul_i32 s7, s4, 9
s_add_u32 s7, s7, s5
s_cmp_ge_u32 s5, 9
s_cbranch_scc1 L_pro_s1
v_lshlrev_b32 v8, 2, v0
s_lshl_b32 s70, s3, 16
s_lshl_b32 s71, s7, 8
s_add_u32 s70, s70, s71
s_add_u32 s70, s70, {B_A(0)}
buffer_store_dword v4, v8, s[16:19], s70 offen sc1
s_lshl_b32 s70, s3, 18
s_lshl_b32 s71, s7, 10
s_add_u32 s70, s70, s71
s_add_u32 s70, s70, {D_A(0)}
buffer_store_dwordx4 v[4:7], v2, s[16:19], s70 offen sc1
s_lshl_b32 s70, s3, 12
s_lshl_b32 s71, s7, 4
s_add_u32 s70, s70, s71
s_add_u32 s70, s70, {C_A(0)}
s_mov_b64 exec, 15
buffer_store_dword v4, v8, s[16:19], s70 offen sc1
s_lshl_b32 s70, s3, 12
s_lshl_b32 s71, s4, 7
s_add_u32 s70, s70, s71
s_add_u32 s70, s70, {H_A(0)}
buffer_store_dword v4, v8, s[16:19], s70 offen sc1
s_mov_b64 exec, -1
s_mov_b32 s20, s32
s_mov_b32 s21, s33
s_mov_b32 s22, 2304
v_lshlrev_b32 v9, 3, v0
v_lshlrev_b32 v10, 1, v0
buffer_load_dwordx2 v[12:13], v9, s[20:23], 0 offen
buffer_load_dwordx2 v[14:15], v9, s[20:23], 0 offen offset:512
buffer_load_ushort v16, v10, s[20:23], 0 offen offset:1024
buffer_load_dwordx2 v[18:19], v9, s[20:23], 0 offen offset:1152
buffer_load_dwordx2 v[20:21], v9, s[20:23], 0 offen offset:1664
buffer_load_ushort v22, v10, s[20:23], 0 offen offset:2176
s_mov_b32 s20, s38
s_mov_b32 s21, s39
s_mov_b32 s22, {576*8192}
v_lshrrev_b32 v24, 5, v0
v_and_b32 v25, 31, v0
v_lshlrev_b32 v25, 4, v25
v_lshlrev_b32 v26, 5, v24
v_xor_b32 v25, v25, v26
v_lshl_add_u32 v24, v24, 13, v25
v_xor_b32 v25, 64, v24
v_xor_b32 v26, 128, v24
v_xor_b32 v27, 192, v24
s_lshl_b32 s70, s5, 19
s_lshl_b32 s71, s3, 17
s_add_u32 s70, s70, s71
s_lshl_b32 s71, s4, 9
s_add_u32 s70, s70, s71
s_lshl_b32 s71, s3, 13
s_add_u32 s71, s71, {LWQ}
""")
for i in range(8):
    fs = ((i >> 2) & 1) * 2 + (i & 1)
    a(f"s_add_u32 m0, s71, {i*1024}\nbuffer_load_dwordx4 v{24+fs}, s[20:23], s70 offen nt lds")
    if i < 7: a("s_add_u32 s70, s70, 16384")
a.label("L_pro_s1")
ln(True, cfg.d1)
pass
a(f"""
v_lshlrev_b32 v23, 16, v23
v_readfirstlane_b32 s78, v23
s_mov_b32 s56, {LMX}
s_cmp_ge_u32 s5, 9
s_cbranch_scc1 L_pro_s2
v_add_u32 v24, {LXB}, v2
v_lshlrev_b32 v25, 2, v0
v_add_u32 v25, {LXB+2048}, v25
""")
for b in range(2):
    r = 12 + 6 * b
    a(f"""v_lshlrev_b32 v28, 16, v{r}
    v_and_b32 v29, 0xffff0000, v{r}
    v_lshlrev_b32 v30, 16, v{r+1}
    v_and_b32 v31, 0xffff0000, v{r+1}
    v_lshlrev_b32 v32, 16, v{r+2}
    v_and_b32 v33, 0xffff0000, v{r+2}
    v_lshlrev_b32 v34, 16, v{r+3}
    v_and_b32 v35, 0xffff0000, v{r+3}
    v_lshlrev_b32 v36, 16, v{r+4}
    ds_write_b128 v24, v[28:31] offset:{b*2304}
    ds_write_b128 v24, v[32:35] offset:{b*2304+1024}
    ds_write_b32 v25, v36 offset:{b*2304}
    s_waitcnt lgkmcnt(0)""")
a.label("L_pro_s2")
a(f"""
s_barrier
s_cmp_lg_u32 s3, {cfg.aw}
s_cbranch_scc1 L_pro_arr
v_mov_b32 v4, 0
v_mov_b32 v5, 1
s_mov_b64 exec, 1
global_atomic_add v6, v4, v5, s[54:55] offset:64 sc0 sc1
s_mov_b64 exec, -1
""")
ln(True, cfg.d0)
a(f"""v_readfirstlane_b32 s70, v6
s_cmp_lg_u32 s70, 255
s_cbranch_scc1 L_pro_arr
s_mov_b64 exec, 1
global_store_dword v4, v5, s[54:55] offset:128 sc1
s_mov_b64 exec, -1
L_pro_arr:
s_cmp_ge_u32 s5, 9
s_cbranch_scc1 L_pro_s3
""")
for b in range(2):
    a(f"s_mov_b32 s63, 1\ns_mov_b32 s64, {LXB + b*2304}\ns_mov_b32 s62, {D_A(b)}")
    call("SUB_CH2")
    if b == 0: a("s_barrier")
def load_wo():
    a(f"""
    s_mov_b32 s20, s40
    s_mov_b32 s21, s41
    s_mov_b32 s22, {4096*1152}
    v_lshrrev_b32 v24, 3, v0
    v_mul_u32_u24 v24, 1152, v24
    v_and_b32 v25, 7, v0
    v_lshlrev_b32 v25, 4, v25
    v_bfe_u32 v26, v0, 4, 1
    v_lshlrev_b32 v26, 5, v26
    v_xor_b32 v25, v25, v26
    v_xor_b32 v26, 64, v25
    v_add_u32 v25, v25, v24
    v_add_u32 v26, v26, v24
    s_lshl_b32 s70, s4, 2
    s_add_u32 s70, s70, s3
    s_mul_i32 s70, s70, {64*1152}
    s_lshl_b32 s71, s5, 7
    s_add_u32 s70, s70, s71
    s_lshl_b32 s71, s3, 13
    s_add_u32 s71, s71, {LWO}
    """)
    for i in range(8):
        a(f"s_add_u32 m0, s71, {i*1024}\nbuffer_load_dwordx4 v{25+(i&1)}, s[20:23], s70 offen nt lds")
        if i < 7: a(f"s_add_u32 s70, s70, {8*1152}")
def load_mixer(base):
    a(f"""
    s_lshl_b32 s70, s3, 10
    v_add_u32 v24, s70, v2
    v_add_u32 v25, 4096, v24
    v_add_u32 v26, 8192, v2
    s_add_u32 s71, s70, {base}
    """)
    for j, p in enumerate((44, 46, 48)):
        a(f"""s_add_u32 m0, s71, {j*9216}
        global_load_lds_dwordx4 v24, s[{p}:{p+1}]
        s_add_u32 m0, s71, {j*9216+4096}
        global_load_lds_dwordx4 v25, s[{p}:{p+1}]
        s_mov_b32 m0, {base+j*9216+8192}
        global_load_lds_dwordx4 v26, s[{p}:{p+1}]""")
if not cfg.latew:
    load_wo(); load_mixer(LMX)
a.label("L_pro_s3")
for r in POOL[17:]:
    if cfg.stamps: a(f"s_mov_b32 s{r}, 0")
ln(False, cfg.d2)
a("v_mov_b32 v4, 0")
poll(lambda: a("global_load_dword v5, v4, s[54:55] offset:128 sc1"), lambda: a("v_cmp_eq_u32 vcc, 0, v5"), depth=cfg.d3)
stamp("cnt")
a(f"""s_lshl_b32 s70, s3, 8
v_lshl_add_u32 v22, v0, 2, s70
s_mul_i32 s69, s4, 9216
s_add_u32 s70, s69, {D_A(0)}
s_add_u32 s71, s70, 4096
s_add_u32 s72, s70, 8192
s_add_u32 s73, s69, {D_A(1)}
s_add_u32 s74, s73, 4096
s_add_u32 s75, s73, 8192
v_lshrrev_b32 v24, 1, v22
v_add_u32 v24, {LQ}, v24""")
poll(lambda: (qg_issue(4, 70), qg_issue(13, 73)), lambda: check_sentinel(range(4, 22), 23), depth=cfg.d4)
qg_sum(4); qg_sum(13)
a("ds_write_b16 v24, v4\nds_write_b16 v24, v13 offset:512")
stamp("q1")
ln_until(10)
a("s_waitcnt lgkmcnt(0)\ns_barrier")

def att_params(ai, seq):
    a(f"s_mov_b32 s58, {A_O(ai)}\ns_mov_b32 s59, {A_L(ai)}\ns_mov_b32 s65, {LQ + ai*512}\ns_mov_b32 s64, {LX + (seq&1)*4224}")
def hint_addr(ai):
    a(f"s_lshl_b32 s62, s4, 7\ns_add_u32 s62, s62, {H_A(ai)+8}")
def att_p1(ai, seq):
    att_params(ai, seq); hint_addr(ai); a("s_mov_b64 vcc, -1"); call("SUB_ATT")
def qatt(ai, seq, loadnext):
    att_params(ai, seq); a(f"s_mov_b32 s62, {D_A(ai)}\ns_mov_b32 s63, {2 if loadnext else 0}"); call("SUB_QATT")
def ch1(inst, final, entry="SUB_CH1", aonly=False):
    b = inst & 1
    a(f"s_mov_b32 s58, {A_O(inst)}\ns_mov_b32 s59, {A_L(inst)}\ns_mov_b32 s60, {B_A(inst)}\ns_mov_b32 s64, {LXB + b*2304}")
    a(f"s_mov_b32 s63, {2 if aonly else 1 if final else 0}\ns_mov_b32 s61, {b*1152 if final else C_A(inst)}")
    call(entry)
def ch2(inst):
    b = inst & 1
    a(f"s_mov_b32 s63, 0\ns_mov_b32 s61, {C_A(inst)}\ns_mov_b32 s64, {LXB + b*2304}\ns_mov_b32 s62, {D_A(2+inst)}")
    call("SUB_CH2")

a(f"s_cmp_eq_u32 s3, 0\ns_cselect_b32 s63, 4, 0\ns_lshl_b32 s60, s4, 7\ns_add_u32 s60, s60, {H_A(2)+4}")
att_p1(0, 0)
stamp("P1b0")
a("s_add_u32 s27, s27, 0x4000000\ns_cmp_ge_u32 s5, 9\ns_cbranch_scc1 L_srole")
a(f"s_mov_b32 s42, {cfg.thr3}")
if cfg.latew:
    load_wo(); load_mixer(LMX)
    a("s_waitcnt vmcnt(9)\ns_barrier")
ch1(0, False); ch2(0)
stamp("wq0")
a(f"s_mov_b32 s69, {cfg.s0['D']}")
qatt(2, 1, True)
stamp("P2b0")
if cfg.roles:
    ln_until(cfg.fa)
    ch1(2, True, aonly=True)
    a(f"""s_or_b32 s70, s5, s3
    s_cbranch_scc1 L_nf3
    s_lshl_b32 s70, s4, 7
    s_add_u32 s70, s70, {H_A(3)}
    s_mov_b64 exec, 1
    buffer_store_dword v2, v2, s[16:19], s70 offen sc1
    s_mov_b64 exec, -1
    L_nf3:""")
else:
    ch1(2, True)
stamp("fin0")
ln_until(10)
a(f"s_cmp_eq_u32 s3, 0\ns_cselect_b32 s63, 3, 0\ns_lshl_b32 s60, s4, 7\ns_add_u32 s60, s60, {H_A(2)}")
att_p1(1, 2)
stamp("P1b1")
a("s_mov_b32 s79, 1")
ch1(1, False); ch2(1)
qatt(3, 3, False)
stamp("P2b1")
a("s_mov_b32 s79, 2")
ch1(3, True)
stamp("end")
a("s_branch L_stamps" if cfg.stamps else "s_branch L_fin")
def s_reload():
    if not cfg.nogo: flagwait(2, cfg.sg, 0, cfg.n1)
    stamp("s.go")
    a("s_mov_b32 s82, 0")
    ln_until(8)
    load_v([t for t in range(cfg.j0) if t not in LDS_T])
    a("s_mov_b32 s29, s57")
    a("s_mov_b32 s82, 16")
    if cfg.stamps: a("s_waitcnt vmcnt(0)")
    stamp("s.rel")
a.label("L_srole")
a("s_mov_b32 s42, 0")
a(f"s_mov_b32 s69, 0")
if cfg.roles:
    a(f"s_mul_i32 s57, s3, {NS*1024}\ns_add_u32 s57, s57, {LWO}")
    if cfg.go0 >= 0: flagwait(2, cfg.sh, 4, cfg.n0)
    att_params(1, 1); call("SUB_RING")
    stamp("s.ring")
    flagwait(0, cfg.sh)
    qatt(2, 2, False)
    stamp("s.P2b0")
    if cfg.j0 < 64:
        att_params(1, 1); hint_addr(1); a("s_mov_b32 s63, 0"); call("SUB_RESUME")
        stamp("s.P1b1")
    if cfg.pf0 < 8:
        nun = 36 * (8 - cfg.pf0)
        a(f"""v_lshlrev_b32 v4, 7, v0
        s_sub_u32 s70, s5, 9
        s_lshl_b32 s70, s70, 2
        s_add_u32 s70, s70, s3
        s_mov_b32 s71, {(1 << 32) // 36 + 1}""")
        for i in range((nun + 27) // 28):
            L = a.newlabel("Lpf")
            if (i + 1) * 28 > nun: a(f"s_cmp_ge_u32 s70, {nun}\ns_cbranch_scc1 {L}")
            a(f"""s_mul_hi_u32 s72, s70, s71
            s_mul_i32 s73, s72, 36
            s_sub_u32 s73, s70, s73
            s_lshr_b32 s74, s73, 2
            s_sub_u32 s74, s74, s4
            s_and_b32 s74, s74, 15
            s_lshl_b32 s75, s4, 4
            s_add_u32 s74, s74, s75
            s_lshl_b32 s74, s74, 18
            s_and_b32 s73, s73, 3
            s_lshl_b32 s73, s73, 16
            s_add_u32 s74, s74, s73
            s_lshl_b32 s72, s72, 13
            s_add_u32 s74, s74, s72
            s_add_u32 s74, s74, {0x4000000 + cfg.pf0 * 8192}
            s_add_u32 s73, s74, 4096
            s_add_u32 s70, s70, 28""")
            for t in range(8): a(f"buffer_load_dwordx4 a[{4*t}:{4*t+3}], v2, s[12:15], s{74 if t < 4 else 73} offen offset:{(t&3)*1024}")
            a.label(L)
    if cfg.relfirst: s_reload()
    load_mixer(0)
    a(f"""s_mov_b32 s56, 0
    s_mov_b32 s70, {C_A(0)}
    v_lshlrev_b32 v13, 2, v0
    buffer_load_dwordx4 v[4:7], v2, s[16:19], s70 offen sc1
    buffer_load_dwordx4 v[8:11], v2, s[16:19], s70 offen offset:1024 sc1
    buffer_load_dword v12, v13, s[16:19], s70 offen offset:2048 sc1
    v_add_u32 v14, {LXB}, v2
    v_add_u32 v13, {LXB}, v13
    s_mul_i32 s7, s4, 7
    s_add_u32 s7, s7, s5
    s_sub_u32 s7, s7, 9
    s_waitcnt vmcnt(0)
    ds_write_b128 v14, v[4:7]
    ds_write_b128 v14, v[8:11] offset:1024
    ds_write_b32 v13, v12 offset:2048""")
    flagwait(3, cfg.sg)
    ch1(2, True, entry="SUB_CH1B")
    if not cfg.late2:
        a("s_add_u32 s7, s7, 112\ns_cmp_ge_u32 s7, 144\ns_cbranch_scc1 L_s_nf")
        call("SUB_CH1B")
        a.label("L_s_nf")
    stamp("s.fin0")
    if not cfg.relfirst: s_reload()
else:
    flagwait(0, cfg.sh)
    qatt(2, 1, True)
    ln_until(10)
    a("s_mov_b32 s63, 0")
    att_p1(1, 2)
    stamp("s.P1b1")
flagwait(1, cfg.sh)
qatt(3, 2 if (cfg.roles and cfg.j0 < 64) else 3, False)
stamp("s.end")
if cfg.roles and cfg.late2:
    a("s_add_u32 s7, s7, 112\ns_cmp_ge_u32 s7, 144\ns_cbranch_scc1 L_s_nf")
    ch1(2, True, entry="SUB_CH1B")
    stamp("end")
    a.label("L_s_nf")
if cfg.stamps: a("s_branch L_stamps")
a.label("L_fin")
a("s_waitcnt vmcnt(0)")
a.label("L_end")
a("s_endpgm")

def att_pre(zero=True):
    a(f"""
    v_bfe_u32 v15, v0, 1, 1
    v_lshlrev_b32 v12, 8, v15
    v_lshrrev_b32 v13, 4, v0
    v_lshl_add_u32 v12, v13, 5, v12
    v_and_b32 v14, 1, v0
    v_lshl_add_u32 v12, v14, 4, v12
    v_add_u32 v12, s65, v12
    v_bfe_u32 v15, v0, 4, 1
    v_lshlrev_b32 v47, 9, v15
    v_and_b32 v15, 15, v0
    v_lshl_add_u32 v47, v15, 5, v47
    v_lshrrev_b32 v15, 5, v0
    v_lshl_add_u32 v47, v15, 4, v47
    s_lshl_b32 s70, s3, 10
    s_add_u32 s70, s70, s64
    v_add_u32 v47, s70, v47
    """)
    if zero: zero_a()
def zero_a():
    for i in range(12): a(f"v_mov_b32 v{34+i}, 0")
def Dset(i): return 12 + 4 * (i % 3)
def adds(i):
    G, t = i >> 2, i & 3; d = Dset(i)
    a(f"v_add_f32_dpp v32, v{d+1}, v{d} quad_perm:[1,0,3,2] row_mask:{1<<t:#x} bank_mask:0xf")
    a(f"v_add_f32_dpp v33, v{d+2}, v{d+3} quad_perm:[1,0,3,2] row_mask:{1<<t:#x} bank_mask:0xf")
    if t == 3:
        a(f"v_cndmask_b32 v{24+G}, v32, v33, s[24:25]")
        if G == 1: a("v_max_f32 v46, v24, v25")
        elif G % 2 == 1: a(f"v_max3_f32 v46, v46, v{23+G}, v{24+G}")
def kmm(kt, src):
    d = Dset(kt >> 1)
    if kt & 1: a(f"v_mfma_f32_16x16x32_bf16 {R4(d)}, v[8:11], {src}, {R4(d)}")
    else: a(f"v_mfma_f32_16x16x32_bf16 {R4(d)}, v[4:7], {src}, 0")
def softmax():
    for ctl in ("quad_perm:[2,3,0,1]", "row_ror:4", "row_ror:8"):
        a(f"v_max_f32_dpp v46, v46, v46 {ctl} {DPPALL}")
    rows_reduce("v_max_f32", 46, 32)
    a("v_mul_f32 v32, s26, v46")
    for G in range(8): a(f"v_fma_f32 v{24+G}, v{24+G}, s26, -v32")
    for G in range(8): a(f"v_exp_f32 v{24+G}, v{24+G}")
    a("v_pk_add_f32 v[4:5], v[24:25], v[26:27]\nv_pk_add_f32 v[6:7], v[28:29], v[30:31]\nv_pk_add_f32 v[4:5], v[4:5], v[6:7]\nv_add_f32 v20, v4, v5")
    lctl = ["quad_perm:[2,3,0,1]", "row_ror:8", "row_ror:4"]
    for G in range(8):
        t = 21 + (G & 1)
        a(f"v_mov_b32_dpp v{t}, v{24+G} quad_perm:[1,0,3,2] {DPPALL}")
        if G in (1, 3, 5): a(f"v_add_f32_dpp v20, v20, v20 {lctl[G//2]} {DPPALL}")
        a(f"v_cvt_pk_bf16_f32 v{24+G}, v{24+G}, v{t}")
    rows_reduce("v_add_f32", 20, 21)
    a("v_and_b32 v32, 3, v0\nv_mul_u32_u24 v32, 0x5555, v32")
def build(p, par):
    G, pi = p >> 2, p & 3
    bs = 34 + 4 * par
    for k in range(4):
        a(f"v_and_b32_dpp v{bs+k}, v{24+G}, v3 row_newbcast:{4*pi + 2*(k>>1)} row_mask:0xf bank_mask:{0xc if k & 1 else 0x3:#x}")
def vmm(src, par):
    a(f"v_smfmac_f32_16x16x64_bf16 v[42:45], {R4(34+4*par)}, {src}, v32")

a.hist = []
a.label("SUB_QATT")
att_pre()
a(f"""s_lshl_b32 s70, s3, 8
v_lshl_add_u32 v22, v0, 2, s70
s_mul_i32 s70, s4, 9216
s_add_u32 s70, s70, s62
s_add_u32 s71, s70, 4096
s_add_u32 s72, s70, 8192
v_lshrrev_b32 v24, 1, v22
v_add_u32 v24, s65, v24
s_cmp_eq_u32 s69, 0
s_cbranch_scc1 L_qatt_ns
s_sleep {max(1, cfg.s0['D'])}
L_qatt_ns:""")
poll(lambda: qg_issue(13, 70), lambda: check_sentinel(range(13, 22), 23))
qg_sum(13)
a("ds_write_b16 v24, v13\ns_cmp_eq_u32 s63, 2\ns_cselect_b32 s82, 0, s82\ns_mov_b64 vcc, 0\ns_waitcnt lgkmcnt(0)\ns_barrier")
stamp("q2b1", 1)
a.label("SUB_ATT2")
outofline = []
def site(fn):
    Lo = a.newlabel("Lo"); Lb = a.newlabel("Lb")
    a(f"s_cbranch_vccnz {Lo}"); a.label(Lb)
    outofline.append((Lo, Lb, fn))
def lnif():
    L = a.newlabel("Lki")
    a(f"s_cmp_ge_u32 s82, 16\ns_cbranch_scc1 {L}\ns_call_b64 s[80:81], SUB_LN"); a.label(L)
a("ds_read_b128 v[4:7], v12\nds_read_b128 v[8:11], v12 offset:128\ns_waitcnt vmcnt(16) lgkmcnt(0)")
for i in range(32):
    kmm(2*i, khome(2*i)); kmm(2*i+1, khome(2*i+1))
    if i >= 2: adds(i - 2)
    if cfg.ksites and i in (0, 15): site(lnif)
    if i in (3, 7):
        Lo = a.newlabel("Lo"); Lb = a.newlabel("Lb")
        a(f"s_cmp_lt_u32 s82, 2\ns_cbranch_scc1 {Lo}"); a.label(Lb)
        outofline.append((Lo, Lb, lambda: a("s_call_b64 s[80:81], SUB_LN")))
adds(30); adds(31)
if cfg.ksites: site(lnif)
softmax()
a("v_add_u32 v33, s29, v2")
sites = list(range(0, 60, 4)) + [60, 62]
done_sites = []
def arrived(t):
    for i in sites:
        if i > t or i in done_sites: continue
        done_sites.append(i)
        nxt = [x for x in sites if x > i]
        last = (nxt[0] if nxt else 64) - 1
        g = min(7, (i >> 3) + 2)
        def fn(i=i, g=g, last=last):
            if i % 8 == 0 and (i >> 3) + 2 <= 7:
                L = a.newlabel("Lsk")
                a(f"s_cmp_gt_u32 s82, {8+g}\ns_cbranch_scc1 {L}\ns_call_b64 s[80:81], SUB_LN"); a.label(L)
            a(f"s_waitcnt vmcnt({8*g + 7 - last})")
            for gi, code in ((cfg.go, 3), (cfg.go0, 4)):
              if i == gi:
                L = a.newlabel("Lsg")
                a(f"s_cmp_lg_u32 s63, {code}\ns_cbranch_scc1 {L}\ns_mov_b64 exec, 1\nbuffer_atomic_add v3, v2, s[16:19], s60 offen sc1\ns_mov_b64 exec, -1"); a.label(L)
        site(fn)
def lbuf(p): return 48 if p == 12 else (4 if (p >> 1) % 2 == 0 else 12)
nread = [0]; readpos = {}
def fetch(p):
    if p > 12 or p & 1: return
    arrived(2*p + 1)
    b = lbuf(p)
    a(f"ds_read_b128 {R4(b)}, v33 offset:{p*1024}"); nread[0] += 1
    if p < 12: a(f"ds_read_b128 {R4(b+4)}, v33 offset:{p*1024+1024}"); nread[0] += 1
    readpos[p] = nread[0]
fetch(0); fetch(2); build(0, 0)
for p in range(32):
    if p == cfg.j0 // 2: a.label("L_att_resume")
    if p + 1 < 32: build(p + 1, (p + 1) & 1)
    arrived(2*p + 1)
    if p in readpos:
        a(f"s_waitcnt lgkmcnt({nread[0] - readpos[p]})"); src = R8(lbuf(p))
    else: src = R8(vreg(2*p))
    vmm(src, p & 1)
    fetch(p + 4)
    if cfg.vsites and p in (1, 9, 17, 25):
        Lo = a.newlabel("Lo"); Lb = a.newlabel("Lb")
        a(f"s_cmp_lt_u32 s82, 8\ns_cbranch_scc1 {Lo}"); a.label(Lb)
        outofline.append((Lo, Lb, lambda: a("s_call_b64 s[80:81], SUB_LN")))
a.label("L_att_epi")
a(f"""
s_nop 3
v_and_b32 v32, 1, v0
v_lshlrev_b32 v32, 5, v32
s_lshl_b32 s70, s3, 2
s_add_u32 s70, s70, s64
s_add_u32 s70, s70, 4096
v_add_u32 v32, s70, v32
ds_write2_b32 v32, v46, v20 offset0:0 offset1:4
v_add_u32 v32, s64, v2
v_lshrrev_b32 v33, 5, v0
v_lshlrev_b32 v34, 6, v33
v_lshlrev_b32 v33, 5, v33
v_add_u32 v33, s64, v33
ds_write_b128 v47, v[42:45]
s_lshl_b32 s70, s2, 10
s_add_u32 s70, s70, s58
s_lshl_b32 s71, s4, 7
s_add_u32 s71, s71, s59
s_lshl_b32 s72, s6, 2
s_add_u32 s71, s71, s72
s_cmp_lg_u32 s3, 0
s_waitcnt lgkmcnt(0)
s_barrier
s_cbranch_scc1 L_att_ret
ds_read_b128 v[20:23], v33 offset:4096
ds_read_b128 v[24:27], v33 offset:4112
ds_read_b128 v[4:7], v32
ds_read_b128 v[8:11], v32 offset:1024
ds_read_b128 v[12:15], v32 offset:2048
ds_read_b128 v[16:19], v32 offset:3072
s_waitcnt lgkmcnt(4)
v_max3_f32 v28, v20, v21, v22
v_max_f32 v28, v28, v23
v_mul_f32 v28, s26, v28
""")
for w in range(4): a(f"v_fma_f32 v{20+w}, v{20+w}, s26, -v28")
for w in range(4): a(f"v_exp_f32 v{20+w}, v{20+w}")
a("""v_mul_f32 v30, v20, v24
v_fmac_f32 v30, v21, v25
v_fmac_f32 v30, v22, v26
v_fmac_f32 v30, v23, v27
s_waitcnt lgkmcnt(0)
v_pk_mul_f32 v[4:5], v[4:5], v[20:21] op_sel:[0,0] op_sel_hi:[1,0]
v_log_f32 v29, v30
v_rcp_f32 v30, v30
v_pk_mul_f32 v[6:7], v[6:7], v[20:21] op_sel:[0,0] op_sel_hi:[1,0]
v_pk_fma_f32 v[4:5], v[8:9], v[20:21], v[4:5] op_sel:[0,1,0] op_sel_hi:[1,1,1]
v_pk_fma_f32 v[6:7], v[10:11], v[20:21], v[6:7] op_sel:[0,1,0] op_sel_hi:[1,1,1]
v_pk_fma_f32 v[4:5], v[12:13], v[22:23], v[4:5] op_sel:[0,0,0] op_sel_hi:[1,0,1]
v_pk_fma_f32 v[6:7], v[14:15], v[22:23], v[6:7] op_sel:[0,0,0] op_sel_hi:[1,0,1]
v_pk_fma_f32 v[4:5], v[16:17], v[22:23], v[4:5] op_sel:[0,1,0] op_sel_hi:[1,1,1]
v_pk_fma_f32 v[6:7], v[18:19], v[22:23], v[6:7] op_sel:[0,1,0] op_sel_hi:[1,1,1]
v_pk_mul_f32 v[4:5], v[4:5], v[30:31] op_sel:[0,0] op_sel_hi:[1,0]
v_pk_mul_f32 v[6:7], v[6:7], v[30:31] op_sel:[0,0] op_sel_hi:[1,0]
v_add_f32 v29, v29, v28
buffer_store_dwordx4 v[4:7], v2, s[16:19], s70 offen sc1
s_mov_b32 exec_lo, 1
s_mov_b32 exec_hi, 1
buffer_store_dword v29, v34, s[16:19], s71 offen sc1
s_mov_b64 exec, -1
L_att_ret:""")
ret()
a.hist = []
a.label("SUB_ATT")
att_pre()
a("s_branch SUB_ATT2")
for Lo, Lb, fn in outofline:
    a.hist = []
    a.label(Lo); fn(); a(f"s_branch {Lb}")

a.hist = []
a.label("SUB_LN")
if cfg.thr >= 0: a(f"s_cmp_eq_u32 s42, 0\ns_cbranch_scc1 L_ln_nt\ns_waitcnt vmcnt({cfg.thr})\nL_ln_nt:")
for k in range(15): a(f"s_cmp_eq_u32 s82, {k}\ns_cbranch_scc1 L_lnb{k}")
for k in [15] + list(range(15)):
    a.label(f"L_lnb{k}")
    for hlf in range(2):
        if hlf and cfg.thrm >= 0: a(f"s_cmp_eq_u32 s42, 0\ns_cbranch_scc1 L_lnm{k}\ns_waitcnt vmcnt({cfg.thrm})\nL_lnm{k}:")
        if k < 8: load_k(range(8*k+4*hlf, 8*k+4*hlf+4))
        else: load_v(range(8*(k-8)+4*hlf, 8*(k-8)+4*hlf+4))
    a("s_add_u32 s82, s82, 1\ns_setpc_b64 s[80:81]")

a.hist = []
a.label("SUB_LNW")
a(f"""s_mov_b32 s36, 0
L_lnw_i:
s_call_b64 s[80:81], SUB_LN
s_add_u32 s36, s36, 8
L_lnw_c:
s_getreg_b32 s37, hwreg(HW_REG_IB_STS)
s_and_b32 s28, s37, 15
s_lshr_b32 s37, s37, 18
s_and_b32 s37, s37, 0x30
s_or_b32 s37, s37, s28
s_cmp_le_u32 s37, s36
s_cbranch_scc1 L_lnw_r
s_cmp_ge_u32 s82, 16
s_cbranch_scc1 L_lnw_s
s_cmp_lt_u32 s37, 40
s_cbranch_scc1 L_lnw_i
L_lnw_s:
s_sleep 1
s_branch L_lnw_c
L_lnw_r:""")
for n in (8, 16, 24, 32, 40):
    a(f"s_cmp_gt_u32 s36, {n}\ns_cbranch_scc1 L_lnw_r{n}\ns_waitcnt vmcnt({n})\ns_setpc_b64 s[34:35]\nL_lnw_r{n}:")
a("s_waitcnt vmcnt(48)\ns_setpc_b64 s[34:35]")

a.hist = []
a.label("SUB_CH1")
a(f"""
v_lshrrev_b32 v21, 4, v0
v_bfe_u32 v22, v0, 2, 2
v_lshl_add_u32 v23, v21, 3, v22
v_lshlrev_b32 v23, 7, v23
v_bfe_u32 v21, v0, 3, 2
v_xor_b32 v21, s3, v21
v_lshl_add_u32 v23, v21, 5, v23
v_and_b32 v21, 3, v0
v_lshl_add_u32 v23, v21, 3, v23
v_add_u32 v23, {LWO}, v23
""")
for ks in range(7):
    for jh in range(2):
        a(f"ds_read_b64_tr_b16 {R2(24 + 4*ks + 2*jh)}, v23 offset:{(32*ks+4*jh)*128}")
a(f"""
v_lshlrev_b32 v21, 2, v0
s_lshl_b32 s70, s4, 14
s_add_u32 s70, s70, s58
s_lshl_b32 s71, s3, 8
s_add_u32 s70, s70, s71
s_add_u32 s71, s70, 4096
s_add_u32 s72, s70, 8192
s_add_u32 s73, s70, 12288
s_lshl_b32 s74, s4, 7
s_add_u32 s74, s74, s59
s_lshr_b32 s75, s3, 1
s_lshl_b32 s75, s75, 6
s_add_u32 s74, s74, s75
s_lshl_b32 s75, s3, 7
s_add_u32 s75, s75, {LO}
""")
def issA():
    a("v_and_b32 v20, 60, v21\nbuffer_load_dword v20, v20, s[16:19], s74 offen sc1")
    for s in range(16):
        a(f"buffer_load_dword v{4+s}, v21, s[16:19], s{70+(s>>2)} offen offset:{(s&3)*1024} sc1")
TGT = 16 * 0xffff - 1
if cfg.hint >= 0:
    a(f"""s_cmp_lg_u32 s63, 0
    s_cbranch_scc1 L_ch1_sa
    s_lshl_b32 s76, s4, 7
    s_add_u32 s76, s76, s61
    s_add_u32 s76, s76, {0x8008}
    v_mov_b32 v4, 0
    s_mov_b32 s68, 0
    L_ch1_wa:
    buffer_load_dword v5, v4, s[16:19], s76 offen sc1
    s_waitcnt vmcnt(0)
    v_cmp_gt_i32 vcc, {TGT}, v5
    s_cbranch_vccz L_ch1_pa
    s_sleep {cfg.sh}
    s_add_u32 s68, s68, 1
    s_cmp_lt_u32 s68, {cfg.spin}
    s_cbranch_scc1 L_ch1_wa
    s_branch L_ch1_pa
    L_ch1_sa:
    s_sleep {cfg.s0['A']}
    L_ch1_pa:""")
    poll(issA, lambda: check_sentinel(range(4, 21), 22), s0=cfg.sA2)
else:
    poll(issA, lambda: check_sentinel(range(4, 21), 22), s0=cfg.s0["A"], s0w=cfg.s0["X"])
stamp("c.A", 1); stamp("f.A", 2)
a(f"v_max_f32_dpp v22, v20, v20 {CTL4[0]} {DPPALL}")
for c in CTL4[1:]: a(f"v_max_f32_dpp v22, v22, v22 {c} {DPPALL}")
a("v_sub_f32 v20, v20, v22\nv_exp_f32 v20, v20")
a(f"v_mul_f32_dpp v21, v20, v4 row_newbcast:0 {DPPALL}\nv_add_f32_dpp v22, v20, v20 {CTL4[0]} {DPPALL}")
for s in range(1, 16):
    a(f"v_fmac_f32_dpp v21, v20, v{4+s} row_newbcast:{s} {DPPALL}")
    if s in (2, 4, 6): a(f"v_add_f32_dpp v22, v22, v22 {CTL4[s//2]} {DPPALL}")
    if s == 4: a(f"ds_read_b64_tr_b16 v[4:5], v23 offset:{(32*7)*128}\nds_read_b64_tr_b16 v[6:7], v23 offset:{(32*7+4)*128}")
    if s == 8: a("v_rcp_f32 v22, v22")
    if s == 9: a("v_lshl_add_u32 v23, v0, 1, s75")
a(f"""
v_mul_f32 v21, v21, v22
v_cvt_pk_bf16_f32 v21, v21, v21
ds_write_b16 v23, v21
v_and_b32 v0, 48, v0
v_add_u32 v0, {LO}, v0
s_lshl_b32 s70, s7, 8
s_add_u32 s70, s70, s60
s_lshl_b32 s71, s3, 6
s_add_u32 s74, s70, s71
s_mul_i32 s70, s3, 9216
s_add_u32 s70, s70, s60
s_add_u32 s71, s70, 2304
s_add_u32 s72, s70, 4608
s_add_u32 s73, s70, 6912
s_waitcnt lgkmcnt(0)
s_barrier
""")
order = [7, 0, 1, 2, 3, 4, 5, 6]
def frag(ks): return "v[4:7]" if ks == 7 else R4(24 + 4*ks)
bufs = ["v[8:11]", "v[12:15]", "v[16:19]"]
for n in range(3): a(f"ds_read_b128 {bufs[n]}, v0 offset:{order[n]*64}")
for n, ks in enumerate(order):
    a(f"s_waitcnt lgkmcnt({len(bufs) - 1 - n})")
    a(f"v_mfma_f32_16x16x32_bf16 v[20:23], {bufs[n]}, {frag(ks)}, {'0' if n == 0 else 'v[20:23]'}")
    for fr in (frag(ks), bufs[n]):
        if len(bufs) < 8:
            a(f"ds_read_b128 {fr}, v0 offset:{order[len(bufs)]*64}"); bufs.append(fr)
a(f"""
v_lshrrev_b32 v0, 4, v2
v_lshlrev_b32 v49, 2, v0
s_mul_i32 s75, s3, 2304
s_add_u32 s75, s75, {LX}
v_add_u32 v51, s75, v2
s_mov_b64 exec, 0xffff
buffer_store_dword v20, v49, s[16:19], s74 offen sc1
s_mov_b64 exec, -1
""")
a("s_cmp_eq_u32 s63, 2\ns_cbranch_scc1 L_ch1_ret")
a.label("L_ch1_b")
ln(False)
def issB():
    for r in range(4):
        a(f"buffer_load_dwordx4 {R4(4+8*r)}, v2, s[16:19], s{70+r} offen sc1")
        a(f"buffer_load_dwordx4 {R4(8+8*r)}, v2, s[16:19], s{70+r} offen offset:1024 sc1")
        a(f"buffer_load_dword v{36+r}, v49, s[16:19], s{70+r} offen offset:2048 sc1")
def chkB():
    for i in range(4): a(f"v_pk_add_f32 {R2(40+2*i)}, {R2(4+2*i)}, {R2(12+2*i)}")
    a("v_add_f32 v48, v36, v37")
    for r in (2, 3):
        for i in range(4): a(f"v_pk_add_f32 {R2(40+2*i)}, {R2(40+2*i)}, {R2(4+8*r+2*i)}")
        a(f"v_add_f32 v48, v48, v{36+r}")
    a("v_add_u32 v50, s75, v49\nds_write_b128 v51, v[40:43]\nds_write_b128 v51, v[44:47] offset:1024\nds_write_b32 v50, v48 offset:2048")
    check_sentinel(range(4, 40), 50)
if cfg.hint >= 0:
    a(f"""s_cmp_lg_u32 s63, 0
    s_cbranch_scc1 L_ch1_sb
    s_add_u32 s76, s61, {0x8008}
    v_and_b32 v4, 15, v0
    v_lshlrev_b32 v4, 7, v4
    buffer_load_dword v5, v4, s[16:19], s76 offen sc1
    s_waitcnt vmcnt(0)
    v_cmp_gt_i32 vcc, {TGT}, v5
    s_cbranch_vccz L_ch1_pb
    s_mov_b32 s68, 0
    L_ch1_wb:
    s_sleep {cfg.sh}
    buffer_load_dword v5, v4, s[16:19], s76 offen sc1
    s_waitcnt vmcnt(0)
    v_cmp_gt_i32 vcc, {TGT}, v5
    s_cbranch_vccz L_ch1_wb2
    s_add_u32 s68, s68, 1
    s_cmp_lt_u32 s68, {cfg.spin}
    s_cbranch_scc1 L_ch1_wb
    L_ch1_wb2:
    s_sleep {cfg.sB2}
    s_branch L_ch1_pb
    L_ch1_sb:
    s_sleep {cfg.s0['B']}
    L_ch1_pb:""")
    poll(issB, chkB)
else:
    poll(issB, chkB, s0=cfg.s0["B"])
stamp("c.B", 1); stamp("f.B", 2)
a(f"""
v_add_u32 v14, s64, v2
v_add_u32 v15, s64, v49
ds_read_b128 v[4:7], v14
ds_read_b128 v[8:11], v14 offset:1024
ds_read_b32 v12, v15 offset:2048
v_add_u32 v14, {LX}, v2
v_add_u32 v15, {LX+2048}, v49
s_waitcnt lgkmcnt(3)
s_barrier
""")
for r in range(4):
    a(f"ds_read_b128 {R4(16+8*r)}, v14 offset:{r*2304}\nds_read_b128 {R4(20+8*r)}, v14 offset:{r*2304+1024}")
    if r == 0: a("ds_read2st64_b32 v[48:49], v15 offset0:0 offset1:9\nds_read2st64_b32 v[50:51], v15 offset0:18 offset1:27")
a(f"""
v_lshlrev_b32 v13, 3, v0
v_add_u32 v13, {LLN}, v13
v_lshlrev_b32 v14, 1, v0
v_add_u32 v14, {LLN+1024}, v14
v_and_b32 v15, 3, v0
s_lshl_b32 s70, s7, 3
s_add_u32 s70, s70, {LLN}
v_lshl_add_u32 v15, v15, 1, s70
s_lshl_b32 s70, s3, 8
s_add_u32 s70, s70, s56
""")
for r in range(4):
    a(f"s_waitcnt lgkmcnt({6 - 2*r})")
    for i in range(4): a(f"v_pk_add_f32 {R2(4+2*i)}, {R2(4+2*i)}, {R2(16+8*r+2*i)}")
    a(f"v_add_f32 v12, v12, v{48+r}")
a("""v_cvt_pk_bf16_f32 v16, v4, v5
v_cvt_pk_bf16_f32 v17, v6, v7
v_cvt_pk_bf16_f32 v18, v8, v9
v_cvt_pk_bf16_f32 v19, v10, v11
v_cvt_pk_bf16_f32 v20, v12, 0
ds_write_b64 v13, v[16:17]
ds_write_b64 v13, v[18:19] offset:512
ds_write_b16 v14, v20
ds_read_u16 v27, v15
v_lshl_add_u32 v26, v0, 2, s70""")
fill = [f"ds_read2st64_b32 {R2(28+2*i)}, v26 offset0:{4*i} offset1:{36+4*i}" for i in range(8)]
fill += [f"ds_read2st64_b32 {R2(44+2*i)}, v26 offset0:{72+8*i} offset1:{76+8*i}" for i in range(4)]
fill = [fill[0], fill[8]] + fill[1:8] + fill[9:]
stats([16, 17, 18, 19, 20], 4, 5, fill)
ln_scalars(4, 5, 6, 7, 8)
a("s_waitcnt lgkmcnt(12)\nv_lshlrev_b32 v27, 16, v27\nv_sub_f32 v9, v27, v6\nv_sub_f32 v4, v4, v6\nv_mul_f32 v5, v5, v7\nv_mul_f32 v4, v4, v7\nv_mul_f32 v5, v5, v7")
rbf(9, 10); a("v_mul_f32 v9, v9, v7"); rbf(9, 10)
ln_scalars(4, 5, 6, 7, 8)
a("v_sub_f32 v9, v9, v6"); rbf(9, 10); a("v_mul_f32 v9, v9, v7"); rbf(9, 10)
a("v_mov_b32 v25, v26")
for e in range(4): a(f"v_readlane_b32 s{70+2*e}, v9, {60+e}")
ln(False)
a(f"v_mov_b32 v26, {f32(C1)}\ns_mov_b32 s66, {f32(C2)}\ns_waitcnt lgkmcnt(0)")
for i in range(9):
    w1, b1, w2 = (28+2*i, 29+2*i, 44+i) if i < 8 else (28, 29, 44)
    if i == 8: a("s_waitcnt lgkmcnt(0)")
    for j, r in enumerate((w1, b1, w2)):
        a(f"v_lshlrev_b32 v{12+2*j}, 16, v{r}\nv_and_b32 v{13+2*j}, 0xffff0000, v{r}")
    if i == 0: a("ds_read2st64_b32 v[28:29], v25 offset0:32 offset1:68\nds_read_b32 v44, v25 offset:26624")
    if cfg.pfc and i == cfg.pfi:
        a(f"s_cmp_eq_u32 s60, {B_A(0)}\ns_cbranch_scc1 L_mx_pf\nL_mx_pfb:")
    for e0 in (0, 2):
        U = (18, 22); T = (20, 24); E = (e0, e0 + 1)
        for k in range(2): a(f"v_pk_fma_f32 {R2(U[k])}, v[12:13], s[{70+2*E[k]}:{71+2*E[k]}], v[14:15] op_sel_hi:[1,0,1]")
        for k in range(2): a(f"v_pk_mul_f32 {R2(T[k])}, {R2(U[k])}, {R2(U[k])}")
        for k in range(2): a(f"v_pk_fma_f32 {R2(T[k])}, {R2(T[k])}, s[66:67], v[26:27] op_sel_hi:[1,0,0]")
        for k in range(2): a(f"v_pk_mul_f32 {R2(T[k])}, {R2(U[k])}, {R2(T[k])}")
        for k in range(2): a(f"v_exp_f32 v{T[k]}, v{T[k]}\nv_exp_f32 v{T[k]+1}, v{T[k]+1}")
        for k in range(2): a(f"v_pk_mul_f32 {R2(U[k])}, {R2(U[k])}, v[16:17]")
        for k in range(2): a(f"v_pk_add_f32 {R2(T[k])}, {R2(T[k])}, 1.0 op_sel_hi:[1,0]")
        for k in range(2): a(f"v_rcp_f32 v{T[k]}, v{T[k]}\nv_rcp_f32 v{T[k]+1}, v{T[k]+1}")
        for k in range(2):
            acc = R2(4 + 2*E[k])
            a(f"v_pk_mul_f32 {acc}, {R2(U[k])}, {R2(T[k])}" if i == 0 else f"v_pk_fma_f32 {acc}, {R2(U[k])}, {R2(T[k])}, {acc}")
stamp("c.mix", 1)
for e in range(4): a(f"v_add_f32 v{4+2*e}, v{4+2*e}, v{5+2*e}")
if cfg.pfc: a("s_waitcnt vmcnt(0)")
a(f"""v_lshrrev_b32 v12, 4, v0
v_lshlrev_b32 v12, 2, v12
s_lshl_b32 s66, s3, 4
s_add_u32 s66, s66, {LRED}
v_add_u32 v12, s66, v12""")
row16_reduce("v_add_f32", [4, 6, 8, 10])
a(f"""
ds_write2_b32 v12, v4, v6 offset0:0 offset1:16
ds_write2_b32 v12, v8, v10 offset0:32 offset1:48
v_and_b32 v13, 3, v0
v_lshlrev_b32 v12, 6, v13
v_add_u32 v12, {LRED}, v12
s_mov_b32 s20, s52
s_mov_b32 s21, s53
s_mov_b32 s22, 2304
s_lshl_b32 s66, s7, 4
s_lshr_b32 s66, s66, s63
s_add_u32 s66, s66, s61
v_lshlrev_b32 v13, 2, v13
v_lshrrev_b32 v13, s63, v13
s_cmp_lg_u32 s3, 0
s_waitcnt lgkmcnt(0)
s_barrier
s_cbranch_scc1 L_ch1_ret
ds_read_b128 v[16:19], v12
ds_read_b128 v[20:23], v12 offset:16
ds_read_b128 v[28:31], v12 offset:32
ds_read_b128 v[32:35], v12 offset:48
s_cmp_eq_u32 s63, 1
s_mov_b64 exec, 15
s_waitcnt lgkmcnt(2)
v_pk_add_f32 v[16:17], v[16:17], v[18:19]
v_pk_add_f32 v[20:21], v[20:21], v[22:23]
s_waitcnt lgkmcnt(0)
v_pk_add_f32 v[28:29], v[28:29], v[30:31]
v_pk_add_f32 v[32:33], v[32:33], v[34:35]
v_pk_add_f32 v[16:17], v[16:17], v[20:21]
v_pk_add_f32 v[28:29], v[28:29], v[32:33]
v_pk_add_f32 v[16:17], v[16:17], v[28:29]
v_add_f32 v16, v16, v17
""")
rbf(16, 17); a("v_add_f32 v16, s78, v16"); rbf(16, 17); a("v_add_f32 v16, v16, v27"); rbf(16, 17)
a(f"""
s_cbranch_scc1 L_ch1_fin
buffer_store_dword v16, v13, s[16:19], s66 offen sc1
s_branch L_ch1_done
L_ch1_fin:
buffer_store_short v17, v13, s[20:23], s66 offen
L_ch1_done:
s_mov_b64 exec, -1
L_ch1_ret:
""")
ret()

if cfg.pfc:
    a.hist = []
    a.label("L_mx_pf")
    for kt in range(cfg.pfc):
        if kt % 8 == 0: a(f"s_add_u32 s28, s27, {(kt>>3)*8192}")
        a(f"buffer_load_dwordx4 v[30:33], v1, s[8:11], s28 offen offset:{((kt>>1)&3)*512+(kt&1)*128}")
    a("s_branch L_mx_pfb")
a.hist = []
a.label("SUB_CH1B")
a(f"""s_mul_i32 s70, s3, 9216
s_add_u32 s70, s70, s60
s_add_u32 s71, s70, 2304
s_add_u32 s72, s70, 4608
s_add_u32 s73, s70, 6912
v_lshlrev_b32 v49, 2, v0
s_mul_i32 s75, s3, 2304
s_add_u32 s75, s75, {LX}
v_add_u32 v51, s75, v2
s_barrier
s_branch L_ch1_b""")

a.hist = []
a.label("SUB_CH2")
a(f"""
v_lshrrev_b32 v13, 4, v0
v_bfe_u32 v14, v0, 2, 2
v_lshl_add_u32 v15, v13, 3, v14
v_lshlrev_b32 v15, 9, v15
v_bfe_u32 v13, v0, 2, 3
s_lshl_b32 s70, s3, 2
v_xor_b32 v13, s70, v13
v_lshl_add_u32 v15, v13, 5, v15
v_and_b32 v13, 3, v0
v_lshl_add_u32 v15, v13, 3, v15
v_add_u32 v15, {LWQ}, v15
v_xor_b32 v16, 32, v15
v_xor_b32 v17, 64, v15
v_xor_b32 v18, 96, v15
""")
for cbk in range(4):
    for ks in range(2):
        for jh in range(2):
            a(f"ds_read_b64_tr_b16 {R2(20 + 8*cbk + 4*ks + 2*jh)}, v{15+cbk} offset:{(32*ks+4*jh)*512}")
a(f"""
v_lshlrev_b32 v19, 2, v0
v_add_u32 v15, s64, v2
v_add_u32 v16, s64, v19
s_lshl_b32 s72, s5, 8
s_lshl_b32 s74, s7, 10
s_add_u32 s74, s74, s62
s_lshl_b32 s71, s3, 8
s_add_u32 s74, s74, s71
s_cmp_eq_u32 s63, 1
s_cbranch_scc0 L_ch2_g
v_add_u32 v17, s72, v16
ds_read_b128 v[4:7], v15
ds_read_b128 v[8:11], v15 offset:1024
ds_read_b32 v12, v16 offset:2048
ds_read_b32 v13, v17
s_waitcnt lgkmcnt(0)
s_branch L_ch2_x
L_ch2_g:
s_add_u32 s72, s72, s61
s_lshl_b32 s73, s4, 7
s_add_u32 s73, s73, s61
s_add_u32 s73, s73, 0x8000
""")
def issC():
    a("""buffer_load_dwordx4 v[4:7], v2, s[16:19], s61 offen sc1
    buffer_load_dwordx4 v[8:11], v2, s[16:19], s61 offen offset:1024 sc1
    buffer_load_dword v12, v19, s[16:19], s61 offen offset:2048 sc1
    buffer_load_dword v13, v19, s[16:19], s72 offen sc1""")
poll(issC, lambda: check_sentinel(range(4, 14), 14), s0=cfg.s0["C"], s0w=cfg.s0["Y"])
a("""s_or_b32 s70, s5, s3
s_cbranch_scc1 L_ch2_nh
s_mov_b64 exec, 1
buffer_store_dword v19, v19, s[16:19], s73 offen sc1
s_mov_b64 exec, -1
L_ch2_nh:
ds_write_b128 v15, v[4:7]
ds_write_b128 v15, v[8:11] offset:1024
ds_write_b32 v16, v12 offset:2048
L_ch2_x:
v_cvt_pk_bf16_f32 v14, v4, v5
v_cvt_pk_bf16_f32 v15, v6, v7
v_cvt_pk_bf16_f32 v16, v8, v9
v_cvt_pk_bf16_f32 v17, v10, v11
v_cvt_pk_bf16_f32 v18, v12, 0""")
stats([14, 15, 16, 17, 18], 4, 5, ["v_lshlrev_b32 v9, 1, v0", f"v_add_u32 v9, {LRED}, v9", "v_and_b32 v12, 48, v0", f"v_add_u32 v12, {LRED}, v12"])
ln_scalars(4, 5, 6, 7, 8)
a("v_readlane_b32 s70, v6, 63\nv_readlane_b32 s71, v7, 63\nv_subrev_f32 v13, s70, v13")
rbf(13, 8)
a("""v_mul_f32 v13, s71, v13
v_cvt_pk_bf16_f32 v13, v13, v13
ds_write_b16 v9, v13
ds_read_b128 v[4:7], v12
ds_read_b128 v[8:11], v12 offset:64
s_waitcnt lgkmcnt(0)""")
accs = [12, 20, 28, 36]
for cbk in range(4):
    d = accs[cbk]; f = 20 + 8 * cbk
    a(f"v_mfma_f32_16x16x32_bf16 {R4(d)}, v[4:7], {R4(f)}, 0")
    a(f"v_mfma_f32_16x16x32_bf16 {R4(d)}, v[8:11], {R4(f+4)}, {R4(d)}")
for cbk in range(1, 4):
    a(f"v_mov_b32_dpp v12, v{accs[cbk]} quad_perm:[0,1,2,3] row_mask:{1<<cbk:#x} bank_mask:0xf")
a("buffer_store_dword v12, v19, s[16:19], s74 offen sc1")
stamp("c.wq", 1)
ret()

if cfg.roles:
    a.hist = []
    a.label("SUB_RING")
    keep = LDS_T + [25]
    vts = [t for t in range(cfg.j0) if t not in keep] + keep
    NT = 64 + len(vts)
    slot = lambda n: (n - (NT - len(keep))) % NS
    lastso = [None]
    def rload(n):
        if n >= NT: return
        if n < 64:
            so, imm, va, srd = ("k", (n >> 3) * 8192), ((n >> 1) & 3) * 512 + (n & 1) * 128, "v1", "s[8:11]"
        else:
            vt = vts[n - 64]
            so, imm, va, srd = ("v", (vt >> 2) * 4096), (vt & 3) * 1024, "v2", "s[12:15]"
        if so != lastso[0]:
            a(f"s_add_u32 s28, s27, {so[1]}"); lastso[0] = so
        a(f"s_add_u32 m0, s57, {slot(n)*1024 - imm}")
        a(f"buffer_load_dwordx4 {va}, {srd}, s28 offen offset:{imm}{'' if n < cfg.l2n else ' nt'} lds")
    for n in range(16): rload(n)
    att_pre(zero=False)
    a("ds_read_b128 v[4:7], v12\nds_read_b128 v[8:11], v12 offset:128\nv_add_u32 v48, s57, v2")
    KT = [34, 38, 42]
    for n in range(66):
        if n < 64:
            rload(n + 16)
            a(f"s_waitcnt vmcnt(16)\nds_read_b128 {R4(KT[n%3])}, v48 offset:{slot(n)*1024}")
        if n >= 2:
            kt = n - 2
            a(f"s_waitcnt lgkmcnt({min(63, n) - kt})")
            kmm(kt, R4(KT[kt % 3]))
            if kt & 1 and (kt >> 1) >= 2: adds((kt >> 1) - 2)
    adds(30); adds(31)
    softmax()
    zero_a()
    a("v_add_u32 v33, s57, v2")
    NP = len(vts) // 2
    def rfetch(m):
        if m >= NP: return
        for h in range(2):
            n = 64 + 2*m + h
            rload(n + 16)
            a(f"s_waitcnt vmcnt({min(16, NT - 1 - n)})\nds_read_b128 {R4(4 + 8*(m&1) + 4*h)}, v33 offset:{slot(n)*1024}")
    rfetch(0)
    for m in range(NP):
        build(vts[2*m] >> 1, m & 1)
        rfetch(m + 1)
        a(f"s_waitcnt lgkmcnt({2 if m + 1 < NP else 0})")
        vmm(R8(4 + 8*(m&1)), m & 1)
    if cfg.j0 == 64:
        a("s_branch L_att_epi")
    else:
        a(f"""v_mov_b32 v47, v20
        ds_write_b128 v33, v[24:27] offset:{14*1024}
        ds_write_b128 v33, v[28:31] offset:{15*1024}
        ds_write_b64 v33, v[46:47] offset:{17*1024}
        ds_write_b128 v33, v[42:45] offset:{16*1024}
        s_waitcnt lgkmcnt(0)""")
        ret()
        a.hist = []
        a.label("SUB_RESUME")
        a(f"s_mov_b32 s82, {8 + cfg.j0//8}\ns_call_b64 s[80:81], SUB_LN")
        if cfg.j0 <= 48: a("s_call_b64 s[80:81], SUB_LN")
        att_pre()
        a(f"""v_add_u32 v33, s57, v2
        ds_read_b128 v[24:27], v33 offset:{14*1024}
        ds_read_b128 v[28:31], v33 offset:{15*1024}
        ds_read_b128 v[42:45], v33 offset:{16*1024}
        ds_read_b64 v[22:23], v33 offset:{17*1024}
        v_and_b32 v32, 3, v0
        v_mul_u32_u24 v32, 0x5555, v32
        s_mov_b64 vcc, -1
        s_waitcnt lgkmcnt(0)
        v_mov_b32 v46, v22
        v_mov_b32 v20, v23""")
        build(cfg.j0 // 2, (cfg.j0 // 2) & 1)
        a.flush()
        a("s_branch L_att_resume")

for Lo, Lb, wait, depth in tramps:
    a.hist = []
    a.label(Lo)
    if wait and cfg.adapt:
        a(f"s_call_b64 s[34:35], SUB_LNW\ns_branch {Lb}")
        continue
    for d in range(1, depth + 1):
        a("s_call_b64 s[80:81], SUB_LN")
        L2 = a.newlabel("Lt2")
        if d < depth: a(f"s_cmp_lt_u32 s82, 16\ns_cbranch_scc1 {L2}")
        if wait: a(f"s_waitcnt vmcnt({8*d})")
        a(f"s_branch {Lb}")
        if d < depth: a.label(L2)
for Rr, L, D, sl in retries:
    a.hist = []
    a.label(Rr)
    a(f"s_sleep {sl}\ns_add_u32 s68, s68, 1\ns_cmp_lt_u32 s68, {cfg.spin}\ns_cbranch_scc1 {L}\ns_branch {D}")
if cfg.stamps:
    n = len(stamp_names)
    a.hist = []
    a.label("L_stamps")
    if cfg.dbg:
        sel = ["start", "start", "q1", "P1b0", "wq0", "s.ring", "P2b0", "s.P1b1", "s.fin0", "P1b1", "c.B", "c.wq", "s.rel", "s.end", "f.B", "end"]
        a("v_mov_b32 v6, 0")
        a(f"s_not_b32 s70, s{POOL[0]}\nv_writelane_b32 v6, s70, 0")
        for i, nm in enumerate(sel):
            if i and nm in stamp_names: a(f"v_writelane_b32 v6, s{POOL[stamp_names.index(nm)]}, {i}")
        a("v_lshrrev_b32 v4, 2, v2\ns_mov_b64 exec, 0xffff\nglobal_atomic_umax v4, v6, s[54:55] sc1\ns_branch L_fin")
    a(f"""s_lshl_b32 s70, s2, 2
    s_add_u32 s70, s70, s3
    s_mul_i32 s70, s70, {8*n}
    s_add_u32 s70, s70, {STAMP}
    v_mov_b32 v4, 0
    v_mov_b32 v7, 0
    s_mov_b64 exec, 1""")
    if cfg.hwid:
        a(f"s_getreg_b32 s71, hwreg(HW_REG_HW_ID)\ns_getreg_b32 s72, hwreg(HW_REG_XCC_ID)\ns_and_b32 s71, s71, 0xffff\ns_and_b32 s72, s72, 15\ns_lshl_b32 s72, s72, 16\ns_or_b32 s71, s71, s72\ns_add_u32 s{POOL[1]}, s{POOL[0]}, s71")
    for i in range(n):
        a(f"v_mov_b32 v6, s{POOL[i]}\nbuffer_store_dwordx2 v[6:7], v4, s[16:19], s70 offen offset:{8*i}\ns_nop 1")
    a("s_branch L_fin")
    open(sys.argv[1] + ".names", "w").write(" ".join(stamp_names))
    print("nstamps", n, file=sys.stderr)
a.label("L_code_end")
hdr = open("cdna_kernels/" + NAME + ".s.ref").read().split("; Override launch")[0]
out = hdr + f"; @launch grid=(256,1,1) block=(256,1,1) lds={LDS_TOTAL}\n"
out += f""".amdgcn_target "amdgcn-amd-amdhsa--gfx950"
.text
.globl {NAME}_kernel
.p2align 8
.type {NAME}_kernel,@function
{NAME}_kernel:
""" + a.text() + f""".section .rodata,"a"
.p2align 6
.amdhsa_kernel {NAME}_kernel
  .amdhsa_next_free_vgpr 512
  .amdhsa_next_free_sgpr 102
  .amdhsa_accum_offset 256
  .amdhsa_group_segment_fixed_size 0
  .amdhsa_kernarg_size 104
  .amdhsa_user_sgpr_count 2
  .amdhsa_user_sgpr_kernarg_segment_ptr 1
  .amdhsa_system_sgpr_workgroup_id_x 1
.end_amdhsa_kernel
"""
open(sys.argv[1], "w").write(out)
print("nops added", a.nops_added, "lines", len(a.lines), file=sys.stderr)
```

```python
import sys, struct, math
sys.path.insert(0, "gen")
from asmlib import *

NAME = "interleave_layers__gqa_block_cached__mixer_token_mlp__decode"
def f32(x): return "0x%08x" % struct.unpack("<I", struct.pack("<f", x))[0]

class Cfg:
    stamps = 0
    spin = 20000
    s0 = dict(A=18, B=17, C=18, D=8, X=18, Y=18)
    s1 = 2
    sh = 2
    sg = 8
    go = 24
    roles = 1
    latew = 0
    vsites = 1
    l2n = 128
    dbg = 0
    n0 = 16
    n1 = 5
    thr = 3
    hint = -1
    pfc = 0
    pfi = 3
    cpf = 1
    hwid = 0
    late2 = 1
    adapt = 1
    warm = 0
    relfirst = 0
    ksites = 1
    pf0 = 8
    nogo = 1
    xthr = 0
    thrm = 4
    sA2 = 0
    sB2 = 32
    aw = 0
    d0 = 2
    thrall = 0
    thr3 = 0
    go0 = 32
    j0 = 48
    fa = 3
    dw = 2
    pre = 8
    d1 = 3
    d2 = 1
    d3 = 4
    d4 = 3
cfg = Cfg()
for arg in sys.argv[2:]:
    k, v = arg.split("=")
    if k.startswith("s0"): cfg.s0[k[2]] = int(v)
    else: setattr(cfg, k, int(v))

W = 52; NL = 13; NS = 20
LV = 0; LWO = 53248; LWQ = 86016; LMX = 118784; LXB = 146432; LX = 151040; LQ = 160256; LLN = 162304; LRED = 163456
LO = LX + 8448
LDS_TOTAL = 163840
A_O = lambda i: i * 0x40000
A_L = lambda i: 0x100000 + i * 0x1000
B_A = lambda i: 0x110000 + i * 0x10000
C_A = lambda i: 0x150000 + i * 0x1000
H_A = lambda i: 0x158000 + i * 0x1000
D_A = lambda i: 0x160000 + i * 0x40000
STAMP = 0x10000000
CSM = math.log2(math.e) / math.sqrt(128.0)
C1 = -2.0 * math.sqrt(2.0 / math.pi) * math.log2(math.e)
C2 = C1 * 0.044715
GS = (-C2) ** (1.0 / 3.0)
GA = -C1 / GS
DPPALL = "row_mask:0xf bank_mask:0xf"
CTL4 = ["quad_perm:[1,0,3,2]", "quad_perm:[2,3,0,1]", "row_half_mirror", "row_mirror"]

a = Asm()
POOL = list(range(83, 100)) + [32, 33, 38, 39, 43, 50, 51]
stamp_names = []
def stamp(name, cond=None):
    if not cfg.stamps: return
    if name in stamp_names: r = POOL[stamp_names.index(name)]
    else:
        r = POOL[len(stamp_names)]; stamp_names.append(name)
    a("s_memrealtime s[100:101]\ns_waitcnt lgkmcnt(0)")
    if cond is None: a(f"s_mov_b32 s{r}, s100")
    else: a(f"s_cmp_eq_u32 s79, {cond}\ns_cselect_b32 s{r}, s100, s{r}")

def khome(kt): return f"a[{4*kt}:{4*kt+3}]"
LDS_T = [0, 1, 4, 5, 8, 9, 12, 13, 16, 17, 20, 21, 24]
REG_T = [25] + [t for t in range(64) if t not in LDS_T and t != 25]
def vreg(vt): return W + 4 * REG_T.index(vt)
def vhome(vt):
    r = vreg(vt); return f"v[{r}:{r+3}]"
def R8(r): return f"v[{r}:{r+7}]"
def R4(r): return f"v[{r}:{r+3}]"
def R2(r): return f"v[{r}:{r+1}]"

def load_k(kts):
    lastG = None
    for kt in kts:
        G, t, half = kt >> 3, (kt >> 1) & 3, kt & 1
        if G != lastG:
            a(f"s_add_u32 s28, s27, {G*8192}"); lastG = G
        a(f"buffer_load_dwordx4 {khome(kt)}, v1, s[8:11], s28 offen offset:{t*512+half*128} nt")
def load_v(vts):
    lastQ = None
    for vt in vts:
        Q = vt >> 2
        if Q != lastQ:
            a(f"s_add_u32 s28, s27, {Q*4096}")
            if vt in LDS_T: a(f"s_add_u32 m0, s29, {LDS_T.index(vt)*1024 - (vt&3)*1024}")
            lastQ = Q
        if vt in LDS_T:
            a(f"buffer_load_dwordx4 v2, s[12:15], s28 offen offset:{(vt&3)*1024} nt lds")
        else:
            a(f"buffer_load_dwordx4 {vhome(vt)}, v2, s[12:15], s28 offen offset:{(vt&3)*1024} nt")

def rbf(v, t):
    a(f"v_cvt_pk_bf16_f32 v{t}, v{v}, v{v}\nv_lshlrev_b32 v{v}, 16, v{t}")
def rows_reduce(op, v, t):
    a(f"v_mov_b32 v{t}, v{v}\nv_permlane16_swap_b32 v{v}, v{t}\n{op} v{v}, v{v}, v{t}")
    a(f"v_mov_b32 v{t}, v{v}\nv_permlane32_swap_b32 v{v}, v{t}\n{op} v{v}, v{v}, v{t}")
def row16_reduce(op, vs):
    for ctl in CTL4:
        for v in vs: a(f"{op}_dpp v{v}, v{v}, v{v} {ctl} {DPPALL}")
def sum_to_row3(vs, fillers=()):
    fillers = list(fillers)
    steps = [f"{c} {DPPALL}" for c in CTL4] + ["row_bcast:15 row_mask:0xa bank_mask:0xf", "row_bcast:31 row_mask:0xc bank_mask:0xf"]
    per = (len(fillers) + 5) // 6
    for st in steps:
        for _ in range(per):
            if fillers: a(fillers.pop(0))
        for v in vs: a(f"v_add_f32_dpp v{v}, v{v}, v{v} {st}")
def stats(P, s1, s2, fillers=()):
    for i, p in enumerate(P):
        a(f"v_dot2_f32_bf16 v{s1}, v{p}, s67, {'0' if i == 0 else 'v%d' % s1}")
        a(f"v_dot2_f32_bf16 v{s2}, v{p}, v{p}, {'0' if i == 0 else 'v%d' % s2}")
    sum_to_row3([s1, s2], fillers)
    a(f"v_mul_f32 v{s1}, {f32(1.0/576)}, v{s1}\nv_mul_f32 v{s2}, {f32(1.0/576)}, v{s2}\nv_fma_f32 v{s2}, -v{s1}, v{s1}, v{s2}\nv_max_f32 v{s2}, 0, v{s2}")
def ln_scalars(m, q, mb, r, t):
    a(f"v_cvt_pk_bf16_f32 v{t}, v{m}, v{q}\nv_and_b32 v{r}, 0xffff0000, v{t}\nv_lshlrev_b32 v{mb}, 16, v{t}\nv_add_f32 v{r}, {f32(1e-5)}, v{r}")
    rbf(r, t); a(f"v_sqrt_f32 v{r}, v{r}"); rbf(r, t); a(f"v_rcp_f32 v{r}, v{r}")

def check_sentinel(regs, t):
    regs = list(regs)
    if len(regs) % 2 == 0:
        a(f"v_max_u32 v{t}, v{regs[0]}, v{regs[1]}"); regs = regs[2:]
    else:
        a(f"v_max3_u32 v{t}, v{regs[0]}, v{regs[1]}, v{regs[2]}"); regs = regs[3:]
    for i in range(0, len(regs), 2):
        a(f"v_max3_u32 v{t}, v{t}, v{regs[i]}, v{regs[i+1]}")
    a(f"v_cmp_eq_u32 vcc, -1, v{t}")

tramps = []
def ln(wait, depth=None):
    Lo = a.newlabel("Lt"); Lb = a.newlabel("Ltb")
    a(f"s_cmp_lt_u32 s82, 16\ns_cbranch_scc1 {Lo}")
    if wait: a("s_waitcnt vmcnt(0)")
    a.label(Lb)
    tramps.append((Lo, Lb, wait, depth or (cfg.dw if wait else 1)))
retries = []
def poll(issue, check, s0=0, depth=None, s0w=None):
    L = a.newlabel("Lpoll"); D = a.newlabel("Lpd"); Rr = a.newlabel("Lpr")
    a("s_mov_b32 s68, 0")
    if s0 and s0w is not None and s0w < s0:
        Ls = a.newlabel("Lsl")
        a(f"s_cmp_eq_u32 s3, 0\ns_cbranch_scc1 {Ls}\ns_sleep {s0 - s0w}"); a.label(Ls)
        if s0w: a(f"s_sleep {s0w}")
    elif s0: a(f"s_sleep {s0}")
    a.label(L)
    issue(); ln(True, depth)
    check()
    a(f"s_cbranch_vccnz {Rr}")
    a.label(D)
    retries.append((Rr, L, D, cfg.s1))
def ln_until(n):
    L = a.newlabel("Lrest"); D = a.newlabel("Lrd")
    a.label(L); a(f"s_cmp_ge_u32 s82, {n}\ns_cbranch_scc1 {D}\ns_call_b64 s[80:81], SUB_LN\ns_branch {L}"); a.label(D)
def call(lbl):
    a.flush(); a(f"s_call_b64 s[30:31], {lbl}")
def ret():
    a.flush(); a("s_setpc_b64 s[30:31]")
def flagwait(inst, sl, off=0, count=0):
    a(f"s_lshl_b32 s70, s4, 7\ns_add_u32 s70, s70, {H_A(inst)+off}\nv_mov_b32 v4, 0")
    L = a.newlabel("Lh"); D = a.newlabel("Lhd")
    a(f"s_mov_b32 s68, 0\ns_cmp_lg_u32 s3, 0\ns_cbranch_scc1 {D}")
    a.label(L)
    a(f"buffer_load_dword v5, v4, s[16:19], s70 offen sc1\ns_waitcnt vmcnt(0)")
    a(f"v_cmp_gt_i32 vcc, {count*0xffff - 1}, v5" if count else "v_cmp_eq_u32 vcc, -1, v5")
    a(f"s_cbranch_vccz {D}")
    a(f"s_sleep {sl}\ns_add_u32 s68, s68, 1\ns_cmp_lt_u32 s68, {cfg.spin}\ns_cbranch_scc1 {L}")
    a.label(D)
    a("s_barrier")

def qg_issue(base, sb):
    for i in range(9):
        a(f"buffer_load_dword v{base+i}, v22, s[16:19], s{sb + (i>>2)} offen offset:{(i&3)*1024} sc1")
def qg_sum(base):
    b = base
    a(f"""v_add_f32 v{b}, v{b}, v{b+1}
    v_add_f32 v{b+2}, v{b+2}, v{b+3}
    v_add_f32 v{b+4}, v{b+4}, v{b+5}
    v_add_f32 v{b+6}, v{b+6}, v{b+7}
    v_add_f32 v{b}, v{b}, v{b+2}
    v_add_f32 v{b+4}, v{b+4}, v{b+6}
    v_add_f32 v{b}, v{b}, v{b+8}
    v_add_f32 v{b}, v{b}, v{b+4}
    v_cvt_pk_bf16_f32 v{b}, v{b}, v{b}""")

a(f"""
s_cmp_ge_u32 s2, 256
s_cbranch_scc1 L_end
s_load_dwordx16 s[32:47], s[0:1], 0
s_load_dwordx8 s[48:55], s[0:1], 64
s_load_dwordx2 s[56:57], s[0:1], 96
v_lshrrev_b32 v1, 6, v0
v_readfirstlane_b32 s3, v1
v_and_b32 v0, 63, v0
s_lshr_b32 s4, s2, 4
s_and_b32 s6, s2, 15
s_add_u32 s5, s6, s4
s_and_b32 s5, s5, 15
v_lshlrev_b32 v2, 4, v0
v_bfe_u32 v1, v0, 2, 2
v_lshlrev_b32 v1, 11, v1
v_bfe_u32 v3, v0, 1, 1
v_lshl_add_u32 v1, v3, 8, v1
v_lshrrev_b32 v3, 4, v0
v_lshl_add_u32 v1, v3, 5, v1
v_and_b32 v3, 1, v0
v_lshl_add_u32 v1, v3, 4, v1
s_lshl_b32 s27, s2, 18
s_lshl_b32 s28, s3, 16
s_add_u32 s27, s27, s28
s_mov_b32 s10, 0x8000000
s_mov_b32 s11, 0x20000
s_mov_b32 s14, 0x8000000
s_mov_b32 s15, 0x20000
s_mov_b32 s18, 0x20000000
s_mov_b32 s19, 0x20000
s_mov_b32 s23, 0x20000
s_waitcnt lgkmcnt(0)
s_mov_b32 s8, s34
s_mov_b32 s9, s35
""")
load_k(range(0, cfg.pre))
a(f"""
s_mov_b32 s12, s36
s_mov_b32 s13, s37
s_mov_b32 s16, s56
s_mov_b32 s17, s57
s_mov_b32 s82, {cfg.pre//8}
s_mov_b32 s79, 0
s_cmp_ge_u32 s5, 9
s_cselect_b32 s42, 1, {cfg.thrall}
""")
if cfg.xthr: a("s_getreg_b32 s42, hwreg(HW_REG_XCC_ID)\ns_andn2_b32 s42, 1, s42")
a(f"""
s_mov_b32 s24, 0xaaaaaaaa
s_mov_b32 s25, 0xaaaaaaaa
v_and_b32 v4, 4, v0
v_lshlrev_b32 v4, 2, v4
v_mov_b32 v3, 0xffff
v_lshlrev_b32 v3, v4, v3
s_mov_b32 s26, {f32(CSM)}
s_mov_b32 s67, 0x3f803f80
s_mul_i32 s29, s3, {NL*1024}
""")
for r in POOL[:17]:
    if cfg.stamps: a(f"s_mov_b32 s{r}, 0")
stamp("start")
if cfg.cpf:
    a(f"""s_cmp_ge_u32 s2, {32*cfg.cpf}
    s_cbranch_scc1 L_nocpf
    s_getpc_b64 s[70:71]
    L_cpf_pc:
    s_lshr_b32 s72, s2, 3
    s_and_b32 s72, s72, 3
    s_lshl_b32 s72, s72, 2
    s_add_u32 s72, s72, s3
    s_lshl_b32 s72, s72, 10
    v_add_u32 v42, s72, v2
    v_add_u32 v43, 0x4000, v42""")
    a.raw("    v_min_u32 v42, L_code_end-L_cpf_pc-16, v42")
    a.raw("    v_min_u32 v43, L_code_end-L_cpf_pc-16, v43")
    a("""global_load_dwordx4 v[44:47], v42, s[70:71]
    global_load_dwordx4 v[48:51], v43, s[70:71]
    L_nocpf:""")
if cfg.warm:
    a("""s_add_u32 s70, s27, 0x4000000
    s_mov_b64 exec, 1
    buffer_load_dword v40, v2, s[12:15], s27 offen nt
    buffer_load_dword v41, v2, s[8:11], s70 offen nt
    buffer_load_dword v42, v2, s[12:15], s70 offen nt
    global_load_ushort v43, v2, s[52:53]
    global_load_dword v44, v2, s[54:55] offset:192
    s_mov_b64 exec, -1""")
a(f"""
v_mov_b32 v4, -1
v_mov_b32 v5, -1
v_mov_b32 v6, -1
v_mov_b32 v7, -1
s_lshl_b32 s70, s3, 18
s_lshl_b32 s71, s2, 10
s_add_u32 s70, s70, s71
buffer_store_dwordx4 v[4:7], v2, s[16:19], s70 offen sc1
s_lshl_b32 s70, s3, 12
s_lshl_b32 s71, s4, 7
s_add_u32 s70, s70, s71
s_lshl_b32 s71, s6, 2
s_add_u32 s70, s70, s71
s_add_u32 s70, s70, {A_L(0)}
v_lshlrev_b32 v8, 6, v0
s_mov_b64 exec, 3
buffer_store_dword v4, v8, s[16:19], s70 offen sc1
s_mov_b64 exec, -1
v_mov_b32 v11, 0
global_load_ushort v23, v11, s[50:51]
s_mul_i32 s7, s4, 9
s_add_u32 s7, s7, s5
s_cmp_ge_u32 s5, 9
s_cbranch_scc1 L_pro_s1
v_lshlrev_b32 v8, 2, v0
s_lshl_b32 s70, s3, 16
s_lshl_b32 s71, s7, 8
s_add_u32 s70, s70, s71
s_add_u32 s70, s70, {B_A(0)}
buffer_store_dword v4, v8, s[16:19], s70 offen sc1
s_lshl_b32 s70, s3, 18
s_lshl_b32 s71, s7, 10
s_add_u32 s70, s70, s71
s_add_u32 s70, s70, {D_A(0)}
buffer_store_dwordx4 v[4:7], v2, s[16:19], s70 offen sc1
s_lshl_b32 s70, s3, 12
s_lshl_b32 s71, s7, 4
s_add_u32 s70, s70, s71
s_add_u32 s70, s70, {C_A(0)}
s_mov_b64 exec, 15
buffer_store_dword v4, v8, s[16:19], s70 offen sc1
s_lshl_b32 s70, s3, 12
s_lshl_b32 s71, s4, 7
s_add_u32 s70, s70, s71
s_add_u32 s70, s70, {H_A(0)}
buffer_store_dword v4, v8, s[16:19], s70 offen sc1
s_mov_b64 exec, -1
s_mov_b32 s20, s32
s_mov_b32 s21, s33
s_mov_b32 s22, 2304
v_lshlrev_b32 v9, 3, v0
v_lshlrev_b32 v10, 1, v0
buffer_load_dwordx2 v[12:13], v9, s[20:23], 0 offen
buffer_load_dwordx2 v[14:15], v9, s[20:23], 0 offen offset:512
buffer_load_ushort v16, v10, s[20:23], 0 offen offset:1024
buffer_load_dwordx2 v[18:19], v9, s[20:23], 0 offen offset:1152
buffer_load_dwordx2 v[20:21], v9, s[20:23], 0 offen offset:1664
buffer_load_ushort v22, v10, s[20:23], 0 offen offset:2176
s_mov_b32 s20, s38
s_mov_b32 s21, s39
s_mov_b32 s22, {576*8192}
v_lshrrev_b32 v24, 5, v0
v_and_b32 v25, 31, v0
v_lshlrev_b32 v25, 4, v25
v_lshlrev_b32 v26, 5, v24
v_xor_b32 v25, v25, v26
v_lshl_add_u32 v24, v24, 13, v25
v_xor_b32 v25, 64, v24
v_xor_b32 v26, 128, v24
v_xor_b32 v27, 192, v24
s_lshl_b32 s70, s5, 19
s_lshl_b32 s71, s3, 17
s_add_u32 s70, s70, s71
s_lshl_b32 s71, s4, 9
s_add_u32 s70, s70, s71
s_lshl_b32 s71, s3, 13
s_add_u32 s71, s71, {LWQ}
""")
for i in range(8):
    fs = ((i >> 2) & 1) * 2 + (i & 1)
    a(f"s_add_u32 m0, s71, {i*1024}\nbuffer_load_dwordx4 v{24+fs}, s[20:23], s70 offen nt lds")
    if i < 7: a("s_add_u32 s70, s70, 16384")
a.label("L_pro_s1")
ln(True, cfg.d1)
pass
a(f"""
v_lshlrev_b32 v23, 16, v23
v_readfirstlane_b32 s78, v23
s_mov_b32 s56, {LMX}
s_cmp_ge_u32 s5, 9
s_cbranch_scc1 L_pro_s2
v_add_u32 v24, {LXB}, v2
v_lshlrev_b32 v25, 2, v0
v_add_u32 v25, {LXB+2048}, v25
""")
for b in range(2):
    r = 12 + 6 * b
    a(f"""v_lshlrev_b32 v28, 16, v{r}
    v_and_b32 v29, 0xffff0000, v{r}
    v_lshlrev_b32 v30, 16, v{r+1}
    v_and_b32 v31, 0xffff0000, v{r+1}
    v_lshlrev_b32 v32, 16, v{r+2}
    v_and_b32 v33, 0xffff0000, v{r+2}
    v_lshlrev_b32 v34, 16, v{r+3}
    v_and_b32 v35, 0xffff0000, v{r+3}
    v_lshlrev_b32 v36, 16, v{r+4}
    ds_write_b128 v24, v[28:31] offset:{b*2304}
    ds_write_b128 v24, v[32:35] offset:{b*2304+1024}
    ds_write_b32 v25, v36 offset:{b*2304}
    s_waitcnt lgkmcnt(0)""")
a.label("L_pro_s2")
a(f"""
s_barrier
s_cmp_lg_u32 s3, {cfg.aw}
s_cbranch_scc1 L_pro_arr
v_mov_b32 v4, 0
v_mov_b32 v5, 1
s_mov_b64 exec, 1
global_atomic_add v6, v4, v5, s[54:55] offset:64 sc0 sc1
s_mov_b64 exec, -1
""")
ln(True, cfg.d0)
a(f"""v_readfirstlane_b32 s70, v6
s_cmp_lg_u32 s70, 255
s_cbranch_scc1 L_pro_arr
s_mov_b64 exec, 1
global_store_dword v4, v5, s[54:55] offset:128 sc1
s_mov_b64 exec, -1
L_pro_arr:
s_cmp_ge_u32 s5, 9
s_cbranch_scc1 L_pro_s3
""")
for b in range(2):
    a(f"s_mov_b32 s63, 1\ns_mov_b32 s64, {LXB + b*2304}\ns_mov_b32 s62, {D_A(b)}")
    call("SUB_CH2")
    if b == 0: a("s_barrier")
def load_wo():
    a(f"""
    s_mov_b32 s20, s40
    s_mov_b32 s21, s41
    s_mov_b32 s22, {4096*1152}
    v_lshrrev_b32 v24, 3, v0
    v_mul_u32_u24 v24, 1152, v24
    v_and_b32 v25, 7, v0
    v_lshlrev_b32 v25, 4, v25
    v_bfe_u32 v26, v0, 4, 1
    v_lshlrev_b32 v26, 5, v26
    v_xor_b32 v25, v25, v26
    v_xor_b32 v26, 64, v25
    v_add_u32 v25, v25, v24
    v_add_u32 v26, v26, v24
    s_lshl_b32 s70, s4, 2
    s_add_u32 s70, s70, s3
    s_mul_i32 s70, s70, {64*1152}
    s_lshl_b32 s71, s5, 7
    s_add_u32 s70, s70, s71
    s_lshl_b32 s71, s3, 13
    s_add_u32 s71, s71, {LWO}
    """)
    for i in range(8):
        a(f"s_add_u32 m0, s71, {i*1024}\nbuffer_load_dwordx4 v{25+(i&1)}, s[20:23], s70 offen nt lds")
        if i < 7: a(f"s_add_u32 s70, s70, {8*1152}")
def load_mixer(base):
    a(f"""
    s_lshl_b32 s70, s3, 10
    v_add_u32 v24, s70, v2
    v_add_u32 v25, 4096, v24
    v_add_u32 v26, 8192, v2
    s_add_u32 s71, s70, {base}
    """)
    for j, p in enumerate((44, 46, 48)):
        a(f"""s_add_u32 m0, s71, {j*9216}
        global_load_lds_dwordx4 v24, s[{p}:{p+1}]
        s_add_u32 m0, s71, {j*9216+4096}
        global_load_lds_dwordx4 v25, s[{p}:{p+1}]
        s_mov_b32 m0, {base+j*9216+8192}
        global_load_lds_dwordx4 v26, s[{p}:{p+1}]""")
if not cfg.latew:
    load_wo(); load_mixer(LMX)
a.label("L_pro_s3")
for r in POOL[17:]:
    if cfg.stamps: a(f"s_mov_b32 s{r}, 0")
ln(False, cfg.d2)
a("v_mov_b32 v4, 0")
poll(lambda: a("global_load_dword v5, v4, s[54:55] offset:128 sc1"), lambda: a("v_cmp_eq_u32 vcc, 0, v5"), depth=cfg.d3)
stamp("cnt")
a(f"""s_lshl_b32 s70, s3, 8
v_lshl_add_u32 v22, v0, 2, s70
s_mul_i32 s69, s4, 9216
s_add_u32 s70, s69, {D_A(0)}
s_add_u32 s71, s70, 4096
s_add_u32 s72, s70, 8192
s_add_u32 s73, s69, {D_A(1)}
s_add_u32 s74, s73, 4096
s_add_u32 s75, s73, 8192
v_lshrrev_b32 v24, 1, v22
v_add_u32 v24, {LQ}, v24""")
poll(lambda: (qg_issue(4, 70), qg_issue(13, 73)), lambda: check_sentinel(range(4, 22), 23), depth=cfg.d4)
qg_sum(4); qg_sum(13)
a("ds_write_b16 v24, v4\nds_write_b16 v24, v13 offset:512")
stamp("q1")
ln_until(10)
a("s_waitcnt lgkmcnt(0)\ns_barrier")

def att_params(ai, seq):
    a(f"s_mov_b32 s58, {A_O(ai)}\ns_mov_b32 s59, {A_L(ai)}\ns_mov_b32 s65, {LQ + ai*512}\ns_mov_b32 s64, {LX + (seq&1)*4224}")
def hint_addr(ai):
    a(f"s_lshl_b32 s62, s4, 7\ns_add_u32 s62, s62, {H_A(ai)+8}")
def att_p1(ai, seq):
    att_params(ai, seq); hint_addr(ai); a("s_mov_b64 vcc, -1"); call("SUB_ATT")
def qatt(ai, seq, loadnext):
    att_params(ai, seq); a(f"s_mov_b32 s62, {D_A(ai)}\ns_mov_b32 s63, {2 if loadnext else 0}"); call("SUB_QATT")
def ch1(inst, final, entry="SUB_CH1", aonly=False):
    b = inst & 1
    a(f"s_mov_b32 s58, {A_O(inst)}\ns_mov_b32 s59, {A_L(inst)}\ns_mov_b32 s60, {B_A(inst)}\ns_mov_b32 s64, {LXB + b*2304}")
    a(f"s_mov_b32 s63, {2 if aonly else 1 if final else 0}\ns_mov_b32 s61, {b*1152 if final else C_A(inst)}")
    call(entry)
def ch2(inst):
    b = inst & 1
    a(f"s_mov_b32 s63, 0\ns_mov_b32 s61, {C_A(inst)}\ns_mov_b32 s64, {LXB + b*2304}\ns_mov_b32 s62, {D_A(2+inst)}")
    call("SUB_CH2")

a(f"s_cmp_eq_u32 s3, 0\ns_cselect_b32 s63, 4, 0\ns_lshl_b32 s60, s4, 7\ns_add_u32 s60, s60, {H_A(2)+4}")
att_p1(0, 0)
stamp("P1b0")
a("s_add_u32 s27, s27, 0x4000000\ns_cmp_ge_u32 s5, 9\ns_cbranch_scc1 L_srole")
a(f"s_mov_b32 s42, {cfg.thr3}")
if cfg.latew:
    load_wo(); load_mixer(LMX)
    a("s_waitcnt vmcnt(9)\ns_barrier")
ch1(0, False); ch2(0)
stamp("wq0")
a(f"s_mov_b32 s69, {cfg.s0['D']}")
qatt(2, 1, True)
stamp("P2b0")
if cfg.roles:
    ln_until(cfg.fa)
    ch1(2, True, aonly=True)
    a(f"""s_or_b32 s70, s5, s3
    s_cbranch_scc1 L_nf3
    s_lshl_b32 s70, s4, 7
    s_add_u32 s70, s70, {H_A(3)}
    s_mov_b64 exec, 1
    buffer_store_dword v2, v2, s[16:19], s70 offen sc1
    s_mov_b64 exec, -1
    L_nf3:""")
else:
    ch1(2, True)
stamp("fin0")
ln_until(10)
a(f"s_cmp_eq_u32 s3, 0\ns_cselect_b32 s63, 3, 0\ns_lshl_b32 s60, s4, 7\ns_add_u32 s60, s60, {H_A(2)}")
att_p1(1, 2)
stamp("P1b1")
a("s_mov_b32 s79, 1")
ch1(1, False); ch2(1)
qatt(3, 3, False)
stamp("P2b1")
a("s_mov_b32 s79, 2")
ch1(3, True)
stamp("end")
a("s_branch L_stamps" if cfg.stamps else "s_branch L_fin")
def s_reload():
    if not cfg.nogo: flagwait(2, cfg.sg, 0, cfg.n1)
    stamp("s.go")
    a("s_mov_b32 s82, 0")
    ln_until(8)
    load_v([t for t in range(cfg.j0) if t not in LDS_T])
    a("s_mov_b32 s29, s57")
    a("s_mov_b32 s82, 16")
    if cfg.stamps: a("s_waitcnt vmcnt(0)")
    stamp("s.rel")
a.label("L_srole")
a("s_mov_b32 s42, 0")
a(f"s_mov_b32 s69, 0")
if cfg.roles:
    a(f"s_mul_i32 s57, s3, {NS*1024}\ns_add_u32 s57, s57, {LWO}")
    if cfg.go0 >= 0: flagwait(2, cfg.sh, 4, cfg.n0)
    att_params(1, 1); call("SUB_RING")
    stamp("s.ring")
    flagwait(0, cfg.sh)
    qatt(2, 2, False)
    stamp("s.P2b0")
    if cfg.j0 < 64:
        att_params(1, 1); hint_addr(1); a("s_mov_b32 s63, 0"); call("SUB_RESUME")
        stamp("s.P1b1")
    if cfg.pf0 < 8:
        nun = 36 * (8 - cfg.pf0)
        a(f"""v_lshlrev_b32 v4, 7, v0
        s_sub_u32 s70, s5, 9
        s_lshl_b32 s70, s70, 2
        s_add_u32 s70, s70, s3
        s_mov_b32 s71, {(1 << 32) // 36 + 1}""")
        for i in range((nun + 27) // 28):
            L = a.newlabel("Lpf")
            if (i + 1) * 28 > nun: a(f"s_cmp_ge_u32 s70, {nun}\ns_cbranch_scc1 {L}")
            a(f"""s_mul_hi_u32 s72, s70, s71
            s_mul_i32 s73, s72, 36
            s_sub_u32 s73, s70, s73
            s_lshr_b32 s74, s73, 2
            s_sub_u32 s74, s74, s4
            s_and_b32 s74, s74, 15
            s_lshl_b32 s75, s4, 4
            s_add_u32 s74, s74, s75
            s_lshl_b32 s74, s74, 18
            s_and_b32 s73, s73, 3
            s_lshl_b32 s73, s73, 16
            s_add_u32 s74, s74, s73
            s_lshl_b32 s72, s72, 13
            s_add_u32 s74, s74, s72
            s_add_u32 s74, s74, {0x4000000 + cfg.pf0 * 8192}
            s_add_u32 s73, s74, 4096
            s_add_u32 s70, s70, 28""")
            for t in range(8): a(f"buffer_load_dwordx4 a[{4*t}:{4*t+3}], v2, s[12:15], s{74 if t < 4 else 73} offen offset:{(t&3)*1024}")
            a.label(L)
    if cfg.relfirst: s_reload()
    load_mixer(0)
    a(f"""s_mov_b32 s56, 0
    s_mov_b32 s70, {C_A(0)}
    v_lshlrev_b32 v13, 2, v0
    buffer_load_dwordx4 v[4:7], v2, s[16:19], s70 offen sc1
    buffer_load_dwordx4 v[8:11], v2, s[16:19], s70 offen offset:1024 sc1
    buffer_load_dword v12, v13, s[16:19], s70 offen offset:2048 sc1
    v_add_u32 v14, {LXB}, v2
    v_add_u32 v13, {LXB}, v13
    s_mul_i32 s7, s4, 7
    s_add_u32 s7, s7, s5
    s_sub_u32 s7, s7, 9
    s_waitcnt vmcnt(0)
    ds_write_b128 v14, v[4:7]
    ds_write_b128 v14, v[8:11] offset:1024
    ds_write_b32 v13, v12 offset:2048""")
    flagwait(3, cfg.sg)
    ch1(2, True, entry="SUB_CH1B")
    if not cfg.late2:
        a("s_add_u32 s7, s7, 112\ns_cmp_ge_u32 s7, 144\ns_cbranch_scc1 L_s_nf")
        call("SUB_CH1B")
        a.label("L_s_nf")
    stamp("s.fin0")
    if not cfg.relfirst: s_reload()
else:
    flagwait(0, cfg.sh)
    qatt(2, 1, True)
    ln_until(10)
    a("s_mov_b32 s63, 0")
    att_p1(1, 2)
    stamp("s.P1b1")
flagwait(1, cfg.sh)
qatt(3, 2 if (cfg.roles and cfg.j0 < 64) else 3, False)
stamp("s.end")
if cfg.roles and cfg.late2:
    a("s_add_u32 s7, s7, 112\ns_cmp_ge_u32 s7, 144\ns_cbranch_scc1 L_s_nf")
    ch1(2, True, entry="SUB_CH1B")
    stamp("end")
    a.label("L_s_nf")
if cfg.stamps: a("s_branch L_stamps")
a.label("L_fin")
a("s_waitcnt vmcnt(0)")
a.label("L_end")
a("s_endpgm")

def att_pre(zero=True):
    a(f"""
    v_bfe_u32 v15, v0, 1, 1
    v_lshlrev_b32 v12, 8, v15
    v_lshrrev_b32 v13, 4, v0
    v_lshl_add_u32 v12, v13, 5, v12
    v_and_b32 v14, 1, v0
    v_lshl_add_u32 v12, v14, 4, v12
    v_add_u32 v12, s65, v12
    v_bfe_u32 v15, v0, 4, 1
    v_lshlrev_b32 v47, 9, v15
    v_and_b32 v15, 15, v0
    v_lshl_add_u32 v47, v15, 5, v47
    v_lshrrev_b32 v15, 5, v0
    v_lshl_add_u32 v47, v15, 4, v47
    s_lshl_b32 s70, s3, 10
    s_add_u32 s70, s70, s64
    v_add_u32 v47, s70, v47
    """)
    if zero: zero_a()
def zero_a():
    for i in range(12): a(f"v_mov_b32 v{34+i}, 0")
def Dset(i): return 12 + 4 * (i % 3)
def adds(i):
    G, t = i >> 2, i & 3; d = Dset(i)
    a(f"v_add_f32_dpp v32, v{d+1}, v{d} quad_perm:[1,0,3,2] row_mask:{1<<t:#x} bank_mask:0xf")
    a(f"v_add_f32_dpp v33, v{d+2}, v{d+3} quad_perm:[1,0,3,2] row_mask:{1<<t:#x} bank_mask:0xf")
    if t == 3:
        a(f"v_cndmask_b32 v{24+G}, v32, v33, s[24:25]")
        if G == 1: a("v_max_f32 v46, v24, v25")
        elif G % 2 == 1: a(f"v_max3_f32 v46, v46, v{23+G}, v{24+G}")
def kmm(kt, src):
    d = Dset(kt >> 1)
    if kt & 1: a(f"v_mfma_f32_16x16x32_bf16 {R4(d)}, v[8:11], {src}, {R4(d)}")
    else: a(f"v_mfma_f32_16x16x32_bf16 {R4(d)}, v[4:7], {src}, 0")
def softmax():
    for ctl in ("quad_perm:[2,3,0,1]", "row_ror:4", "row_ror:8"):
        a(f"v_max_f32_dpp v46, v46, v46 {ctl} {DPPALL}")
    rows_reduce("v_max_f32", 46, 32)
    a("v_mul_f32 v32, s26, v46")
    for G in range(8): a(f"v_fma_f32 v{24+G}, v{24+G}, s26, -v32")
    for G in range(8): a(f"v_exp_f32 v{24+G}, v{24+G}")
    a("v_pk_add_f32 v[4:5], v[24:25], v[26:27]\nv_pk_add_f32 v[6:7], v[28:29], v[30:31]\nv_pk_add_f32 v[4:5], v[4:5], v[6:7]\nv_add_f32 v20, v4, v5")
    lctl = ["quad_perm:[2,3,0,1]", "row_ror:8", "row_ror:4"]
    for G in range(8):
        t = 21 + (G & 1)
        a(f"v_mov_b32_dpp v{t}, v{24+G} quad_perm:[1,0,3,2] {DPPALL}")
        if G in (1, 3, 5): a(f"v_add_f32_dpp v20, v20, v20 {lctl[G//2]} {DPPALL}")
        a(f"v_cvt_pk_bf16_f32 v{24+G}, v{24+G}, v{t}")
    rows_reduce("v_add_f32", 20, 21)
    a("v_and_b32 v32, 3, v0\nv_mul_u32_u24 v32, 0x5555, v32")
def build(p, par):
    G, pi = p >> 2, p & 3
    bs = 34 + 4 * par
    for k in range(4):
        a(f"v_and_b32_dpp v{bs+k}, v{24+G}, v3 row_newbcast:{4*pi + 2*(k>>1)} row_mask:0xf bank_mask:{0xc if k & 1 else 0x3:#x}")
def vmm(src, par):
    a(f"v_smfmac_f32_16x16x64_bf16 v[42:45], {R4(34+4*par)}, {src}, v32")

a.hist = []
a.label("SUB_QATT")
att_pre()
a(f"""s_lshl_b32 s70, s3, 8
v_lshl_add_u32 v22, v0, 2, s70
s_mul_i32 s70, s4, 9216
s_add_u32 s70, s70, s62
s_add_u32 s71, s70, 4096
s_add_u32 s72, s70, 8192
v_lshrrev_b32 v24, 1, v22
v_add_u32 v24, s65, v24
s_cmp_eq_u32 s69, 0
s_cbranch_scc1 L_qatt_ns
s_sleep {max(1, cfg.s0['D'])}
L_qatt_ns:""")
poll(lambda: qg_issue(13, 70), lambda: check_sentinel(range(13, 22), 23))
qg_sum(13)
a("ds_write_b16 v24, v13\ns_cmp_eq_u32 s63, 2\ns_cselect_b32 s82, 0, s82\ns_mov_b64 vcc, 0\ns_waitcnt lgkmcnt(0)\ns_barrier")
stamp("q2b1", 1)
a.label("SUB_ATT2")
outofline = []
def site(fn):
    Lo = a.newlabel("Lo"); Lb = a.newlabel("Lb")
    a(f"s_cbranch_vccnz {Lo}"); a.label(Lb)
    outofline.append((Lo, Lb, fn))
def lnif():
    L = a.newlabel("Lki")
    a(f"s_cmp_ge_u32 s82, 16\ns_cbranch_scc1 {L}\ns_call_b64 s[80:81], SUB_LN"); a.label(L)
a("ds_read_b128 v[4:7], v12\nds_read_b128 v[8:11], v12 offset:128\ns_waitcnt vmcnt(16) lgkmcnt(0)")
for i in range(32):
    kmm(2*i, khome(2*i)); kmm(2*i+1, khome(2*i+1))
    if i >= 2: adds(i - 2)
    if cfg.ksites and i in (0, 15): site(lnif)
    if i in (3, 7):
        Lo = a.newlabel("Lo"); Lb = a.newlabel("Lb")
        a(f"s_cmp_lt_u32 s82, 2\ns_cbranch_scc1 {Lo}"); a.label(Lb)
        outofline.append((Lo, Lb, lambda: a("s_call_b64 s[80:81], SUB_LN")))
adds(30); adds(31)
if cfg.ksites: site(lnif)
softmax()
a("v_add_u32 v33, s29, v2")
sites = list(range(0, 60, 4)) + [60, 62]
done_sites = []
def arrived(t):
    for i in sites:
        if i > t or i in done_sites: continue
        done_sites.append(i)
        nxt = [x for x in sites if x > i]
        last = (nxt[0] if nxt else 64) - 1
        g = min(7, (i >> 3) + 2)
        def fn(i=i, g=g, last=last):
            if i % 8 == 0 and (i >> 3) + 2 <= 7:
                L = a.newlabel("Lsk")
                a(f"s_cmp_gt_u32 s82, {8+g}\ns_cbranch_scc1 {L}\ns_call_b64 s[80:81], SUB_LN"); a.label(L)
            a(f"s_waitcnt vmcnt({8*g + 7 - last})")
            for gi, code in ((cfg.go, 3), (cfg.go0, 4)):
              if i == gi:
                L = a.newlabel("Lsg")
                a(f"s_cmp_lg_u32 s63, {code}\ns_cbranch_scc1 {L}\ns_mov_b64 exec, 1\nbuffer_atomic_add v3, v2, s[16:19], s60 offen sc1\ns_mov_b64 exec, -1"); a.label(L)
        site(fn)
def lbuf(p): return 48 if p == 12 else (4 if (p >> 1) % 2 == 0 else 12)
nread = [0]; readpos = {}
def fetch(p):
    if p > 12 or p & 1: return
    arrived(2*p + 1)
    b = lbuf(p)
    a(f"ds_read_b128 {R4(b)}, v33 offset:{p*1024}"); nread[0] += 1
    if p < 12: a(f"ds_read_b128 {R4(b+4)}, v33 offset:{p*1024+1024}"); nread[0] += 1
    readpos[p] = nread[0]
fetch(0); fetch(2); build(0, 0)
for p in range(32):
    if p == cfg.j0 // 2: a.label("L_att_resume")
    if p + 1 < 32: build(p + 1, (p + 1) & 1)
    arrived(2*p + 1)
    if p in readpos:
        a(f"s_waitcnt lgkmcnt({nread[0] - readpos[p]})"); src = R8(lbuf(p))
    else: src = R8(vreg(2*p))
    vmm(src, p & 1)
    fetch(p + 4)
    if cfg.vsites and p in (1, 9, 17, 25):
        Lo = a.newlabel("Lo"); Lb = a.newlabel("Lb")
        a(f"s_cmp_lt_u32 s82, 8\ns_cbranch_scc1 {Lo}"); a.label(Lb)
        outofline.append((Lo, Lb, lambda: a("s_call_b64 s[80:81], SUB_LN")))
a.label("L_att_epi")
a(f"""
s_nop 3
v_and_b32 v32, 1, v0
v_lshlrev_b32 v32, 5, v32
s_lshl_b32 s70, s3, 2
s_add_u32 s70, s70, s64
s_add_u32 s70, s70, 4096
v_add_u32 v32, s70, v32
ds_write2_b32 v32, v46, v20 offset0:0 offset1:4
v_add_u32 v32, s64, v2
v_lshrrev_b32 v33, 5, v0
v_lshlrev_b32 v34, 6, v33
v_lshlrev_b32 v33, 5, v33
v_add_u32 v33, s64, v33
ds_write_b128 v47, v[42:45]
s_lshl_b32 s70, s2, 10
s_add_u32 s70, s70, s58
s_lshl_b32 s71, s4, 7
s_add_u32 s71, s71, s59
s_lshl_b32 s72, s6, 2
s_add_u32 s71, s71, s72
s_cmp_lg_u32 s3, 0
s_waitcnt lgkmcnt(0)
s_barrier
s_cbranch_scc1 L_att_ret
ds_read_b128 v[20:23], v33 offset:4096
ds_read_b128 v[24:27], v33 offset:4112
ds_read_b128 v[4:7], v32
ds_read_b128 v[8:11], v32 offset:1024
ds_read_b128 v[12:15], v32 offset:2048
ds_read_b128 v[16:19], v32 offset:3072
s_waitcnt lgkmcnt(4)
v_max3_f32 v28, v20, v21, v22
v_max_f32 v28, v28, v23
v_mul_f32 v28, s26, v28
""")
for w in range(4): a(f"v_fma_f32 v{20+w}, v{20+w}, s26, -v28")
for w in range(4): a(f"v_exp_f32 v{20+w}, v{20+w}")
a("""v_mul_f32 v30, v20, v24
v_fmac_f32 v30, v21, v25
v_fmac_f32 v30, v22, v26
v_fmac_f32 v30, v23, v27
s_waitcnt lgkmcnt(0)
v_pk_mul_f32 v[4:5], v[4:5], v[20:21] op_sel:[0,0] op_sel_hi:[1,0]
v_log_f32 v29, v30
v_rcp_f32 v30, v30
v_pk_mul_f32 v[6:7], v[6:7], v[20:21] op_sel:[0,0] op_sel_hi:[1,0]
v_pk_fma_f32 v[4:5], v[8:9], v[20:21], v[4:5] op_sel:[0,1,0] op_sel_hi:[1,1,1]
v_pk_fma_f32 v[6:7], v[10:11], v[20:21], v[6:7] op_sel:[0,1,0] op_sel_hi:[1,1,1]
v_pk_fma_f32 v[4:5], v[12:13], v[22:23], v[4:5] op_sel:[0,0,0] op_sel_hi:[1,0,1]
v_pk_fma_f32 v[6:7], v[14:15], v[22:23], v[6:7] op_sel:[0,0,0] op_sel_hi:[1,0,1]
v_pk_fma_f32 v[4:5], v[16:17], v[22:23], v[4:5] op_sel:[0,1,0] op_sel_hi:[1,1,1]
v_pk_fma_f32 v[6:7], v[18:19], v[22:23], v[6:7] op_sel:[0,1,0] op_sel_hi:[1,1,1]
v_pk_mul_f32 v[4:5], v[4:5], v[30:31] op_sel:[0,0] op_sel_hi:[1,0]
v_pk_mul_f32 v[6:7], v[6:7], v[30:31] op_sel:[0,0] op_sel_hi:[1,0]
v_add_f32 v29, v29, v28
buffer_store_dwordx4 v[4:7], v2, s[16:19], s70 offen sc1
s_mov_b32 exec_lo, 1
s_mov_b32 exec_hi, 1
buffer_store_dword v29, v34, s[16:19], s71 offen sc1
s_mov_b64 exec, -1
L_att_ret:""")
ret()
a.hist = []
a.label("SUB_ATT")
att_pre()
a("s_branch SUB_ATT2")
for Lo, Lb, fn in outofline:
    a.hist = []
    a.label(Lo); fn(); a(f"s_branch {Lb}")

a.hist = []
a.label("SUB_LN")
if cfg.thr >= 0: a(f"s_cmp_eq_u32 s42, 0\ns_cbranch_scc1 L_ln_nt\ns_waitcnt vmcnt({cfg.thr})\nL_ln_nt:")
for k in range(15): a(f"s_cmp_eq_u32 s82, {k}\ns_cbranch_scc1 L_lnb{k}")
for k in [15] + list(range(15)):
    a.label(f"L_lnb{k}")
    for hlf in range(2):
        if hlf and cfg.thrm >= 0: a(f"s_cmp_eq_u32 s42, 0\ns_cbranch_scc1 L_lnm{k}\ns_waitcnt vmcnt({cfg.thrm})\nL_lnm{k}:")
        if k < 8: load_k(range(8*k+4*hlf, 8*k+4*hlf+4))
        else: load_v(range(8*(k-8)+4*hlf, 8*(k-8)+4*hlf+4))
    a("s_add_u32 s82, s82, 1\ns_setpc_b64 s[80:81]")

a.hist = []
a.label("SUB_LNW")
a(f"""s_mov_b32 s36, 0
L_lnw_i:
s_call_b64 s[80:81], SUB_LN
s_add_u32 s36, s36, 8
L_lnw_c:
s_getreg_b32 s37, hwreg(HW_REG_IB_STS)
s_and_b32 s28, s37, 15
s_lshr_b32 s37, s37, 18
s_and_b32 s37, s37, 0x30
s_or_b32 s37, s37, s28
s_cmp_le_u32 s37, s36
s_cbranch_scc1 L_lnw_r
s_cmp_ge_u32 s82, 16
s_cbranch_scc1 L_lnw_s
s_cmp_lt_u32 s37, 40
s_cbranch_scc1 L_lnw_i
L_lnw_s:
s_sleep 1
s_branch L_lnw_c
L_lnw_r:""")
for n in (8, 16, 24, 32, 40):
    a(f"s_cmp_gt_u32 s36, {n}\ns_cbranch_scc1 L_lnw_r{n}\ns_waitcnt vmcnt({n})\ns_setpc_b64 s[34:35]\nL_lnw_r{n}:")
a("s_waitcnt vmcnt(48)\ns_setpc_b64 s[34:35]")

a.hist = []
a.label("SUB_CH1")
a(f"""
v_lshrrev_b32 v21, 4, v0
v_bfe_u32 v22, v0, 2, 2
v_lshl_add_u32 v23, v21, 3, v22
v_lshlrev_b32 v23, 7, v23
v_bfe_u32 v21, v0, 3, 2
v_xor_b32 v21, s3, v21
v_lshl_add_u32 v23, v21, 5, v23
v_and_b32 v21, 3, v0
v_lshl_add_u32 v23, v21, 3, v23
v_add_u32 v23, {LWO}, v23
""")
for ks in range(7):
    for jh in range(2):
        a(f"ds_read_b64_tr_b16 {R2(24 + 4*ks + 2*jh)}, v23 offset:{(32*ks+4*jh)*128}")
a(f"""
v_lshlrev_b32 v21, 2, v0
s_lshl_b32 s70, s4, 14
s_add_u32 s70, s70, s58
s_lshl_b32 s71, s3, 8
s_add_u32 s70, s70, s71
s_add_u32 s71, s70, 4096
s_add_u32 s72, s70, 8192
s_add_u32 s73, s70, 12288
s_lshl_b32 s74, s4, 7
s_add_u32 s74, s74, s59
s_lshr_b32 s75, s3, 1
s_lshl_b32 s75, s75, 6
s_add_u32 s74, s74, s75
s_lshl_b32 s75, s3, 7
s_add_u32 s75, s75, {LO}
""")
def issA():
    a("v_and_b32 v20, 60, v21\nbuffer_load_dword v20, v20, s[16:19], s74 offen sc1")
    for s in range(16):
        a(f"buffer_load_dword v{4+s}, v21, s[16:19], s{70+(s>>2)} offen offset:{(s&3)*1024} sc1")
TGT = 16 * 0xffff - 1
if cfg.hint >= 0:
    a(f"""s_cmp_lg_u32 s63, 0
    s_cbranch_scc1 L_ch1_sa
    s_lshl_b32 s76, s4, 7
    s_add_u32 s76, s76, s61
    s_add_u32 s76, s76, {0x8008}
    v_mov_b32 v4, 0
    s_mov_b32 s68, 0
    L_ch1_wa:
    buffer_load_dword v5, v4, s[16:19], s76 offen sc1
    s_waitcnt vmcnt(0)
    v_cmp_gt_i32 vcc, {TGT}, v5
    s_cbranch_vccz L_ch1_pa
    s_sleep {cfg.sh}
    s_add_u32 s68, s68, 1
    s_cmp_lt_u32 s68, {cfg.spin}
    s_cbranch_scc1 L_ch1_wa
    s_branch L_ch1_pa
    L_ch1_sa:
    s_sleep {cfg.s0['A']}
    L_ch1_pa:""")
    poll(issA, lambda: check_sentinel(range(4, 21), 22), s0=cfg.sA2)
else:
    poll(issA, lambda: check_sentinel(range(4, 21), 22), s0=cfg.s0["A"], s0w=cfg.s0["X"])
stamp("c.A", 1); stamp("f.A", 2)
a(f"v_max_f32_dpp v22, v20, v20 {CTL4[0]} {DPPALL}")
for c in CTL4[1:]: a(f"v_max_f32_dpp v22, v22, v22 {c} {DPPALL}")
a("v_sub_f32 v20, v20, v22\nv_exp_f32 v20, v20")
a(f"v_mul_f32_dpp v21, v20, v4 row_newbcast:0 {DPPALL}\nv_add_f32_dpp v22, v20, v20 {CTL4[0]} {DPPALL}")
for s in range(1, 16):
    a(f"v_fmac_f32_dpp v21, v20, v{4+s} row_newbcast:{s} {DPPALL}")
    if s in (2, 4, 6): a(f"v_add_f32_dpp v22, v22, v22 {CTL4[s//2]} {DPPALL}")
    if s == 4: a(f"ds_read_b64_tr_b16 v[4:5], v23 offset:{(32*7)*128}\nds_read_b64_tr_b16 v[6:7], v23 offset:{(32*7+4)*128}")
    if s == 8: a("v_rcp_f32 v22, v22")
    if s == 9: a("v_lshl_add_u32 v23, v0, 1, s75")
a(f"""
v_mul_f32 v21, v21, v22
v_cvt_pk_bf16_f32 v21, v21, v21
ds_write_b16 v23, v21
v_and_b32 v0, 48, v0
v_add_u32 v0, {LO}, v0
s_lshl_b32 s70, s7, 8
s_add_u32 s70, s70, s60
s_lshl_b32 s71, s3, 6
s_add_u32 s74, s70, s71
s_mul_i32 s70, s3, 9216
s_add_u32 s70, s70, s60
s_add_u32 s71, s70, 2304
s_add_u32 s72, s70, 4608
s_add_u32 s73, s70, 6912
s_waitcnt lgkmcnt(0)
s_barrier
""")
order = [7, 0, 1, 2, 3, 4, 5, 6]
def frag(ks): return "v[4:7]" if ks == 7 else R4(24 + 4*ks)
bufs = ["v[8:11]", "v[12:15]", "v[16:19]"]
for n in range(3): a(f"ds_read_b128 {bufs[n]}, v0 offset:{order[n]*64}")
for n, ks in enumerate(order):
    a(f"s_waitcnt lgkmcnt({len(bufs) - 1 - n})")
    a(f"v_mfma_f32_16x16x32_bf16 v[20:23], {bufs[n]}, {frag(ks)}, {'0' if n == 0 else 'v[20:23]'}")
    for fr in (frag(ks), bufs[n]):
        if len(bufs) < 8:
            a(f"ds_read_b128 {fr}, v0 offset:{order[len(bufs)]*64}"); bufs.append(fr)
a(f"""
v_lshrrev_b32 v0, 4, v2
v_lshlrev_b32 v49, 2, v0
s_mul_i32 s75, s3, 2304
s_add_u32 s75, s75, {LX}
v_add_u32 v51, s75, v2
s_mov_b64 exec, 0xffff
buffer_store_dword v20, v49, s[16:19], s74 offen sc1
s_mov_b64 exec, -1
""")
a("s_cmp_eq_u32 s63, 2\ns_cbranch_scc1 L_ch1_ret")
a.label("L_ch1_b")
ln(False)
def issB():
    for r in range(4):
        a(f"buffer_load_dwordx4 {R4(4+8*r)}, v2, s[16:19], s{70+r} offen sc1")
        a(f"buffer_load_dwordx4 {R4(8+8*r)}, v2, s[16:19], s{70+r} offen offset:1024 sc1")
        a(f"buffer_load_dword v{36+r}, v49, s[16:19], s{70+r} offen offset:2048 sc1")
def chkB():
    for i in range(4): a(f"v_pk_add_f32 {R2(40+2*i)}, {R2(4+2*i)}, {R2(12+2*i)}")
    a("v_add_f32 v48, v36, v37")
    for r in (2, 3):
        for i in range(4): a(f"v_pk_add_f32 {R2(40+2*i)}, {R2(40+2*i)}, {R2(4+8*r+2*i)}")
        a(f"v_add_f32 v48, v48, v{36+r}")
    a("v_add_u32 v50, s75, v49\nds_write_b128 v51, v[40:43]\nds_write_b128 v51, v[44:47] offset:1024\nds_write_b32 v50, v48 offset:2048")
    check_sentinel(range(4, 40), 50)
if cfg.hint >= 0:
    a(f"""s_cmp_lg_u32 s63, 0
    s_cbranch_scc1 L_ch1_sb
    s_add_u32 s76, s61, {0x8008}
    v_and_b32 v4, 15, v0
    v_lshlrev_b32 v4, 7, v4
    buffer_load_dword v5, v4, s[16:19], s76 offen sc1
    s_waitcnt vmcnt(0)
    v_cmp_gt_i32 vcc, {TGT}, v5
    s_cbranch_vccz L_ch1_pb
    s_mov_b32 s68, 0
    L_ch1_wb:
    s_sleep {cfg.sh}
    buffer_load_dword v5, v4, s[16:19], s76 offen sc1
    s_waitcnt vmcnt(0)
    v_cmp_gt_i32 vcc, {TGT}, v5
    s_cbranch_vccz L_ch1_wb2
    s_add_u32 s68, s68, 1
    s_cmp_lt_u32 s68, {cfg.spin}
    s_cbranch_scc1 L_ch1_wb
    L_ch1_wb2:
    s_sleep {cfg.sB2}
    s_branch L_ch1_pb
    L_ch1_sb:
    s_sleep {cfg.s0['B']}
    L_ch1_pb:""")
    poll(issB, chkB)
else:
    poll(issB, chkB, s0=cfg.s0["B"])
stamp("c.B", 1); stamp("f.B", 2)
a(f"""
v_add_u32 v14, s64, v2
v_add_u32 v15, s64, v49
ds_read_b128 v[4:7], v14
ds_read_b128 v[8:11], v14 offset:1024
ds_read_b32 v12, v15 offset:2048
v_add_u32 v14, {LX}, v2
v_add_u32 v15, {LX+2048}, v49
s_waitcnt lgkmcnt(3)
s_barrier
""")
for r in range(4):
    a(f"ds_read_b128 {R4(16+8*r)}, v14 offset:{r*2304}\nds_read_b128 {R4(20+8*r)}, v14 offset:{r*2304+1024}")
    if r == 0: a("ds_read2st64_b32 v[48:49], v15 offset0:0 offset1:9\nds_read2st64_b32 v[50:51], v15 offset0:18 offset1:27")
a(f"""
v_lshlrev_b32 v13, 3, v0
v_add_u32 v13, {LLN}, v13
v_lshlrev_b32 v14, 1, v0
v_add_u32 v14, {LLN+1024}, v14
v_and_b32 v15, 3, v0
s_lshl_b32 s70, s7, 3
s_add_u32 s70, s70, {LLN}
v_lshl_add_u32 v15, v15, 1, s70
s_lshl_b32 s70, s3, 8
s_add_u32 s70, s70, s56
""")
for r in range(4):
    a(f"s_waitcnt lgkmcnt({6 - 2*r})")
    for i in range(4): a(f"v_pk_add_f32 {R2(4+2*i)}, {R2(4+2*i)}, {R2(16+8*r+2*i)}")
    a(f"v_add_f32 v12, v12, v{48+r}")
a("""v_cvt_pk_bf16_f32 v16, v4, v5
v_cvt_pk_bf16_f32 v17, v6, v7
v_cvt_pk_bf16_f32 v18, v8, v9
v_cvt_pk_bf16_f32 v19, v10, v11
v_cvt_pk_bf16_f32 v20, v12, 0
ds_write_b64 v13, v[16:17]
ds_write_b64 v13, v[18:19] offset:512
ds_write_b16 v14, v20
ds_read_u16 v27, v15
v_lshl_add_u32 v26, v0, 2, s70""")
fill = [f"ds_read2st64_b32 {R2(28+2*i)}, v26 offset0:{4*i} offset1:{36+4*i}" for i in range(8)]
fill += [f"ds_read2st64_b32 {R2(44+2*i)}, v26 offset0:{72+8*i} offset1:{76+8*i}" for i in range(4)]
fill = [fill[0], fill[8]] + fill[1:8] + fill[9:]
stats([16, 17, 18, 19, 20], 4, 5, fill)
ln_scalars(4, 5, 6, 7, 8)
a("s_waitcnt lgkmcnt(12)\nv_lshlrev_b32 v27, 16, v27\nv_sub_f32 v9, v27, v6\nv_sub_f32 v4, v4, v6\nv_mul_f32 v5, v5, v7\nv_mul_f32 v4, v4, v7\nv_mul_f32 v5, v5, v7")
rbf(9, 10); a("v_mul_f32 v9, v9, v7"); rbf(9, 10)
ln_scalars(4, 5, 6, 7, 8)
a("v_sub_f32 v9, v9, v6"); rbf(9, 10); a("v_mul_f32 v9, v9, v7"); rbf(9, 10)
a(f"v_mul_f32 v9, {f32(GS)}, v9\nv_mov_b32 v25, v26")
for e in range(4): a(f"v_readlane_b32 s{70+2*e}, v9, {60+e}")
ln(False)
a(f"v_mov_b32 v26, {f32(GA)}\ns_mov_b32 s66, {f32(GS)}\ns_waitcnt lgkmcnt(0)")
for i in range(9):
    w1, b1, w2 = (28+2*i, 29+2*i, 44+i) if i < 8 else (28, 29, 44)
    if i == 8: a("s_waitcnt lgkmcnt(0)")
    for j, r in enumerate((w1, b1, w2)):
        a(f"v_lshlrev_b32 v{12+2*j}, 16, v{r}\nv_and_b32 v{13+2*j}, 0xffff0000, v{r}")
    a("v_pk_mul_f32 v[14:15], v[14:15], s[66:67] op_sel_hi:[1,0]")
    if i == 0: a("ds_read2st64_b32 v[28:29], v25 offset0:32 offset1:68\nds_read_b32 v44, v25 offset:26624")
    if cfg.pfc and i == cfg.pfi:
        a(f"s_cmp_eq_u32 s60, {B_A(0)}\ns_cbranch_scc1 L_mx_pf\nL_mx_pfb:")
    for e0 in (0, 2):
        U = (18, 22); T = (20, 24); E = (e0, e0 + 1)
        for k in range(2): a(f"v_pk_fma_f32 {R2(U[k])}, v[12:13], s[{70+2*E[k]}:{71+2*E[k]}], v[14:15] op_sel_hi:[1,0,1]")
        for k in range(2): a(f"v_pk_fma_f32 {R2(T[k])}, {R2(U[k])}, {R2(U[k])}, v[26:27] op_sel_hi:[1,1,0]")
        for k in range(2): a(f"v_pk_mul_f32 {R2(T[k])}, {R2(U[k])}, {R2(T[k])}")
        for k in range(2): a(f"v_exp_f32 v{T[k]}, -v{T[k]}\nv_exp_f32 v{T[k]+1}, -v{T[k]+1}")
        for k in range(2): a(f"v_pk_mul_f32 {R2(U[k])}, {R2(U[k])}, v[16:17]")
        for k in range(2): a(f"v_pk_add_f32 {R2(T[k])}, {R2(T[k])}, 1.0 op_sel_hi:[1,0]")
        for k in range(2): a(f"v_rcp_f32 v{T[k]}, v{T[k]}\nv_rcp_f32 v{T[k]+1}, v{T[k]+1}")
        for k in range(2):
            acc = R2(4 + 2*E[k])
            a(f"v_pk_mul_f32 {acc}, {R2(U[k])}, {R2(T[k])}" if i == 0 else f"v_pk_fma_f32 {acc}, {R2(U[k])}, {R2(T[k])}, {acc}")
stamp("c.mix", 1)
for e in range(4): a(f"v_add_f32 v{4+2*e}, v{4+2*e}, v{5+2*e}")
if cfg.pfc: a("s_waitcnt vmcnt(0)")
a(f"""v_lshrrev_b32 v12, 4, v0
v_lshlrev_b32 v12, 2, v12
s_lshl_b32 s66, s3, 4
s_add_u32 s66, s66, {LRED}
v_add_u32 v12, s66, v12""")
row16_reduce("v_add_f32", [4, 6, 8, 10])
a(f"""
ds_write2_b32 v12, v4, v6 offset0:0 offset1:16
ds_write2_b32 v12, v8, v10 offset0:32 offset1:48
v_and_b32 v13, 3, v0
v_lshlrev_b32 v12, 6, v13
v_add_u32 v12, {LRED}, v12
s_mov_b32 s20, s52
s_mov_b32 s21, s53
s_mov_b32 s22, 2304
s_lshl_b32 s66, s7, 4
s_lshr_b32 s66, s66, s63
s_add_u32 s66, s66, s61
v_lshlrev_b32 v13, 2, v13
v_lshrrev_b32 v13, s63, v13
s_cmp_lg_u32 s3, 0
s_waitcnt lgkmcnt(0)
s_barrier
s_cbranch_scc1 L_ch1_ret
ds_read_b128 v[16:19], v12
ds_read_b128 v[20:23], v12 offset:16
ds_read_b128 v[28:31], v12 offset:32
ds_read_b128 v[32:35], v12 offset:48
s_cmp_eq_u32 s63, 1
s_mov_b64 exec, 15
s_waitcnt lgkmcnt(2)
v_pk_add_f32 v[16:17], v[16:17], v[18:19]
v_pk_add_f32 v[20:21], v[20:21], v[22:23]
s_waitcnt lgkmcnt(0)
v_pk_add_f32 v[28:29], v[28:29], v[30:31]
v_pk_add_f32 v[32:33], v[32:33], v[34:35]
v_pk_add_f32 v[16:17], v[16:17], v[20:21]
v_pk_add_f32 v[28:29], v[28:29], v[32:33]
v_pk_add_f32 v[16:17], v[16:17], v[28:29]
v_add_f32 v16, v16, v17
v_mul_f32 v16, {f32(1.0/GS)}, v16
""")
rbf(16, 17); a("v_add_f32 v16, s78, v16"); rbf(16, 17); a("v_add_f32 v16, v16, v27"); rbf(16, 17)
a(f"""
s_cbranch_scc1 L_ch1_fin
buffer_store_dword v16, v13, s[16:19], s66 offen sc1
s_branch L_ch1_done
L_ch1_fin:
buffer_store_short v17, v13, s[20:23], s66 offen
L_ch1_done:
s_mov_b64 exec, -1
L_ch1_ret:
""")
ret()

if cfg.pfc:
    a.hist = []
    a.label("L_mx_pf")
    for kt in range(cfg.pfc):
        if kt % 8 == 0: a(f"s_add_u32 s28, s27, {(kt>>3)*8192}")
        a(f"buffer_load_dwordx4 v[30:33], v1, s[8:11], s28 offen offset:{((kt>>1)&3)*512+(kt&1)*128}")
    a("s_branch L_mx_pfb")
a.hist = []
a.label("SUB_CH1B")
a(f"""s_mul_i32 s70, s3, 9216
s_add_u32 s70, s70, s60
s_add_u32 s71, s70, 2304
s_add_u32 s72, s70, 4608
s_add_u32 s73, s70, 6912
v_lshlrev_b32 v49, 2, v0
s_mul_i32 s75, s3, 2304
s_add_u32 s75, s75, {LX}
v_add_u32 v51, s75, v2
s_barrier
s_branch L_ch1_b""")

a.hist = []
a.label("SUB_CH2")
a(f"""
v_lshrrev_b32 v13, 4, v0
v_bfe_u32 v14, v0, 2, 2
v_lshl_add_u32 v15, v13, 3, v14
v_lshlrev_b32 v15, 9, v15
v_bfe_u32 v13, v0, 2, 3
s_lshl_b32 s70, s3, 2
v_xor_b32 v13, s70, v13
v_lshl_add_u32 v15, v13, 5, v15
v_and_b32 v13, 3, v0
v_lshl_add_u32 v15, v13, 3, v15
v_add_u32 v15, {LWQ}, v15
v_xor_b32 v16, 32, v15
v_xor_b32 v17, 64, v15
v_xor_b32 v18, 96, v15
""")
for cbk in range(4):
    for ks in range(2):
        for jh in range(2):
            a(f"ds_read_b64_tr_b16 {R2(20 + 8*cbk + 4*ks + 2*jh)}, v{15+cbk} offset:{(32*ks+4*jh)*512}")
a(f"""
v_lshlrev_b32 v19, 2, v0
v_add_u32 v15, s64, v2
v_add_u32 v16, s64, v19
s_lshl_b32 s72, s5, 8
s_lshl_b32 s74, s7, 10
s_add_u32 s74, s74, s62
s_lshl_b32 s71, s3, 8
s_add_u32 s74, s74, s71
s_cmp_eq_u32 s63, 1
s_cbranch_scc0 L_ch2_g
v_add_u32 v17, s72, v16
ds_read_b128 v[4:7], v15
ds_read_b128 v[8:11], v15 offset:1024
ds_read_b32 v12, v16 offset:2048
ds_read_b32 v13, v17
s_waitcnt lgkmcnt(0)
s_branch L_ch2_x
L_ch2_g:
s_add_u32 s72, s72, s61
s_lshl_b32 s73, s4, 7
s_add_u32 s73, s73, s61
s_add_u32 s73, s73, 0x8000
""")
def issC():
    a("""buffer_load_dwordx4 v[4:7], v2, s[16:19], s61 offen sc1
    buffer_load_dwordx4 v[8:11], v2, s[16:19], s61 offen offset:1024 sc1
    buffer_load_dword v12, v19, s[16:19], s61 offen offset:2048 sc1
    buffer_load_dword v13, v19, s[16:19], s72 offen sc1""")
poll(issC, lambda: check_sentinel(range(4, 14), 14), s0=cfg.s0["C"], s0w=cfg.s0["Y"])
a("""s_or_b32 s70, s5, s3
s_cbranch_scc1 L_ch2_nh
s_mov_b64 exec, 1
buffer_store_dword v19, v19, s[16:19], s73 offen sc1
s_mov_b64 exec, -1
L_ch2_nh:
ds_write_b128 v15, v[4:7]
ds_write_b128 v15, v[8:11] offset:1024
ds_write_b32 v16, v12 offset:2048
L_ch2_x:
v_cvt_pk_bf16_f32 v14, v4, v5
v_cvt_pk_bf16_f32 v15, v6, v7
v_cvt_pk_bf16_f32 v16, v8, v9
v_cvt_pk_bf16_f32 v17, v10, v11
v_cvt_pk_bf16_f32 v18, v12, 0""")
stats([14, 15, 16, 17, 18], 4, 5, ["v_lshlrev_b32 v9, 1, v0", f"v_add_u32 v9, {LRED}, v9", "v_and_b32 v12, 48, v0", f"v_add_u32 v12, {LRED}, v12"])
ln_scalars(4, 5, 6, 7, 8)
a("v_readlane_b32 s70, v6, 63\nv_readlane_b32 s71, v7, 63\nv_subrev_f32 v13, s70, v13")
rbf(13, 8)
a("""v_mul_f32 v13, s71, v13
v_cvt_pk_bf16_f32 v13, v13, v13
ds_write_b16 v9, v13
ds_read_b128 v[4:7], v12
ds_read_b128 v[8:11], v12 offset:64
s_waitcnt lgkmcnt(0)""")
accs = [12, 20, 28, 36]
for cbk in range(4):
    d = accs[cbk]; f = 20 + 8 * cbk
    a(f"v_mfma_f32_16x16x32_bf16 {R4(d)}, v[4:7], {R4(f)}, 0")
    a(f"v_mfma_f32_16x16x32_bf16 {R4(d)}, v[8:11], {R4(f+4)}, {R4(d)}")
for cbk in range(1, 4):
    a(f"v_mov_b32_dpp v12, v{accs[cbk]} quad_perm:[0,1,2,3] row_mask:{1<<cbk:#x} bank_mask:0xf")
a("buffer_store_dword v12, v19, s[16:19], s74 offen sc1")
stamp("c.wq", 1)
ret()

if cfg.roles:
    a.hist = []
    a.label("SUB_RING")
    keep = LDS_T + [25]
    vts = [t for t in range(cfg.j0) if t not in keep] + keep
    NT = 64 + len(vts)
    slot = lambda n: (n - (NT - len(keep))) % NS
    lastso = [None]
    def rload(n):
        if n >= NT: return
        if n < 64:
            so, imm, va, srd = ("k", (n >> 3) * 8192), ((n >> 1) & 3) * 512 + (n & 1) * 128, "v1", "s[8:11]"
        else:
            vt = vts[n - 64]
            so, imm, va, srd = ("v", (vt >> 2) * 4096), (vt & 3) * 1024, "v2", "s[12:15]"
        if so != lastso[0]:
            a(f"s_add_u32 s28, s27, {so[1]}"); lastso[0] = so
        a(f"s_add_u32 m0, s57, {slot(n)*1024 - imm}")
        a(f"buffer_load_dwordx4 {va}, {srd}, s28 offen offset:{imm}{'' if n < cfg.l2n else ' nt'} lds")
    for n in range(16): rload(n)
    att_pre(zero=False)
    a("ds_read_b128 v[4:7], v12\nds_read_b128 v[8:11], v12 offset:128\nv_add_u32 v48, s57, v2")
    KT = [34, 38, 42]
    for n in range(66):
        if n < 64:
            rload(n + 16)
            a(f"s_waitcnt vmcnt(16)\nds_read_b128 {R4(KT[n%3])}, v48 offset:{slot(n)*1024}")
        if n >= 2:
            kt = n - 2
            a(f"s_waitcnt lgkmcnt({min(63, n) - kt})")
            kmm(kt, R4(KT[kt % 3]))
            if kt & 1 and (kt >> 1) >= 2: adds((kt >> 1) - 2)
    adds(30); adds(31)
    softmax()
    zero_a()
    a("v_add_u32 v33, s57, v2")
    NP = len(vts) // 2
    def rfetch(m):
        if m >= NP: return
        for h in range(2):
            n = 64 + 2*m + h
            rload(n + 16)
            a(f"s_waitcnt vmcnt({min(16, NT - 1 - n)})\nds_read_b128 {R4(4 + 8*(m&1) + 4*h)}, v33 offset:{slot(n)*1024}")
    rfetch(0)
    for m in range(NP):
        build(vts[2*m] >> 1, m & 1)
        rfetch(m + 1)
        a(f"s_waitcnt lgkmcnt({2 if m + 1 < NP else 0})")
        vmm(R8(4 + 8*(m&1)), m & 1)
    if cfg.j0 == 64:
        a("s_branch L_att_epi")
    else:
        a(f"""v_mov_b32 v47, v20
        ds_write_b128 v33, v[24:27] offset:{14*1024}
        ds_write_b128 v33, v[28:31] offset:{15*1024}
        ds_write_b64 v33, v[46:47] offset:{17*1024}
        ds_write_b128 v33, v[42:45] offset:{16*1024}
        s_waitcnt lgkmcnt(0)""")
        ret()
        a.hist = []
        a.label("SUB_RESUME")
        a(f"s_mov_b32 s82, {8 + cfg.j0//8}\ns_call_b64 s[80:81], SUB_LN")
        if cfg.j0 <= 48: a("s_call_b64 s[80:81], SUB_LN")
        att_pre()
        a(f"""v_add_u32 v33, s57, v2
        ds_read_b128 v[24:27], v33 offset:{14*1024}
        ds_read_b128 v[28:31], v33 offset:{15*1024}
        ds_read_b128 v[42:45], v33 offset:{16*1024}
        ds_read_b64 v[22:23], v33 offset:{17*1024}
        v_and_b32 v32, 3, v0
        v_mul_u32_u24 v32, 0x5555, v32
        s_mov_b64 vcc, -1
        s_waitcnt lgkmcnt(0)
        v_mov_b32 v46, v22
        v_mov_b32 v20, v23""")
        build(cfg.j0 // 2, (cfg.j0 // 2) & 1)
        a.flush()
        a("s_branch L_att_resume")

for Lo, Lb, wait, depth in tramps:
    a.hist = []
    a.label(Lo)
    if wait and cfg.adapt:
        a(f"s_call_b64 s[34:35], SUB_LNW\ns_branch {Lb}")
        continue
    for d in range(1, depth + 1):
        a("s_call_b64 s[80:81], SUB_LN")
        L2 = a.newlabel("Lt2")
        if d < depth: a(f"s_cmp_lt_u32 s82, 16\ns_cbranch_scc1 {L2}")
        if wait: a(f"s_waitcnt vmcnt({8*d})")
        a(f"s_branch {Lb}")
        if d < depth: a.label(L2)
for Rr, L, D, sl in retries:
    a.hist = []
    a.label(Rr)
    a(f"s_sleep {sl}\ns_add_u32 s68, s68, 1\ns_cmp_lt_u32 s68, {cfg.spin}\ns_cbranch_scc1 {L}\ns_branch {D}")
if cfg.stamps:
    n = len(stamp_names)
    a.hist = []
    a.label("L_stamps")
    if cfg.dbg:
        sel = ["start", "start", "q1", "P1b0", "wq0", "s.ring", "P2b0", "s.P1b1", "s.fin0", "P1b1", "c.B", "c.wq", "s.rel", "s.end", "f.B", "end"]
        a("v_mov_b32 v6, 0")
        a(f"s_not_b32 s70, s{POOL[0]}\nv_writelane_b32 v6, s70, 0")
        for i, nm in enumerate(sel):
            if i and nm in stamp_names: a(f"v_writelane_b32 v6, s{POOL[stamp_names.index(nm)]}, {i}")
        a("v_lshrrev_b32 v4, 2, v2\ns_mov_b64 exec, 0xffff\nglobal_atomic_umax v4, v6, s[54:55] sc1\ns_branch L_fin")
    a(f"""s_lshl_b32 s70, s2, 2
    s_add_u32 s70, s70, s3
    s_mul_i32 s70, s70, {8*n}
    s_add_u32 s70, s70, {STAMP}
    v_mov_b32 v4, 0
    v_mov_b32 v7, 0
    s_mov_b64 exec, 1""")
    if cfg.hwid:
        a(f"s_getreg_b32 s71, hwreg(HW_REG_HW_ID)\ns_getreg_b32 s72, hwreg(HW_REG_XCC_ID)\ns_and_b32 s71, s71, 0xffff\ns_and_b32 s72, s72, 15\ns_lshl_b32 s72, s72, 16\ns_or_b32 s71, s71, s72\ns_add_u32 s{POOL[1]}, s{POOL[0]}, s71")
    for i in range(n):
        a(f"v_mov_b32 v6, s{POOL[i]}\nbuffer_store_dwordx2 v[6:7], v4, s[16:19], s70 offen offset:{8*i}\ns_nop 1")
    a("s_branch L_fin")
    open(sys.argv[1] + ".names", "w").write(" ".join(stamp_names))
    print("nstamps", n, file=sys.stderr)
a.label("L_code_end")
hdr = open("cdna_kernels/" + NAME + ".s.ref").read().split("; Override launch")[0]
out = hdr + f"; @launch grid=(256,1,1) block=(256,1,1) lds={LDS_TOTAL}\n"
out += f""".amdgcn_target "amdgcn-amd-amdhsa--gfx950"
.text
.globl {NAME}_kernel
.p2align 8
.type {NAME}_kernel,@function
{NAME}_kernel:
""" + a.text() + f""".section .rodata,"a"
.p2align 6
.amdhsa_kernel {NAME}_kernel
  .amdhsa_next_free_vgpr 512
  .amdhsa_next_free_sgpr 102
  .amdhsa_accum_offset 256
  .amdhsa_group_segment_fixed_size 0
  .amdhsa_kernarg_size 104
  .amdhsa_user_sgpr_count 2
  .amdhsa_user_sgpr_kernarg_segment_ptr 1
  .amdhsa_system_sgpr_workgroup_id_x 1
.end_amdhsa_kernel
"""
open(sys.argv[1], "w").write(out)
print("nops added", a.nops_added, "lines", len(a.lines), file=sys.stderr)
```

```python
import sys, struct, math
sys.path.insert(0, "gen")
from asmlib import *

NAME = "interleave_layers__gqa_block_cached__mixer_token_mlp__decode"
def f32(x): return "0x%08x" % struct.unpack("<I", struct.pack("<f", x))[0]

class Cfg:
    stamps = 0
    spin = 20000
    s0 = dict(A=18, B=17, C=18, D=8, X=18, Y=18, M=18, N=17)
    s1 = 2
    sh = 2
    sg = 8
    go = 24
    roles = 1
    latew = 0
    vsites = 1
    l2n = 128
    dbg = 0
    n0 = 16
    n1 = 5
    thr = 3
    hint = -1
    xl = 1
    fA = 0
    fD = 0
    thr2 = -1
    pfc = 0
    pfi = 3
    cpf = 1
    hwid = 0
    late2 = 1
    adapt = 1
    warm = 0
    relfirst = 0
    ksites = 1
    pf0 = 8
    nogo = 1
    xthr = 0
    thrm = 4
    sA2 = 0
    sB2 = 32
    aw = 0
    d0 = 2
    thrall = 0
    thr3 = 0
    go0 = 32
    j0 = 32
    fa = 3
    dw = 2
    pre = 8
    d1 = 3
    d2 = 1
    d3 = 4
    d4 = 3
cfg = Cfg()
for arg in sys.argv[2:]:
    k, v = arg.split("=")
    if k.startswith("s0"): cfg.s0[k[2]] = int(v)
    else: setattr(cfg, k, int(v))

W = 52; NL = 13; NS = 20
LV = 0; LWO = 53248; LWQ = 86016; LMX = 118784; LXB = 146432; LX = 151040; LQ = 160256; LLN = 162304; LRED = 163456
LO = LX + 8448
LDS_TOTAL = 163840
A_O = lambda i: i * 0x40000
A_L = lambda i: 0x100000 + i * 0x1000
B_A = lambda i: 0x110000 + i * 0x10000
C_A = lambda i: 0x150000 + i * 0x1000
H_A = lambda i: 0x158000 + i * 0x1000
D_A = lambda i: 0x160000 + i * 0x40000
X_A = 0x15c000
STAMP = 0x10000000
CSM = math.log2(math.e) / math.sqrt(128.0)
C1 = -2.0 * math.sqrt(2.0 / math.pi) * math.log2(math.e)
C2 = C1 * 0.044715
GS = (-C2) ** (1.0 / 3.0)
GA = -C1 / GS
DPPALL = "row_mask:0xf bank_mask:0xf"
CTL4 = ["quad_perm:[1,0,3,2]", "quad_perm:[2,3,0,1]", "row_half_mirror", "row_mirror"]

a = Asm()
POOL = list(range(83, 100)) + [32, 38, 39, 43, 50, 51]
stamp_names = []
def stamp(name, cond=None):
    if not cfg.stamps: return
    if name in stamp_names: r = POOL[stamp_names.index(name)]
    else:
        r = POOL[len(stamp_names)]; stamp_names.append(name)
    a("s_memrealtime s[100:101]\ns_waitcnt lgkmcnt(0)")
    if cond is None: a(f"s_mov_b32 s{r}, s100")
    else: a(f"s_cmp_eq_u32 s79, {cond}\ns_cselect_b32 s{r}, s100, s{r}")

def khome(kt): return f"a[{4*kt}:{4*kt+3}]"
LDS_T = [0, 1, 4, 5, 8, 9, 12, 13, 16, 17, 20, 21, 24]
REG_T = [25] + [t for t in range(64) if t not in LDS_T and t != 25]
def vreg(vt): return W + 4 * REG_T.index(vt)
def vhome(vt):
    r = vreg(vt); return f"v[{r}:{r+3}]"
def R8(r): return f"v[{r}:{r+7}]"
def R4(r): return f"v[{r}:{r+3}]"
def R2(r): return f"v[{r}:{r+1}]"

def load_k(kts):
    lastG = None
    for kt in kts:
        G, t, half = kt >> 3, (kt >> 1) & 3, kt & 1
        if G != lastG:
            a(f"s_add_u32 s28, s27, {G*8192}"); lastG = G
        a(f"buffer_load_dwordx4 {khome(kt)}, v1, s[8:11], s28 offen offset:{t*512+half*128} nt")
def load_v(vts):
    lastQ = None
    for vt in vts:
        Q = vt >> 2
        if Q != lastQ:
            a(f"s_add_u32 s28, s27, {Q*4096}")
            if vt in LDS_T: a(f"s_add_u32 m0, s29, {LDS_T.index(vt)*1024 - (vt&3)*1024}")
            lastQ = Q
        if vt in LDS_T:
            a(f"buffer_load_dwordx4 v2, s[12:15], s28 offen offset:{(vt&3)*1024} nt lds")
        else:
            a(f"buffer_load_dwordx4 {vhome(vt)}, v2, s[12:15], s28 offen offset:{(vt&3)*1024} nt")

def rbf(v, t):
    a(f"v_cvt_pk_bf16_f32 v{t}, v{v}, v{v}\nv_lshlrev_b32 v{v}, 16, v{t}")
def rows_reduce(op, v, t):
    a(f"v_mov_b32 v{t}, v{v}\nv_permlane16_swap_b32 v{v}, v{t}\n{op} v{v}, v{v}, v{t}")
    a(f"v_mov_b32 v{t}, v{v}\nv_permlane32_swap_b32 v{v}, v{t}\n{op} v{v}, v{v}, v{t}")
def row16_reduce(op, vs):
    for ctl in CTL4:
        for v in vs: a(f"{op}_dpp v{v}, v{v}, v{v} {ctl} {DPPALL}")
def sum_to_row3(vs, fillers=()):
    fillers = list(fillers)
    steps = [f"{c} {DPPALL}" for c in CTL4] + ["row_bcast:15 row_mask:0xa bank_mask:0xf", "row_bcast:31 row_mask:0xc bank_mask:0xf"]
    per = (len(fillers) + 5) // 6
    for st in steps:
        for _ in range(per):
            if fillers: a(fillers.pop(0))
        for v in vs: a(f"v_add_f32_dpp v{v}, v{v}, v{v} {st}")
def stats(P, s1, s2, fillers=()):
    for i, p in enumerate(P):
        a(f"v_dot2_f32_bf16 v{s1}, v{p}, s67, {'0' if i == 0 else 'v%d' % s1}")
        a(f"v_dot2_f32_bf16 v{s2}, v{p}, v{p}, {'0' if i == 0 else 'v%d' % s2}")
    sum_to_row3([s1, s2], fillers)
    a(f"v_mul_f32 v{s1}, {f32(1.0/576)}, v{s1}\nv_mul_f32 v{s2}, {f32(1.0/576)}, v{s2}\nv_fma_f32 v{s2}, -v{s1}, v{s1}, v{s2}\nv_max_f32 v{s2}, 0, v{s2}")
def ln_scalars(m, q, mb, r, t):
    a(f"v_cvt_pk_bf16_f32 v{t}, v{m}, v{q}\nv_and_b32 v{r}, 0xffff0000, v{t}\nv_lshlrev_b32 v{mb}, 16, v{t}\nv_add_f32 v{r}, {f32(1e-5)}, v{r}")
    rbf(r, t); a(f"v_sqrt_f32 v{r}, v{r}"); rbf(r, t); a(f"v_rcp_f32 v{r}, v{r}")

def check_sentinel(regs, t):
    regs = list(regs)
    if len(regs) % 2 == 0:
        a(f"v_max_u32 v{t}, v{regs[0]}, v{regs[1]}"); regs = regs[2:]
    else:
        a(f"v_max3_u32 v{t}, v{regs[0]}, v{regs[1]}, v{regs[2]}"); regs = regs[3:]
    for i in range(0, len(regs), 2):
        a(f"v_max3_u32 v{t}, v{t}, v{regs[i]}, v{regs[i+1]}")
    a(f"v_cmp_eq_u32 vcc, -1, v{t}")

gstores = []
def gstore(instrs):
    Lo = a.newlabel("Lgs"); Lb = a.newlabel("Lgb")
    a(f"s_cmp_eq_u32 s33, 0\ns_cbranch_scc1 {Lo}")
    a.flush()
    a(instrs.replace(" sc1", ""))
    a.label(Lb)
    gstores.append((Lo, Lb, instrs))
tramps = []
def ln(wait, depth=None):
    Lo = a.newlabel("Lt"); Lb = a.newlabel("Ltb")
    a(f"s_cmp_lt_u32 s82, 16\ns_cbranch_scc1 {Lo}")
    if wait: a("s_waitcnt vmcnt(0)")
    a.label(Lb)
    tramps.append((Lo, Lb, wait, depth or (cfg.dw if wait else 1)))
retries = []
def poll(issue, check, s0=0, depth=None, s0w=None):
    L = a.newlabel("Lpoll"); D = a.newlabel("Lpd"); Rr = a.newlabel("Lpr")
    a("s_mov_b32 s68, 0")
    if s0 and s0w is not None and s0w < s0:
        Ls = a.newlabel("Lsl")
        a(f"s_cmp_eq_u32 s3, 0\ns_cbranch_scc1 {Ls}\ns_sleep {s0 - s0w}"); a.label(Ls)
        if s0w: a(f"s_sleep {s0w}")
    elif s0: a(f"s_sleep {s0}")
    a.label(L)
    issue(); ln(True, depth)
    check()
    a(f"s_cbranch_vccnz {Rr}")
    a.label(D)
    retries.append((Rr, L, D, cfg.s1))
def ln_until(n):
    L = a.newlabel("Lrest"); D = a.newlabel("Lrd")
    a.label(L); a(f"s_cmp_ge_u32 s82, {n}\ns_cbranch_scc1 {D}\ns_call_b64 s[80:81], SUB_LN\ns_branch {L}"); a.label(D)
def call(lbl):
    a.flush(); a(f"s_call_b64 s[30:31], {lbl}")
def ret():
    a.flush(); a("s_setpc_b64 s[30:31]")
def flagwait(inst, sl, off=0, count=0):
    a(f"s_lshl_b32 s70, s4, 7\ns_add_u32 s70, s70, {H_A(inst)+off}\nv_mov_b32 v4, 0")
    L = a.newlabel("Lh"); D = a.newlabel("Lhd")
    a(f"s_mov_b32 s68, 0\ns_cmp_lg_u32 s3, 0\ns_cbranch_scc1 {D}")
    a.label(L)
    a(f"buffer_load_dword v5, v4, s[16:19], s70 offen sc1\ns_waitcnt vmcnt(0)")
    a(f"v_cmp_gt_i32 vcc, {count*0xffff - 1}, v5" if count else "v_cmp_eq_u32 vcc, -1, v5")
    a(f"s_cbranch_vccz {D}")
    a(f"s_sleep {sl}\ns_add_u32 s68, s68, 1\ns_cmp_lt_u32 s68, {cfg.spin}\ns_cbranch_scc1 {L}")
    a.label(D)
    a("s_barrier")

def qg_issue(base, sb):
    for i in range(9):
        a(f"buffer_load_dword v{base+i}, v22, s[16:19], s{sb + (i>>2)} offen offset:{(i&3)*1024} sc1")
def qg_sum(base):
    b = base
    a(f"""v_add_f32 v{b}, v{b}, v{b+1}
    v_add_f32 v{b+2}, v{b+2}, v{b+3}
    v_add_f32 v{b+4}, v{b+4}, v{b+5}
    v_add_f32 v{b+6}, v{b+6}, v{b+7}
    v_add_f32 v{b}, v{b}, v{b+2}
    v_add_f32 v{b+4}, v{b+4}, v{b+6}
    v_add_f32 v{b}, v{b}, v{b+8}
    v_add_f32 v{b}, v{b}, v{b+4}
    v_cvt_pk_bf16_f32 v{b}, v{b}, v{b}""")

a(f"""
s_cmp_ge_u32 s2, 256
s_cbranch_scc1 L_end
s_load_dwordx16 s[32:47], s[0:1], 0
s_load_dwordx8 s[48:55], s[0:1], 64
s_load_dwordx2 s[56:57], s[0:1], 96
v_lshrrev_b32 v1, 6, v0
v_readfirstlane_b32 s3, v1
v_and_b32 v0, 63, v0
s_mov_b32 s69, s2
s_and_b32 s4, s2, 7
s_lshl_b32 s4, s4, 1
s_bfe_u32 s6, s2, 0x10003
s_or_b32 s4, s4, s6
s_lshr_b32 s6, s2, 4
s_lshl_b32 s2, s4, 4
s_or_b32 s2, s2, s6
s_add_u32 s5, s6, s4
s_and_b32 s5, s5, 15
v_lshlrev_b32 v2, 4, v0
v_bfe_u32 v1, v0, 2, 2
v_lshlrev_b32 v1, 11, v1
v_bfe_u32 v3, v0, 1, 1
v_lshl_add_u32 v1, v3, 8, v1
v_lshrrev_b32 v3, 4, v0
v_lshl_add_u32 v1, v3, 5, v1
v_and_b32 v3, 1, v0
v_lshl_add_u32 v1, v3, 4, v1
s_lshl_b32 s27, s2, 18
s_lshl_b32 s28, s3, 16
s_add_u32 s27, s27, s28
s_mov_b32 s10, 0x8000000
s_mov_b32 s11, 0x20000
s_mov_b32 s14, 0x8000000
s_mov_b32 s15, 0x20000
s_mov_b32 s18, 0x20000000
s_mov_b32 s19, 0x20000
s_mov_b32 s23, 0x20000
s_waitcnt lgkmcnt(0)
s_mov_b32 s8, s34
s_mov_b32 s9, s35
""")
load_k(range(0, cfg.pre))
a(f"""
s_mov_b32 s12, s36
s_mov_b32 s13, s37
s_mov_b32 s16, s56
s_mov_b32 s17, s57
s_mov_b32 s82, {cfg.pre//8}
s_mov_b32 s79, 0
s_cmp_ge_u32 s5, 9
s_cselect_b32 s42, 1, {cfg.thrall}
""")
if cfg.xthr: a("s_getreg_b32 s42, hwreg(HW_REG_XCC_ID)\ns_andn2_b32 s42, 1, s42")
a(f"""
s_mov_b32 s24, 0xaaaaaaaa
s_mov_b32 s25, 0xaaaaaaaa
v_and_b32 v4, 4, v0
v_lshlrev_b32 v4, 2, v4
v_mov_b32 v3, 0xffff
v_lshlrev_b32 v3, v4, v3
s_mov_b32 s26, {f32(CSM)}
s_mov_b32 s67, 0x3f803f80
s_mul_i32 s29, s3, {NL*1024}
""")
for r in POOL[:17]:
    if cfg.stamps: a(f"s_mov_b32 s{r}, 0")
stamp("start")
if cfg.cpf:
    a(f"""s_cmp_ge_u32 s69, {32*cfg.cpf}
    s_cbranch_scc1 L_nocpf
    s_getpc_b64 s[70:71]
    L_cpf_pc:
    s_lshr_b32 s72, s69, 3
    s_and_b32 s72, s72, 3
    s_lshl_b32 s72, s72, 2
    s_add_u32 s72, s72, s3
    s_lshl_b32 s72, s72, 10
    v_add_u32 v42, s72, v2
    v_add_u32 v43, 0x4000, v42""")
    a.raw("    v_min_u32 v42, L_code_end-L_cpf_pc-16, v42")
    a.raw("    v_min_u32 v43, L_code_end-L_cpf_pc-16, v43")
    a("""global_load_dwordx4 v[44:47], v42, s[70:71]
    global_load_dwordx4 v[48:51], v43, s[70:71]
    L_nocpf:""")
if cfg.warm:
    a("""s_add_u32 s70, s27, 0x4000000
    s_mov_b64 exec, 1
    buffer_load_dword v40, v2, s[12:15], s27 offen nt
    buffer_load_dword v41, v2, s[8:11], s70 offen nt
    buffer_load_dword v42, v2, s[12:15], s70 offen nt
    global_load_ushort v43, v2, s[52:53]
    global_load_dword v44, v2, s[54:55] offset:192
    s_mov_b64 exec, -1""")
a(f"""
v_mov_b32 v4, -1
v_mov_b32 v5, -1
v_mov_b32 v6, -1
v_mov_b32 v7, -1
s_lshl_b32 s70, s3, 18
s_lshl_b32 s71, s2, 10
s_add_u32 s70, s70, s71
buffer_store_dwordx4 v[4:7], v2, s[16:19], s70 offen sc1
s_lshl_b32 s70, s3, 12
s_lshl_b32 s71, s4, 7
s_add_u32 s70, s70, s71
s_lshl_b32 s71, s6, 2
s_add_u32 s70, s70, s71
s_add_u32 s70, s70, {A_L(0)}
v_lshlrev_b32 v8, 6, v0
s_mov_b64 exec, 3
buffer_store_dword v4, v8, s[16:19], s70 offen sc1
s_mov_b64 exec, -1
s_getreg_b32 s70, hwreg(HW_REG_XCC_ID)
s_and_b32 s70, s70, 15
v_mov_b32 v10, s70
s_lshl_b32 s70, s2, 2
s_add_u32 s70, s70, {X_A}
v_mov_b32 v11, 0
s_mov_b64 exec, 1
buffer_store_dword v10, v11, s[16:19], s70 offen sc1
s_mov_b64 exec, -1
global_load_ushort v23, v11, s[50:51]
s_mul_i32 s7, s4, 9
s_add_u32 s7, s7, s5
s_cmp_ge_u32 s5, 9
s_cbranch_scc1 L_pro_s1
v_lshlrev_b32 v8, 2, v0
s_lshl_b32 s70, s3, 16
s_lshl_b32 s71, s7, 8
s_add_u32 s70, s70, s71
s_add_u32 s70, s70, {B_A(0)}
buffer_store_dword v4, v8, s[16:19], s70 offen sc1
s_lshl_b32 s70, s3, 18
s_lshl_b32 s71, s7, 10
s_add_u32 s70, s70, s71
s_add_u32 s70, s70, {D_A(0)}
buffer_store_dwordx4 v[4:7], v2, s[16:19], s70 offen sc1
s_lshl_b32 s70, s3, 12
s_lshl_b32 s71, s7, 4
s_add_u32 s70, s70, s71
s_add_u32 s70, s70, {C_A(0)}
s_mov_b64 exec, 15
buffer_store_dword v4, v8, s[16:19], s70 offen sc1
s_lshl_b32 s70, s3, 12
s_lshl_b32 s71, s4, 7
s_add_u32 s70, s70, s71
s_add_u32 s70, s70, {H_A(0)}
buffer_store_dword v4, v8, s[16:19], s70 offen sc1
s_mov_b64 exec, -1
s_mov_b32 s20, s32
s_mov_b32 s21, s33
s_mov_b32 s22, 2304
v_lshlrev_b32 v9, 3, v0
v_lshlrev_b32 v10, 1, v0
buffer_load_dwordx2 v[12:13], v9, s[20:23], 0 offen
buffer_load_dwordx2 v[14:15], v9, s[20:23], 0 offen offset:512
buffer_load_ushort v16, v10, s[20:23], 0 offen offset:1024
buffer_load_dwordx2 v[18:19], v9, s[20:23], 0 offen offset:1152
buffer_load_dwordx2 v[20:21], v9, s[20:23], 0 offen offset:1664
buffer_load_ushort v22, v10, s[20:23], 0 offen offset:2176
s_mov_b32 s20, s38
s_mov_b32 s21, s39
s_mov_b32 s22, {576*8192}
v_lshrrev_b32 v24, 5, v0
v_and_b32 v25, 31, v0
v_lshlrev_b32 v25, 4, v25
v_lshlrev_b32 v26, 5, v24
v_xor_b32 v25, v25, v26
v_lshl_add_u32 v24, v24, 13, v25
v_xor_b32 v25, 64, v24
v_xor_b32 v26, 128, v24
v_xor_b32 v27, 192, v24
s_lshl_b32 s70, s5, 19
s_lshl_b32 s71, s3, 17
s_add_u32 s70, s70, s71
s_lshl_b32 s71, s4, 9
s_add_u32 s70, s70, s71
s_lshl_b32 s71, s3, 13
s_add_u32 s71, s71, {LWQ}
""")
for i in range(8):
    fs = ((i >> 2) & 1) * 2 + (i & 1)
    a(f"s_add_u32 m0, s71, {i*1024}\nbuffer_load_dwordx4 v{24+fs}, s[20:23], s70 offen nt lds")
    if i < 7: a("s_add_u32 s70, s70, 16384")
a.label("L_pro_s1")
a("s_mov_b32 s33, 0")
ln(True, cfg.d1)
pass
a(f"""
v_lshlrev_b32 v23, 16, v23
v_readfirstlane_b32 s78, v23
s_mov_b32 s56, {LMX}
s_cmp_ge_u32 s5, 9
s_cbranch_scc1 L_pro_s2
v_add_u32 v24, {LXB}, v2
v_lshlrev_b32 v25, 2, v0
v_add_u32 v25, {LXB+2048}, v25
""")
for b in range(2):
    r = 12 + 6 * b
    a(f"""v_lshlrev_b32 v28, 16, v{r}
    v_and_b32 v29, 0xffff0000, v{r}
    v_lshlrev_b32 v30, 16, v{r+1}
    v_and_b32 v31, 0xffff0000, v{r+1}
    v_lshlrev_b32 v32, 16, v{r+2}
    v_and_b32 v33, 0xffff0000, v{r+2}
    v_lshlrev_b32 v34, 16, v{r+3}
    v_and_b32 v35, 0xffff0000, v{r+3}
    v_lshlrev_b32 v36, 16, v{r+4}
    ds_write_b128 v24, v[28:31] offset:{b*2304}
    ds_write_b128 v24, v[32:35] offset:{b*2304+1024}
    ds_write_b32 v25, v36 offset:{b*2304}
    s_waitcnt lgkmcnt(0)""")
a.label("L_pro_s2")
a(f"""
s_barrier
s_cmp_lg_u32 s3, {cfg.aw}
s_cbranch_scc1 L_pro_arr
v_mov_b32 v4, 0
v_mov_b32 v5, 1
s_mov_b64 exec, 1
global_atomic_add v6, v4, v5, s[54:55] offset:64 sc0 sc1
s_mov_b64 exec, -1
""")
ln(True, cfg.d0)
a(f"""v_readfirstlane_b32 s70, v6
s_cmp_lg_u32 s70, 255
s_cbranch_scc1 L_pro_arr
s_mov_b64 exec, 1
global_store_dword v4, v5, s[54:55] offset:128 sc1
s_mov_b64 exec, -1
L_pro_arr:
s_cmp_ge_u32 s5, 9
s_cbranch_scc1 L_pro_s3
""")
for b in range(2):
    a(f"s_mov_b32 s63, 1\ns_mov_b32 s64, {LXB + b*2304}\ns_mov_b32 s62, {D_A(b)}")
    call("SUB_CH2")
    if b == 0: a("s_barrier")
def load_wo():
    a(f"""
    s_mov_b32 s20, s40
    s_mov_b32 s21, s41
    s_mov_b32 s22, {4096*1152}
    v_lshrrev_b32 v24, 3, v0
    v_mul_u32_u24 v24, 1152, v24
    v_and_b32 v25, 7, v0
    v_lshlrev_b32 v25, 4, v25
    v_bfe_u32 v26, v0, 4, 1
    v_lshlrev_b32 v26, 5, v26
    v_xor_b32 v25, v25, v26
    v_xor_b32 v26, 64, v25
    v_add_u32 v25, v25, v24
    v_add_u32 v26, v26, v24
    s_lshl_b32 s70, s4, 2
    s_add_u32 s70, s70, s3
    s_mul_i32 s70, s70, {64*1152}
    s_lshl_b32 s71, s5, 7
    s_add_u32 s70, s70, s71
    s_lshl_b32 s71, s3, 13
    s_add_u32 s71, s71, {LWO}
    """)
    for i in range(8):
        a(f"s_add_u32 m0, s71, {i*1024}\nbuffer_load_dwordx4 v{25+(i&1)}, s[20:23], s70 offen nt lds")
        if i < 7: a(f"s_add_u32 s70, s70, {8*1152}")
def load_mixer(base):
    a(f"""
    s_lshl_b32 s70, s3, 10
    v_add_u32 v24, s70, v2
    v_add_u32 v25, 4096, v24
    v_add_u32 v26, 8192, v2
    s_add_u32 s71, s70, {base}
    """)
    for j, p in enumerate((44, 46, 48)):
        a(f"""s_add_u32 m0, s71, {j*9216}
        global_load_lds_dwordx4 v24, s[{p}:{p+1}]
        s_add_u32 m0, s71, {j*9216+4096}
        global_load_lds_dwordx4 v25, s[{p}:{p+1}]
        s_mov_b32 m0, {base+j*9216+8192}
        global_load_lds_dwordx4 v26, s[{p}:{p+1}]""")
if not cfg.latew:
    load_wo(); load_mixer(LMX)
a.label("L_pro_s3")
for r in POOL[17:]:
    if cfg.stamps: a(f"s_mov_b32 s{r}, 0")
ln(False, cfg.d2)
a("v_mov_b32 v4, 0")
poll(lambda: a("global_load_dword v5, v4, s[54:55] offset:128 sc1"), lambda: a("v_cmp_eq_u32 vcc, 0, v5"), depth=cfg.d3)
stamp("cnt")
a(f"""s_lshl_b32 s70, s3, 8
v_lshl_add_u32 v22, v0, 2, s70
s_mul_i32 s69, s4, 9216
s_add_u32 s70, s69, {D_A(0)}
s_add_u32 s71, s70, 4096
s_add_u32 s72, s70, 8192
s_add_u32 s73, s69, {D_A(1)}
s_add_u32 s74, s73, 4096
s_add_u32 s75, s73, 8192
v_lshrrev_b32 v24, 1, v22
v_add_u32 v24, {LQ}, v24""")
a(f"s_lshl_b32 s76, s4, 6\ns_add_u32 s76, s76, {X_A}\nv_and_b32 v25, 15, v0\nv_lshlrev_b32 v25, 2, v25")
poll(lambda: (a("buffer_load_dword v26, v25, s[16:19], s76 offen sc1"), qg_issue(4, 70), qg_issue(13, 73)), lambda: check_sentinel(range(4, 22), 23), depth=cfg.d4)
a(f"v_readfirstlane_b32 s70, v26\nv_cmp_ne_u32 vcc, s70, v26\ns_cmp_eq_u64 vcc, 0\ns_cselect_b32 s33, {cfg.xl}, 0")
qg_sum(4); qg_sum(13)
a("ds_write_b16 v24, v4\nds_write_b16 v24, v13 offset:512")
stamp("q1")
ln_until(10)
a("s_waitcnt lgkmcnt(0)\ns_barrier")

def att_params(ai, seq):
    a(f"s_mov_b32 s58, {A_O(ai)}\ns_mov_b32 s59, {A_L(ai)}\ns_mov_b32 s65, {LQ + ai*512}\ns_mov_b32 s64, {LX + (seq&1)*4224}")
def hint_addr(ai):
    a(f"s_lshl_b32 s62, s4, 7\ns_add_u32 s62, s62, {H_A(ai)+8}")
def att_p1(ai, seq):
    att_params(ai, seq); hint_addr(ai); a("s_mov_b64 vcc, -1"); call("SUB_ATT")
def qatt(ai, seq, loadnext):
    att_params(ai, seq); a(f"s_mov_b32 s62, {D_A(ai)}\ns_mov_b32 s63, {2 if loadnext else 0}"); call("SUB_QATT")
def ch1(inst, final, entry="SUB_CH1", aonly=False):
    b = inst & 1
    a(f"s_mov_b32 s58, {A_O(inst)}\ns_mov_b32 s59, {A_L(inst)}\ns_mov_b32 s60, {B_A(inst)}\ns_mov_b32 s64, {LXB + b*2304}")
    a(f"s_mov_b32 s63, {2 if aonly else 1 if final else 0}\ns_mov_b32 s61, {b*1152 if final else C_A(inst)}")
    call(entry)
def ch2(inst):
    b = inst & 1
    a(f"s_mov_b32 s63, 0\ns_mov_b32 s61, {C_A(inst)}\ns_mov_b32 s64, {LXB + b*2304}\ns_mov_b32 s62, {D_A(2+inst)}")
    call("SUB_CH2")

a(f"s_cmp_eq_u32 s3, 0\ns_cselect_b32 s63, 4, 0\ns_lshl_b32 s60, s4, 7\ns_add_u32 s60, s60, {H_A(2)+4}")
att_p1(0, 0)
stamp("P1b0")
a("s_add_u32 s27, s27, 0x4000000\ns_cmp_ge_u32 s5, 9\ns_cbranch_scc1 L_srole")
a(f"s_mov_b32 s42, {cfg.thr3}")
if cfg.latew:
    load_wo(); load_mixer(LMX)
    a("s_waitcnt vmcnt(9)\ns_barrier")
ch1(0, False); ch2(0)
stamp("wq0")
a(f"s_xor_b32 s69, s33, 1")
qatt(2, 1, True)
stamp("P2b0")
if cfg.roles:
    ln_until(cfg.fa)
    ch1(2, True, aonly=True)
    a(f"""s_or_b32 s70, s5, s3
    s_cbranch_scc1 L_nf3
    s_lshl_b32 s70, s4, 7
    s_add_u32 s70, s70, {H_A(3)}
    s_mov_b64 exec, 1
    buffer_store_dword v2, v2, s[16:19], s70 offen sc1
    s_mov_b64 exec, -1
    L_nf3:""")
else:
    ch1(2, True)
stamp("fin0")
ln_until(10)
a(f"s_cmp_eq_u32 s3, 0\ns_cselect_b32 s63, 3, 0\ns_lshl_b32 s60, s4, 7\ns_add_u32 s60, s60, {H_A(2)}")
att_p1(1, 2)
stamp("P1b1")
a("s_mov_b32 s79, 1")
ch1(1, False); ch2(1)
qatt(3, 3, False)
stamp("P2b1")
a("s_mov_b32 s79, 2")
ch1(3, True)
stamp("end")
a("s_branch L_stamps" if cfg.stamps else "s_branch L_fin")
def s_reload():
    if not cfg.nogo: flagwait(2, cfg.sg, 0, cfg.n1)
    pass
    a("s_mov_b32 s82, 0")
    if cfg.thr2 >= 0: a("s_mov_b32 s42, 2")
    ln_until(8)
    load_v([t for t in range(cfg.j0) if t not in LDS_T])
    a("s_mov_b32 s29, s57")
    a("s_mov_b32 s82, 16")
    if cfg.stamps: a("s_waitcnt vmcnt(0)")
    stamp("s.rel")
a.label("L_srole")
a("s_mov_b32 s42, 0")
a(f"s_mov_b32 s69, 0")
if cfg.roles:
    a(f"s_mul_i32 s57, s3, {NS*1024}\ns_add_u32 s57, s57, {LWO}")
    if cfg.go0 >= 0: flagwait(2, cfg.sh, 4, cfg.n0)
    att_params(1, 1); call("SUB_RING")
    stamp("s.ring")
    flagwait(0, cfg.sh)
    qatt(2, 2, False)
    stamp("s.P2b0")
    if cfg.j0 < 64:
        att_params(1, 1); hint_addr(1); a("s_mov_b32 s63, 0"); call("SUB_RESUME")
        stamp("s.P1b1")
    if cfg.pf0 < 8:
        nun = 36 * (8 - cfg.pf0)
        a(f"""v_lshlrev_b32 v4, 7, v0
        s_sub_u32 s70, s5, 9
        s_lshl_b32 s70, s70, 2
        s_add_u32 s70, s70, s3
        s_mov_b32 s71, {(1 << 32) // 36 + 1}""")
        for i in range((nun + 27) // 28):
            L = a.newlabel("Lpf")
            if (i + 1) * 28 > nun: a(f"s_cmp_ge_u32 s70, {nun}\ns_cbranch_scc1 {L}")
            a(f"""s_mul_hi_u32 s72, s70, s71
            s_mul_i32 s73, s72, 36
            s_sub_u32 s73, s70, s73
            s_lshr_b32 s74, s73, 2
            s_sub_u32 s74, s74, s4
            s_and_b32 s74, s74, 15
            s_lshl_b32 s75, s4, 4
            s_add_u32 s74, s74, s75
            s_lshl_b32 s74, s74, 18
            s_and_b32 s73, s73, 3
            s_lshl_b32 s73, s73, 16
            s_add_u32 s74, s74, s73
            s_lshl_b32 s72, s72, 13
            s_add_u32 s74, s74, s72
            s_add_u32 s74, s74, {0x4000000 + cfg.pf0 * 8192}
            s_add_u32 s73, s74, 4096
            s_add_u32 s70, s70, 28""")
            for t in range(8): a(f"buffer_load_dwordx4 a[{4*t}:{4*t+3}], v2, s[12:15], s{74 if t < 4 else 73} offen offset:{(t&3)*1024}")
            a.label(L)
    if cfg.relfirst: s_reload()
    load_mixer(0)
    a(f"""s_mov_b32 s56, 0
    s_mov_b32 s70, {C_A(0)}
    v_lshlrev_b32 v13, 2, v0
    buffer_load_dwordx4 v[4:7], v2, s[16:19], s70 offen sc1
    buffer_load_dwordx4 v[8:11], v2, s[16:19], s70 offen offset:1024 sc1
    buffer_load_dword v12, v13, s[16:19], s70 offen offset:2048 sc1
    v_add_u32 v14, {LXB}, v2
    v_add_u32 v13, {LXB}, v13
    s_mul_i32 s7, s4, 7
    s_add_u32 s7, s7, s5
    s_sub_u32 s7, s7, 9
    s_waitcnt vmcnt(0)
    ds_write_b128 v14, v[4:7]
    ds_write_b128 v14, v[8:11] offset:1024
    ds_write_b32 v13, v12 offset:2048""")
    flagwait(3, cfg.sg)
    ch1(2, True, entry="SUB_CH1B")
    if not cfg.late2:
        a("s_add_u32 s7, s7, 112\ns_cmp_ge_u32 s7, 144\ns_cbranch_scc1 L_s_nf")
        call("SUB_CH1B")
        a.label("L_s_nf")
    stamp("s.fin0")
    if not cfg.relfirst: s_reload()
else:
    flagwait(0, cfg.sh)
    qatt(2, 1, True)
    ln_until(10)
    a("s_mov_b32 s63, 0")
    att_p1(1, 2)
    stamp("s.P1b1")
flagwait(1, cfg.sh)
qatt(3, 2 if (cfg.roles and cfg.j0 < 64) else 3, False)
stamp("s.end")
if cfg.roles and cfg.late2:
    a("s_add_u32 s7, s7, 112\ns_cmp_ge_u32 s7, 144\ns_cbranch_scc1 L_s_nf")
    ch1(2, True, entry="SUB_CH1B")
    stamp("end")
    a.label("L_s_nf")
if cfg.stamps: a("s_branch L_stamps")
a.label("L_fin")
a("s_waitcnt vmcnt(0)")
a.label("L_end")
a("s_endpgm")

def att_pre(zero=True):
    a(f"""
    v_bfe_u32 v15, v0, 1, 1
    v_lshlrev_b32 v12, 8, v15
    v_lshrrev_b32 v13, 4, v0
    v_lshl_add_u32 v12, v13, 5, v12
    v_and_b32 v14, 1, v0
    v_lshl_add_u32 v12, v14, 4, v12
    v_add_u32 v12, s65, v12
    v_bfe_u32 v15, v0, 4, 1
    v_lshlrev_b32 v47, 9, v15
    v_and_b32 v15, 15, v0
    v_lshl_add_u32 v47, v15, 5, v47
    v_lshrrev_b32 v15, 5, v0
    v_lshl_add_u32 v47, v15, 4, v47
    s_lshl_b32 s70, s3, 10
    s_add_u32 s70, s70, s64
    v_add_u32 v47, s70, v47
    """)
    if zero: zero_a()
def zero_a():
    for i in range(12): a(f"v_mov_b32 v{34+i}, 0")
def Dset(i): return 12 + 4 * (i % 3)
def adds(i):
    G, t = i >> 2, i & 3; d = Dset(i)
    a(f"v_add_f32_dpp v32, v{d+1}, v{d} quad_perm:[1,0,3,2] row_mask:{1<<t:#x} bank_mask:0xf")
    a(f"v_add_f32_dpp v33, v{d+2}, v{d+3} quad_perm:[1,0,3,2] row_mask:{1<<t:#x} bank_mask:0xf")
    if t == 3:
        a(f"v_cndmask_b32 v{24+G}, v32, v33, s[24:25]")
        if G == 1: a("v_max_f32 v46, v24, v25")
        elif G % 2 == 1: a(f"v_max3_f32 v46, v46, v{23+G}, v{24+G}")
def kmm(kt, src):
    d = Dset(kt >> 1)
    if kt & 1: a(f"v_mfma_f32_16x16x32_bf16 {R4(d)}, v[8:11], {src}, {R4(d)}")
    else: a(f"v_mfma_f32_16x16x32_bf16 {R4(d)}, v[4:7], {src}, 0")
def softmax():
    for ctl in ("quad_perm:[2,3,0,1]", "row_ror:4", "row_ror:8"):
        a(f"v_max_f32_dpp v46, v46, v46 {ctl} {DPPALL}")
    rows_reduce("v_max_f32", 46, 32)
    a("v_mul_f32 v32, s26, v46")
    for G in range(8): a(f"v_fma_f32 v{24+G}, v{24+G}, s26, -v32")
    for G in range(8): a(f"v_exp_f32 v{24+G}, v{24+G}")
    a("v_pk_add_f32 v[4:5], v[24:25], v[26:27]\nv_pk_add_f32 v[6:7], v[28:29], v[30:31]\nv_pk_add_f32 v[4:5], v[4:5], v[6:7]\nv_add_f32 v20, v4, v5")
    lctl = ["quad_perm:[2,3,0,1]", "row_ror:8", "row_ror:4"]
    for G in range(8):
        t = 21 + (G & 1)
        a(f"v_mov_b32_dpp v{t}, v{24+G} quad_perm:[1,0,3,2] {DPPALL}")
        if G in (1, 3, 5): a(f"v_add_f32_dpp v20, v20, v20 {lctl[G//2]} {DPPALL}")
        a(f"v_cvt_pk_bf16_f32 v{24+G}, v{24+G}, v{t}")
    rows_reduce("v_add_f32", 20, 21)
    a("v_and_b32 v32, 3, v0\nv_mul_u32_u24 v32, 0x5555, v32")
def build(p, par):
    G, pi = p >> 2, p & 3
    bs = 34 + 4 * par
    for k in range(4):
        a(f"v_and_b32_dpp v{bs+k}, v{24+G}, v3 row_newbcast:{4*pi + 2*(k>>1)} row_mask:0xf bank_mask:{0xc if k & 1 else 0x3:#x}")
def vmm(src, par):
    a(f"v_smfmac_f32_16x16x64_bf16 v[42:45], {R4(34+4*par)}, {src}, v32")

a.hist = []
a.label("SUB_QATT")
att_pre()
a(f"""s_lshl_b32 s70, s3, 8
v_lshl_add_u32 v22, v0, 2, s70
s_mul_i32 s70, s4, 9216
s_add_u32 s70, s70, s62
s_add_u32 s71, s70, 4096
s_add_u32 s72, s70, 8192
v_lshrrev_b32 v24, 1, v22
v_add_u32 v24, s65, v24
s_cmp_eq_u32 s69, 0
s_cbranch_scc1 L_qatt_ns
s_sleep {max(1, cfg.s0['D'])}
L_qatt_ns:""")
poll(lambda: qg_issue(13, 70), lambda: check_sentinel(range(13, 22), 23))
qg_sum(13)
a("ds_write_b16 v24, v13\ns_cmp_eq_u32 s63, 2\ns_cselect_b32 s82, 0, s82\ns_mov_b64 vcc, 0\ns_waitcnt lgkmcnt(0)\ns_barrier")
stamp("q2b1", 1)
a.label("SUB_ATT2")
outofline = []
def site(fn):
    Lo = a.newlabel("Lo"); Lb = a.newlabel("Lb")
    a(f"s_cbranch_vccnz {Lo}"); a.label(Lb)
    outofline.append((Lo, Lb, fn))
def lnif():
    L = a.newlabel("Lki")
    a(f"s_cmp_ge_u32 s82, 16\ns_cbranch_scc1 {L}\ns_call_b64 s[80:81], SUB_LN"); a.label(L)
a("ds_read_b128 v[4:7], v12\nds_read_b128 v[8:11], v12 offset:128\ns_waitcnt vmcnt(16) lgkmcnt(0)")
for i in range(32):
    kmm(2*i, khome(2*i)); kmm(2*i+1, khome(2*i+1))
    if i >= 2: adds(i - 2)
    if cfg.ksites and i in (0, 15): site(lnif)
    if i in (3, 7):
        Lo = a.newlabel("Lo"); Lb = a.newlabel("Lb")
        a(f"s_cmp_lt_u32 s82, 2\ns_cbranch_scc1 {Lo}"); a.label(Lb)
        outofline.append((Lo, Lb, lambda: a("s_call_b64 s[80:81], SUB_LN")))
adds(30); adds(31)
if cfg.ksites: site(lnif)
softmax()
a("v_add_u32 v33, s29, v2")
sites = list(range(0, 60, 4)) + [60, 62]
done_sites = []
def arrived(t):
    for i in sites:
        if i > t or i in done_sites: continue
        done_sites.append(i)
        nxt = [x for x in sites if x > i]
        last = (nxt[0] if nxt else 64) - 1
        g = min(7, (i >> 3) + 2)
        def fn(i=i, g=g, last=last):
            if i % 8 == 0 and (i >> 3) + 2 <= 7:
                L = a.newlabel("Lsk")
                a(f"s_cmp_gt_u32 s82, {8+g}\ns_cbranch_scc1 {L}\ns_call_b64 s[80:81], SUB_LN"); a.label(L)
            a(f"s_waitcnt vmcnt({8*g + 7 - last})")
            for gi, code in ((cfg.go, 3), (cfg.go0, 4)):
              if i == gi:
                L = a.newlabel("Lsg")
                a(f"s_cmp_lg_u32 s63, {code}\ns_cbranch_scc1 {L}\ns_mov_b64 exec, 1\nbuffer_atomic_add v3, v2, s[16:19], s60 offen sc1\ns_mov_b64 exec, -1"); a.label(L)
        site(fn)
def lbuf(p): return 48 if p == 12 else (4 if (p >> 1) % 2 == 0 else 12)
nread = [0]; readpos = {}
def fetch(p):
    if p > 12 or p & 1: return
    arrived(2*p + 1)
    b = lbuf(p)
    a(f"ds_read_b128 {R4(b)}, v33 offset:{p*1024}"); nread[0] += 1
    if p < 12: a(f"ds_read_b128 {R4(b+4)}, v33 offset:{p*1024+1024}"); nread[0] += 1
    readpos[p] = nread[0]
fetch(0); fetch(2); build(0, 0)
for p in range(32):
    if p == cfg.j0 // 2: a.label("L_att_resume")
    if p + 1 < 32: build(p + 1, (p + 1) & 1)
    arrived(2*p + 1)
    if p in readpos:
        a(f"s_waitcnt lgkmcnt({nread[0] - readpos[p]})"); src = R8(lbuf(p))
    else: src = R8(vreg(2*p))
    vmm(src, p & 1)
    fetch(p + 4)
    if cfg.vsites and p in (1, 9, 17, 25):
        Lo = a.newlabel("Lo"); Lb = a.newlabel("Lb")
        a(f"s_cmp_lt_u32 s82, 8\ns_cbranch_scc1 {Lo}"); a.label(Lb)
        outofline.append((Lo, Lb, lambda: a("s_call_b64 s[80:81], SUB_LN")))
a.label("L_att_epi")
a(f"""
s_nop 3
v_and_b32 v32, 1, v0
v_lshlrev_b32 v32, 5, v32
s_lshl_b32 s70, s3, 2
s_add_u32 s70, s70, s64
s_add_u32 s70, s70, 4096
v_add_u32 v32, s70, v32
ds_write2_b32 v32, v46, v20 offset0:0 offset1:4
v_add_u32 v32, s64, v2
v_lshrrev_b32 v33, 5, v0
v_lshlrev_b32 v34, 6, v33
v_lshlrev_b32 v33, 5, v33
v_add_u32 v33, s64, v33
ds_write_b128 v47, v[42:45]
s_lshl_b32 s70, s2, 10
s_add_u32 s70, s70, s58
s_lshl_b32 s71, s4, 7
s_add_u32 s71, s71, s59
s_lshl_b32 s72, s6, 2
s_add_u32 s71, s71, s72
s_cmp_lg_u32 s3, 0
s_waitcnt lgkmcnt(0)
s_barrier
s_cbranch_scc1 L_att_ret
ds_read_b128 v[20:23], v33 offset:4096
ds_read_b128 v[24:27], v33 offset:4112
ds_read_b128 v[4:7], v32
ds_read_b128 v[8:11], v32 offset:1024
ds_read_b128 v[12:15], v32 offset:2048
ds_read_b128 v[16:19], v32 offset:3072
s_waitcnt lgkmcnt(4)
v_max3_f32 v28, v20, v21, v22
v_max_f32 v28, v28, v23
v_mul_f32 v28, s26, v28
""")
for w in range(4): a(f"v_fma_f32 v{20+w}, v{20+w}, s26, -v28")
for w in range(4): a(f"v_exp_f32 v{20+w}, v{20+w}")
a("""v_mul_f32 v30, v20, v24
v_fmac_f32 v30, v21, v25
v_fmac_f32 v30, v22, v26
v_fmac_f32 v30, v23, v27
s_waitcnt lgkmcnt(0)
v_pk_mul_f32 v[4:5], v[4:5], v[20:21] op_sel:[0,0] op_sel_hi:[1,0]
v_log_f32 v29, v30
v_rcp_f32 v30, v30
v_pk_mul_f32 v[6:7], v[6:7], v[20:21] op_sel:[0,0] op_sel_hi:[1,0]
v_pk_fma_f32 v[4:5], v[8:9], v[20:21], v[4:5] op_sel:[0,1,0] op_sel_hi:[1,1,1]
v_pk_fma_f32 v[6:7], v[10:11], v[20:21], v[6:7] op_sel:[0,1,0] op_sel_hi:[1,1,1]
v_pk_fma_f32 v[4:5], v[12:13], v[22:23], v[4:5] op_sel:[0,0,0] op_sel_hi:[1,0,1]
v_pk_fma_f32 v[6:7], v[14:15], v[22:23], v[6:7] op_sel:[0,0,0] op_sel_hi:[1,0,1]
v_pk_fma_f32 v[4:5], v[16:17], v[22:23], v[4:5] op_sel:[0,1,0] op_sel_hi:[1,1,1]
v_pk_fma_f32 v[6:7], v[18:19], v[22:23], v[6:7] op_sel:[0,1,0] op_sel_hi:[1,1,1]
v_pk_mul_f32 v[4:5], v[4:5], v[30:31] op_sel:[0,0] op_sel_hi:[1,0]
v_pk_mul_f32 v[6:7], v[6:7], v[30:31] op_sel:[0,0] op_sel_hi:[1,0]
v_add_f32 v29, v29, v28""")
gstore("""buffer_store_dwordx4 v[4:7], v2, s[16:19], s70 offen sc1
s_mov_b32 exec_lo, 1
s_mov_b32 exec_hi, 1
buffer_store_dword v29, v34, s[16:19], s71 offen sc1
s_mov_b64 exec, -1""")
a.label("L_att_ret")
ret()
a.hist = []
a.label("SUB_ATT")
att_pre()
a("s_branch SUB_ATT2")
for Lo, Lb, fn in outofline:
    a.hist = []
    a.label(Lo); fn(); a(f"s_branch {Lb}")

a.hist = []
a.label("SUB_LN")
T2 = f"s_waitcnt vmcnt({cfg.thr2})\ns_cmp_eq_u32 s42, 2\ns_cbranch_scc1 %s\n" if cfg.thr2 >= 0 else "%.0s"
if cfg.thr >= 0: a(f"s_cmp_eq_u32 s42, 0\ns_cbranch_scc1 L_ln_nt\n" + T2 % "L_ln_nt" + f"s_waitcnt vmcnt({cfg.thr})\nL_ln_nt:")
for k in range(15): a(f"s_cmp_eq_u32 s82, {k}\ns_cbranch_scc1 L_lnb{k}")
for k in [15] + list(range(15)):
    a.label(f"L_lnb{k}")
    for hlf in range(2):
        if hlf and cfg.thrm >= 0: a(f"s_cmp_eq_u32 s42, 0\ns_cbranch_scc1 L_lnm{k}\n" + T2 % f"L_lnm{k}" + f"s_waitcnt vmcnt({cfg.thrm})\nL_lnm{k}:")
        if k < 8: load_k(range(8*k+4*hlf, 8*k+4*hlf+4))
        else: load_v(range(8*(k-8)+4*hlf, 8*(k-8)+4*hlf+4))
    a("s_add_u32 s82, s82, 1\ns_setpc_b64 s[80:81]")

a.hist = []
a.label("SUB_LNW")
a(f"""s_mov_b32 s36, 0
L_lnw_i:
s_call_b64 s[80:81], SUB_LN
s_add_u32 s36, s36, 8
L_lnw_c:
s_getreg_b32 s37, hwreg(HW_REG_IB_STS)
s_and_b32 s28, s37, 15
s_lshr_b32 s37, s37, 18
s_and_b32 s37, s37, 0x30
s_or_b32 s37, s37, s28
s_cmp_le_u32 s37, s36
s_cbranch_scc1 L_lnw_r
s_cmp_ge_u32 s82, 16
s_cbranch_scc1 L_lnw_s
s_cmp_lt_u32 s37, 40
s_cbranch_scc1 L_lnw_i
L_lnw_s:
s_sleep 1
s_branch L_lnw_c
L_lnw_r:""")
for n in (8, 16, 24, 32, 40):
    a(f"s_cmp_gt_u32 s36, {n}\ns_cbranch_scc1 L_lnw_r{n}\ns_waitcnt vmcnt({n})\ns_setpc_b64 s[34:35]\nL_lnw_r{n}:")
a("s_waitcnt vmcnt(48)\ns_setpc_b64 s[34:35]")

a.hist = []
a.label("SUB_CH1")
a(f"""
v_lshrrev_b32 v21, 4, v0
v_bfe_u32 v22, v0, 2, 2
v_lshl_add_u32 v23, v21, 3, v22
v_lshlrev_b32 v23, 7, v23
v_bfe_u32 v21, v0, 3, 2
v_xor_b32 v21, s3, v21
v_lshl_add_u32 v23, v21, 5, v23
v_and_b32 v21, 3, v0
v_lshl_add_u32 v23, v21, 3, v23
v_add_u32 v23, {LWO}, v23
""")
for ks in range(7):
    for jh in range(2):
        a(f"ds_read_b64_tr_b16 {R2(24 + 4*ks + 2*jh)}, v23 offset:{(32*ks+4*jh)*128}")
a(f"""
v_lshlrev_b32 v21, 2, v0
s_lshl_b32 s70, s4, 14
s_add_u32 s70, s70, s58
s_lshl_b32 s71, s3, 8
s_add_u32 s70, s70, s71
s_add_u32 s71, s70, 4096
s_add_u32 s72, s70, 8192
s_add_u32 s73, s70, 12288
s_lshl_b32 s74, s4, 7
s_add_u32 s74, s74, s59
s_lshr_b32 s75, s3, 1
s_lshl_b32 s75, s75, 6
s_add_u32 s74, s74, s75
s_lshl_b32 s75, s3, 7
s_add_u32 s75, s75, {LO}
""")
def issA():
    a("v_and_b32 v20, 60, v21\nbuffer_load_dword v20, v20, s[16:19], s74 offen sc1")
    for s in range(16):
        a(f"buffer_load_dword v{4+s}, v21, s[16:19], s{70+(s>>2)} offen offset:{(s&3)*1024} sc1")
TGT = 16 * 0xffff - 1
if cfg.hint >= 0:
    a(f"""s_cmp_lg_u32 s63, 0
    s_cbranch_scc1 L_ch1_sa
    s_lshl_b32 s76, s4, 7
    s_add_u32 s76, s76, s61
    s_add_u32 s76, s76, {0x8008}
    v_mov_b32 v4, 0
    s_mov_b32 s68, 0
    L_ch1_wa:
    buffer_load_dword v5, v4, s[16:19], s76 offen sc1
    s_waitcnt vmcnt(0)
    v_cmp_gt_i32 vcc, {TGT}, v5
    s_cbranch_vccz L_ch1_pa
    s_sleep {cfg.sh}
    s_add_u32 s68, s68, 1
    s_cmp_lt_u32 s68, {cfg.spin}
    s_cbranch_scc1 L_ch1_wa
    s_branch L_ch1_pa
    L_ch1_sa:
    s_sleep {cfg.s0['A']}
    L_ch1_pa:""")
    poll(issA, lambda: check_sentinel(range(4, 21), 22), s0=cfg.sA2)
else:
    if cfg.s0["M"] < cfg.s0["A"]:
        a(f"s_cmp_eq_u32 s63, 0\ns_cbranch_scc1 L_ch1_ms\ns_sleep {cfg.s0['A'] - cfg.s0['M']}\nL_ch1_ms:")
        poll(issA, lambda: check_sentinel(range(4, 21), 22), s0=cfg.s0["M"])
    else:
        a(f"s_cmp_lg_u32 s33, 0\ns_cbranch_scc1 L_ch1_fs\ns_sleep {cfg.s0['A'] - cfg.fA}\nL_ch1_fs:")
        poll(issA, lambda: check_sentinel(range(4, 21), 22), s0=cfg.fA)
stamp("c.A", 1); stamp("f.A", 2)
a(f"v_max_f32_dpp v22, v20, v20 {CTL4[0]} {DPPALL}")
for c in CTL4[1:]: a(f"v_max_f32_dpp v22, v22, v22 {c} {DPPALL}")
a("v_sub_f32 v20, v20, v22\nv_exp_f32 v20, v20")
a(f"v_mul_f32_dpp v21, v20, v4 row_newbcast:0 {DPPALL}\nv_add_f32_dpp v22, v20, v20 {CTL4[0]} {DPPALL}")
for s in range(1, 16):
    a(f"v_fmac_f32_dpp v21, v20, v{4+s} row_newbcast:{s} {DPPALL}")
    if s in (2, 4, 6): a(f"v_add_f32_dpp v22, v22, v22 {CTL4[s//2]} {DPPALL}")
    if s == 4: a(f"ds_read_b64_tr_b16 v[4:5], v23 offset:{(32*7)*128}\nds_read_b64_tr_b16 v[6:7], v23 offset:{(32*7+4)*128}")
    if s == 8: a("v_rcp_f32 v22, v22")
    if s == 9: a("v_lshl_add_u32 v23, v0, 1, s75")
a(f"""
v_mul_f32 v21, v21, v22
v_cvt_pk_bf16_f32 v21, v21, v21
ds_write_b16 v23, v21
v_and_b32 v0, 48, v0
v_add_u32 v0, {LO}, v0
s_lshl_b32 s70, s7, 8
s_add_u32 s70, s70, s60
s_lshl_b32 s71, s3, 6
s_add_u32 s74, s70, s71
s_mul_i32 s70, s3, 9216
s_add_u32 s70, s70, s60
s_add_u32 s71, s70, 2304
s_add_u32 s72, s70, 4608
s_add_u32 s73, s70, 6912
s_waitcnt lgkmcnt(0)
s_barrier
""")
order = [7, 0, 1, 2, 3, 4, 5, 6]
def frag(ks): return "v[4:7]" if ks == 7 else R4(24 + 4*ks)
bufs = ["v[8:11]", "v[12:15]", "v[16:19]"]
for n in range(3): a(f"ds_read_b128 {bufs[n]}, v0 offset:{order[n]*64}")
for n, ks in enumerate(order):
    a(f"s_waitcnt lgkmcnt({len(bufs) - 1 - n})")
    a(f"v_mfma_f32_16x16x32_bf16 v[20:23], {bufs[n]}, {frag(ks)}, {'0' if n == 0 else 'v[20:23]'}")
    for fr in (frag(ks), bufs[n]):
        if len(bufs) < 8:
            a(f"ds_read_b128 {fr}, v0 offset:{order[len(bufs)]*64}"); bufs.append(fr)
a(f"""
v_lshrrev_b32 v0, 4, v2
v_lshlrev_b32 v49, 2, v0
s_mul_i32 s75, s3, 2304
s_add_u32 s75, s75, {LX}
v_add_u32 v51, s75, v2
s_mov_b64 exec, 0xffff
buffer_store_dword v20, v49, s[16:19], s74 offen sc1
s_mov_b64 exec, -1
""")
a("s_cmp_eq_u32 s63, 2\ns_cbranch_scc1 L_ch1_ret")
a.label("L_ch1_b")
ln(False)
def issB():
    for r in range(4):
        a(f"buffer_load_dwordx4 {R4(4+8*r)}, v2, s[16:19], s{70+r} offen sc1")
        a(f"buffer_load_dwordx4 {R4(8+8*r)}, v2, s[16:19], s{70+r} offen offset:1024 sc1")
        a(f"buffer_load_dword v{36+r}, v49, s[16:19], s{70+r} offen offset:2048 sc1")
def chkB():
    for i in range(4): a(f"v_pk_add_f32 {R2(40+2*i)}, {R2(4+2*i)}, {R2(12+2*i)}")
    a("v_add_f32 v48, v36, v37")
    for r in (2, 3):
        for i in range(4): a(f"v_pk_add_f32 {R2(40+2*i)}, {R2(40+2*i)}, {R2(4+8*r+2*i)}")
        a(f"v_add_f32 v48, v48, v{36+r}")
    a("v_add_u32 v50, s75, v49\nds_write_b128 v51, v[40:43]\nds_write_b128 v51, v[44:47] offset:1024\nds_write_b32 v50, v48 offset:2048")
    check_sentinel(range(4, 40), 50)
if cfg.hint >= 0:
    a(f"""s_cmp_lg_u32 s63, 0
    s_cbranch_scc1 L_ch1_sb
    s_add_u32 s76, s61, {0x8008}
    v_and_b32 v4, 15, v0
    v_lshlrev_b32 v4, 7, v4
    buffer_load_dword v5, v4, s[16:19], s76 offen sc1
    s_waitcnt vmcnt(0)
    v_cmp_gt_i32 vcc, {TGT}, v5
    s_cbranch_vccz L_ch1_pb
    s_mov_b32 s68, 0
    L_ch1_wb:
    s_sleep {cfg.sh}
    buffer_load_dword v5, v4, s[16:19], s76 offen sc1
    s_waitcnt vmcnt(0)
    v_cmp_gt_i32 vcc, {TGT}, v5
    s_cbranch_vccz L_ch1_wb2
    s_add_u32 s68, s68, 1
    s_cmp_lt_u32 s68, {cfg.spin}
    s_cbranch_scc1 L_ch1_wb
    L_ch1_wb2:
    s_sleep {cfg.sB2}
    s_branch L_ch1_pb
    L_ch1_sb:
    s_sleep {cfg.s0['B']}
    L_ch1_pb:""")
    poll(issB, chkB)
else:
    if cfg.s0["N"] < cfg.s0["B"]:
        a(f"s_cmp_eq_u32 s63, 0\ns_cbranch_scc1 L_ch1_ns\ns_sleep {cfg.s0['B'] - cfg.s0['N']}\nL_ch1_ns:")
    poll(issB, chkB, s0=min(cfg.s0["B"], cfg.s0["N"]))
stamp("c.B", 1); stamp("f.B", 2)
a(f"""
v_add_u32 v14, s64, v2
v_add_u32 v15, s64, v49
ds_read_b128 v[4:7], v14
ds_read_b128 v[8:11], v14 offset:1024
ds_read_b32 v12, v15 offset:2048
v_add_u32 v14, {LX}, v2
v_add_u32 v15, {LX+2048}, v49
s_waitcnt lgkmcnt(3)
s_barrier
""")
for r in range(4):
    a(f"ds_read_b128 {R4(16+8*r)}, v14 offset:{r*2304}\nds_read_b128 {R4(20+8*r)}, v14 offset:{r*2304+1024}")
    if r == 0: a("ds_read2st64_b32 v[48:49], v15 offset0:0 offset1:9\nds_read2st64_b32 v[50:51], v15 offset0:18 offset1:27")
a(f"""
v_lshlrev_b32 v13, 3, v0
v_add_u32 v13, {LLN}, v13
v_lshlrev_b32 v14, 1, v0
v_add_u32 v14, {LLN+1024}, v14
v_and_b32 v15, 3, v0
s_lshl_b32 s70, s7, 3
s_add_u32 s70, s70, {LLN}
v_lshl_add_u32 v15, v15, 1, s70
s_lshl_b32 s70, s3, 8
s_add_u32 s70, s70, s56
""")
for r in range(4):
    a(f"s_waitcnt lgkmcnt({6 - 2*r})")
    for i in range(4): a(f"v_pk_add_f32 {R2(4+2*i)}, {R2(4+2*i)}, {R2(16+8*r+2*i)}")
    a(f"v_add_f32 v12, v12, v{48+r}")
a("""v_cvt_pk_bf16_f32 v16, v4, v5
v_cvt_pk_bf16_f32 v17, v6, v7
v_cvt_pk_bf16_f32 v18, v8, v9
v_cvt_pk_bf16_f32 v19, v10, v11
v_cvt_pk_bf16_f32 v20, v12, 0
ds_write_b64 v13, v[16:17]
ds_write_b64 v13, v[18:19] offset:512
ds_write_b16 v14, v20
ds_read_u16 v27, v15
v_lshl_add_u32 v26, v0, 2, s70""")
fill = [f"ds_read2st64_b32 {R2(28+2*i)}, v26 offset0:{4*i} offset1:{36+4*i}" for i in range(8)]
fill += [f"ds_read2st64_b32 {R2(44+2*i)}, v26 offset0:{72+8*i} offset1:{76+8*i}" for i in range(4)]
fill = [fill[0], fill[8]] + fill[1:8] + fill[9:]
stats([16, 17, 18, 19, 20], 4, 5, fill)
ln_scalars(4, 5, 6, 7, 8)
a("s_waitcnt lgkmcnt(12)\nv_lshlrev_b32 v27, 16, v27\nv_sub_f32 v9, v27, v6\nv_sub_f32 v4, v4, v6\nv_mul_f32 v5, v5, v7\nv_mul_f32 v4, v4, v7\nv_mul_f32 v5, v5, v7")
rbf(9, 10); a("v_mul_f32 v9, v9, v7"); rbf(9, 10)
ln_scalars(4, 5, 6, 7, 8)
a("v_sub_f32 v9, v9, v6"); rbf(9, 10); a("v_mul_f32 v9, v9, v7"); rbf(9, 10)
a(f"v_mul_f32 v9, {f32(GS)}, v9\nv_mov_b32 v25, v26")
for e in range(4): a(f"v_readlane_b32 s{70+2*e}, v9, {60+e}")
ln(False)
a(f"v_mov_b32 v26, {f32(GA)}\ns_mov_b32 s66, {f32(GS)}\ns_waitcnt lgkmcnt(0)")
for i in range(9):
    w1, b1, w2 = (28+2*i, 29+2*i, 44+i) if i < 8 else (28, 29, 44)
    if i == 8: a("s_waitcnt lgkmcnt(0)")
    for j, r in enumerate((w1, b1, w2)):
        a(f"v_lshlrev_b32 v{12+2*j}, 16, v{r}\nv_and_b32 v{13+2*j}, 0xffff0000, v{r}")
    a("v_pk_mul_f32 v[14:15], v[14:15], s[66:67] op_sel_hi:[1,0]")
    if i == 0: a("ds_read2st64_b32 v[28:29], v25 offset0:32 offset1:68\nds_read_b32 v44, v25 offset:26624")
    if cfg.pfc and i == cfg.pfi:
        a(f"s_cmp_eq_u32 s60, {B_A(0)}\ns_cbranch_scc1 L_mx_pf\nL_mx_pfb:")
    for e0 in (0, 2):
        U = (18, 22); T = (20, 24); E = (e0, e0 + 1)
        for k in range(2): a(f"v_pk_fma_f32 {R2(U[k])}, v[12:13], s[{70+2*E[k]}:{71+2*E[k]}], v[14:15] op_sel_hi:[1,0,1]")
        for k in range(2): a(f"v_pk_fma_f32 {R2(T[k])}, {R2(U[k])}, {R2(U[k])}, v[26:27] op_sel_hi:[1,1,0]")
        for k in range(2): a(f"v_pk_mul_f32 {R2(T[k])}, {R2(U[k])}, {R2(T[k])}")
        for k in range(2): a(f"v_exp_f32 v{T[k]}, -v{T[k]}\nv_exp_f32 v{T[k]+1}, -v{T[k]+1}")
        for k in range(2): a(f"v_pk_mul_f32 {R2(U[k])}, {R2(U[k])}, v[16:17]")
        for k in range(2): a(f"v_pk_add_f32 {R2(T[k])}, {R2(T[k])}, 1.0 op_sel_hi:[1,0]")
        for k in range(2): a(f"v_rcp_f32 v{T[k]}, v{T[k]}\nv_rcp_f32 v{T[k]+1}, v{T[k]+1}")
        for k in range(2):
            acc = R2(4 + 2*E[k])
            a(f"v_pk_mul_f32 {acc}, {R2(U[k])}, {R2(T[k])}" if i == 0 else f"v_pk_fma_f32 {acc}, {R2(U[k])}, {R2(T[k])}, {acc}")
stamp("c.mix", 1)
for e in range(4): a(f"v_add_f32 v{4+2*e}, v{4+2*e}, v{5+2*e}")
if cfg.pfc: a("s_waitcnt vmcnt(0)")
a(f"""v_lshrrev_b32 v12, 4, v0
v_lshlrev_b32 v12, 2, v12
s_lshl_b32 s66, s3, 4
s_add_u32 s66, s66, {LRED}
v_add_u32 v12, s66, v12""")
row16_reduce("v_add_f32", [4, 6, 8, 10])
a(f"""
ds_write2_b32 v12, v4, v6 offset0:0 offset1:16
ds_write2_b32 v12, v8, v10 offset0:32 offset1:48
v_and_b32 v13, 3, v0
v_lshlrev_b32 v12, 6, v13
v_add_u32 v12, {LRED}, v12
s_mov_b32 s20, s52
s_mov_b32 s21, s53
s_mov_b32 s22, 2304
s_lshl_b32 s66, s7, 4
s_lshr_b32 s66, s66, s63
s_add_u32 s66, s66, s61
v_lshlrev_b32 v13, 2, v13
v_lshrrev_b32 v13, s63, v13
s_cmp_lg_u32 s3, 0
s_waitcnt lgkmcnt(0)
s_barrier
s_cbranch_scc1 L_ch1_ret
ds_read_b128 v[16:19], v12
ds_read_b128 v[20:23], v12 offset:16
ds_read_b128 v[28:31], v12 offset:32
ds_read_b128 v[32:35], v12 offset:48
s_cmp_eq_u32 s63, 1
s_mov_b64 exec, 15
s_waitcnt lgkmcnt(2)
v_pk_add_f32 v[16:17], v[16:17], v[18:19]
v_pk_add_f32 v[20:21], v[20:21], v[22:23]
s_waitcnt lgkmcnt(0)
v_pk_add_f32 v[28:29], v[28:29], v[30:31]
v_pk_add_f32 v[32:33], v[32:33], v[34:35]
v_pk_add_f32 v[16:17], v[16:17], v[20:21]
v_pk_add_f32 v[28:29], v[28:29], v[32:33]
v_pk_add_f32 v[16:17], v[16:17], v[28:29]
v_add_f32 v16, v16, v17
v_mul_f32 v16, {f32(1.0/GS)}, v16
""")
rbf(16, 17); a("v_add_f32 v16, s78, v16"); rbf(16, 17); a("v_add_f32 v16, v16, v27"); rbf(16, 17)
a(f"""
s_cbranch_scc1 L_ch1_fin
buffer_store_dword v16, v13, s[16:19], s66 offen sc1
s_branch L_ch1_done
L_ch1_fin:
buffer_store_short v17, v13, s[20:23], s66 offen
L_ch1_done:
s_mov_b64 exec, -1
L_ch1_ret:
""")
ret()

if cfg.pfc:
    a.hist = []
    a.label("L_mx_pf")
    for kt in range(cfg.pfc):
        if kt % 8 == 0: a(f"s_add_u32 s28, s27, {(kt>>3)*8192}")
        a(f"buffer_load_dwordx4 v[30:33], v1, s[8:11], s28 offen offset:{((kt>>1)&3)*512+(kt&1)*128}")
    a("s_branch L_mx_pfb")
a.hist = []
a.label("SUB_CH1B")
a(f"""s_mul_i32 s70, s3, 9216
s_add_u32 s70, s70, s60
s_add_u32 s71, s70, 2304
s_add_u32 s72, s70, 4608
s_add_u32 s73, s70, 6912
v_lshlrev_b32 v49, 2, v0
s_mul_i32 s75, s3, 2304
s_add_u32 s75, s75, {LX}
v_add_u32 v51, s75, v2
s_barrier
s_branch L_ch1_b""")

a.hist = []
a.label("SUB_CH2")
a(f"""
v_lshrrev_b32 v13, 4, v0
v_bfe_u32 v14, v0, 2, 2
v_lshl_add_u32 v15, v13, 3, v14
v_lshlrev_b32 v15, 9, v15
v_bfe_u32 v13, v0, 2, 3
s_lshl_b32 s70, s3, 2
v_xor_b32 v13, s70, v13
v_lshl_add_u32 v15, v13, 5, v15
v_and_b32 v13, 3, v0
v_lshl_add_u32 v15, v13, 3, v15
v_add_u32 v15, {LWQ}, v15
v_xor_b32 v16, 32, v15
v_xor_b32 v17, 64, v15
v_xor_b32 v18, 96, v15
""")
for cbk in range(4):
    for ks in range(2):
        for jh in range(2):
            a(f"ds_read_b64_tr_b16 {R2(20 + 8*cbk + 4*ks + 2*jh)}, v{15+cbk} offset:{(32*ks+4*jh)*512}")
a(f"""
v_lshlrev_b32 v19, 2, v0
v_add_u32 v15, s64, v2
v_add_u32 v16, s64, v19
s_lshl_b32 s72, s5, 8
s_lshl_b32 s74, s7, 10
s_add_u32 s74, s74, s62
s_lshl_b32 s71, s3, 8
s_add_u32 s74, s74, s71
s_cmp_eq_u32 s63, 1
s_cbranch_scc0 L_ch2_g
v_add_u32 v17, s72, v16
ds_read_b128 v[4:7], v15
ds_read_b128 v[8:11], v15 offset:1024
ds_read_b32 v12, v16 offset:2048
ds_read_b32 v13, v17
s_waitcnt lgkmcnt(0)
s_branch L_ch2_x
L_ch2_g:
s_add_u32 s72, s72, s61
s_lshl_b32 s73, s4, 7
s_add_u32 s73, s73, s61
s_add_u32 s73, s73, 0x8000
""")
def issC():
    a("""buffer_load_dwordx4 v[4:7], v2, s[16:19], s61 offen sc1
    buffer_load_dwordx4 v[8:11], v2, s[16:19], s61 offen offset:1024 sc1
    buffer_load_dword v12, v19, s[16:19], s61 offen offset:2048 sc1
    buffer_load_dword v13, v19, s[16:19], s72 offen sc1""")
poll(issC, lambda: check_sentinel(range(4, 14), 14), s0=cfg.s0["C"], s0w=cfg.s0["Y"])
a("""s_or_b32 s70, s5, s3
s_cbranch_scc1 L_ch2_nh
""")
gstore("s_mov_b64 exec, 1\nbuffer_store_dword v19, v19, s[16:19], s73 offen sc1\ns_mov_b64 exec, -1")
a("""L_ch2_nh:
ds_write_b128 v15, v[4:7]
ds_write_b128 v15, v[8:11] offset:1024
ds_write_b32 v16, v12 offset:2048
L_ch2_x:
v_cvt_pk_bf16_f32 v14, v4, v5
v_cvt_pk_bf16_f32 v15, v6, v7
v_cvt_pk_bf16_f32 v16, v8, v9
v_cvt_pk_bf16_f32 v17, v10, v11
v_cvt_pk_bf16_f32 v18, v12, 0""")
stats([14, 15, 16, 17, 18], 4, 5, ["v_lshlrev_b32 v9, 1, v0", f"v_add_u32 v9, {LRED}, v9", "v_and_b32 v12, 48, v0", f"v_add_u32 v12, {LRED}, v12"])
ln_scalars(4, 5, 6, 7, 8)
a("v_readlane_b32 s70, v6, 63\nv_readlane_b32 s71, v7, 63\nv_subrev_f32 v13, s70, v13")
rbf(13, 8)
a("""v_mul_f32 v13, s71, v13
v_cvt_pk_bf16_f32 v13, v13, v13
ds_write_b16 v9, v13
ds_read_b128 v[4:7], v12
ds_read_b128 v[8:11], v12 offset:64
s_waitcnt lgkmcnt(0)""")
accs = [12, 20, 28, 36]
for cbk in range(4):
    d = accs[cbk]; f = 20 + 8 * cbk
    a(f"v_mfma_f32_16x16x32_bf16 {R4(d)}, v[4:7], {R4(f)}, 0")
    a(f"v_mfma_f32_16x16x32_bf16 {R4(d)}, v[8:11], {R4(f+4)}, {R4(d)}")
for cbk in range(1, 4):
    a(f"v_mov_b32_dpp v12, v{accs[cbk]} quad_perm:[0,1,2,3] row_mask:{1<<cbk:#x} bank_mask:0xf")
gstore("buffer_store_dword v12, v19, s[16:19], s74 offen sc1")
stamp("c.wq", 1)
ret()

if cfg.roles:
    a.hist = []
    a.label("SUB_RING")
    keep = LDS_T + [25]
    vts = [t for t in range(cfg.j0) if t not in keep] + keep
    NT = 64 + len(vts)
    slot = lambda n: (n - (NT - len(keep))) % NS
    lastso = [None]
    def rload(n):
        if n >= NT: return
        if n < 64:
            so, imm, va, srd = ("k", (n >> 3) * 8192), ((n >> 1) & 3) * 512 + (n & 1) * 128, "v1", "s[8:11]"
        else:
            vt = vts[n - 64]
            so, imm, va, srd = ("v", (vt >> 2) * 4096), (vt & 3) * 1024, "v2", "s[12:15]"
        if so != lastso[0]:
            a(f"s_add_u32 s28, s27, {so[1]}"); lastso[0] = so
        a(f"s_add_u32 m0, s57, {slot(n)*1024 - imm}")
        a(f"buffer_load_dwordx4 {va}, {srd}, s28 offen offset:{imm}{'' if n < cfg.l2n else ' nt'} lds")
    for n in range(16): rload(n)
    att_pre(zero=False)
    a("ds_read_b128 v[4:7], v12\nds_read_b128 v[8:11], v12 offset:128\nv_add_u32 v48, s57, v2")
    KT = [34, 38, 42]
    for n in range(66):
        if n < 64:
            rload(n + 16)
            a(f"s_waitcnt vmcnt(16)\nds_read_b128 {R4(KT[n%3])}, v48 offset:{slot(n)*1024}")
        if n >= 2:
            kt = n - 2
            a(f"s_waitcnt lgkmcnt({min(63, n) - kt})")
            kmm(kt, R4(KT[kt % 3]))
            if kt & 1 and (kt >> 1) >= 2: adds((kt >> 1) - 2)
    adds(30); adds(31)
    softmax()
    zero_a()
    a("v_add_u32 v33, s57, v2")
    NP = len(vts) // 2
    def rfetch(m):
        if m >= NP: return
        for h in range(2):
            n = 64 + 2*m + h
            rload(n + 16)
            a(f"s_waitcnt vmcnt({min(16, NT - 1 - n)})\nds_read_b128 {R4(4 + 8*(m&1) + 4*h)}, v33 offset:{slot(n)*1024}")
    rfetch(0)
    for m in range(NP):
        build(vts[2*m] >> 1, m & 1)
        rfetch(m + 1)
        a(f"s_waitcnt lgkmcnt({2 if m + 1 < NP else 0})")
        vmm(R8(4 + 8*(m&1)), m & 1)
    if cfg.j0 == 64:
        a("s_branch L_att_epi")
    else:
        a(f"""v_mov_b32 v47, v20
        ds_write_b128 v33, v[24:27] offset:{14*1024}
        ds_write_b128 v33, v[28:31] offset:{15*1024}
        ds_write_b64 v33, v[46:47] offset:{17*1024}
        ds_write_b128 v33, v[42:45] offset:{16*1024}
        s_waitcnt lgkmcnt(0)""")
        ret()
        a.hist = []
        a.label("SUB_RESUME")
        a(f"s_mov_b32 s82, {8 + cfg.j0//8}\ns_call_b64 s[80:81], SUB_LN")
        if cfg.j0 <= 48: a("s_call_b64 s[80:81], SUB_LN")
        att_pre()
        a(f"""v_add_u32 v33, s57, v2
        ds_read_b128 v[24:27], v33 offset:{14*1024}
        ds_read_b128 v[28:31], v33 offset:{15*1024}
        ds_read_b128 v[42:45], v33 offset:{16*1024}
        ds_read_b64 v[22:23], v33 offset:{17*1024}
        v_and_b32 v32, 3, v0
        v_mul_u32_u24 v32, 0x5555, v32
        s_mov_b64 vcc, -1
        s_waitcnt lgkmcnt(0)
        v_mov_b32 v46, v22
        v_mov_b32 v20, v23""")
        build(cfg.j0 // 2, (cfg.j0 // 2) & 1)
        a.flush()
        a("s_branch L_att_resume")

for Lo, Lb, wait, depth in tramps:
    a.hist = []
    a.label(Lo)
    if wait and cfg.adapt:
        a(f"s_call_b64 s[34:35], SUB_LNW\ns_branch {Lb}")
        continue
    for d in range(1, depth + 1):
        a("s_call_b64 s[80:81], SUB_LN")
        L2 = a.newlabel("Lt2")
        if d < depth: a(f"s_cmp_lt_u32 s82, 16\ns_cbranch_scc1 {L2}")
        if wait: a(f"s_waitcnt vmcnt({8*d})")
        a(f"s_branch {Lb}")
        if d < depth: a.label(L2)
for Lo, Lb, instrs in gstores:
    a.hist = []
    a.label(Lo); a("s_nop 7"); a(instrs); a(f"s_branch {Lb}")
for Rr, L, D, sl in retries:
    a.hist = []
    a.label(Rr)
    a(f"s_sleep {sl}\ns_add_u32 s68, s68, 1\ns_cmp_lt_u32 s68, {cfg.spin}\ns_cbranch_scc1 {L}\ns_branch {D}")
if cfg.stamps:
    n = len(stamp_names)
    a.hist = []
    a.label("L_stamps")
    if cfg.dbg:
        sel = ["start", "start", "q1", "P1b0", "wq0", "s.ring", "P2b0", "s.P1b1", "s.fin0", "P1b1", "c.B", "c.wq", "s.rel", "s.end", "f.B", "end"]
        a("v_mov_b32 v6, 0")
        a(f"s_not_b32 s70, s{POOL[0]}\nv_writelane_b32 v6, s70, 0")
        for i, nm in enumerate(sel):
            if i and nm in stamp_names: a(f"v_writelane_b32 v6, s{POOL[stamp_names.index(nm)]}, {i}")
        a("v_lshrrev_b32 v4, 2, v2\ns_mov_b64 exec, 0xffff\nglobal_atomic_umax v4, v6, s[54:55] sc1\ns_branch L_fin")
    a(f"""s_lshl_b32 s70, s2, 2
    s_add_u32 s70, s70, s3
    s_mul_i32 s70, s70, {8*n}
    s_add_u32 s70, s70, {STAMP}
    v_mov_b32 v4, 0
    v_mov_b32 v7, 0
    s_mov_b64 exec, 1""")
    if cfg.hwid:
        a(f"s_getreg_b32 s71, hwreg(HW_REG_HW_ID)\ns_getreg_b32 s72, hwreg(HW_REG_XCC_ID)\ns_and_b32 s71, s71, 0xffff\ns_and_b32 s72, s72, 15\ns_lshl_b32 s72, s72, 16\ns_or_b32 s71, s71, s72\ns_add_u32 s{POOL[1]}, s{POOL[0]}, s71")
    for i in range(n):
        a(f"v_mov_b32 v6, s{POOL[i]}\nbuffer_store_dwordx2 v[6:7], v4, s[16:19], s70 offen offset:{8*i}\ns_nop 1")
    a("s_branch L_fin")
    open(sys.argv[1] + ".names", "w").write(" ".join(stamp_names))
    print("nstamps", n, file=sys.stderr)
a.label("L_code_end")
hdr = open("cdna_kernels/" + NAME + ".s.ref").read().split("; Override launch")[0]
out = hdr + f"; @launch grid=(256,1,1) block=(256,1,1) lds={LDS_TOTAL}\n"
out += f""".amdgcn_target "amdgcn-amd-amdhsa--gfx950"
.text
.globl {NAME}_kernel
.p2align 8
.type {NAME}_kernel,@function
{NAME}_kernel:
""" + a.text() + f""".section .rodata,"a"
.p2align 6
.amdhsa_kernel {NAME}_kernel
  .amdhsa_next_free_vgpr 512
  .amdhsa_next_free_sgpr 102
  .amdhsa_accum_offset 256
  .amdhsa_group_segment_fixed_size 0
  .amdhsa_kernarg_size 104
  .amdhsa_user_sgpr_count 2
  .amdhsa_user_sgpr_kernarg_segment_ptr 1
  .amdhsa_system_sgpr_workgroup_id_x 1
.end_amdhsa_kernel
"""
open(sys.argv[1], "w").write(out)
print("nops added", a.nops_added, "lines", len(a.lines), file=sys.stderr)
```

```python
import sys, struct, math
sys.path.insert(0, "gen")
from asmlib import *

NAME = "interleave_layers__gqa_block_cached__mixer_token_mlp__decode"
def f32(x): return "0x%08x" % struct.unpack("<I", struct.pack("<f", x))[0]

class Cfg:
    stamps = 0
    spin = 20000
    s0 = dict(A=18, B=14, C=18, D=8, X=18, Y=18, M=18, N=14)
    s1 = 2
    sh = 2
    sg = 8
    go = 24
    roles = 1
    latew = 0
    vsites = 1
    l2n = 128
    dbg = 0
    n0 = 16
    n1 = 5
    thr = 3
    hint = -1
    zpre = 0
    xl = 1
    fA = 0
    fD = 0
    thr2 = -1
    pfc = 0
    pfi = 3
    cpf = 1
    hwid = 0
    late2 = 1
    adapt = 1
    warm = 0
    relfirst = 0
    ksites = 1
    pf0 = 8
    nogo = 1
    xthr = 0
    thrm = 4
    sA2 = 0
    sB2 = 32
    aw = 0
    d0 = 2
    thrall = 0
    thr3 = 0
    go0 = 32
    j0 = 40
    fa = 3
    dw = 2
    pre = 8
    d1 = 3
    d2 = 1
    d3 = 4
    d4 = 3
cfg = Cfg()
for arg in sys.argv[2:]:
    k, v = arg.split("=")
    if k.startswith("s0"): cfg.s0[k[2]] = int(v)
    else: setattr(cfg, k, int(v))

W = 52; NL = 13; NS = 20
LV = 0; LWO = 53248; LWQ = 86016; LMX = 118784; LXB = 146432; LX = 151040; LQ = 160256; LLN = 162304; LRED = 163456
LO = LX + 8448
LDS_TOTAL = 163840
A_O = lambda i: i * 0x40000
A_L = lambda i: 0x100000 + i * 0x1000
B_A = lambda i: 0x110000 + i * 0x10000
C_A = lambda i: 0x150000 + i * 0x1000
H_A = lambda i: 0x158000 + i * 0x1000
D_A = lambda i: 0x160000 + i * 0x40000
X_A = 0x15c000
STAMP = 0x10000000
CSM = math.log2(math.e) / math.sqrt(128.0)
C1 = -2.0 * math.sqrt(2.0 / math.pi) * math.log2(math.e)
C2 = C1 * 0.044715
GS = (-C2) ** (1.0 / 3.0)
GA = -C1 / GS
DPPALL = "row_mask:0xf bank_mask:0xf"
CTL4 = ["quad_perm:[1,0,3,2]", "quad_perm:[2,3,0,1]", "row_half_mirror", "row_mirror"]

a = Asm()
POOL = list(range(83, 100)) + [32, 38, 39, 43, 50, 51]
stamp_names = []
def stamp(name, cond=None):
    if not cfg.stamps: return
    if name in stamp_names: r = POOL[stamp_names.index(name)]
    else:
        r = POOL[len(stamp_names)]; stamp_names.append(name)
    a("s_memrealtime s[100:101]\ns_waitcnt lgkmcnt(0)")
    if cond is None: a(f"s_mov_b32 s{r}, s100")
    else: a(f"s_cmp_eq_u32 s79, {cond}\ns_cselect_b32 s{r}, s100, s{r}")

def khome(kt): return f"a[{4*kt}:{4*kt+3}]"
LDS_T = [0, 1, 4, 5, 8, 9, 12, 13, 16, 17, 20, 21, 24]
REG_T = [25] + [t for t in range(64) if t not in LDS_T and t != 25]
def vreg(vt): return W + 4 * REG_T.index(vt)
def vhome(vt):
    r = vreg(vt); return f"v[{r}:{r+3}]"
def R8(r): return f"v[{r}:{r+7}]"
def R4(r): return f"v[{r}:{r+3}]"
def R2(r): return f"v[{r}:{r+1}]"

def load_k(kts):
    lastG = None
    for kt in kts:
        G, t, half = kt >> 3, (kt >> 1) & 3, kt & 1
        if G != lastG:
            a(f"s_add_u32 s28, s27, {G*8192}"); lastG = G
        a(f"buffer_load_dwordx4 {khome(kt)}, v1, s[8:11], s28 offen offset:{t*512+half*128} nt")
def load_v(vts):
    lastQ = None
    for vt in vts:
        Q = vt >> 2
        if Q != lastQ:
            a(f"s_add_u32 s28, s27, {Q*4096}")
            if vt in LDS_T: a(f"s_add_u32 m0, s29, {LDS_T.index(vt)*1024 - (vt&3)*1024}")
            lastQ = Q
        if vt in LDS_T:
            a(f"buffer_load_dwordx4 v2, s[12:15], s28 offen offset:{(vt&3)*1024} nt lds")
        else:
            a(f"buffer_load_dwordx4 {vhome(vt)}, v2, s[12:15], s28 offen offset:{(vt&3)*1024} nt")

def rbf(v, t):
    a(f"v_cvt_pk_bf16_f32 v{t}, v{v}, v{v}\nv_lshlrev_b32 v{v}, 16, v{t}")
def rows_reduce(op, v, t):
    a(f"v_mov_b32 v{t}, v{v}\nv_permlane16_swap_b32 v{v}, v{t}\n{op} v{v}, v{v}, v{t}")
    a(f"v_mov_b32 v{t}, v{v}\nv_permlane32_swap_b32 v{v}, v{t}\n{op} v{v}, v{v}, v{t}")
def row16_reduce(op, vs):
    for ctl in CTL4:
        for v in vs: a(f"{op}_dpp v{v}, v{v}, v{v} {ctl} {DPPALL}")
def sum_to_row3(vs, fillers=()):
    fillers = list(fillers)
    steps = [f"{c} {DPPALL}" for c in CTL4] + ["row_bcast:15 row_mask:0xa bank_mask:0xf", "row_bcast:31 row_mask:0xc bank_mask:0xf"]
    per = (len(fillers) + 5) // 6
    for st in steps:
        for _ in range(per):
            if fillers: a(fillers.pop(0))
        for v in vs: a(f"v_add_f32_dpp v{v}, v{v}, v{v} {st}")
def stats(P, s1, s2, fillers=()):
    for i, p in enumerate(P):
        a(f"v_dot2_f32_bf16 v{s1}, v{p}, s67, {'0' if i == 0 else 'v%d' % s1}")
        a(f"v_dot2_f32_bf16 v{s2}, v{p}, v{p}, {'0' if i == 0 else 'v%d' % s2}")
    sum_to_row3([s1, s2], fillers)
    a(f"v_mul_f32 v{s1}, {f32(1.0/576)}, v{s1}\nv_mul_f32 v{s2}, {f32(1.0/576)}, v{s2}\nv_fma_f32 v{s2}, -v{s1}, v{s1}, v{s2}\nv_max_f32 v{s2}, 0, v{s2}")
def ln_scalars(m, q, mb, r, t):
    a(f"v_cvt_pk_bf16_f32 v{t}, v{m}, v{q}\nv_and_b32 v{r}, 0xffff0000, v{t}\nv_lshlrev_b32 v{mb}, 16, v{t}\nv_add_f32 v{r}, {f32(1e-5)}, v{r}")
    rbf(r, t); a(f"v_sqrt_f32 v{r}, v{r}"); rbf(r, t); a(f"v_rcp_f32 v{r}, v{r}")

def check_sentinel(regs, t):
    regs = list(regs)
    if len(regs) % 2 == 0:
        a(f"v_max_u32 v{t}, v{regs[0]}, v{regs[1]}"); regs = regs[2:]
    else:
        a(f"v_max3_u32 v{t}, v{regs[0]}, v{regs[1]}, v{regs[2]}"); regs = regs[3:]
    for i in range(0, len(regs), 2):
        a(f"v_max3_u32 v{t}, v{t}, v{regs[i]}, v{regs[i+1]}")
    a(f"v_cmp_eq_u32 vcc, -1, v{t}")

gstores = []
def gstore(instrs):
    Lo = a.newlabel("Lgs"); Lb = a.newlabel("Lgb")
    a(f"s_cmp_eq_u32 s33, 0\ns_cbranch_scc1 {Lo}")
    a.flush()
    a(instrs.replace(" sc1", ""))
    a.label(Lb)
    gstores.append((Lo, Lb, instrs))
tramps = []
def ln(wait, depth=None):
    Lo = a.newlabel("Lt"); Lb = a.newlabel("Ltb")
    a(f"s_cmp_lt_u32 s82, 16\ns_cbranch_scc1 {Lo}")
    if wait: a("s_waitcnt vmcnt(0)")
    a.label(Lb)
    tramps.append((Lo, Lb, wait, depth or (cfg.dw if wait else 1)))
retries = []
def poll(issue, check, s0=0, depth=None, s0w=None):
    L = a.newlabel("Lpoll"); D = a.newlabel("Lpd"); Rr = a.newlabel("Lpr")
    a("s_mov_b32 s68, 0")
    if s0 and s0w is not None and s0w < s0:
        Ls = a.newlabel("Lsl")
        a(f"s_cmp_eq_u32 s3, 0\ns_cbranch_scc1 {Ls}\ns_sleep {s0 - s0w}"); a.label(Ls)
        if s0w: a(f"s_sleep {s0w}")
    elif s0: a(f"s_sleep {s0}")
    a.label(L)
    issue(); ln(True, depth)
    check()
    a(f"s_cbranch_vccnz {Rr}")
    a.label(D)
    retries.append((Rr, L, D, cfg.s1))
def ln_until(n):
    L = a.newlabel("Lrest"); D = a.newlabel("Lrd")
    a.label(L); a(f"s_cmp_ge_u32 s82, {n}\ns_cbranch_scc1 {D}\ns_call_b64 s[80:81], SUB_LN\ns_branch {L}"); a.label(D)
def call(lbl):
    a.flush(); a(f"s_call_b64 s[30:31], {lbl}")
def ret():
    a.flush(); a("s_setpc_b64 s[30:31]")
def flagwait(inst, sl, off=0, count=0):
    a(f"s_lshl_b32 s70, s4, 7\ns_add_u32 s70, s70, {H_A(inst)+off}\nv_mov_b32 v4, 0")
    L = a.newlabel("Lh"); D = a.newlabel("Lhd")
    a(f"s_mov_b32 s68, 0\ns_cmp_lg_u32 s3, 0\ns_cbranch_scc1 {D}")
    a.label(L)
    a(f"buffer_load_dword v5, v4, s[16:19], s70 offen sc1\ns_waitcnt vmcnt(0)")
    a(f"v_cmp_gt_i32 vcc, {count*0xffff - 1}, v5" if count else "v_cmp_eq_u32 vcc, -1, v5")
    a(f"s_cbranch_vccz {D}")
    a(f"s_sleep {sl}\ns_add_u32 s68, s68, 1\ns_cmp_lt_u32 s68, {cfg.spin}\ns_cbranch_scc1 {L}")
    a.label(D)
    a("s_barrier")

def qg_issue(base, sb):
    for i in range(9):
        a(f"buffer_load_dword v{base+i}, v22, s[16:19], s{sb + (i>>2)} offen offset:{(i&3)*1024} sc1")
def qg_sum(base):
    b = base
    a(f"""v_add_f32 v{b}, v{b}, v{b+1}
    v_add_f32 v{b+2}, v{b+2}, v{b+3}
    v_add_f32 v{b+4}, v{b+4}, v{b+5}
    v_add_f32 v{b+6}, v{b+6}, v{b+7}
    v_add_f32 v{b}, v{b}, v{b+2}
    v_add_f32 v{b+4}, v{b+4}, v{b+6}
    v_add_f32 v{b}, v{b}, v{b+8}
    v_add_f32 v{b}, v{b}, v{b+4}
    v_cvt_pk_bf16_f32 v{b}, v{b}, v{b}""")

a(f"""
s_cmp_ge_u32 s2, 256
s_cbranch_scc1 L_end
s_load_dwordx16 s[32:47], s[0:1], 0
s_load_dwordx8 s[48:55], s[0:1], 64
s_load_dwordx2 s[56:57], s[0:1], 96
v_lshrrev_b32 v1, 6, v0
v_readfirstlane_b32 s3, v1
v_and_b32 v0, 63, v0
s_mov_b32 s69, s2
s_and_b32 s4, s2, 7
s_lshl_b32 s4, s4, 1
s_bfe_u32 s6, s2, 0x10003
s_or_b32 s4, s4, s6
s_lshr_b32 s6, s2, 4
s_lshl_b32 s2, s4, 4
s_or_b32 s2, s2, s6
s_add_u32 s5, s6, s4
s_and_b32 s5, s5, 15
v_lshlrev_b32 v2, 4, v0
v_bfe_u32 v1, v0, 2, 2
v_lshlrev_b32 v1, 11, v1
v_bfe_u32 v3, v0, 1, 1
v_lshl_add_u32 v1, v3, 8, v1
v_lshrrev_b32 v3, 4, v0
v_lshl_add_u32 v1, v3, 5, v1
v_and_b32 v3, 1, v0
v_lshl_add_u32 v1, v3, 4, v1
s_lshl_b32 s27, s2, 18
s_lshl_b32 s28, s3, 16
s_add_u32 s27, s27, s28
s_mov_b32 s10, 0x8000000
s_mov_b32 s11, 0x20000
s_mov_b32 s14, 0x8000000
s_mov_b32 s15, 0x20000
s_mov_b32 s18, 0x20000000
s_mov_b32 s19, 0x20000
s_mov_b32 s23, 0x20000
s_waitcnt lgkmcnt(0)
s_mov_b32 s8, s34
s_mov_b32 s9, s35
""")
load_k(range(0, cfg.pre))
a(f"""
s_mov_b32 s12, s36
s_mov_b32 s13, s37
s_mov_b32 s16, s56
s_mov_b32 s17, s57
s_mov_b32 s82, {cfg.pre//8}
s_mov_b32 s79, 0
s_cmp_ge_u32 s5, 9
s_cselect_b32 s42, 1, {cfg.thrall}
""")
if cfg.xthr: a("s_getreg_b32 s42, hwreg(HW_REG_XCC_ID)\ns_andn2_b32 s42, 1, s42")
a(f"""
s_mov_b32 s24, 0xaaaaaaaa
s_mov_b32 s25, 0xaaaaaaaa
v_and_b32 v4, 4, v0
v_lshlrev_b32 v4, 2, v4
v_mov_b32 v3, 0xffff
v_lshlrev_b32 v3, v4, v3
s_mov_b32 s26, {f32(CSM)}
s_mov_b32 s67, 0x3f803f80
s_mul_i32 s29, s3, {NL*1024}
""")
for r in POOL[:17]:
    if cfg.stamps: a(f"s_mov_b32 s{r}, 0")
stamp("start")
if cfg.cpf:
    a(f"""s_cmp_ge_u32 s69, {32*cfg.cpf}
    s_cbranch_scc1 L_nocpf
    s_getpc_b64 s[70:71]
    L_cpf_pc:
    s_lshr_b32 s72, s69, 3
    s_and_b32 s72, s72, 3
    s_lshl_b32 s72, s72, 2
    s_add_u32 s72, s72, s3
    s_lshl_b32 s72, s72, 10
    v_add_u32 v42, s72, v2
    v_add_u32 v43, 0x4000, v42""")
    a.raw("    v_min_u32 v42, L_code_end-L_cpf_pc-16, v42")
    a.raw("    v_min_u32 v43, L_code_end-L_cpf_pc-16, v43")
    a("""global_load_dwordx4 v[44:47], v42, s[70:71]
    global_load_dwordx4 v[48:51], v43, s[70:71]
    L_nocpf:""")
if cfg.warm:
    a("""s_add_u32 s70, s27, 0x4000000
    s_mov_b64 exec, 1
    buffer_load_dword v40, v2, s[12:15], s27 offen nt
    buffer_load_dword v41, v2, s[8:11], s70 offen nt
    buffer_load_dword v42, v2, s[12:15], s70 offen nt
    global_load_ushort v43, v2, s[52:53]
    global_load_dword v44, v2, s[54:55] offset:192
    s_mov_b64 exec, -1""")
a(f"""
v_mov_b32 v4, -1
v_mov_b32 v5, -1
v_mov_b32 v6, -1
v_mov_b32 v7, -1
s_lshl_b32 s70, s3, 18
s_lshl_b32 s71, s2, 10
s_add_u32 s70, s70, s71
buffer_store_dwordx4 v[4:7], v2, s[16:19], s70 offen sc1
s_lshl_b32 s70, s3, 12
s_lshl_b32 s71, s4, 7
s_add_u32 s70, s70, s71
s_lshl_b32 s71, s6, 2
s_add_u32 s70, s70, s71
s_add_u32 s70, s70, {A_L(0)}
v_lshlrev_b32 v8, 6, v0
s_mov_b64 exec, 3
buffer_store_dword v4, v8, s[16:19], s70 offen sc1
s_mov_b64 exec, -1
s_getreg_b32 s70, hwreg(HW_REG_XCC_ID)
s_and_b32 s70, s70, 15
v_mov_b32 v10, s70
s_lshl_b32 s70, s2, 2
s_add_u32 s70, s70, {X_A}
v_mov_b32 v11, 0
s_mov_b64 exec, 1
buffer_store_dword v10, v11, s[16:19], s70 offen sc1
s_mov_b64 exec, -1
global_load_ushort v23, v11, s[50:51]
s_mul_i32 s7, s4, 9
s_add_u32 s7, s7, s5
s_cmp_ge_u32 s5, 9
s_cbranch_scc1 L_pro_s1
v_lshlrev_b32 v8, 2, v0
s_lshl_b32 s70, s3, 16
s_lshl_b32 s71, s7, 8
s_add_u32 s70, s70, s71
s_add_u32 s70, s70, {B_A(0)}
buffer_store_dword v4, v8, s[16:19], s70 offen sc1
s_lshl_b32 s70, s3, 18
s_lshl_b32 s71, s7, 10
s_add_u32 s70, s70, s71
s_add_u32 s70, s70, {D_A(0)}
buffer_store_dwordx4 v[4:7], v2, s[16:19], s70 offen sc1
s_lshl_b32 s70, s3, 12
s_lshl_b32 s71, s7, 4
s_add_u32 s70, s70, s71
s_add_u32 s70, s70, {C_A(0)}
s_mov_b64 exec, 15
buffer_store_dword v4, v8, s[16:19], s70 offen sc1
s_lshl_b32 s70, s3, 12
s_lshl_b32 s71, s4, 7
s_add_u32 s70, s70, s71
s_add_u32 s70, s70, {H_A(0)}
buffer_store_dword v4, v8, s[16:19], s70 offen sc1
buffer_store_dword v4, v8, s[16:19], s70 offen offset:2048 sc1
s_mov_b64 exec, -1
s_mov_b32 s20, s32
s_mov_b32 s21, s33
s_mov_b32 s22, 2304
v_lshlrev_b32 v9, 3, v0
v_lshlrev_b32 v10, 1, v0
buffer_load_dwordx2 v[12:13], v9, s[20:23], 0 offen
buffer_load_dwordx2 v[14:15], v9, s[20:23], 0 offen offset:512
buffer_load_ushort v16, v10, s[20:23], 0 offen offset:1024
buffer_load_dwordx2 v[18:19], v9, s[20:23], 0 offen offset:1152
buffer_load_dwordx2 v[20:21], v9, s[20:23], 0 offen offset:1664
buffer_load_ushort v22, v10, s[20:23], 0 offen offset:2176
s_mov_b32 s20, s38
s_mov_b32 s21, s39
s_mov_b32 s22, {576*8192}
v_lshrrev_b32 v24, 5, v0
v_and_b32 v25, 31, v0
v_lshlrev_b32 v25, 4, v25
v_lshlrev_b32 v26, 5, v24
v_xor_b32 v25, v25, v26
v_lshl_add_u32 v24, v24, 13, v25
v_xor_b32 v25, 64, v24
v_xor_b32 v26, 128, v24
v_xor_b32 v27, 192, v24
s_lshl_b32 s70, s5, 19
s_lshl_b32 s71, s3, 17
s_add_u32 s70, s70, s71
s_lshl_b32 s71, s4, 9
s_add_u32 s70, s70, s71
s_lshl_b32 s71, s3, 13
s_add_u32 s71, s71, {LWQ}
""")
for i in range(8):
    fs = ((i >> 2) & 1) * 2 + (i & 1)
    a(f"s_add_u32 m0, s71, {i*1024}\nbuffer_load_dwordx4 v{24+fs}, s[20:23], s70 offen nt lds")
    if i < 7: a("s_add_u32 s70, s70, 16384")
a.label("L_pro_s1")
a("s_mov_b32 s33, 0")
ln(True, cfg.d1)
pass
a(f"""
v_lshlrev_b32 v23, 16, v23
v_readfirstlane_b32 s78, v23
s_mov_b32 s56, {LMX}
s_cmp_ge_u32 s5, 9
s_cbranch_scc1 L_pro_s2
v_add_u32 v24, {LXB}, v2
v_lshlrev_b32 v25, 2, v0
v_add_u32 v25, {LXB+2048}, v25
""")
for b in range(2):
    r = 12 + 6 * b
    a(f"""v_lshlrev_b32 v28, 16, v{r}
    v_and_b32 v29, 0xffff0000, v{r}
    v_lshlrev_b32 v30, 16, v{r+1}
    v_and_b32 v31, 0xffff0000, v{r+1}
    v_lshlrev_b32 v32, 16, v{r+2}
    v_and_b32 v33, 0xffff0000, v{r+2}
    v_lshlrev_b32 v34, 16, v{r+3}
    v_and_b32 v35, 0xffff0000, v{r+3}
    v_lshlrev_b32 v36, 16, v{r+4}
    ds_write_b128 v24, v[28:31] offset:{b*2304}
    ds_write_b128 v24, v[32:35] offset:{b*2304+1024}
    ds_write_b32 v25, v36 offset:{b*2304}
    s_waitcnt lgkmcnt(0)""")
a.label("L_pro_s2")
a(f"""
s_barrier
s_cmp_lg_u32 s3, {cfg.aw}
s_cbranch_scc1 L_pro_arr
v_mov_b32 v4, 0
v_mov_b32 v5, 1
s_mov_b64 exec, 1
global_atomic_add v6, v4, v5, s[54:55] offset:64 sc0 sc1
s_mov_b64 exec, -1
""")
ln(True, cfg.d0)
a(f"""v_readfirstlane_b32 s70, v6
s_cmp_lg_u32 s70, 255
s_cbranch_scc1 L_pro_arr
s_mov_b64 exec, 1
global_store_dword v4, v5, s[54:55] offset:128 sc1
s_mov_b64 exec, -1
L_pro_arr:
s_cmp_ge_u32 s5, 9
s_cbranch_scc1 L_pro_s3
""")
for b in range(2):
    a(f"s_mov_b32 s63, 1\ns_mov_b32 s64, {LXB + b*2304}\ns_mov_b32 s62, {D_A(b)}")
    call("SUB_CH2")
    if b == 0: a("s_barrier")
def load_wo():
    a(f"""
    s_mov_b32 s20, s40
    s_mov_b32 s21, s41
    s_mov_b32 s22, {4096*1152}
    v_lshrrev_b32 v24, 3, v0
    v_mul_u32_u24 v24, 1152, v24
    v_and_b32 v25, 7, v0
    v_lshlrev_b32 v25, 4, v25
    v_bfe_u32 v26, v0, 4, 1
    v_lshlrev_b32 v26, 5, v26
    v_xor_b32 v25, v25, v26
    v_xor_b32 v26, 64, v25
    v_add_u32 v25, v25, v24
    v_add_u32 v26, v26, v24
    s_lshl_b32 s70, s4, 2
    s_add_u32 s70, s70, s3
    s_mul_i32 s70, s70, {64*1152}
    s_lshl_b32 s71, s5, 7
    s_add_u32 s70, s70, s71
    s_lshl_b32 s71, s3, 13
    s_add_u32 s71, s71, {LWO}
    """)
    for i in range(8):
        a(f"s_add_u32 m0, s71, {i*1024}\nbuffer_load_dwordx4 v{25+(i&1)}, s[20:23], s70 offen nt lds")
        if i < 7: a(f"s_add_u32 s70, s70, {8*1152}")
def load_mixer(base):
    a(f"""
    s_lshl_b32 s70, s3, 10
    v_add_u32 v24, s70, v2
    v_add_u32 v25, 4096, v24
    v_add_u32 v26, 8192, v2
    s_add_u32 s71, s70, {base}
    """)
    for j, p in enumerate((44, 46, 48)):
        a(f"""s_add_u32 m0, s71, {j*9216}
        global_load_lds_dwordx4 v24, s[{p}:{p+1}]
        s_add_u32 m0, s71, {j*9216+4096}
        global_load_lds_dwordx4 v25, s[{p}:{p+1}]
        s_mov_b32 m0, {base+j*9216+8192}
        global_load_lds_dwordx4 v26, s[{p}:{p+1}]""")
if not cfg.latew:
    load_wo(); load_mixer(LMX)
a.label("L_pro_s3")
for r in POOL[17:]:
    if cfg.stamps: a(f"s_mov_b32 s{r}, 0")
ln(False, cfg.d2)
a("v_mov_b32 v4, 0")
poll(lambda: a("global_load_dword v5, v4, s[54:55] offset:128 sc1"), lambda: a("v_cmp_eq_u32 vcc, 0, v5"), depth=cfg.d3)
a(f"""s_lshl_b32 s70, s3, 8
v_lshl_add_u32 v22, v0, 2, s70
s_mul_i32 s69, s4, 9216
s_add_u32 s70, s69, {D_A(0)}
s_add_u32 s71, s70, 4096
s_add_u32 s72, s70, 8192
s_add_u32 s73, s69, {D_A(1)}
s_add_u32 s74, s73, 4096
s_add_u32 s75, s73, 8192
v_lshrrev_b32 v24, 1, v22
v_add_u32 v24, {LQ}, v24""")
a(f"s_lshl_b32 s76, s4, 6\ns_add_u32 s76, s76, {X_A}\nv_and_b32 v25, 15, v0\nv_lshlrev_b32 v25, 2, v25")
poll(lambda: (a("buffer_load_dword v26, v25, s[16:19], s76 offen sc1"), qg_issue(4, 70), qg_issue(13, 73)), lambda: check_sentinel(range(4, 22), 23), depth=cfg.d4)
a(f"v_readfirstlane_b32 s70, v26\nv_cmp_ne_u32 vcc, s70, v26\ns_cmp_eq_u64 vcc, 0\ns_cselect_b32 s33, {cfg.xl}, 0")
qg_sum(4); qg_sum(13)
a("ds_write_b16 v24, v4\nds_write_b16 v24, v13 offset:512")
stamp("q1")
ln_until(10)
a("s_waitcnt lgkmcnt(0)\ns_barrier")

def att_params(ai, seq):
    a(f"s_mov_b32 s58, {A_O(ai)}\ns_mov_b32 s59, {A_L(ai)}\ns_mov_b32 s65, {LQ + ai*512}\ns_mov_b32 s64, {LX + (seq&1)*4224}")
def hint_addr(ai):
    a(f"s_lshl_b32 s62, s4, 7\ns_add_u32 s62, s62, {H_A(ai)+0x800}")
def att_p1(ai, seq):
    att_params(ai, seq); hint_addr(ai); a("s_mov_b64 vcc, -1"); call("SUB_ATT")
def qatt(ai, seq, loadnext):
    att_params(ai, seq); a(f"s_mov_b32 s62, {D_A(ai)}\ns_mov_b32 s63, {2 if loadnext else 0}"); call("SUB_QATT")
def ch1(inst, final, entry="SUB_CH1", aonly=False):
    b = inst & 1
    a(f"s_mov_b32 s58, {A_O(inst)}\ns_mov_b32 s59, {A_L(inst)}\ns_mov_b32 s60, {B_A(inst)}\ns_mov_b32 s64, {LXB + b*2304}")
    a(f"s_mov_b32 s63, {2 if aonly else 1 if final else 0}\ns_mov_b32 s61, {b*1152 if final else C_A(inst)}")
    call(entry)
def ch2(inst):
    b = inst & 1
    a(f"s_mov_b32 s63, 0\ns_mov_b32 s61, {C_A(inst)}\ns_mov_b32 s64, {LXB + b*2304}\ns_mov_b32 s62, {D_A(2+inst)}")
    call("SUB_CH2")

a(f"s_cmp_eq_u32 s3, 0\ns_cselect_b32 s63, 4, 0\ns_lshl_b32 s60, s4, 7\ns_add_u32 s60, s60, {H_A(2)+4}")
att_p1(0, 0)
stamp("P1b0")
a("s_add_u32 s27, s27, 0x4000000\ns_cmp_ge_u32 s5, 9\ns_cbranch_scc1 L_srole")
a(f"s_mov_b32 s42, {cfg.thr3}")
if cfg.latew:
    load_wo(); load_mixer(LMX)
    a("s_waitcnt vmcnt(9)\ns_barrier")
ch1(0, False); ch2(0)
stamp("wq0")
a(f"s_xor_b32 s69, s33, 1")
qatt(2, 1, True)
stamp("P2b0")
if cfg.roles:
    ln_until(cfg.fa)
    ch1(2, True, aonly=True)
    a(f"""s_or_b32 s70, s5, s3
    s_cbranch_scc1 L_nf3
    s_lshl_b32 s70, s4, 7
    s_add_u32 s70, s70, {H_A(3)}
    s_mov_b64 exec, 1
    buffer_store_dword v2, v2, s[16:19], s70 offen sc1
    s_mov_b64 exec, -1
    L_nf3:""")
else:
    ch1(2, True)
stamp("fin0")
ln_until(10)
a(f"s_cmp_eq_u32 s3, 0\ns_cselect_b32 s63, 3, 0\ns_lshl_b32 s60, s4, 7\ns_add_u32 s60, s60, {H_A(2)}")
att_p1(1, 2)
stamp("P1b1")
a("s_mov_b32 s79, 1")
ch1(1, False); ch2(1)
qatt(3, 3, False)
stamp("P2b1")
a("s_mov_b32 s79, 2")
ch1(3, True)
stamp("end")
a("s_branch L_stamps" if cfg.stamps else "s_branch L_fin")
def s_reload():
    if not cfg.nogo: flagwait(2, cfg.sg, 0, cfg.n1)
    pass
    a("s_mov_b32 s82, 0")
    if cfg.thr2 >= 0: a("s_mov_b32 s42, 2")
    ln_until(8)
    load_v([t for t in range(cfg.j0) if t not in LDS_T])
    a("s_mov_b32 s29, s57")
    a("s_mov_b32 s82, 16")
    if cfg.stamps: a("s_waitcnt vmcnt(0)")
    stamp("s.rel")
a.label("L_srole")
a("s_mov_b32 s42, 0")
a(f"s_mov_b32 s69, 0")
if cfg.roles:
    a(f"s_mul_i32 s57, s3, {NS*1024}\ns_add_u32 s57, s57, {LWO}")
    if cfg.go0 >= 0: flagwait(2, cfg.sh, 4, cfg.n0)
    att_params(1, 1); call("SUB_RING")
    stamp("s.ring")
    flagwait(0, cfg.sh)
    qatt(2, 2, False)
    stamp("s.P2b0")
    if cfg.j0 < 64:
        att_params(1, 1); hint_addr(1); a("s_mov_b32 s63, 0"); call("SUB_RESUME")
        stamp("s.P1b1")
    if cfg.pf0 < 8:
        nun = 36 * (8 - cfg.pf0)
        a(f"""v_lshlrev_b32 v4, 7, v0
        s_sub_u32 s70, s5, 9
        s_lshl_b32 s70, s70, 2
        s_add_u32 s70, s70, s3
        s_mov_b32 s71, {(1 << 32) // 36 + 1}""")
        for i in range((nun + 27) // 28):
            L = a.newlabel("Lpf")
            if (i + 1) * 28 > nun: a(f"s_cmp_ge_u32 s70, {nun}\ns_cbranch_scc1 {L}")
            a(f"""s_mul_hi_u32 s72, s70, s71
            s_mul_i32 s73, s72, 36
            s_sub_u32 s73, s70, s73
            s_lshr_b32 s74, s73, 2
            s_sub_u32 s74, s74, s4
            s_and_b32 s74, s74, 15
            s_lshl_b32 s75, s4, 4
            s_add_u32 s74, s74, s75
            s_lshl_b32 s74, s74, 18
            s_and_b32 s73, s73, 3
            s_lshl_b32 s73, s73, 16
            s_add_u32 s74, s74, s73
            s_lshl_b32 s72, s72, 13
            s_add_u32 s74, s74, s72
            s_add_u32 s74, s74, {0x4000000 + cfg.pf0 * 8192}
            s_add_u32 s73, s74, 4096
            s_add_u32 s70, s70, 28""")
            for t in range(8): a(f"buffer_load_dwordx4 a[{4*t}:{4*t+3}], v2, s[12:15], s{74 if t < 4 else 73} offen offset:{(t&3)*1024}")
            a.label(L)
    if cfg.relfirst: s_reload()
    load_mixer(0)
    a(f"""s_mov_b32 s56, 0
    s_mov_b32 s70, {C_A(0)}
    v_lshlrev_b32 v13, 2, v0
    buffer_load_dwordx4 v[4:7], v2, s[16:19], s70 offen sc1
    buffer_load_dwordx4 v[8:11], v2, s[16:19], s70 offen offset:1024 sc1
    buffer_load_dword v12, v13, s[16:19], s70 offen offset:2048 sc1
    v_add_u32 v14, {LXB}, v2
    v_add_u32 v13, {LXB}, v13
    s_mul_i32 s7, s4, 7
    s_add_u32 s7, s7, s5
    s_sub_u32 s7, s7, 9
    s_waitcnt vmcnt(0)
    ds_write_b128 v14, v[4:7]
    ds_write_b128 v14, v[8:11] offset:1024
    ds_write_b32 v13, v12 offset:2048""")
    flagwait(3, cfg.sg)
    ch1(2, True, entry="SUB_CH1B")
    if not cfg.late2:
        a("s_add_u32 s7, s7, 112\ns_cmp_ge_u32 s7, 144\ns_cbranch_scc1 L_s_nf")
        call("SUB_CH1B")
        a.label("L_s_nf")
    stamp("s.fin0")
    if not cfg.relfirst: s_reload()
else:
    flagwait(0, cfg.sh)
    qatt(2, 1, True)
    ln_until(10)
    a("s_mov_b32 s63, 0")
    att_p1(1, 2)
    stamp("s.P1b1")
flagwait(1, cfg.sh)
qatt(3, 2 if (cfg.roles and cfg.j0 < 64) else 3, False)
stamp("s.end")
if cfg.roles and cfg.late2:
    a("s_add_u32 s7, s7, 112\ns_cmp_ge_u32 s7, 144\ns_cbranch_scc1 L_s_nf")
    ch1(2, True, entry="SUB_CH1B")
    stamp("s.fin2")
    a.label("L_s_nf")
if cfg.stamps: a("s_branch L_stamps")
a.label("L_fin")
a("s_waitcnt vmcnt(0)")
a.label("L_end")
a("s_endpgm")

def att_pre(zero=True):
    a(f"""
    v_bfe_u32 v15, v0, 1, 1
    v_lshlrev_b32 v12, 8, v15
    v_lshrrev_b32 v13, 4, v0
    v_lshl_add_u32 v12, v13, 5, v12
    v_and_b32 v14, 1, v0
    v_lshl_add_u32 v12, v14, 4, v12
    v_add_u32 v12, s65, v12
    v_bfe_u32 v15, v0, 4, 1
    v_lshlrev_b32 v47, 9, v15
    v_and_b32 v15, 15, v0
    v_lshl_add_u32 v47, v15, 5, v47
    v_lshrrev_b32 v15, 5, v0
    v_lshl_add_u32 v47, v15, 4, v47
    s_lshl_b32 s70, s3, 10
    s_add_u32 s70, s70, s64
    v_add_u32 v47, s70, v47
    """)
    if zero: zero_a()
def zero_a():
    for i in range(12): a(f"v_mov_b32 v{34+i}, 0")
def Dset(i): return 12 + 4 * (i % 3)
def adds(i):
    G, t = i >> 2, i & 3; d = Dset(i)
    a(f"v_add_f32_dpp v32, v{d+1}, v{d} quad_perm:[1,0,3,2] row_mask:{1<<t:#x} bank_mask:0xf")
    a(f"v_add_f32_dpp v33, v{d+2}, v{d+3} quad_perm:[1,0,3,2] row_mask:{1<<t:#x} bank_mask:0xf")
    if t == 3:
        a(f"v_cndmask_b32 v{24+G}, v32, v33, s[24:25]")
        if G == 1: a("v_max_f32 v46, v24, v25")
        elif G % 2 == 1: a(f"v_max3_f32 v46, v46, v{23+G}, v{24+G}")
def kmm(kt, src):
    d = Dset(kt >> 1)
    if kt & 1: a(f"v_mfma_f32_16x16x32_bf16 {R4(d)}, v[8:11], {src}, {R4(d)}")
    else: a(f"v_mfma_f32_16x16x32_bf16 {R4(d)}, v[4:7], {src}, 0")
def softmax():
    for ctl in ("quad_perm:[2,3,0,1]", "row_ror:4", "row_ror:8"):
        a(f"v_max_f32_dpp v46, v46, v46 {ctl} {DPPALL}")
    rows_reduce("v_max_f32", 46, 32)
    a("v_mul_f32 v32, s26, v46")
    for G in range(8): a(f"v_fma_f32 v{24+G}, v{24+G}, s26, -v32")
    for G in range(8): a(f"v_exp_f32 v{24+G}, v{24+G}")
    a("v_pk_add_f32 v[4:5], v[24:25], v[26:27]\nv_pk_add_f32 v[6:7], v[28:29], v[30:31]\nv_pk_add_f32 v[4:5], v[4:5], v[6:7]\nv_add_f32 v20, v4, v5")
    lctl = ["quad_perm:[2,3,0,1]", "row_ror:8", "row_ror:4"]
    for G in range(8):
        t = 21 + (G & 1)
        a(f"v_mov_b32_dpp v{t}, v{24+G} quad_perm:[1,0,3,2] {DPPALL}")
        if G in (1, 3, 5): a(f"v_add_f32_dpp v20, v20, v20 {lctl[G//2]} {DPPALL}")
        a(f"v_cvt_pk_bf16_f32 v{24+G}, v{24+G}, v{t}")
    rows_reduce("v_add_f32", 20, 21)
    a("v_and_b32 v32, 3, v0\nv_mul_u32_u24 v32, 0x5555, v32")
def build(p, par):
    G, pi = p >> 2, p & 3
    bs = 34 + 4 * par
    for k in range(4):
        a(f"v_and_b32_dpp v{bs+k}, v{24+G}, v3 row_newbcast:{4*pi + 2*(k>>1)} row_mask:0xf bank_mask:{0xc if k & 1 else 0x3:#x}")
def vmm(src, par):
    a(f"v_smfmac_f32_16x16x64_bf16 v[42:45], {R4(34+4*par)}, {src}, v32")

a.hist = []
outofline = []
def lnsite():
    Lo = a.newlabel("Lo"); Lb = a.newlabel("Lb")
    a(f"s_cbranch_vccnz {Lo}"); a.label(Lb)
    outofline.append((Lo, Lb, lambda: a("s_call_b64 s[80:81], SUB_LN")))
def lnif():
    L = a.newlabel("Lki")
    a(f"s_cmp_ge_u32 s82, 16\ns_cbranch_scc1 {L}\ns_call_b64 s[80:81], SUB_LN"); a.label(L)
sites = list(range(0, 60, 4)) + [60, 62]
def lbuf(p): return 48 if p == 12 else (4 if (p >> 1) % 2 == 0 else 12)
def vphase(p1):
    done_sites = []; nread = [0]; readpos = {}
    def arrived(t):
        if not p1: return
        for i in sites:
            if i > t or i in done_sites: continue
            done_sites.append(i)
            nxt = [x for x in sites if x > i]
            last = (nxt[0] if nxt else 64) - 1
            g = min(7, (i >> 3) + 2)
            if i % 8 == 0 and (i >> 3) + 2 <= 7:
                L = a.newlabel("Lsk")
                a(f"s_cmp_gt_u32 s82, {8+g}\ns_cbranch_scc1 {L}\ns_call_b64 s[80:81], SUB_LN"); a.label(L)
            a(f"s_waitcnt vmcnt({8*g + 7 - last})")
            for gi, code in ((-1 if cfg.nogo else cfg.go, 3), (cfg.go0, 4)):
                if i == gi:
                    L = a.newlabel("Lsg")
                    a(f"s_cmp_lg_u32 s63, {code}\ns_cbranch_scc1 {L}\ns_mov_b64 exec, 1\nbuffer_atomic_add v3, v2, s[16:19], s60 offen sc1\ns_mov_b64 exec, -1"); a.label(L)
    def fetch(p):
        if p > 12 or p & 1: return
        arrived(2*p + 1)
        b = lbuf(p)
        a(f"ds_read_b128 {R4(b)}, v33 offset:{p*1024}"); nread[0] += 1
        if p < 12: a(f"ds_read_b128 {R4(b+4)}, v33 offset:{p*1024+1024}"); nread[0] += 1
        readpos[p] = nread[0]
    a("v_add_u32 v33, s29, v2")
    fetch(0); fetch(2); build(0, 0)
    for p in range(32):
        if p1 and p == cfg.j0 // 2: a.label("L_att_resume")
        if p + 1 < 32: build(p + 1, (p + 1) & 1)
        arrived(2*p + 1)
        if p in readpos:
            a(f"s_waitcnt lgkmcnt({nread[0] - readpos[p]})"); src = R8(lbuf(p))
        else: src = R8(vreg(2*p))
        vmm(src, p & 1)
        fetch(p + 4)
        if not p1 and cfg.vsites and p in (1, 9, 17, 25): lnsite()

a.label("SUB_ATT")
att_pre()
a("ds_read_b128 v[4:7], v12\nds_read_b128 v[8:11], v12 offset:128\ns_waitcnt vmcnt(16) lgkmcnt(0)")
for i in range(32):
    kmm(2*i, khome(2*i)); kmm(2*i+1, khome(2*i+1))
    if i >= 2: adds(i - 2)
    if cfg.ksites and i in (0, 15): lnif()
adds(30); adds(31)
if cfg.ksites: lnif()
softmax()
vphase(True)
a("s_branch L_att_epi")

a.hist = []
a.label("SUB_QATT")
att_pre(zero=False)
QR = [24, 25, 26, 27, 28, 29, 30, 31, 46]
a(f"""v_bfe_u32 v32, v0, 1, 1
v_lshlrev_b32 v32, 8, v32
v_lshl_add_u32 v32, v13, 6, v32
v_lshl_add_u32 v32, v14, 4, v32
v_and_b32 v15, 4, v0
v_add3_u32 v32, v32, v15, s65
v_mul_u32_u24 v33, 0x2aaa, v15
v_add_u32 v33, 0x4444, v33
v_lshrrev_b32 v15, 1, v15
v_add_u32 v33, v33, v15""")
ZR = list(range(4, 21)) + [48, 49, 50, 51] + list(range(34, 46))
for r in ZR[:cfg.zpre]: a(f"v_mov_b32 v{r}, 0")
a(f"""s_lshl_b32 s70, s3, 8
v_lshl_add_u32 v22, v0, 2, s70
s_mul_i32 s70, s4, 9216
s_add_u32 s70, s70, s62
s_add_u32 s71, s70, 4096
s_add_u32 s72, s70, 8192
v_lshrrev_b32 v21, 1, v22
v_add_u32 v21, s65, v21
s_mov_b32 s74, 0x00ff00ff
s_mov_b32 s75, 0x00ff00ff
s_cmp_eq_u32 s69, 0
s_cbranch_scc1 L_qatt_ns
s_sleep {max(1, cfg.s0['D'])}
L_qatt_ns:""")
def qiss():
    for i in range(9): a(f"buffer_load_dword v{QR[i]}, v22, s[16:19], s{70 + (i>>2)} offen offset:{(i&3)*1024} sc1")
    for r in ZR[cfg.zpre:]: a(f"v_mov_b32 v{r}, 0")
poll(qiss, lambda: check_sentinel(QR, 23))
for (x, y) in ((0, 1), (2, 3), (4, 5), (6, 7), (0, 2), (4, 6), (0, 8), (0, 4)): a(f"v_add_f32 v{QR[x]}, v{QR[x]}, v{QR[y]}")
a("""v_cvt_pk_bf16_f32 v24, v24, v24
ds_write_b16 v21, v24
v_mov_b32 v21, 0
v_mov_b32 v22, 0
v_mov_b32 v23, 0
s_cmp_eq_u32 s63, 2
s_cselect_b32 s82, 0, s82
s_cselect_b64 vcc, -1, 0
s_mov_b64 exec, s[74:75]
s_waitcnt lgkmcnt(0)
s_barrier""")
stamp("q2b1", 1)
a("""ds_read2_b32 v[4:5], v32 offset0:0 offset1:2
ds_read2_b32 v[6:7], v32 offset0:8 offset1:10
s_not_b64 exec, exec
ds_read2_b32 v[8:9], v32 offset0:0 offset1:2
ds_read2_b32 v[10:11], v32 offset0:8 offset1:10
s_mov_b64 exec, -1
s_waitcnt lgkmcnt(0)""")
DA = (12, 20); DB = (16, 48)
def ksm(G, t):
    d = (DA, DB)[t & 1][G & 1]
    a(f"v_smfmac_f32_16x16x64_bf16 {R4(d)}, {R4(4 + 4*(t>>1))}, a[{32*G+8*t}:{32*G+8*t+7}], v33")
def xy(d):
    a(f"v_add_f32_dpp v32, v{d+1}, v{d} quad_perm:[1,0,3,2] {DPPALL}\nv_add_f32_dpp v46, v{d+2}, v{d+3} quad_perm:[1,0,3,2] {DPPALL}")
for G in range(10):
    if G < 8: ksm(G, 0); ksm(G, 1)
    if G >= 2: a(f"v_permlane16_swap_b32 v{22+G}, v32\nv_add_f32 v{22+G}, v{22+G}, v32")
    if 1 <= G <= 8: xy(DA[(G-1) & 1])
    if G < 8: ksm(G, 2)
    if 1 <= G <= 8: a(f"v_cndmask_b32 v{23+G}, v32, v46, s[24:25]"); xy(DB[(G-1) & 1])
    if G < 8: ksm(G, 3)
    if 1 <= G <= 8: a("v_cndmask_b32 v32, v32, v46, s[24:25]")
    if G in (0, 1): lnsite()
a("v_pk_add_f32 v[30:31], v[30:31], v[28:29] neg_lo:[0,1] neg_hi:[0,1]\nv_pk_add_f32 v[28:29], v[28:29], v[26:27] neg_lo:[0,1] neg_hi:[0,1]\nv_pk_add_f32 v[26:27], v[26:27], v[24:25] neg_lo:[0,1] neg_hi:[0,1]")
a("v_max3_f32 v46, v24, v25, v30\nv_max3_f32 v32, v31, v28, v29\nv_max3_f32 v46, v46, v26, v27\nv_max_f32 v46, v46, v32")
softmax()
vphase(False)
a.label("L_att_epi")
a(f"""
s_nop 3
v_and_b32 v32, 1, v0
v_lshlrev_b32 v32, 5, v32
s_lshl_b32 s70, s3, 2
s_add_u32 s70, s70, s64
s_add_u32 s70, s70, 4096
v_add_u32 v32, s70, v32
ds_write2_b32 v32, v46, v20 offset0:0 offset1:4
v_add_u32 v32, s64, v2
v_lshrrev_b32 v33, 5, v0
v_lshlrev_b32 v34, 6, v33
v_lshlrev_b32 v33, 5, v33
v_add_u32 v33, s64, v33
ds_write_b128 v47, v[42:45]
s_lshl_b32 s70, s2, 10
s_add_u32 s70, s70, s58
s_lshl_b32 s71, s4, 7
s_add_u32 s71, s71, s59
s_lshl_b32 s72, s6, 2
s_add_u32 s71, s71, s72
s_cmp_lg_u32 s3, 0
s_waitcnt lgkmcnt(0)
s_barrier
s_cbranch_scc1 L_att_ret
ds_read_b128 v[20:23], v33 offset:4096
ds_read_b128 v[24:27], v33 offset:4112
ds_read_b128 v[4:7], v32
ds_read_b128 v[8:11], v32 offset:1024
ds_read_b128 v[12:15], v32 offset:2048
ds_read_b128 v[16:19], v32 offset:3072
s_waitcnt lgkmcnt(4)
v_max3_f32 v28, v20, v21, v22
v_max_f32 v28, v28, v23
v_mul_f32 v28, s26, v28
""")
for w in range(4): a(f"v_fma_f32 v{20+w}, v{20+w}, s26, -v28")
for w in range(4): a(f"v_exp_f32 v{20+w}, v{20+w}")
a("""v_mul_f32 v30, v20, v24
v_fmac_f32 v30, v21, v25
v_fmac_f32 v30, v22, v26
v_fmac_f32 v30, v23, v27
s_waitcnt lgkmcnt(0)
v_pk_mul_f32 v[4:5], v[4:5], v[20:21] op_sel:[0,0] op_sel_hi:[1,0]
v_log_f32 v29, v30
v_rcp_f32 v30, v30
v_pk_mul_f32 v[6:7], v[6:7], v[20:21] op_sel:[0,0] op_sel_hi:[1,0]
v_pk_fma_f32 v[4:5], v[8:9], v[20:21], v[4:5] op_sel:[0,1,0] op_sel_hi:[1,1,1]
v_pk_fma_f32 v[6:7], v[10:11], v[20:21], v[6:7] op_sel:[0,1,0] op_sel_hi:[1,1,1]
v_pk_fma_f32 v[4:5], v[12:13], v[22:23], v[4:5] op_sel:[0,0,0] op_sel_hi:[1,0,1]
v_pk_fma_f32 v[6:7], v[14:15], v[22:23], v[6:7] op_sel:[0,0,0] op_sel_hi:[1,0,1]
v_pk_fma_f32 v[4:5], v[16:17], v[22:23], v[4:5] op_sel:[0,1,0] op_sel_hi:[1,1,1]
v_pk_fma_f32 v[6:7], v[18:19], v[22:23], v[6:7] op_sel:[0,1,0] op_sel_hi:[1,1,1]
v_pk_mul_f32 v[4:5], v[4:5], v[30:31] op_sel:[0,0] op_sel_hi:[1,0]
v_pk_mul_f32 v[6:7], v[6:7], v[30:31] op_sel:[0,0] op_sel_hi:[1,0]
v_add_f32 v29, v29, v28""")
gstore("""buffer_store_dwordx4 v[4:7], v2, s[16:19], s70 offen sc1
s_mov_b32 exec_lo, 1
s_mov_b32 exec_hi, 1
buffer_store_dword v29, v34, s[16:19], s71 offen sc1
s_mov_b64 exec, -1""")
a.label("L_att_ret")
ret()
for Lo, Lb, fn in outofline:
    a.hist = []
    a.label(Lo); fn(); a(f"s_branch {Lb}")

a.hist = []
a.label("SUB_LN")
T2 = f"s_waitcnt vmcnt({cfg.thr2})\ns_cmp_eq_u32 s42, 2\ns_cbranch_scc1 %s\n" if cfg.thr2 >= 0 else "%.0s"
if cfg.thr >= 0: a(f"s_cmp_eq_u32 s42, 0\ns_cbranch_scc1 L_ln_nt\n" + T2 % "L_ln_nt" + f"s_waitcnt vmcnt({cfg.thr})\nL_ln_nt:")
for k in range(15): a(f"s_cmp_eq_u32 s82, {k}\ns_cbranch_scc1 L_lnb{k}")
for k in [15] + list(range(15)):
    a.label(f"L_lnb{k}")
    for hlf in range(2):
        if hlf and cfg.thrm >= 0: a(f"s_cmp_eq_u32 s42, 0\ns_cbranch_scc1 L_lnm{k}\n" + T2 % f"L_lnm{k}" + f"s_waitcnt vmcnt({cfg.thrm})\nL_lnm{k}:")
        if k < 8: load_k(range(8*k+4*hlf, 8*k+4*hlf+4))
        else: load_v(range(8*(k-8)+4*hlf, 8*(k-8)+4*hlf+4))
    a("s_add_u32 s82, s82, 1\ns_setpc_b64 s[80:81]")

a.hist = []
a.label("SUB_LNW")
a(f"""s_mov_b32 s36, 0
L_lnw_i:
s_call_b64 s[80:81], SUB_LN
s_add_u32 s36, s36, 8
L_lnw_c:
s_getreg_b32 s37, hwreg(HW_REG_IB_STS)
s_and_b32 s28, s37, 15
s_lshr_b32 s37, s37, 18
s_and_b32 s37, s37, 0x30
s_or_b32 s37, s37, s28
s_cmp_le_u32 s37, s36
s_cbranch_scc1 L_lnw_r
s_cmp_ge_u32 s82, 16
s_cbranch_scc1 L_lnw_s
s_cmp_lt_u32 s37, 40
s_cbranch_scc1 L_lnw_i
L_lnw_s:
s_sleep 1
s_branch L_lnw_c
L_lnw_r:""")
for n in (8, 16, 24, 32, 40):
    a(f"s_cmp_gt_u32 s36, {n}\ns_cbranch_scc1 L_lnw_r{n}\ns_waitcnt vmcnt({n})\ns_setpc_b64 s[34:35]\nL_lnw_r{n}:")
a("s_waitcnt vmcnt(48)\ns_setpc_b64 s[34:35]")

a.hist = []
a.label("SUB_CH1")
a(f"""
v_lshrrev_b32 v21, 4, v0
v_bfe_u32 v22, v0, 2, 2
v_lshl_add_u32 v23, v21, 3, v22
v_lshlrev_b32 v23, 7, v23
v_bfe_u32 v21, v0, 3, 2
v_xor_b32 v21, s3, v21
v_lshl_add_u32 v23, v21, 5, v23
v_and_b32 v21, 3, v0
v_lshl_add_u32 v23, v21, 3, v23
v_add_u32 v23, {LWO}, v23
""")
for ks in range(7):
    for jh in range(2):
        a(f"ds_read_b64_tr_b16 {R2(24 + 4*ks + 2*jh)}, v23 offset:{(32*ks+4*jh)*128}")
a(f"""
v_lshlrev_b32 v21, 2, v0
s_lshl_b32 s70, s4, 14
s_add_u32 s70, s70, s58
s_lshl_b32 s71, s3, 8
s_add_u32 s70, s70, s71
s_add_u32 s71, s70, 4096
s_add_u32 s72, s70, 8192
s_add_u32 s73, s70, 12288
s_lshl_b32 s74, s4, 7
s_add_u32 s74, s74, s59
s_lshr_b32 s75, s3, 1
s_lshl_b32 s75, s75, 6
s_add_u32 s74, s74, s75
s_lshl_b32 s75, s3, 7
s_add_u32 s75, s75, {LO}
""")
def issA():
    a("v_and_b32 v20, 60, v21\nbuffer_load_dword v20, v20, s[16:19], s74 offen sc1")
    for s in range(16):
        a(f"buffer_load_dword v{4+s}, v21, s[16:19], s{70+(s>>2)} offen offset:{(s&3)*1024} sc1")
TGT = 16 * 0xffff - 1
if False:
    a(f"""s_cmp_lg_u32 s63, 0
    s_cbranch_scc1 L_ch1_sa
    s_lshl_b32 s76, s4, 7
    s_add_u32 s76, s76, s61
    s_add_u32 s76, s76, {0x8008}
    v_mov_b32 v4, 0
    s_mov_b32 s68, 0
    L_ch1_wa:
    buffer_load_dword v5, v4, s[16:19], s76 offen sc1
    s_waitcnt vmcnt(0)
    v_cmp_gt_i32 vcc, {TGT}, v5
    s_cbranch_vccz L_ch1_pa
    s_sleep {cfg.sh}
    s_add_u32 s68, s68, 1
    s_cmp_lt_u32 s68, {cfg.spin}
    s_cbranch_scc1 L_ch1_wa
    s_branch L_ch1_pa
    L_ch1_sa:
    s_sleep {cfg.s0['A']}
    L_ch1_pa:""")
    poll(issA, lambda: check_sentinel(range(4, 21), 22), s0=cfg.sA2)
else:
    if cfg.s0["M"] < cfg.s0["A"]:
        a(f"s_cmp_eq_u32 s63, 0\ns_cbranch_scc1 L_ch1_ms\ns_sleep {cfg.s0['A'] - cfg.s0['M']}\nL_ch1_ms:")
        poll(issA, lambda: check_sentinel(range(4, 21), 22), s0=cfg.s0["M"])
    else:
        a(f"s_cmp_lg_u32 s33, 0\ns_cbranch_scc1 L_ch1_fs\ns_sleep {cfg.s0['A'] - cfg.fA}\nL_ch1_fs:")
        poll(issA, lambda: check_sentinel(range(4, 21), 22), s0=cfg.fA)
stamp("c.A", 1); stamp("f.A", 2)
a(f"v_max_f32_dpp v22, v20, v20 {CTL4[0]} {DPPALL}")
for c in CTL4[1:]: a(f"v_max_f32_dpp v22, v22, v22 {c} {DPPALL}")
a("v_sub_f32 v20, v20, v22\nv_exp_f32 v20, v20")
a(f"v_mul_f32_dpp v21, v20, v4 row_newbcast:0 {DPPALL}\nv_add_f32_dpp v22, v20, v20 {CTL4[0]} {DPPALL}")
for s in range(1, 16):
    a(f"v_fmac_f32_dpp v21, v20, v{4+s} row_newbcast:{s} {DPPALL}")
    if s in (2, 4, 6): a(f"v_add_f32_dpp v22, v22, v22 {CTL4[s//2]} {DPPALL}")
    if s == 4: a(f"ds_read_b64_tr_b16 v[4:5], v23 offset:{(32*7)*128}\nds_read_b64_tr_b16 v[6:7], v23 offset:{(32*7+4)*128}")
    if s == 8: a("v_rcp_f32 v22, v22")
    if s == 9: a("v_lshl_add_u32 v23, v0, 1, s75")
a(f"""
v_mul_f32 v21, v21, v22
v_cvt_pk_bf16_f32 v21, v21, v21
ds_write_b16 v23, v21
v_and_b32 v0, 48, v0
v_add_u32 v0, {LO}, v0
s_lshl_b32 s70, s7, 8
s_add_u32 s70, s70, s60
s_lshl_b32 s71, s3, 6
s_add_u32 s74, s70, s71
s_mul_i32 s70, s3, 9216
s_add_u32 s70, s70, s60
s_add_u32 s71, s70, 2304
s_add_u32 s72, s70, 4608
s_add_u32 s73, s70, 6912
s_waitcnt lgkmcnt(0)
s_barrier
""")
order = [7, 0, 1, 2, 3, 4, 5, 6]
def frag(ks): return "v[4:7]" if ks == 7 else R4(24 + 4*ks)
bufs = ["v[8:11]", "v[12:15]", "v[16:19]"]
for n in range(3): a(f"ds_read_b128 {bufs[n]}, v0 offset:{order[n]*64}")
for n, ks in enumerate(order):
    a(f"s_waitcnt lgkmcnt({len(bufs) - 1 - n})")
    a(f"v_mfma_f32_16x16x32_bf16 v[20:23], {bufs[n]}, {frag(ks)}, {'0' if n == 0 else 'v[20:23]'}")
    for fr in (frag(ks), bufs[n]):
        if len(bufs) < 8:
            a(f"ds_read_b128 {fr}, v0 offset:{order[len(bufs)]*64}"); bufs.append(fr)
a(f"""
v_lshrrev_b32 v0, 4, v2
v_lshlrev_b32 v49, 2, v0
s_mul_i32 s75, s3, 2304
s_add_u32 s75, s75, {LX}
v_add_u32 v51, s75, v2
s_mov_b64 exec, 0xffff
buffer_store_dword v20, v49, s[16:19], s74 offen sc1
s_mov_b64 exec, -1
""")
a("s_cmp_eq_u32 s63, 2\ns_cbranch_scc1 L_ch1_ret")
a.label("L_ch1_b")
ln(False)
def issB():
    for r in range(4):
        a(f"buffer_load_dwordx4 {R4(4+8*r)}, v2, s[16:19], s{70+r} offen sc1")
        a(f"buffer_load_dwordx4 {R4(8+8*r)}, v2, s[16:19], s{70+r} offen offset:1024 sc1")
        a(f"buffer_load_dword v{36+r}, v49, s[16:19], s{70+r} offen offset:2048 sc1")
def chkB():
    for i in range(4): a(f"v_pk_add_f32 {R2(40+2*i)}, {R2(4+2*i)}, {R2(12+2*i)}")
    a("v_add_f32 v48, v36, v37")
    for r in (2, 3):
        for i in range(4): a(f"v_pk_add_f32 {R2(40+2*i)}, {R2(40+2*i)}, {R2(4+8*r+2*i)}")
        a(f"v_add_f32 v48, v48, v{36+r}")
    a("v_add_u32 v50, s75, v49\nds_write_b128 v51, v[40:43]\nds_write_b128 v51, v[44:47] offset:1024\nds_write_b32 v50, v48 offset:2048")
    check_sentinel(range(4, 40), 50)
if cfg.hint >= 0:
    a(f"""s_cmp_lg_u32 s63, 0
    s_cbranch_scc1 L_ch1_sb
    s_add_u32 s76, s61, {0x8800}
    v_and_b32 v4, 15, v0
    v_lshlrev_b32 v4, 7, v4
    buffer_load_dword v5, v4, s[16:19], s76 offen sc1
    s_waitcnt vmcnt(0)
    v_cmp_gt_i32 vcc, {TGT}, v5
    s_cbranch_vccz L_ch1_pb
    s_mov_b32 s68, 0
    L_ch1_wb:
    s_sleep {cfg.sh}
    buffer_load_dword v5, v4, s[16:19], s76 offen sc1
    s_waitcnt vmcnt(0)
    v_cmp_gt_i32 vcc, {TGT}, v5
    s_cbranch_vccz L_ch1_wb2
    s_add_u32 s68, s68, 1
    s_cmp_lt_u32 s68, {cfg.spin}
    s_cbranch_scc1 L_ch1_wb
    L_ch1_wb2:
    s_sleep {cfg.sB2}
    s_branch L_ch1_pb
    L_ch1_sb:
    s_sleep {cfg.s0['B']}
    L_ch1_pb:""")
    poll(issB, chkB)
else:
    if cfg.s0["N"] < cfg.s0["B"]:
        a(f"s_cmp_eq_u32 s63, 0\ns_cbranch_scc1 L_ch1_ns\ns_sleep {cfg.s0['B'] - cfg.s0['N']}\nL_ch1_ns:")
    poll(issB, chkB, s0=min(cfg.s0["B"], cfg.s0["N"]))
stamp("c.B", 1); stamp("f.B", 2)
a(f"""
v_add_u32 v14, s64, v2
v_add_u32 v15, s64, v49
ds_read_b128 v[4:7], v14
ds_read_b128 v[8:11], v14 offset:1024
ds_read_b32 v12, v15 offset:2048
v_add_u32 v14, {LX}, v2
v_add_u32 v15, {LX+2048}, v49
s_waitcnt lgkmcnt(3)
s_barrier
""")
for r in range(4):
    a(f"ds_read_b128 {R4(16+8*r)}, v14 offset:{r*2304}\nds_read_b128 {R4(20+8*r)}, v14 offset:{r*2304+1024}")
    if r == 0: a("ds_read2st64_b32 v[48:49], v15 offset0:0 offset1:9\nds_read2st64_b32 v[50:51], v15 offset0:18 offset1:27")
a(f"""
v_lshlrev_b32 v13, 3, v0
v_add_u32 v13, {LLN}, v13
v_lshlrev_b32 v14, 1, v0
v_add_u32 v14, {LLN+1024}, v14
v_and_b32 v15, 3, v0
s_lshl_b32 s70, s7, 3
s_add_u32 s70, s70, {LLN}
v_lshl_add_u32 v15, v15, 1, s70
s_lshl_b32 s70, s3, 8
s_add_u32 s70, s70, s56
""")
for r in range(4):
    a(f"s_waitcnt lgkmcnt({6 - 2*r})")
    for i in range(4): a(f"v_pk_add_f32 {R2(4+2*i)}, {R2(4+2*i)}, {R2(16+8*r+2*i)}")
    a(f"v_add_f32 v12, v12, v{48+r}")
a("""v_cvt_pk_bf16_f32 v16, v4, v5
v_cvt_pk_bf16_f32 v17, v6, v7
v_cvt_pk_bf16_f32 v18, v8, v9
v_cvt_pk_bf16_f32 v19, v10, v11
v_cvt_pk_bf16_f32 v20, v12, 0
ds_write_b64 v13, v[16:17]
ds_write_b64 v13, v[18:19] offset:512
ds_write_b16 v14, v20
ds_read_u16 v27, v15
v_lshl_add_u32 v26, v0, 2, s70""")
fill = [f"ds_read2st64_b32 {R2(28+2*i)}, v26 offset0:{4*i} offset1:{36+4*i}" for i in range(8)]
fill += [f"ds_read2st64_b32 {R2(44+2*i)}, v26 offset0:{72+8*i} offset1:{76+8*i}" for i in range(4)]
fill = [fill[0], fill[8]] + fill[1:8] + fill[9:]
stats([16, 17, 18, 19, 20], 4, 5, fill)
ln_scalars(4, 5, 6, 7, 8)
a("s_waitcnt lgkmcnt(12)\nv_lshlrev_b32 v27, 16, v27\nv_sub_f32 v9, v27, v6\nv_sub_f32 v4, v4, v6\nv_mul_f32 v5, v5, v7\nv_mul_f32 v4, v4, v7\nv_mul_f32 v5, v5, v7")
rbf(9, 10); a("v_mul_f32 v9, v9, v7"); rbf(9, 10)
ln_scalars(4, 5, 6, 7, 8)
a("v_sub_f32 v9, v9, v6"); rbf(9, 10); a("v_mul_f32 v9, v9, v7"); rbf(9, 10)
a(f"v_mul_f32 v9, {f32(GS)}, v9\nv_mov_b32 v25, v26")
for e in range(4): a(f"v_readlane_b32 s{70+2*e}, v9, {60+e}")
ln(False)
a(f"v_mov_b32 v26, {f32(GA)}\ns_mov_b32 s66, {f32(GS)}\ns_waitcnt lgkmcnt(0)")
for i in range(9):
    w1, b1, w2 = (28+2*i, 29+2*i, 44+i) if i < 8 else (28, 29, 44)
    if i == 8: a("s_waitcnt lgkmcnt(0)")
    for j, r in enumerate((w1, b1, w2)):
        a(f"v_lshlrev_b32 v{12+2*j}, 16, v{r}\nv_and_b32 v{13+2*j}, 0xffff0000, v{r}")
    a("v_pk_mul_f32 v[14:15], v[14:15], s[66:67] op_sel_hi:[1,0]")
    if i == 0: a("ds_read2st64_b32 v[28:29], v25 offset0:32 offset1:68\nds_read_b32 v44, v25 offset:26624")
    if cfg.pfc and i == cfg.pfi:
        a(f"s_cmp_eq_u32 s60, {B_A(0)}\ns_cbranch_scc1 L_mx_pf\nL_mx_pfb:")
    for e0 in (0, 2):
        U = (18, 22); T = (20, 24); E = (e0, e0 + 1)
        for k in range(2): a(f"v_pk_fma_f32 {R2(U[k])}, v[12:13], s[{70+2*E[k]}:{71+2*E[k]}], v[14:15] op_sel_hi:[1,0,1]")
        for k in range(2): a(f"v_pk_fma_f32 {R2(T[k])}, {R2(U[k])}, {R2(U[k])}, v[26:27] op_sel_hi:[1,1,0]")
        for k in range(2): a(f"v_pk_mul_f32 {R2(T[k])}, {R2(U[k])}, {R2(T[k])}")
        for k in range(2): a(f"v_exp_f32 v{T[k]}, -v{T[k]}\nv_exp_f32 v{T[k]+1}, -v{T[k]+1}")
        for k in range(2): a(f"v_pk_mul_f32 {R2(U[k])}, {R2(U[k])}, v[16:17]")
        for k in range(2): a(f"v_pk_add_f32 {R2(T[k])}, {R2(T[k])}, 1.0 op_sel_hi:[1,0]")
        for k in range(2): a(f"v_rcp_f32 v{T[k]}, v{T[k]}\nv_rcp_f32 v{T[k]+1}, v{T[k]+1}")
        for k in range(2):
            acc = R2(4 + 2*E[k])
            a(f"v_pk_mul_f32 {acc}, {R2(U[k])}, {R2(T[k])}" if i == 0 else f"v_pk_fma_f32 {acc}, {R2(U[k])}, {R2(T[k])}, {acc}")
stamp("c.mix", 1)
for e in range(4): a(f"v_add_f32 v{4+2*e}, v{4+2*e}, v{5+2*e}")
if cfg.pfc: a("s_waitcnt vmcnt(0)")
a(f"""v_lshrrev_b32 v12, 4, v0
v_lshlrev_b32 v12, 2, v12
s_lshl_b32 s66, s3, 4
s_add_u32 s66, s66, {LRED}
v_add_u32 v12, s66, v12""")
row16_reduce("v_add_f32", [4, 6, 8, 10])
a(f"""
ds_write2_b32 v12, v4, v6 offset0:0 offset1:16
ds_write2_b32 v12, v8, v10 offset0:32 offset1:48
v_and_b32 v13, 3, v0
v_lshlrev_b32 v12, 6, v13
v_add_u32 v12, {LRED}, v12
s_mov_b32 s20, s52
s_mov_b32 s21, s53
s_mov_b32 s22, 2304
s_lshl_b32 s66, s7, 4
s_lshr_b32 s66, s66, s63
s_add_u32 s66, s66, s61
v_lshlrev_b32 v13, 2, v13
v_lshrrev_b32 v13, s63, v13
s_cmp_lg_u32 s3, 0
s_waitcnt lgkmcnt(0)
s_barrier
s_cbranch_scc1 L_ch1_ret
ds_read_b128 v[16:19], v12
ds_read_b128 v[20:23], v12 offset:16
ds_read_b128 v[28:31], v12 offset:32
ds_read_b128 v[32:35], v12 offset:48
s_cmp_eq_u32 s63, 1
s_mov_b64 exec, 15
s_waitcnt lgkmcnt(2)
v_pk_add_f32 v[16:17], v[16:17], v[18:19]
v_pk_add_f32 v[20:21], v[20:21], v[22:23]
s_waitcnt lgkmcnt(0)
v_pk_add_f32 v[28:29], v[28:29], v[30:31]
v_pk_add_f32 v[32:33], v[32:33], v[34:35]
v_pk_add_f32 v[16:17], v[16:17], v[20:21]
v_pk_add_f32 v[28:29], v[28:29], v[32:33]
v_pk_add_f32 v[16:17], v[16:17], v[28:29]
v_add_f32 v16, v16, v17
v_mul_f32 v16, {f32(1.0/GS)}, v16
""")
rbf(16, 17); a("v_add_f32 v16, s78, v16"); rbf(16, 17); a("v_add_f32 v16, v16, v27"); rbf(16, 17)
a(f"""
s_cbranch_scc1 L_ch1_fin
buffer_store_dword v16, v13, s[16:19], s66 offen sc1
s_branch L_ch1_done
L_ch1_fin:
buffer_store_short v17, v13, s[20:23], s66 offen
L_ch1_done:
s_mov_b64 exec, -1
L_ch1_ret:
""")
ret()

if cfg.pfc:
    a.hist = []
    a.label("L_mx_pf")
    for kt in range(cfg.pfc):
        if kt % 8 == 0: a(f"s_add_u32 s28, s27, {(kt>>3)*8192}")
        a(f"buffer_load_dwordx4 v[30:33], v1, s[8:11], s28 offen offset:{((kt>>1)&3)*512+(kt&1)*128}")
    a("s_branch L_mx_pfb")
a.hist = []
a.label("SUB_CH1B")
a(f"""s_mul_i32 s70, s3, 9216
s_add_u32 s70, s70, s60
s_add_u32 s71, s70, 2304
s_add_u32 s72, s70, 4608
s_add_u32 s73, s70, 6912
v_lshlrev_b32 v49, 2, v0
s_mul_i32 s75, s3, 2304
s_add_u32 s75, s75, {LX}
v_add_u32 v51, s75, v2
s_barrier
s_branch L_ch1_b""")

a.hist = []
a.label("SUB_CH2")
a(f"""
v_lshrrev_b32 v13, 4, v0
v_bfe_u32 v14, v0, 2, 2
v_lshl_add_u32 v15, v13, 3, v14
v_lshlrev_b32 v15, 9, v15
v_bfe_u32 v13, v0, 2, 3
s_lshl_b32 s70, s3, 2
v_xor_b32 v13, s70, v13
v_lshl_add_u32 v15, v13, 5, v15
v_and_b32 v13, 3, v0
v_lshl_add_u32 v15, v13, 3, v15
v_add_u32 v15, {LWQ}, v15
v_xor_b32 v16, 32, v15
v_xor_b32 v17, 64, v15
v_xor_b32 v18, 96, v15
""")
for cbk in range(4):
    for ks in range(2):
        for jh in range(2):
            a(f"ds_read_b64_tr_b16 {R2(20 + 8*cbk + 4*ks + 2*jh)}, v{15+cbk} offset:{(32*ks+4*jh)*512}")
a(f"""
v_lshlrev_b32 v19, 2, v0
v_add_u32 v15, s64, v2
v_add_u32 v16, s64, v19
s_lshl_b32 s72, s5, 8
s_lshl_b32 s74, s7, 10
s_add_u32 s74, s74, s62
s_lshl_b32 s71, s3, 8
s_add_u32 s74, s74, s71
s_cmp_eq_u32 s63, 1
s_cbranch_scc0 L_ch2_g
v_add_u32 v17, s72, v16
ds_read_b128 v[4:7], v15
ds_read_b128 v[8:11], v15 offset:1024
ds_read_b32 v12, v16 offset:2048
ds_read_b32 v13, v17
s_waitcnt lgkmcnt(0)
s_branch L_ch2_x
L_ch2_g:
s_add_u32 s72, s72, s61
s_lshl_b32 s73, s4, 7
s_add_u32 s73, s73, s61
s_add_u32 s73, s73, 0x8000
""")
def issC():
    a("""buffer_load_dwordx4 v[4:7], v2, s[16:19], s61 offen sc1
    buffer_load_dwordx4 v[8:11], v2, s[16:19], s61 offen offset:1024 sc1
    buffer_load_dword v12, v19, s[16:19], s61 offen offset:2048 sc1
    buffer_load_dword v13, v19, s[16:19], s72 offen sc1""")
poll(issC, lambda: check_sentinel(range(4, 14), 14), s0=cfg.s0["C"], s0w=cfg.s0["Y"])
a("""s_or_b32 s70, s5, s3
s_cbranch_scc1 L_ch2_nh
""")
gstore("s_mov_b64 exec, 1\nbuffer_store_dword v19, v19, s[16:19], s73 offen sc1\ns_mov_b64 exec, -1")
a("""L_ch2_nh:
ds_write_b128 v15, v[4:7]
ds_write_b128 v15, v[8:11] offset:1024
ds_write_b32 v16, v12 offset:2048
L_ch2_x:
v_cvt_pk_bf16_f32 v14, v4, v5
v_cvt_pk_bf16_f32 v15, v6, v7
v_cvt_pk_bf16_f32 v16, v8, v9
v_cvt_pk_bf16_f32 v17, v10, v11
v_cvt_pk_bf16_f32 v18, v12, 0""")
stats([14, 15, 16, 17, 18], 4, 5, ["v_lshlrev_b32 v9, 1, v0", f"v_add_u32 v9, {LRED}, v9", "v_and_b32 v12, 48, v0", f"v_add_u32 v12, {LRED}, v12"])
ln_scalars(4, 5, 6, 7, 8)
a("v_readlane_b32 s70, v6, 63\nv_readlane_b32 s71, v7, 63\nv_subrev_f32 v13, s70, v13")
rbf(13, 8)
a("""v_mul_f32 v13, s71, v13
v_cvt_pk_bf16_f32 v13, v13, v13
ds_write_b16 v9, v13
ds_read_b128 v[4:7], v12
ds_read_b128 v[8:11], v12 offset:64
s_waitcnt lgkmcnt(0)""")
accs = [12, 20, 28, 36]
for cbk in range(4):
    d = accs[cbk]; f = 20 + 8 * cbk
    a(f"v_mfma_f32_16x16x32_bf16 {R4(d)}, v[4:7], {R4(f)}, 0")
    a(f"v_mfma_f32_16x16x32_bf16 {R4(d)}, v[8:11], {R4(f+4)}, {R4(d)}")
for cbk in range(1, 4):
    a(f"v_mov_b32_dpp v12, v{accs[cbk]} quad_perm:[0,1,2,3] row_mask:{1<<cbk:#x} bank_mask:0xf")
gstore("buffer_store_dword v12, v19, s[16:19], s74 offen sc1")
stamp("c.wq", 1)
ret()

if cfg.roles:
    a.hist = []
    a.label("SUB_RING")
    keep = LDS_T + [25]
    vts = [t for t in range(cfg.j0) if t not in keep] + keep
    NT = 64 + len(vts)
    slot = lambda n: (n - (NT - len(keep))) % NS
    lastso = [None]
    def rload(n):
        if n >= NT: return
        if n < 64:
            so, imm, va, srd = ("k", (n >> 3) * 8192), ((n >> 1) & 3) * 512 + (n & 1) * 128, "v1", "s[8:11]"
        else:
            vt = vts[n - 64]
            so, imm, va, srd = ("v", (vt >> 2) * 4096), (vt & 3) * 1024, "v2", "s[12:15]"
        if so != lastso[0]:
            a(f"s_add_u32 s28, s27, {so[1]}"); lastso[0] = so
        a(f"s_add_u32 m0, s57, {slot(n)*1024 - imm}")
        a(f"buffer_load_dwordx4 {va}, {srd}, s28 offen offset:{imm}{'' if n < cfg.l2n else ' nt'} lds")
    for n in range(16): rload(n)
    att_pre(zero=False)
    a("ds_read_b128 v[4:7], v12\nds_read_b128 v[8:11], v12 offset:128\nv_add_u32 v48, s57, v2")
    KT = [34, 38, 42]
    for n in range(66):
        if n < 64:
            rload(n + 16)
            a(f"s_waitcnt vmcnt(16)\nds_read_b128 {R4(KT[n%3])}, v48 offset:{slot(n)*1024}")
        if n >= 2:
            kt = n - 2
            a(f"s_waitcnt lgkmcnt({min(63, n) - kt})")
            kmm(kt, R4(KT[kt % 3]))
            if kt & 1 and (kt >> 1) >= 2: adds((kt >> 1) - 2)
    adds(30); adds(31)
    softmax()
    zero_a()
    a("v_add_u32 v33, s57, v2")
    NP = len(vts) // 2
    def rfetch(m):
        if m >= NP: return
        for h in range(2):
            n = 64 + 2*m + h
            rload(n + 16)
            a(f"s_waitcnt vmcnt({min(16, NT - 1 - n)})\nds_read_b128 {R4(4 + 8*(m&1) + 4*h)}, v33 offset:{slot(n)*1024}")
    rfetch(0)
    for m in range(NP):
        build(vts[2*m] >> 1, m & 1)
        rfetch(m + 1)
        a(f"s_waitcnt lgkmcnt({2 if m + 1 < NP else 0})")
        vmm(R8(4 + 8*(m&1)), m & 1)
    if cfg.j0 == 64:
        a("s_branch L_att_epi")
    else:
        a(f"""v_mov_b32 v47, v20
        ds_write_b128 v33, v[24:27] offset:{14*1024}
        ds_write_b128 v33, v[28:31] offset:{15*1024}
        ds_write_b64 v33, v[46:47] offset:{17*1024}
        ds_write_b128 v33, v[42:45] offset:{16*1024}
        s_waitcnt lgkmcnt(0)""")
        ret()
        a.hist = []
        a.label("SUB_RESUME")
        a(f"s_mov_b32 s82, {8 + cfg.j0//8}\ns_call_b64 s[80:81], SUB_LN")
        if cfg.j0 <= 48: a("s_call_b64 s[80:81], SUB_LN")
        att_pre()
        a(f"""v_add_u32 v33, s57, v2
        ds_read_b128 v[24:27], v33 offset:{14*1024}
        ds_read_b128 v[28:31], v33 offset:{15*1024}
        ds_read_b128 v[42:45], v33 offset:{16*1024}
        ds_read_b64 v[22:23], v33 offset:{17*1024}
        v_and_b32 v32, 3, v0
        v_mul_u32_u24 v32, 0x5555, v32
        s_mov_b64 vcc, -1
        s_waitcnt lgkmcnt(0)
        v_mov_b32 v46, v22
        v_mov_b32 v20, v23""")
        build(cfg.j0 // 2, (cfg.j0 // 2) & 1)
        a.flush()
        a("s_branch L_att_resume")

for Lo, Lb, wait, depth in tramps:
    a.hist = []
    a.label(Lo)
    if wait and cfg.adapt:
        a(f"s_call_b64 s[34:35], SUB_LNW\ns_branch {Lb}")
        continue
    for d in range(1, depth + 1):
        a("s_call_b64 s[80:81], SUB_LN")
        L2 = a.newlabel("Lt2")
        if d < depth: a(f"s_cmp_lt_u32 s82, 16\ns_cbranch_scc1 {L2}")
        if wait: a(f"s_waitcnt vmcnt({8*d})")
        a(f"s_branch {Lb}")
        if d < depth: a.label(L2)
for Lo, Lb, instrs in gstores:
    a.hist = []
    a.label(Lo); a("s_nop 7"); a(instrs); a(f"s_branch {Lb}")
for Rr, L, D, sl in retries:
    a.hist = []
    a.label(Rr)
    a(f"s_sleep {sl}\ns_add_u32 s68, s68, 1\ns_cmp_lt_u32 s68, {cfg.spin}\ns_cbranch_scc1 {L}\ns_branch {D}")
if cfg.stamps:
    n = len(stamp_names)
    a.hist = []
    a.label("L_stamps")
    if cfg.dbg:
        sel = ["start", "start", "q1", "P1b0", "wq0", "s.ring", "P2b0", "s.P1b1", "s.fin0", "P1b1", "c.B", "c.wq", "s.rel", "s.end", "f.B", "end"]
        a("v_mov_b32 v6, 0")
        a(f"s_not_b32 s70, s{POOL[0]}\nv_writelane_b32 v6, s70, 0")
        for i, nm in enumerate(sel):
            if i and nm in stamp_names: a(f"v_writelane_b32 v6, s{POOL[stamp_names.index(nm)]}, {i}")
        a("v_lshrrev_b32 v4, 2, v2\ns_mov_b64 exec, 0xffff\nglobal_atomic_umax v4, v6, s[54:55] sc1\ns_branch L_fin")
    a(f"""s_lshl_b32 s70, s2, 2
    s_add_u32 s70, s70, s3
    s_mul_i32 s70, s70, {8*n}
    s_add_u32 s70, s70, {STAMP}
    v_mov_b32 v4, 0
    v_mov_b32 v7, 0
    s_mov_b64 exec, 1""")
    if cfg.hwid:
        a(f"s_getreg_b32 s71, hwreg(HW_REG_HW_ID)\ns_getreg_b32 s72, hwreg(HW_REG_XCC_ID)\ns_and_b32 s71, s71, 0xffff\ns_and_b32 s72, s72, 15\ns_lshl_b32 s72, s72, 16\ns_or_b32 s71, s71, s72\ns_add_u32 s{POOL[1]}, s{POOL[0]}, s71")
    for i in range(n):
        a(f"v_mov_b32 v6, s{POOL[i]}\nbuffer_store_dwordx2 v[6:7], v4, s[16:19], s70 offen offset:{8*i}\ns_nop 1")
    a("s_branch L_fin")
    open(sys.argv[1] + ".names", "w").write(" ".join(stamp_names))
    print("nstamps", n, file=sys.stderr)
a.label("L_code_end")
hdr = open("cdna_kernels/" + NAME + ".s.ref").read().split("; Override launch")[0]
out = hdr + f"; @launch grid=(256,1,1) block=(256,1,1) lds={LDS_TOTAL}\n"
out += f""".amdgcn_target "amdgcn-amd-amdhsa--gfx950"
.text
.globl {NAME}_kernel
.p2align 8
.type {NAME}_kernel,@function
{NAME}_kernel:
""" + a.text() + f""".section .rodata,"a"
.p2align 6
.amdhsa_kernel {NAME}_kernel
  .amdhsa_next_free_vgpr 512
  .amdhsa_next_free_sgpr 102
  .amdhsa_accum_offset 256
  .amdhsa_group_segment_fixed_size 0
  .amdhsa_kernarg_size 104
  .amdhsa_user_sgpr_count 2
  .amdhsa_user_sgpr_kernarg_segment_ptr 1
  .amdhsa_system_sgpr_workgroup_id_x 1
.end_amdhsa_kernel
"""
open(sys.argv[1], "w").write(out)
print("nops added", a.nops_added, "lines", len(a.lines), file=sys.stderr)
```

```python
import sys, struct, math
sys.path.insert(0, "gen")
from asmlib import *

NAME = "interleave_layers__gqa_block_cached__mixer_token_mlp__decode"
def f32(x): return "0x%08x" % struct.unpack("<I", struct.pack("<f", x))[0]

class Cfg:
    stamps = 0
    spin = 20000
    s0 = dict(A=18, B=14, C=18, D=8, X=18, Y=18, M=18, N=14)
    s1 = 2
    sh = 2
    sg = 8
    go = 24
    roles = 1
    latew = 0
    vsites = 1
    l2n = 128
    dbg = 0
    n0 = 16
    n1 = 5
    thr = 3
    hint = -1
    xe1 = 0
    xe3 = 0
    zpre = 0
    xl = 1
    fA = 0
    fD = 0
    thr2 = -1
    pfc = 0
    pfi = 3
    cpf = 1
    hwid = 0
    late2 = 1
    adapt = 1
    warm = 0
    relfirst = 0
    ksites = 1
    pf0 = 8
    nogo = 1
    xthr = 0
    thrm = 4
    sA2 = 0
    sB2 = 32
    aw = 0
    d0 = 2
    thrall = 0
    thr3 = 0
    go0 = 32
    j0 = 40
    fa = 3
    dw = 2
    pre = 8
    d1 = 3
    d2 = 1
    d3 = 4
    d4 = 3
cfg = Cfg()
for arg in sys.argv[2:]:
    k, v = arg.split("=")
    if k.startswith("s0"): cfg.s0[k[2]] = int(v)
    else: setattr(cfg, k, int(v))

W = 52; NL = 13; NS = 20
LV = 0; LWO = 53248; LWQ = 86016; LMX = 118784; LXB = 146432; LX = 151040; LQ = 160256; LLN = 162304; LRED = 163456
LO = LX + 8448
LDS_TOTAL = 163840
A_O = lambda i: i * 0x40000
A_L = lambda i: 0x100000 + i * 0x1000
B_A = lambda i: 0x110000 + i * 0x10000
C_A = lambda i: 0x150000 + i * 0x1000
H_A = lambda i: 0x158000 + i * 0x1000
D_A = lambda i: 0x160000 + i * 0x40000
X_A = 0x15c000
STAMP = 0x10000000
CSM = math.log2(math.e) / math.sqrt(128.0)
C1 = -2.0 * math.sqrt(2.0 / math.pi) * math.log2(math.e)
C2 = C1 * 0.044715
GS = (-C2) ** (1.0 / 3.0)
GA = -C1 / GS
DPPALL = "row_mask:0xf bank_mask:0xf"
CTL4 = ["quad_perm:[1,0,3,2]", "quad_perm:[2,3,0,1]", "row_half_mirror", "row_mirror"]

a = Asm()
POOL = list(range(83, 100)) + [32, 38, 39, 43, 50, 51]
stamp_names = []
def stamp(name, cond=None):
    if not cfg.stamps: return
    if name in stamp_names: r = POOL[stamp_names.index(name)]
    else:
        r = POOL[len(stamp_names)]; stamp_names.append(name)
    a("s_memrealtime s[100:101]\ns_waitcnt lgkmcnt(0)")
    if cond is None: a(f"s_mov_b32 s{r}, s100")
    else: a(f"s_cmp_eq_u32 s79, {cond}\ns_cselect_b32 s{r}, s100, s{r}")

def khome(kt): return f"a[{4*kt}:{4*kt+3}]"
LDS_T = [0, 1, 4, 5, 8, 9, 12, 13, 16, 17, 20, 21, 24]
REG_T = [25] + [t for t in range(64) if t not in LDS_T and t != 25]
def vreg(vt): return W + 4 * REG_T.index(vt)
def vhome(vt):
    r = vreg(vt); return f"v[{r}:{r+3}]"
def R8(r): return f"v[{r}:{r+7}]"
def R4(r): return f"v[{r}:{r+3}]"
def R2(r): return f"v[{r}:{r+1}]"

def load_k(kts):
    lastG = None
    for kt in kts:
        G, t, half = kt >> 3, (kt >> 1) & 3, kt & 1
        if G != lastG:
            a(f"s_add_u32 s28, s27, {G*8192}"); lastG = G
        a(f"buffer_load_dwordx4 {khome(kt)}, v1, s[8:11], s28 offen offset:{t*512+half*128} nt")
def load_v(vts):
    lastQ = None
    for vt in vts:
        Q = vt >> 2
        if Q != lastQ:
            a(f"s_add_u32 s28, s27, {Q*4096}")
            if vt in LDS_T: a(f"s_add_u32 m0, s29, {LDS_T.index(vt)*1024 - (vt&3)*1024}")
            lastQ = Q
        if vt in LDS_T:
            a(f"buffer_load_dwordx4 v2, s[12:15], s28 offen offset:{(vt&3)*1024} nt lds")
        else:
            a(f"buffer_load_dwordx4 {vhome(vt)}, v2, s[12:15], s28 offen offset:{(vt&3)*1024} nt")

def rbf(v, t):
    a(f"v_cvt_pk_bf16_f32 v{t}, v{v}, v{v}\nv_lshlrev_b32 v{v}, 16, v{t}")
def rows_reduce(op, v, t):
    a(f"v_mov_b32 v{t}, v{v}\nv_permlane16_swap_b32 v{v}, v{t}\n{op} v{v}, v{v}, v{t}")
    a(f"v_mov_b32 v{t}, v{v}\nv_permlane32_swap_b32 v{v}, v{t}\n{op} v{v}, v{v}, v{t}")
def row16_reduce(op, vs):
    for ctl in CTL4:
        for v in vs: a(f"{op}_dpp v{v}, v{v}, v{v} {ctl} {DPPALL}")
def sum_to_row3(vs, fillers=()):
    fillers = list(fillers)
    steps = [f"{c} {DPPALL}" for c in CTL4] + ["row_bcast:15 row_mask:0xa bank_mask:0xf", "row_bcast:31 row_mask:0xc bank_mask:0xf"]
    per = (len(fillers) + 5) // 6
    for st in steps:
        for _ in range(per):
            if fillers: a(fillers.pop(0))
        for v in vs: a(f"v_add_f32_dpp v{v}, v{v}, v{v} {st}")
def stats(P, s1, s2, fillers=()):
    for i, p in enumerate(P):
        a(f"v_dot2_f32_bf16 v{s1}, v{p}, s67, {'0' if i == 0 else 'v%d' % s1}")
        a(f"v_dot2_f32_bf16 v{s2}, v{p}, v{p}, {'0' if i == 0 else 'v%d' % s2}")
    sum_to_row3([s1, s2], fillers)
    a(f"v_mul_f32 v{s1}, {f32(1.0/576)}, v{s1}\nv_mul_f32 v{s2}, {f32(1.0/576)}, v{s2}\nv_fma_f32 v{s2}, -v{s1}, v{s1}, v{s2}\nv_max_f32 v{s2}, 0, v{s2}")
def ln_scalars(m, q, mb, r, t):
    a(f"v_cvt_pk_bf16_f32 v{t}, v{m}, v{q}\nv_and_b32 v{r}, 0xffff0000, v{t}\nv_lshlrev_b32 v{mb}, 16, v{t}\nv_add_f32 v{r}, {f32(1e-5)}, v{r}")
    rbf(r, t); a(f"v_sqrt_f32 v{r}, v{r}"); rbf(r, t); a(f"v_rcp_f32 v{r}, v{r}")

def check_sentinel(regs, t):
    regs = list(regs)
    if len(regs) % 2 == 0:
        a(f"v_max_u32 v{t}, v{regs[0]}, v{regs[1]}"); regs = regs[2:]
    else:
        a(f"v_max3_u32 v{t}, v{regs[0]}, v{regs[1]}, v{regs[2]}"); regs = regs[3:]
    for i in range(0, len(regs), 2):
        a(f"v_max3_u32 v{t}, v{t}, v{regs[i]}, v{regs[i+1]}")
    a(f"v_cmp_eq_u32 vcc, -1, v{t}")

gstores = []
def gstore(instrs):
    Lo = a.newlabel("Lgs"); Lb = a.newlabel("Lgb")
    a(f"s_cmp_eq_u32 s33, 0\ns_cbranch_scc1 {Lo}")
    a.flush()
    a(instrs.replace(" sc1", ""))
    a.label(Lb)
    gstores.append((Lo, Lb, instrs))
tramps = []
def ln(wait, depth=None):
    Lo = a.newlabel("Lt"); Lb = a.newlabel("Ltb")
    a(f"s_cmp_lt_u32 s82, 16\ns_cbranch_scc1 {Lo}")
    if wait: a("s_waitcnt vmcnt(0)")
    a.label(Lb)
    tramps.append((Lo, Lb, wait, depth or (cfg.dw if wait else 1)))
retries = []
def poll(issue, check, s0=0, depth=None, s0w=None):
    L = a.newlabel("Lpoll"); D = a.newlabel("Lpd"); Rr = a.newlabel("Lpr")
    a("s_mov_b32 s68, 0")
    if s0 and s0w is not None and s0w < s0:
        Ls = a.newlabel("Lsl")
        a(f"s_cmp_eq_u32 s3, 0\ns_cbranch_scc1 {Ls}\ns_sleep {s0 - s0w}"); a.label(Ls)
        if s0w: a(f"s_sleep {s0w}")
    elif s0: a(f"s_sleep {s0}")
    a.label(L)
    issue(); ln(True, depth)
    check()
    a(f"s_cbranch_vccnz {Rr}")
    a.label(D)
    retries.append((Rr, L, D, cfg.s1))
def ln_until(n):
    L = a.newlabel("Lrest"); D = a.newlabel("Lrd")
    a.label(L); a(f"s_cmp_ge_u32 s82, {n}\ns_cbranch_scc1 {D}\ns_call_b64 s[80:81], SUB_LN\ns_branch {L}"); a.label(D)
def call(lbl):
    a.flush(); a(f"s_call_b64 s[30:31], {lbl}")
def ret():
    a.flush(); a("s_setpc_b64 s[30:31]")
def flagwait(inst, sl, off=0, count=0):
    a(f"s_lshl_b32 s70, s4, 7\ns_add_u32 s70, s70, {H_A(inst)+off}\nv_mov_b32 v4, 0")
    L = a.newlabel("Lh"); D = a.newlabel("Lhd")
    a(f"s_mov_b32 s68, 0\ns_cmp_lg_u32 s3, 0\ns_cbranch_scc1 {D}")
    a.label(L)
    a(f"buffer_load_dword v5, v4, s[16:19], s70 offen sc1\ns_waitcnt vmcnt(0)")
    a(f"v_cmp_gt_i32 vcc, {count*0xffff - 1}, v5" if count else "v_cmp_eq_u32 vcc, -1, v5")
    a(f"s_cbranch_vccz {D}")
    a(f"s_sleep {sl}\ns_add_u32 s68, s68, 1\ns_cmp_lt_u32 s68, {cfg.spin}\ns_cbranch_scc1 {L}")
    a.label(D)
    a("s_barrier")

def qg_issue(base, sb):
    for i in range(9):
        a(f"buffer_load_dword v{base+i}, v22, s[16:19], s{sb + (i>>2)} offen offset:{(i&3)*1024} sc1")
def qg_sum(base):
    b = base
    a(f"""v_add_f32 v{b}, v{b}, v{b+1}
    v_add_f32 v{b+2}, v{b+2}, v{b+3}
    v_add_f32 v{b+4}, v{b+4}, v{b+5}
    v_add_f32 v{b+6}, v{b+6}, v{b+7}
    v_add_f32 v{b}, v{b}, v{b+2}
    v_add_f32 v{b+4}, v{b+4}, v{b+6}
    v_add_f32 v{b}, v{b}, v{b+8}
    v_add_f32 v{b}, v{b}, v{b+4}
    v_cvt_pk_bf16_f32 v{b}, v{b}, v{b}""")

a(f"""
s_cmp_ge_u32 s2, 256
s_cbranch_scc1 L_end
s_load_dwordx16 s[32:47], s[0:1], 0
s_load_dwordx8 s[48:55], s[0:1], 64
s_load_dwordx2 s[56:57], s[0:1], 96
v_lshrrev_b32 v1, 6, v0
v_readfirstlane_b32 s3, v1
v_and_b32 v0, 63, v0
s_mov_b32 s69, s2
s_and_b32 s4, s2, 7
s_lshl_b32 s4, s4, 1
s_bfe_u32 s6, s2, 0x10003
s_or_b32 s4, s4, s6
s_lshr_b32 s6, s2, 4
s_lshl_b32 s2, s4, 4
s_or_b32 s2, s2, s6
s_add_u32 s5, s6, s4
s_and_b32 s5, s5, 15
v_lshlrev_b32 v2, 4, v0
v_bfe_u32 v1, v0, 2, 2
v_lshlrev_b32 v1, 11, v1
v_bfe_u32 v3, v0, 1, 1
v_lshl_add_u32 v1, v3, 8, v1
v_lshrrev_b32 v3, 4, v0
v_lshl_add_u32 v1, v3, 5, v1
v_and_b32 v3, 1, v0
v_lshl_add_u32 v1, v3, 4, v1
s_lshl_b32 s27, s2, 18
s_lshl_b32 s28, s3, 16
s_add_u32 s27, s27, s28
s_mov_b32 s10, 0x8000000
s_mov_b32 s11, 0x20000
s_mov_b32 s14, 0x8000000
s_mov_b32 s15, 0x20000
s_mov_b32 s18, 0x20000000
s_mov_b32 s19, 0x20000
s_mov_b32 s23, 0x20000
s_waitcnt lgkmcnt(0)
s_mov_b32 s8, s34
s_mov_b32 s9, s35
""")
load_k(range(0, cfg.pre))
a(f"""
s_mov_b32 s12, s36
s_mov_b32 s13, s37
s_mov_b32 s16, s56
s_mov_b32 s17, s57
s_mov_b32 s82, {cfg.pre//8}
s_mov_b32 s79, 0
s_cmp_ge_u32 s5, 9
s_cselect_b32 s42, 1, {cfg.thrall}
""")
if cfg.xe1: a("s_getreg_b32 s28, hwreg(HW_REG_XCC_ID)\ns_andn2_b32 s28, 1, s28\ns_lshl_b32 s28, s28, 1\ns_cmp_ge_u32 s5, 9\ns_cselect_b32 s42, 1, s28")
if cfg.xthr: a("s_getreg_b32 s42, hwreg(HW_REG_XCC_ID)\ns_andn2_b32 s42, 1, s42")
a(f"""
s_mov_b32 s24, 0xaaaaaaaa
s_mov_b32 s25, 0xaaaaaaaa
v_and_b32 v4, 4, v0
v_lshlrev_b32 v4, 2, v4
v_mov_b32 v3, 0xffff
v_lshlrev_b32 v3, v4, v3
s_mov_b32 s26, {f32(CSM)}
s_mov_b32 s67, 0x3f803f80
s_mul_i32 s29, s3, {NL*1024}
""")
for r in POOL[:17]:
    if cfg.stamps: a(f"s_mov_b32 s{r}, 0")
stamp("start")
if cfg.cpf:
    a(f"""s_cmp_ge_u32 s69, {32*cfg.cpf}
    s_cbranch_scc1 L_nocpf
    s_getpc_b64 s[70:71]
    L_cpf_pc:
    s_lshr_b32 s72, s69, 3
    s_and_b32 s72, s72, 3
    s_lshl_b32 s72, s72, 2
    s_add_u32 s72, s72, s3
    s_lshl_b32 s72, s72, 10
    v_add_u32 v42, s72, v2
    v_add_u32 v43, 0x4000, v42""")
    a.raw("    v_min_u32 v42, L_code_end-L_cpf_pc-16, v42")
    a.raw("    v_min_u32 v43, L_code_end-L_cpf_pc-16, v43")
    a("""global_load_dwordx4 v[44:47], v42, s[70:71]
    global_load_dwordx4 v[48:51], v43, s[70:71]
    L_nocpf:""")
if cfg.warm:
    a("""s_add_u32 s70, s27, 0x4000000
    s_mov_b64 exec, 1
    buffer_load_dword v40, v2, s[12:15], s27 offen nt
    buffer_load_dword v41, v2, s[8:11], s70 offen nt
    buffer_load_dword v42, v2, s[12:15], s70 offen nt
    global_load_ushort v43, v2, s[52:53]
    global_load_dword v44, v2, s[54:55] offset:192
    s_mov_b64 exec, -1""")
a(f"""
v_mov_b32 v4, -1
v_mov_b32 v5, -1
v_mov_b32 v6, -1
v_mov_b32 v7, -1
s_lshl_b32 s70, s3, 18
s_lshl_b32 s71, s2, 10
s_add_u32 s70, s70, s71
buffer_store_dwordx4 v[4:7], v2, s[16:19], s70 offen sc1
s_lshl_b32 s70, s3, 12
s_lshl_b32 s71, s4, 7
s_add_u32 s70, s70, s71
s_lshl_b32 s71, s6, 2
s_add_u32 s70, s70, s71
s_add_u32 s70, s70, {A_L(0)}
v_lshlrev_b32 v8, 6, v0
s_mov_b64 exec, 3
buffer_store_dword v4, v8, s[16:19], s70 offen sc1
s_mov_b64 exec, -1
s_getreg_b32 s70, hwreg(HW_REG_XCC_ID)
s_and_b32 s70, s70, 15
v_mov_b32 v10, s70
s_lshl_b32 s70, s2, 2
s_add_u32 s70, s70, {X_A}
v_mov_b32 v11, 0
s_mov_b64 exec, 1
buffer_store_dword v10, v11, s[16:19], s70 offen sc1
s_mov_b64 exec, -1
global_load_ushort v23, v11, s[50:51]
s_mul_i32 s7, s4, 9
s_add_u32 s7, s7, s5
s_cmp_ge_u32 s5, 9
s_cbranch_scc1 L_pro_s1
v_lshlrev_b32 v8, 2, v0
s_lshl_b32 s70, s3, 16
s_lshl_b32 s71, s7, 8
s_add_u32 s70, s70, s71
s_add_u32 s70, s70, {B_A(0)}
buffer_store_dword v4, v8, s[16:19], s70 offen sc1
s_lshl_b32 s70, s3, 18
s_lshl_b32 s71, s7, 10
s_add_u32 s70, s70, s71
s_add_u32 s70, s70, {D_A(0)}
buffer_store_dwordx4 v[4:7], v2, s[16:19], s70 offen sc1
s_lshl_b32 s70, s3, 12
s_lshl_b32 s71, s7, 4
s_add_u32 s70, s70, s71
s_add_u32 s70, s70, {C_A(0)}
s_mov_b64 exec, 15
buffer_store_dword v4, v8, s[16:19], s70 offen sc1
s_lshl_b32 s70, s3, 12
s_lshl_b32 s71, s4, 7
s_add_u32 s70, s70, s71
s_add_u32 s70, s70, {H_A(0)}
buffer_store_dword v4, v8, s[16:19], s70 offen sc1
buffer_store_dword v4, v8, s[16:19], s70 offen offset:2048 sc1
s_mov_b64 exec, -1
s_mov_b32 s20, s32
s_mov_b32 s21, s33
s_mov_b32 s22, 2304
v_lshlrev_b32 v9, 3, v0
v_lshlrev_b32 v10, 1, v0
buffer_load_dwordx2 v[12:13], v9, s[20:23], 0 offen
buffer_load_dwordx2 v[14:15], v9, s[20:23], 0 offen offset:512
buffer_load_ushort v16, v10, s[20:23], 0 offen offset:1024
buffer_load_dwordx2 v[18:19], v9, s[20:23], 0 offen offset:1152
buffer_load_dwordx2 v[20:21], v9, s[20:23], 0 offen offset:1664
buffer_load_ushort v22, v10, s[20:23], 0 offen offset:2176
s_mov_b32 s20, s38
s_mov_b32 s21, s39
s_mov_b32 s22, {576*8192}
v_lshrrev_b32 v24, 5, v0
v_and_b32 v25, 31, v0
v_lshlrev_b32 v25, 4, v25
v_lshlrev_b32 v26, 5, v24
v_xor_b32 v25, v25, v26
v_lshl_add_u32 v24, v24, 13, v25
v_xor_b32 v25, 64, v24
v_xor_b32 v26, 128, v24
v_xor_b32 v27, 192, v24
s_lshl_b32 s70, s5, 19
s_lshl_b32 s71, s3, 17
s_add_u32 s70, s70, s71
s_lshl_b32 s71, s4, 9
s_add_u32 s70, s70, s71
s_lshl_b32 s71, s3, 13
s_add_u32 s71, s71, {LWQ}
""")
for i in range(8):
    fs = ((i >> 2) & 1) * 2 + (i & 1)
    a(f"s_add_u32 m0, s71, {i*1024}\nbuffer_load_dwordx4 v{24+fs}, s[20:23], s70 offen nt lds")
    if i < 7: a("s_add_u32 s70, s70, 16384")
a.label("L_pro_s1")
a("s_mov_b32 s33, 0")
ln(True, cfg.d1)
pass
a(f"""
v_lshlrev_b32 v23, 16, v23
v_readfirstlane_b32 s78, v23
s_mov_b32 s56, {LMX}
s_cmp_ge_u32 s5, 9
s_cbranch_scc1 L_pro_s2
v_add_u32 v24, {LXB}, v2
v_lshlrev_b32 v25, 2, v0
v_add_u32 v25, {LXB+2048}, v25
""")
for b in range(2):
    r = 12 + 6 * b
    a(f"""v_lshlrev_b32 v28, 16, v{r}
    v_and_b32 v29, 0xffff0000, v{r}
    v_lshlrev_b32 v30, 16, v{r+1}
    v_and_b32 v31, 0xffff0000, v{r+1}
    v_lshlrev_b32 v32, 16, v{r+2}
    v_and_b32 v33, 0xffff0000, v{r+2}
    v_lshlrev_b32 v34, 16, v{r+3}
    v_and_b32 v35, 0xffff0000, v{r+3}
    v_lshlrev_b32 v36, 16, v{r+4}
    ds_write_b128 v24, v[28:31] offset:{b*2304}
    ds_write_b128 v24, v[32:35] offset:{b*2304+1024}
    ds_write_b32 v25, v36 offset:{b*2304}
    s_waitcnt lgkmcnt(0)""")
a.label("L_pro_s2")
a(f"""
s_barrier
s_cmp_lg_u32 s3, {cfg.aw}
s_cbranch_scc1 L_pro_arr
v_mov_b32 v4, 0
v_mov_b32 v5, 1
s_mov_b64 exec, 1
global_atomic_add v6, v4, v5, s[54:55] offset:64 sc0 sc1
s_mov_b64 exec, -1
""")
ln(True, cfg.d0)
a(f"""v_readfirstlane_b32 s70, v6
s_cmp_lg_u32 s70, 255
s_cbranch_scc1 L_pro_arr
s_mov_b64 exec, 1
global_store_dword v4, v5, s[54:55] offset:128 sc1
s_mov_b64 exec, -1
L_pro_arr:
s_cmp_ge_u32 s5, 9
s_cbranch_scc1 L_pro_s3
""")
for b in range(2):
    a(f"s_mov_b32 s63, 1\ns_mov_b32 s64, {LXB + b*2304}\ns_mov_b32 s62, {D_A(b)}")
    call("SUB_CH2")
    if b == 0: a("s_barrier")
def load_wo():
    a(f"""
    s_mov_b32 s20, s40
    s_mov_b32 s21, s41
    s_mov_b32 s22, {4096*1152}
    v_lshrrev_b32 v24, 3, v0
    v_mul_u32_u24 v24, 1152, v24
    v_and_b32 v25, 7, v0
    v_lshlrev_b32 v25, 4, v25
    v_bfe_u32 v26, v0, 4, 1
    v_lshlrev_b32 v26, 5, v26
    v_xor_b32 v25, v25, v26
    v_xor_b32 v26, 64, v25
    v_add_u32 v25, v25, v24
    v_add_u32 v26, v26, v24
    s_lshl_b32 s70, s4, 2
    s_add_u32 s70, s70, s3
    s_mul_i32 s70, s70, {64*1152}
    s_lshl_b32 s71, s5, 7
    s_add_u32 s70, s70, s71
    s_lshl_b32 s71, s3, 13
    s_add_u32 s71, s71, {LWO}
    """)
    for i in range(8):
        a(f"s_add_u32 m0, s71, {i*1024}\nbuffer_load_dwordx4 v{25+(i&1)}, s[20:23], s70 offen nt lds")
        if i < 7: a(f"s_add_u32 s70, s70, {8*1152}")
def load_mixer(base):
    a(f"""
    s_lshl_b32 s70, s3, 10
    v_add_u32 v24, s70, v2
    v_add_u32 v25, 4096, v24
    v_add_u32 v26, 8192, v2
    s_add_u32 s71, s70, {base}
    """)
    for j, p in enumerate((44, 46, 48)):
        a(f"""s_add_u32 m0, s71, {j*9216}
        global_load_lds_dwordx4 v24, s[{p}:{p+1}]
        s_add_u32 m0, s71, {j*9216+4096}
        global_load_lds_dwordx4 v25, s[{p}:{p+1}]
        s_mov_b32 m0, {base+j*9216+8192}
        global_load_lds_dwordx4 v26, s[{p}:{p+1}]""")
if not cfg.latew:
    load_wo(); load_mixer(LMX)
a.label("L_pro_s3")
for r in POOL[17:]:
    if cfg.stamps: a(f"s_mov_b32 s{r}, 0")
ln(False, cfg.d2)
a("v_mov_b32 v4, 0")
poll(lambda: a("global_load_dword v5, v4, s[54:55] offset:128 sc1"), lambda: a("v_cmp_eq_u32 vcc, 0, v5"), depth=cfg.d3)
a(f"""s_lshl_b32 s70, s3, 8
v_lshl_add_u32 v22, v0, 2, s70
s_mul_i32 s69, s4, 9216
s_add_u32 s70, s69, {D_A(0)}
s_add_u32 s71, s70, 4096
s_add_u32 s72, s70, 8192
s_add_u32 s73, s69, {D_A(1)}
s_add_u32 s74, s73, 4096
s_add_u32 s75, s73, 8192
v_lshrrev_b32 v24, 1, v22
v_add_u32 v24, {LQ}, v24""")
a(f"s_lshl_b32 s76, s4, 6\ns_add_u32 s76, s76, {X_A}\nv_and_b32 v25, 15, v0\nv_lshlrev_b32 v25, 2, v25")
poll(lambda: (a("buffer_load_dword v26, v25, s[16:19], s76 offen sc1"), qg_issue(4, 70), qg_issue(13, 73)), lambda: check_sentinel(range(4, 22), 23), depth=cfg.d4)
a(f"v_readfirstlane_b32 s70, v26\nv_cmp_ne_u32 vcc, s70, v26\ns_cmp_eq_u64 vcc, 0\ns_cselect_b32 s33, {cfg.xl}, 0")
qg_sum(4); qg_sum(13)
a("ds_write_b16 v24, v4\nds_write_b16 v24, v13 offset:512")
stamp("q1")
ln_until(10)
a("s_waitcnt lgkmcnt(0)\ns_barrier")

def att_params(ai, seq):
    a(f"s_mov_b32 s58, {A_O(ai)}\ns_mov_b32 s59, {A_L(ai)}\ns_mov_b32 s65, {LQ + ai*512}\ns_mov_b32 s64, {LX + (seq&1)*4224}")
def hint_addr(ai):
    a(f"s_lshl_b32 s62, s4, 7\ns_add_u32 s62, s62, {H_A(ai)+0x800}")
def att_p1(ai, seq):
    att_params(ai, seq); hint_addr(ai); a("s_mov_b64 vcc, -1"); call("SUB_ATT")
def qatt(ai, seq, loadnext):
    att_params(ai, seq); a(f"s_mov_b32 s62, {D_A(ai)}\ns_mov_b32 s63, {2 if loadnext else 0}"); call("SUB_QATT")
def ch1(inst, final, entry="SUB_CH1", aonly=False):
    b = inst & 1
    a(f"s_mov_b32 s58, {A_O(inst)}\ns_mov_b32 s59, {A_L(inst)}\ns_mov_b32 s60, {B_A(inst)}\ns_mov_b32 s64, {LXB + b*2304}")
    a(f"s_mov_b32 s63, {2 if aonly else 1 if final else 0}\ns_mov_b32 s61, {b*1152 if final else C_A(inst)}")
    call(entry)
def ch2(inst):
    b = inst & 1
    a(f"s_mov_b32 s63, 0\ns_mov_b32 s61, {C_A(inst)}\ns_mov_b32 s64, {LXB + b*2304}\ns_mov_b32 s62, {D_A(2+inst)}")
    call("SUB_CH2")

a(f"s_cmp_eq_u32 s3, 0\ns_cselect_b32 s63, 4, 0\ns_lshl_b32 s60, s4, 7\ns_add_u32 s60, s60, {H_A(2)+4}")
att_p1(0, 0)
stamp("P1b0")
a("s_add_u32 s27, s27, 0x4000000\ns_cmp_ge_u32 s5, 9\ns_cbranch_scc1 L_srole")
a(f"s_mov_b32 s42, {cfg.thr3}")
if cfg.xe3: a("s_getreg_b32 s42, hwreg(HW_REG_XCC_ID)\ns_andn2_b32 s42, 1, s42\ns_lshl_b32 s42, s42, 1")
if cfg.latew:
    load_wo(); load_mixer(LMX)
    a("s_waitcnt vmcnt(9)\ns_barrier")
ch1(0, False); ch2(0)
stamp("wq0")
a(f"s_xor_b32 s69, s33, 1")
qatt(2, 1, True)
stamp("P2b0")
if cfg.roles:
    ln_until(cfg.fa)
    ch1(2, True, aonly=True)
    a(f"""s_or_b32 s70, s5, s3
    s_cbranch_scc1 L_nf3
    s_lshl_b32 s70, s4, 7
    s_add_u32 s70, s70, {H_A(3)}
    s_mov_b64 exec, 1
    buffer_store_dword v2, v2, s[16:19], s70 offen sc1
    s_mov_b64 exec, -1
    L_nf3:""")
else:
    ch1(2, True)
stamp("fin0")
ln_until(10)
a(f"s_cmp_eq_u32 s3, 0\ns_cselect_b32 s63, 3, 0\ns_lshl_b32 s60, s4, 7\ns_add_u32 s60, s60, {H_A(2)}")
att_p1(1, 2)
stamp("P1b1")
a("s_mov_b32 s79, 1")
ch1(1, False); ch2(1)
qatt(3, 3, False)
stamp("P2b1")
a("s_mov_b32 s79, 2")
ch1(3, True)
stamp("end")
a("s_branch L_stamps" if cfg.stamps else "s_branch L_fin")
def s_reload():
    if not cfg.nogo: flagwait(2, cfg.sg, 0, cfg.n1)
    pass
    a("s_mov_b32 s82, 0")
    ln_until(8)
    load_v([t for t in range(cfg.j0) if t not in LDS_T])
    a("s_mov_b32 s29, s57")
    a("s_mov_b32 s82, 16")
    if cfg.stamps: a("s_waitcnt vmcnt(0)")
    stamp("s.rel")
a.label("L_srole")
a("s_mov_b32 s42, 0")
a(f"s_mov_b32 s69, 0")
if cfg.roles:
    a(f"s_mul_i32 s57, s3, {NS*1024}\ns_add_u32 s57, s57, {LWO}")
    if cfg.go0 >= 0: flagwait(2, cfg.sh, 4, cfg.n0)
    att_params(1, 1); call("SUB_RING")
    stamp("s.ring")
    flagwait(0, cfg.sh)
    qatt(2, 2, False)
    stamp("s.P2b0")
    if cfg.j0 < 64:
        att_params(1, 1); hint_addr(1); a("s_mov_b32 s63, 0"); call("SUB_RESUME")
        stamp("s.P1b1")
    if cfg.pf0 < 8:
        nun = 36 * (8 - cfg.pf0)
        a(f"""v_lshlrev_b32 v4, 7, v0
        s_sub_u32 s70, s5, 9
        s_lshl_b32 s70, s70, 2
        s_add_u32 s70, s70, s3
        s_mov_b32 s71, {(1 << 32) // 36 + 1}""")
        for i in range((nun + 27) // 28):
            L = a.newlabel("Lpf")
            if (i + 1) * 28 > nun: a(f"s_cmp_ge_u32 s70, {nun}\ns_cbranch_scc1 {L}")
            a(f"""s_mul_hi_u32 s72, s70, s71
            s_mul_i32 s73, s72, 36
            s_sub_u32 s73, s70, s73
            s_lshr_b32 s74, s73, 2
            s_sub_u32 s74, s74, s4
            s_and_b32 s74, s74, 15
            s_lshl_b32 s75, s4, 4
            s_add_u32 s74, s74, s75
            s_lshl_b32 s74, s74, 18
            s_and_b32 s73, s73, 3
            s_lshl_b32 s73, s73, 16
            s_add_u32 s74, s74, s73
            s_lshl_b32 s72, s72, 13
            s_add_u32 s74, s74, s72
            s_add_u32 s74, s74, {0x4000000 + cfg.pf0 * 8192}
            s_add_u32 s73, s74, 4096
            s_add_u32 s70, s70, 28""")
            for t in range(8): a(f"buffer_load_dwordx4 a[{4*t}:{4*t+3}], v2, s[12:15], s{74 if t < 4 else 73} offen offset:{(t&3)*1024}")
            a.label(L)
    if cfg.relfirst: s_reload()
    load_mixer(0)
    a(f"""s_mov_b32 s56, 0
    s_mov_b32 s70, {C_A(0)}
    v_lshlrev_b32 v13, 2, v0
    v_add_u32 v14, {LXB}, v2
    s_mul_i32 s7, s4, 7
    s_add_u32 s7, s7, s5
    s_sub_u32 s7, s7, 9""")
    poll(lambda: a("""buffer_load_dwordx4 v[4:7], v2, s[16:19], s70 offen sc1
    buffer_load_dwordx4 v[8:11], v2, s[16:19], s70 offen offset:1024 sc1
    buffer_load_dword v12, v13, s[16:19], s70 offen offset:2048 sc1"""), lambda: check_sentinel(range(4, 13), 15))
    a(f"""v_add_u32 v13, {LXB}, v13
    ds_write_b128 v14, v[4:7]
    ds_write_b128 v14, v[8:11] offset:1024
    ds_write_b32 v13, v12 offset:2048""")
    flagwait(3, cfg.sg)
    ch1(2, True, entry="SUB_CH1B")
    if not cfg.late2:
        a("s_add_u32 s7, s7, 112\ns_cmp_ge_u32 s7, 144\ns_cbranch_scc1 L_s_nf")
        call("SUB_CH1B")
        a.label("L_s_nf")
    stamp("s.fin0")
    if not cfg.relfirst: s_reload()
else:
    flagwait(0, cfg.sh)
    qatt(2, 1, True)
    ln_until(10)
    a("s_mov_b32 s63, 0")
    att_p1(1, 2)
    stamp("s.P1b1")
flagwait(1, cfg.sh)
qatt(3, 2 if (cfg.roles and cfg.j0 < 64) else 3, False)
stamp("s.end")
if cfg.roles and cfg.late2:
    a("s_add_u32 s7, s7, 112\ns_cmp_ge_u32 s7, 144\ns_cbranch_scc1 L_s_nf")
    ch1(2, True, entry="SUB_CH1B")
    stamp("s.fin2")
    a.label("L_s_nf")
if cfg.stamps: a("s_branch L_stamps")
a.label("L_fin")
a("s_waitcnt vmcnt(0)")
a.label("L_end")
a("s_endpgm")

def att_pre(zero=True):
    a(f"""
    v_bfe_u32 v15, v0, 1, 1
    v_lshlrev_b32 v12, 8, v15
    v_lshrrev_b32 v13, 4, v0
    v_lshl_add_u32 v12, v13, 5, v12
    v_and_b32 v14, 1, v0
    v_lshl_add_u32 v12, v14, 4, v12
    v_add_u32 v12, s65, v12
    v_bfe_u32 v15, v0, 4, 1
    v_lshlrev_b32 v47, 9, v15
    v_and_b32 v15, 15, v0
    v_lshl_add_u32 v47, v15, 5, v47
    v_lshrrev_b32 v15, 5, v0
    v_lshl_add_u32 v47, v15, 4, v47
    s_lshl_b32 s70, s3, 10
    s_add_u32 s70, s70, s64
    v_add_u32 v47, s70, v47
    """)
    if zero: zero_a()
def zero_a():
    for i in range(12): a(f"v_mov_b32 v{34+i}, 0")
def Dset(i): return 12 + 4 * (i % 3)
def adds(i):
    G, t = i >> 2, i & 3; d = Dset(i)
    a(f"v_add_f32_dpp v32, v{d+1}, v{d} quad_perm:[1,0,3,2] row_mask:{1<<t:#x} bank_mask:0xf")
    a(f"v_add_f32_dpp v33, v{d+2}, v{d+3} quad_perm:[1,0,3,2] row_mask:{1<<t:#x} bank_mask:0xf")
    if t == 3:
        a(f"v_cndmask_b32 v{24+G}, v32, v33, s[24:25]")
        if G == 1: a("v_max_f32 v46, v24, v25")
        elif G % 2 == 1: a(f"v_max3_f32 v46, v46, v{23+G}, v{24+G}")
def kmm(kt, src):
    d = Dset(kt >> 1)
    if kt & 1: a(f"v_mfma_f32_16x16x32_bf16 {R4(d)}, v[8:11], {src}, {R4(d)}")
    else: a(f"v_mfma_f32_16x16x32_bf16 {R4(d)}, v[4:7], {src}, 0")
def softmax():
    for ctl in ("quad_perm:[2,3,0,1]", "row_ror:4", "row_ror:8"):
        a(f"v_max_f32_dpp v46, v46, v46 {ctl} {DPPALL}")
    rows_reduce("v_max_f32", 46, 32)
    a("v_mul_f32 v32, s26, v46")
    for G in range(8): a(f"v_fma_f32 v{24+G}, v{24+G}, s26, -v32")
    for G in range(8): a(f"v_exp_f32 v{24+G}, v{24+G}")
    a("v_pk_add_f32 v[4:5], v[24:25], v[26:27]\nv_pk_add_f32 v[6:7], v[28:29], v[30:31]\nv_pk_add_f32 v[4:5], v[4:5], v[6:7]\nv_add_f32 v20, v4, v5")
    lctl = ["quad_perm:[2,3,0,1]", "row_ror:8", "row_ror:4"]
    for G in range(8):
        t = 21 + (G & 1)
        a(f"v_mov_b32_dpp v{t}, v{24+G} quad_perm:[1,0,3,2] {DPPALL}")
        if G in (1, 3, 5): a(f"v_add_f32_dpp v20, v20, v20 {lctl[G//2]} {DPPALL}")
        a(f"v_cvt_pk_bf16_f32 v{24+G}, v{24+G}, v{t}")
    rows_reduce("v_add_f32", 20, 21)
    a("v_and_b32 v32, 3, v0\nv_mul_u32_u24 v32, 0x5555, v32")
def build(p, par):
    G, pi = p >> 2, p & 3
    bs = 34 + 4 * par
    for k in range(4):
        a(f"v_and_b32_dpp v{bs+k}, v{24+G}, v3 row_newbcast:{4*pi + 2*(k>>1)} row_mask:0xf bank_mask:{0xc if k & 1 else 0x3:#x}")
def vmm(src, par):
    a(f"v_smfmac_f32_16x16x64_bf16 v[42:45], {R4(34+4*par)}, {src}, v32")

a.hist = []
outofline = []
def lnsite():
    Lo = a.newlabel("Lo"); Lb = a.newlabel("Lb")
    a(f"s_cbranch_vccnz {Lo}"); a.label(Lb)
    outofline.append((Lo, Lb, lambda: a("s_call_b64 s[80:81], SUB_LN")))
def lnif():
    L = a.newlabel("Lki")
    a(f"s_cmp_ge_u32 s82, 16\ns_cbranch_scc1 {L}\ns_call_b64 s[80:81], SUB_LN"); a.label(L)
sites = list(range(0, 60, 4)) + [60, 62]
def lbuf(p): return 48 if p == 12 else (4 if (p >> 1) % 2 == 0 else 12)
def vphase(p1):
    done_sites = []; nread = [0]; readpos = {}
    def arrived(t):
        if not p1: return
        for i in sites:
            if i > t or i in done_sites: continue
            done_sites.append(i)
            nxt = [x for x in sites if x > i]
            last = (nxt[0] if nxt else 64) - 1
            g = min(7, (i >> 3) + 2)
            if i % 8 == 0 and (i >> 3) + 2 <= 7:
                L = a.newlabel("Lsk")
                a(f"s_cmp_gt_u32 s82, {8+g}\ns_cbranch_scc1 {L}\ns_call_b64 s[80:81], SUB_LN"); a.label(L)
            a(f"s_waitcnt vmcnt({8*g + 7 - last})")
            for gi, code in ((-1 if cfg.nogo else cfg.go, 3), (cfg.go0, 4)):
                if i == gi:
                    L = a.newlabel("Lsg")
                    a(f"s_cmp_lg_u32 s63, {code}\ns_cbranch_scc1 {L}\ns_mov_b64 exec, 1\nbuffer_atomic_add v3, v2, s[16:19], s60 offen sc1\ns_mov_b64 exec, -1"); a.label(L)
    def fetch(p):
        if p > 12 or p & 1: return
        arrived(2*p + 1)
        b = lbuf(p)
        a(f"ds_read_b128 {R4(b)}, v33 offset:{p*1024}"); nread[0] += 1
        if p < 12: a(f"ds_read_b128 {R4(b+4)}, v33 offset:{p*1024+1024}"); nread[0] += 1
        readpos[p] = nread[0]
    a("v_add_u32 v33, s29, v2")
    fetch(0); fetch(2); build(0, 0)
    for p in range(32):
        if p1 and p == cfg.j0 // 2: a.label("L_att_resume")
        if p + 1 < 32: build(p + 1, (p + 1) & 1)
        arrived(2*p + 1)
        if p in readpos:
            a(f"s_waitcnt lgkmcnt({nread[0] - readpos[p]})"); src = R8(lbuf(p))
        else: src = R8(vreg(2*p))
        vmm(src, p & 1)
        fetch(p + 4)
        if not p1 and cfg.vsites and p in (1, 9, 17, 25): lnsite()

a.label("SUB_ATT")
att_pre()
a("ds_read_b128 v[4:7], v12\nds_read_b128 v[8:11], v12 offset:128\ns_waitcnt vmcnt(16) lgkmcnt(0)")
for i in range(32):
    kmm(2*i, khome(2*i)); kmm(2*i+1, khome(2*i+1))
    if i >= 2: adds(i - 2)
    if cfg.ksites and i in (0, 15): lnif()
adds(30); adds(31)
if cfg.ksites: lnif()
softmax()
vphase(True)
a("s_branch L_att_epi")

a.hist = []
a.label("SUB_QATT")
att_pre(zero=False)
QR = [24, 25, 26, 27, 28, 29, 30, 31, 46]
a(f"""v_bfe_u32 v32, v0, 1, 1
v_lshlrev_b32 v32, 8, v32
v_lshl_add_u32 v32, v13, 6, v32
v_lshl_add_u32 v32, v14, 4, v32
v_and_b32 v15, 4, v0
v_add3_u32 v32, v32, v15, s65
v_mul_u32_u24 v33, 0x2aaa, v15
v_add_u32 v33, 0x4444, v33
v_lshrrev_b32 v15, 1, v15
v_add_u32 v33, v33, v15""")
ZR = list(range(4, 21)) + [48, 49, 50, 51] + list(range(34, 46))
for r in ZR[:cfg.zpre]: a(f"v_mov_b32 v{r}, 0")
a(f"""s_lshl_b32 s70, s3, 8
v_lshl_add_u32 v22, v0, 2, s70
s_mul_i32 s70, s4, 9216
s_add_u32 s70, s70, s62
s_add_u32 s71, s70, 4096
s_add_u32 s72, s70, 8192
v_lshrrev_b32 v21, 1, v22
v_add_u32 v21, s65, v21
s_mov_b32 s74, 0x00ff00ff
s_mov_b32 s75, 0x00ff00ff
s_cmp_eq_u32 s69, 0
s_cbranch_scc1 L_qatt_ns
s_sleep {max(1, cfg.s0['D'])}
L_qatt_ns:""")
def qiss():
    for i in range(9): a(f"buffer_load_dword v{QR[i]}, v22, s[16:19], s{70 + (i>>2)} offen offset:{(i&3)*1024} sc1")
    for r in ZR[cfg.zpre:]: a(f"v_mov_b32 v{r}, 0")
poll(qiss, lambda: check_sentinel(QR, 23))
for (x, y) in ((0, 1), (2, 3), (4, 5), (6, 7), (0, 2), (4, 6), (0, 8), (0, 4)): a(f"v_add_f32 v{QR[x]}, v{QR[x]}, v{QR[y]}")
a("""v_cvt_pk_bf16_f32 v24, v24, v24
ds_write_b16 v21, v24
v_mov_b32 v21, 0
v_mov_b32 v22, 0
v_mov_b32 v23, 0
s_cmp_eq_u32 s63, 2
s_cselect_b32 s82, 0, s82
s_cselect_b64 vcc, -1, 0
s_mov_b64 exec, s[74:75]
s_waitcnt lgkmcnt(0)
s_barrier""")
stamp("q2b1", 1)
a("""ds_read2_b32 v[4:5], v32 offset0:0 offset1:2
ds_read2_b32 v[6:7], v32 offset0:8 offset1:10
s_not_b64 exec, exec
ds_read2_b32 v[8:9], v32 offset0:0 offset1:2
ds_read2_b32 v[10:11], v32 offset0:8 offset1:10
s_mov_b64 exec, -1
s_waitcnt lgkmcnt(0)""")
DA = (12, 20); DB = (16, 48)
def ksm(G, t):
    d = (DA, DB)[t & 1][G & 1]
    a(f"v_smfmac_f32_16x16x64_bf16 {R4(d)}, {R4(4 + 4*(t>>1))}, a[{32*G+8*t}:{32*G+8*t+7}], v33")
def xy(d):
    a(f"v_add_f32_dpp v32, v{d+1}, v{d} quad_perm:[1,0,3,2] {DPPALL}\nv_add_f32_dpp v46, v{d+2}, v{d+3} quad_perm:[1,0,3,2] {DPPALL}")
for G in range(10):
    if G < 8: ksm(G, 0); ksm(G, 1)
    if G >= 2: a(f"v_permlane16_swap_b32 v{22+G}, v32\nv_add_f32 v{22+G}, v{22+G}, v32")
    if 1 <= G <= 8: xy(DA[(G-1) & 1])
    if G < 8: ksm(G, 2)
    if 1 <= G <= 8: a(f"v_cndmask_b32 v{23+G}, v32, v46, s[24:25]"); xy(DB[(G-1) & 1])
    if G < 8: ksm(G, 3)
    if 1 <= G <= 8: a("v_cndmask_b32 v32, v32, v46, s[24:25]")
    if G in (0, 1): lnsite()
a("v_pk_add_f32 v[30:31], v[30:31], v[28:29] neg_lo:[0,1] neg_hi:[0,1]\nv_pk_add_f32 v[28:29], v[28:29], v[26:27] neg_lo:[0,1] neg_hi:[0,1]\nv_pk_add_f32 v[26:27], v[26:27], v[24:25] neg_lo:[0,1] neg_hi:[0,1]")
a("v_max3_f32 v46, v24, v25, v30\nv_max3_f32 v32, v31, v28, v29\nv_max3_f32 v46, v46, v26, v27\nv_max_f32 v46, v46, v32")
softmax()
vphase(False)
a.label("L_att_epi")
a(f"""
s_nop 3
v_and_b32 v32, 1, v0
v_lshlrev_b32 v32, 5, v32
s_lshl_b32 s70, s3, 2
s_add_u32 s70, s70, s64
s_add_u32 s70, s70, 4096
v_add_u32 v32, s70, v32
ds_write2_b32 v32, v46, v20 offset0:0 offset1:4
v_add_u32 v32, s64, v2
v_lshrrev_b32 v33, 5, v0
v_lshlrev_b32 v34, 6, v33
v_lshlrev_b32 v33, 5, v33
v_add_u32 v33, s64, v33
ds_write_b128 v47, v[42:45]
s_lshl_b32 s70, s2, 10
s_add_u32 s70, s70, s58
s_lshl_b32 s71, s4, 7
s_add_u32 s71, s71, s59
s_lshl_b32 s72, s6, 2
s_add_u32 s71, s71, s72
s_cmp_lg_u32 s3, 0
s_waitcnt lgkmcnt(0)
s_barrier
s_cbranch_scc1 L_att_ret
ds_read_b128 v[20:23], v33 offset:4096
ds_read_b128 v[24:27], v33 offset:4112
ds_read_b128 v[4:7], v32
ds_read_b128 v[8:11], v32 offset:1024
ds_read_b128 v[12:15], v32 offset:2048
ds_read_b128 v[16:19], v32 offset:3072
s_waitcnt lgkmcnt(4)
v_max3_f32 v28, v20, v21, v22
v_max_f32 v28, v28, v23
v_mul_f32 v28, s26, v28
""")
for w in range(4): a(f"v_fma_f32 v{20+w}, v{20+w}, s26, -v28")
for w in range(4): a(f"v_exp_f32 v{20+w}, v{20+w}")
a("""v_mul_f32 v30, v20, v24
v_fmac_f32 v30, v21, v25
v_fmac_f32 v30, v22, v26
v_fmac_f32 v30, v23, v27
s_waitcnt lgkmcnt(0)
v_pk_mul_f32 v[4:5], v[4:5], v[20:21] op_sel:[0,0] op_sel_hi:[1,0]
v_log_f32 v29, v30
v_rcp_f32 v30, v30
v_pk_mul_f32 v[6:7], v[6:7], v[20:21] op_sel:[0,0] op_sel_hi:[1,0]
v_pk_fma_f32 v[4:5], v[8:9], v[20:21], v[4:5] op_sel:[0,1,0] op_sel_hi:[1,1,1]
v_pk_fma_f32 v[6:7], v[10:11], v[20:21], v[6:7] op_sel:[0,1,0] op_sel_hi:[1,1,1]
v_pk_fma_f32 v[4:5], v[12:13], v[22:23], v[4:5] op_sel:[0,0,0] op_sel_hi:[1,0,1]
v_pk_fma_f32 v[6:7], v[14:15], v[22:23], v[6:7] op_sel:[0,0,0] op_sel_hi:[1,0,1]
v_pk_fma_f32 v[4:5], v[16:17], v[22:23], v[4:5] op_sel:[0,1,0] op_sel_hi:[1,1,1]
v_pk_fma_f32 v[6:7], v[18:19], v[22:23], v[6:7] op_sel:[0,1,0] op_sel_hi:[1,1,1]
v_pk_mul_f32 v[4:5], v[4:5], v[30:31] op_sel:[0,0] op_sel_hi:[1,0]
v_pk_mul_f32 v[6:7], v[6:7], v[30:31] op_sel:[0,0] op_sel_hi:[1,0]
v_add_f32 v29, v29, v28""")
gstore("""buffer_store_dwordx4 v[4:7], v2, s[16:19], s70 offen sc1
s_mov_b32 exec_lo, 1
s_mov_b32 exec_hi, 1
buffer_store_dword v29, v34, s[16:19], s71 offen sc1
s_mov_b64 exec, -1""")
a.label("L_att_ret")
ret()
for Lo, Lb, fn in outofline:
    a.hist = []
    a.label(Lo); fn(); a(f"s_branch {Lb}")

a.hist = []
a.label("SUB_LN")
T2 = f"s_waitcnt vmcnt({cfg.thr2})\ns_cmp_eq_u32 s42, 2\ns_cbranch_scc1 %s\n" if cfg.thr2 >= 0 else "%.0s"
if cfg.thr >= 0: a(f"s_cmp_eq_u32 s42, 0\ns_cbranch_scc1 L_ln_nt\n" + T2 % "L_ln_nt" + f"s_waitcnt vmcnt({cfg.thr})\nL_ln_nt:")
for k in range(15): a(f"s_cmp_eq_u32 s82, {k}\ns_cbranch_scc1 L_lnb{k}")
for k in [15] + list(range(15)):
    a.label(f"L_lnb{k}")
    for hlf in range(2):
        if hlf and cfg.thrm >= 0: a(f"s_cmp_eq_u32 s42, 0\ns_cbranch_scc1 L_lnm{k}\n" + T2 % f"L_lnm{k}" + f"s_waitcnt vmcnt({cfg.thrm})\nL_lnm{k}:")
        if k < 8: load_k(range(8*k+4*hlf, 8*k+4*hlf+4))
        else: load_v(range(8*(k-8)+4*hlf, 8*(k-8)+4*hlf+4))
    a("s_add_u32 s82, s82, 1\ns_setpc_b64 s[80:81]")

a.hist = []
a.label("SUB_LNW")
a(f"""s_mov_b32 s36, 0
L_lnw_i:
s_call_b64 s[80:81], SUB_LN
s_add_u32 s36, s36, 8
L_lnw_c:
s_getreg_b32 s37, hwreg(HW_REG_IB_STS)
s_and_b32 s28, s37, 15
s_lshr_b32 s37, s37, 18
s_and_b32 s37, s37, 0x30
s_or_b32 s37, s37, s28
s_cmp_le_u32 s37, s36
s_cbranch_scc1 L_lnw_r
s_cmp_ge_u32 s82, 16
s_cbranch_scc1 L_lnw_s
s_cmp_lt_u32 s37, 40
s_cbranch_scc1 L_lnw_i
L_lnw_s:
s_sleep 1
s_branch L_lnw_c
L_lnw_r:""")
for n in (8, 16, 24, 32, 40):
    a(f"s_cmp_gt_u32 s36, {n}\ns_cbranch_scc1 L_lnw_r{n}\ns_waitcnt vmcnt({n})\ns_setpc_b64 s[34:35]\nL_lnw_r{n}:")
a("s_waitcnt vmcnt(48)\ns_setpc_b64 s[34:35]")

a.hist = []
a.label("SUB_CH1")
a(f"""
v_lshrrev_b32 v21, 4, v0
v_bfe_u32 v22, v0, 2, 2
v_lshl_add_u32 v23, v21, 3, v22
v_lshlrev_b32 v23, 7, v23
v_bfe_u32 v21, v0, 3, 2
v_xor_b32 v21, s3, v21
v_lshl_add_u32 v23, v21, 5, v23
v_and_b32 v21, 3, v0
v_lshl_add_u32 v23, v21, 3, v23
v_add_u32 v23, {LWO}, v23
""")
for ks in range(7):
    for jh in range(2):
        a(f"ds_read_b64_tr_b16 {R2(24 + 4*ks + 2*jh)}, v23 offset:{(32*ks+4*jh)*128}")
a(f"""
v_lshlrev_b32 v21, 2, v0
s_lshl_b32 s70, s4, 14
s_add_u32 s70, s70, s58
s_lshl_b32 s71, s3, 8
s_add_u32 s70, s70, s71
s_add_u32 s71, s70, 4096
s_add_u32 s72, s70, 8192
s_add_u32 s73, s70, 12288
s_lshl_b32 s74, s4, 7
s_add_u32 s74, s74, s59
s_lshr_b32 s75, s3, 1
s_lshl_b32 s75, s75, 6
s_add_u32 s74, s74, s75
s_lshl_b32 s75, s3, 7
s_add_u32 s75, s75, {LO}
""")
def issA():
    a("v_and_b32 v20, 60, v21\nbuffer_load_dword v20, v20, s[16:19], s74 offen sc1")
    for s in range(16):
        a(f"buffer_load_dword v{4+s}, v21, s[16:19], s{70+(s>>2)} offen offset:{(s&3)*1024} sc1")
TGT = 16 * 0xffff - 1
if False:
    a(f"""s_cmp_lg_u32 s63, 0
    s_cbranch_scc1 L_ch1_sa
    s_lshl_b32 s76, s4, 7
    s_add_u32 s76, s76, s61
    s_add_u32 s76, s76, {0x8008}
    v_mov_b32 v4, 0
    s_mov_b32 s68, 0
    L_ch1_wa:
    buffer_load_dword v5, v4, s[16:19], s76 offen sc1
    s_waitcnt vmcnt(0)
    v_cmp_gt_i32 vcc, {TGT}, v5
    s_cbranch_vccz L_ch1_pa
    s_sleep {cfg.sh}
    s_add_u32 s68, s68, 1
    s_cmp_lt_u32 s68, {cfg.spin}
    s_cbranch_scc1 L_ch1_wa
    s_branch L_ch1_pa
    L_ch1_sa:
    s_sleep {cfg.s0['A']}
    L_ch1_pa:""")
    poll(issA, lambda: check_sentinel(range(4, 21), 22), s0=cfg.sA2)
else:
    if cfg.s0["M"] < cfg.s0["A"]:
        a(f"s_cmp_eq_u32 s63, 0\ns_cbranch_scc1 L_ch1_ms\ns_sleep {cfg.s0['A'] - cfg.s0['M']}\nL_ch1_ms:")
        poll(issA, lambda: check_sentinel(range(4, 21), 22), s0=cfg.s0["M"])
    else:
        a(f"s_cmp_lg_u32 s33, 0\ns_cbranch_scc1 L_ch1_fs\ns_sleep {cfg.s0['A'] - cfg.fA}\nL_ch1_fs:")
        poll(issA, lambda: check_sentinel(range(4, 21), 22), s0=cfg.fA)
stamp("c.A", 1); stamp("f.A", 2)
a(f"v_max_f32_dpp v22, v20, v20 {CTL4[0]} {DPPALL}")
for c in CTL4[1:]: a(f"v_max_f32_dpp v22, v22, v22 {c} {DPPALL}")
a("v_sub_f32 v20, v20, v22\nv_exp_f32 v20, v20")
a(f"v_mul_f32_dpp v21, v20, v4 row_newbcast:0 {DPPALL}\nv_add_f32_dpp v22, v20, v20 {CTL4[0]} {DPPALL}")
for s in range(1, 16):
    a(f"v_fmac_f32_dpp v21, v20, v{4+s} row_newbcast:{s} {DPPALL}")
    if s in (2, 4, 6): a(f"v_add_f32_dpp v22, v22, v22 {CTL4[s//2]} {DPPALL}")
    if s == 4: a(f"ds_read_b64_tr_b16 v[4:5], v23 offset:{(32*7)*128}\nds_read_b64_tr_b16 v[6:7], v23 offset:{(32*7+4)*128}")
    if s == 8: a("v_rcp_f32 v22, v22")
    if s == 9: a("v_lshl_add_u32 v23, v0, 1, s75")
a(f"""
v_mul_f32 v21, v21, v22
v_cvt_pk_bf16_f32 v21, v21, v21
ds_write_b16 v23, v21
v_and_b32 v0, 48, v0
v_add_u32 v0, {LO}, v0
s_lshl_b32 s70, s7, 8
s_add_u32 s70, s70, s60
s_lshl_b32 s71, s3, 6
s_add_u32 s74, s70, s71
s_mul_i32 s70, s3, 9216
s_add_u32 s70, s70, s60
s_add_u32 s71, s70, 2304
s_add_u32 s72, s70, 4608
s_add_u32 s73, s70, 6912
s_waitcnt lgkmcnt(0)
s_barrier
""")
order = [7, 0, 1, 2, 3, 4, 5, 6]
def frag(ks): return "v[4:7]" if ks == 7 else R4(24 + 4*ks)
bufs = ["v[8:11]", "v[12:15]", "v[16:19]"]
for n in range(3): a(f"ds_read_b128 {bufs[n]}, v0 offset:{order[n]*64}")
for n, ks in enumerate(order):
    a(f"s_waitcnt lgkmcnt({len(bufs) - 1 - n})")
    a(f"v_mfma_f32_16x16x32_bf16 v[20:23], {bufs[n]}, {frag(ks)}, {'0' if n == 0 else 'v[20:23]'}")
    for fr in (frag(ks), bufs[n]):
        if len(bufs) < 8:
            a(f"ds_read_b128 {fr}, v0 offset:{order[len(bufs)]*64}"); bufs.append(fr)
a(f"""
v_lshrrev_b32 v0, 4, v2
v_lshlrev_b32 v49, 2, v0
s_mul_i32 s75, s3, 2304
s_add_u32 s75, s75, {LX}
v_add_u32 v51, s75, v2
s_mov_b64 exec, 0xffff
buffer_store_dword v20, v49, s[16:19], s74 offen sc1
s_mov_b64 exec, -1
""")
a("s_cmp_eq_u32 s63, 2\ns_cbranch_scc1 L_ch1_ret")
a.label("L_ch1_b")
ln(False)
def issB():
    for r in range(4):
        a(f"buffer_load_dwordx4 {R4(4+8*r)}, v2, s[16:19], s{70+r} offen sc1")
        a(f"buffer_load_dwordx4 {R4(8+8*r)}, v2, s[16:19], s{70+r} offen offset:1024 sc1")
        a(f"buffer_load_dword v{36+r}, v49, s[16:19], s{70+r} offen offset:2048 sc1")
def chkB():
    for i in range(4): a(f"v_pk_add_f32 {R2(40+2*i)}, {R2(4+2*i)}, {R2(12+2*i)}")
    a("v_add_f32 v48, v36, v37")
    for r in (2, 3):
        for i in range(4): a(f"v_pk_add_f32 {R2(40+2*i)}, {R2(40+2*i)}, {R2(4+8*r+2*i)}")
        a(f"v_add_f32 v48, v48, v{36+r}")
    a("v_add_u32 v50, s75, v49\nds_write_b128 v51, v[40:43]\nds_write_b128 v51, v[44:47] offset:1024\nds_write_b32 v50, v48 offset:2048")
    check_sentinel(range(4, 40), 50)
if cfg.hint >= 0:
    a(f"""s_cmp_lg_u32 s63, 0
    s_cbranch_scc1 L_ch1_sb
    s_add_u32 s76, s61, {0x8800}
    v_and_b32 v4, 15, v0
    v_lshlrev_b32 v4, 7, v4
    buffer_load_dword v5, v4, s[16:19], s76 offen sc1
    s_waitcnt vmcnt(0)
    v_cmp_gt_i32 vcc, {TGT}, v5
    s_cbranch_vccz L_ch1_pb
    s_mov_b32 s68, 0
    L_ch1_wb:
    s_sleep {cfg.sh}
    buffer_load_dword v5, v4, s[16:19], s76 offen sc1
    s_waitcnt vmcnt(0)
    v_cmp_gt_i32 vcc, {TGT}, v5
    s_cbranch_vccz L_ch1_wb2
    s_add_u32 s68, s68, 1
    s_cmp_lt_u32 s68, {cfg.spin}
    s_cbranch_scc1 L_ch1_wb
    L_ch1_wb2:
    s_sleep {cfg.sB2}
    s_branch L_ch1_pb
    L_ch1_sb:
    s_sleep {cfg.s0['B']}
    L_ch1_pb:""")
    poll(issB, chkB)
else:
    if cfg.s0["N"] < cfg.s0["B"]:
        a(f"s_cmp_eq_u32 s63, 0\ns_cbranch_scc1 L_ch1_ns\ns_sleep {cfg.s0['B'] - cfg.s0['N']}\nL_ch1_ns:")
    poll(issB, chkB, s0=min(cfg.s0["B"], cfg.s0["N"]))
stamp("c.B", 1); stamp("f.B", 2)
a(f"""
v_add_u32 v14, s64, v2
v_add_u32 v15, s64, v49
ds_read_b128 v[4:7], v14
ds_read_b128 v[8:11], v14 offset:1024
ds_read_b32 v12, v15 offset:2048
v_add_u32 v14, {LX}, v2
v_add_u32 v15, {LX+2048}, v49
s_waitcnt lgkmcnt(3)
s_barrier
""")
for r in range(4):
    a(f"ds_read_b128 {R4(16+8*r)}, v14 offset:{r*2304}\nds_read_b128 {R4(20+8*r)}, v14 offset:{r*2304+1024}")
    if r == 0: a("ds_read2st64_b32 v[48:49], v15 offset0:0 offset1:9\nds_read2st64_b32 v[50:51], v15 offset0:18 offset1:27")
a(f"""
v_lshlrev_b32 v13, 3, v0
v_add_u32 v13, {LLN}, v13
v_lshlrev_b32 v14, 1, v0
v_add_u32 v14, {LLN+1024}, v14
v_and_b32 v15, 3, v0
s_lshl_b32 s70, s7, 3
s_add_u32 s70, s70, {LLN}
v_lshl_add_u32 v15, v15, 1, s70
s_lshl_b32 s70, s3, 8
s_add_u32 s70, s70, s56
""")
for r in range(4):
    a(f"s_waitcnt lgkmcnt({6 - 2*r})")
    for i in range(4): a(f"v_pk_add_f32 {R2(4+2*i)}, {R2(4+2*i)}, {R2(16+8*r+2*i)}")
    a(f"v_add_f32 v12, v12, v{48+r}")
a("""v_cvt_pk_bf16_f32 v16, v4, v5
v_cvt_pk_bf16_f32 v17, v6, v7
v_cvt_pk_bf16_f32 v18, v8, v9
v_cvt_pk_bf16_f32 v19, v10, v11
v_cvt_pk_bf16_f32 v20, v12, 0
ds_write_b64 v13, v[16:17]
ds_write_b64 v13, v[18:19] offset:512
ds_write_b16 v14, v20
ds_read_u16 v27, v15
v_lshl_add_u32 v26, v0, 2, s70""")
fill = [f"ds_read2st64_b32 {R2(28+2*i)}, v26 offset0:{4*i} offset1:{36+4*i}" for i in range(8)]
fill += [f"ds_read2st64_b32 {R2(44+2*i)}, v26 offset0:{72+8*i} offset1:{76+8*i}" for i in range(4)]
fill = [fill[0], fill[8]] + fill[1:8] + fill[9:]
stats([16, 17, 18, 19, 20], 4, 5, fill)
ln_scalars(4, 5, 6, 7, 8)
a("s_waitcnt lgkmcnt(12)\nv_lshlrev_b32 v27, 16, v27\nv_sub_f32 v9, v27, v6\nv_sub_f32 v4, v4, v6\nv_mul_f32 v5, v5, v7\nv_mul_f32 v4, v4, v7\nv_mul_f32 v5, v5, v7")
rbf(9, 10); a("v_mul_f32 v9, v9, v7"); rbf(9, 10)
ln_scalars(4, 5, 6, 7, 8)
a("v_sub_f32 v9, v9, v6"); rbf(9, 10); a("v_mul_f32 v9, v9, v7"); rbf(9, 10)
a(f"v_mul_f32 v9, {f32(GS)}, v9\nv_mov_b32 v25, v26")
for e in range(4): a(f"v_readlane_b32 s{70+2*e}, v9, {60+e}")
ln(False)
a(f"v_mov_b32 v26, {f32(GA)}\ns_mov_b32 s66, {f32(GS)}\ns_waitcnt lgkmcnt(0)")
for i in range(9):
    w1, b1, w2 = (28+2*i, 29+2*i, 44+i) if i < 8 else (28, 29, 44)
    if i == 8: a("s_waitcnt lgkmcnt(0)")
    for j, r in enumerate((w1, b1, w2)):
        a(f"v_lshlrev_b32 v{12+2*j}, 16, v{r}\nv_and_b32 v{13+2*j}, 0xffff0000, v{r}")
    a("v_pk_mul_f32 v[14:15], v[14:15], s[66:67] op_sel_hi:[1,0]")
    if i == 0: a("ds_read2st64_b32 v[28:29], v25 offset0:32 offset1:68\nds_read_b32 v44, v25 offset:26624")
    if cfg.pfc and i == cfg.pfi:
        a(f"s_cmp_eq_u32 s60, {B_A(0)}\ns_cbranch_scc1 L_mx_pf\nL_mx_pfb:")
    for e0 in (0, 2):
        U = (18, 22); T = (20, 24); E = (e0, e0 + 1)
        for k in range(2): a(f"v_pk_fma_f32 {R2(U[k])}, v[12:13], s[{70+2*E[k]}:{71+2*E[k]}], v[14:15] op_sel_hi:[1,0,1]")
        for k in range(2): a(f"v_pk_fma_f32 {R2(T[k])}, {R2(U[k])}, {R2(U[k])}, v[26:27] op_sel_hi:[1,1,0]")
        for k in range(2): a(f"v_pk_mul_f32 {R2(T[k])}, {R2(U[k])}, {R2(T[k])}")
        for k in range(2): a(f"v_exp_f32 v{T[k]}, -v{T[k]}\nv_exp_f32 v{T[k]+1}, -v{T[k]+1}")
        for k in range(2): a(f"v_pk_mul_f32 {R2(U[k])}, {R2(U[k])}, v[16:17]")
        for k in range(2): a(f"v_pk_add_f32 {R2(T[k])}, {R2(T[k])}, 1.0 op_sel_hi:[1,0]")
        for k in range(2): a(f"v_rcp_f32 v{T[k]}, v{T[k]}\nv_rcp_f32 v{T[k]+1}, v{T[k]+1}")
        for k in range(2):
            acc = R2(4 + 2*E[k])
            a(f"v_pk_mul_f32 {acc}, {R2(U[k])}, {R2(T[k])}" if i == 0 else f"v_pk_fma_f32 {acc}, {R2(U[k])}, {R2(T[k])}, {acc}")
stamp("c.mix", 1)
for e in range(4): a(f"v_add_f32 v{4+2*e}, v{4+2*e}, v{5+2*e}")
if cfg.pfc: a("s_waitcnt vmcnt(0)")
a(f"""v_lshrrev_b32 v12, 4, v0
v_lshlrev_b32 v12, 2, v12
s_lshl_b32 s66, s3, 4
s_add_u32 s66, s66, {LRED}
v_add_u32 v12, s66, v12""")
row16_reduce("v_add_f32", [4, 6, 8, 10])
a(f"""
ds_write2_b32 v12, v4, v6 offset0:0 offset1:16
ds_write2_b32 v12, v8, v10 offset0:32 offset1:48
v_and_b32 v13, 3, v0
v_lshlrev_b32 v12, 6, v13
v_add_u32 v12, {LRED}, v12
s_mov_b32 s20, s52
s_mov_b32 s21, s53
s_mov_b32 s22, 2304
s_lshl_b32 s66, s7, 4
s_lshr_b32 s66, s66, s63
s_add_u32 s66, s66, s61
v_lshlrev_b32 v13, 2, v13
v_lshrrev_b32 v13, s63, v13
s_cmp_lg_u32 s3, 0
s_waitcnt lgkmcnt(0)
s_barrier
s_cbranch_scc1 L_ch1_ret
ds_read_b128 v[16:19], v12
ds_read_b128 v[20:23], v12 offset:16
ds_read_b128 v[28:31], v12 offset:32
ds_read_b128 v[32:35], v12 offset:48
s_cmp_eq_u32 s63, 1
s_mov_b64 exec, 15
s_waitcnt lgkmcnt(2)
v_pk_add_f32 v[16:17], v[16:17], v[18:19]
v_pk_add_f32 v[20:21], v[20:21], v[22:23]
s_waitcnt lgkmcnt(0)
v_pk_add_f32 v[28:29], v[28:29], v[30:31]
v_pk_add_f32 v[32:33], v[32:33], v[34:35]
v_pk_add_f32 v[16:17], v[16:17], v[20:21]
v_pk_add_f32 v[28:29], v[28:29], v[32:33]
v_pk_add_f32 v[16:17], v[16:17], v[28:29]
v_add_f32 v16, v16, v17
v_mul_f32 v16, {f32(1.0/GS)}, v16
""")
rbf(16, 17); a("v_add_f32 v16, s78, v16"); rbf(16, 17); a("v_add_f32 v16, v16, v27"); rbf(16, 17)
a(f"""
s_cbranch_scc1 L_ch1_fin
buffer_store_dword v16, v13, s[16:19], s66 offen sc1
s_branch L_ch1_done
L_ch1_fin:
buffer_store_short v17, v13, s[20:23], s66 offen
L_ch1_done:
s_mov_b64 exec, -1
L_ch1_ret:
""")
ret()

if cfg.pfc:
    a.hist = []
    a.label("L_mx_pf")
    for kt in range(cfg.pfc):
        if kt % 8 == 0: a(f"s_add_u32 s28, s27, {(kt>>3)*8192}")
        a(f"buffer_load_dwordx4 v[30:33], v1, s[8:11], s28 offen offset:{((kt>>1)&3)*512+(kt&1)*128}")
    a("s_branch L_mx_pfb")
a.hist = []
a.label("SUB_CH1B")
a(f"""s_mul_i32 s70, s3, 9216
s_add_u32 s70, s70, s60
s_add_u32 s71, s70, 2304
s_add_u32 s72, s70, 4608
s_add_u32 s73, s70, 6912
v_lshlrev_b32 v49, 2, v0
s_mul_i32 s75, s3, 2304
s_add_u32 s75, s75, {LX}
v_add_u32 v51, s75, v2
s_barrier
s_branch L_ch1_b""")

a.hist = []
a.label("SUB_CH2")
a(f"""
v_lshrrev_b32 v13, 4, v0
v_bfe_u32 v14, v0, 2, 2
v_lshl_add_u32 v15, v13, 3, v14
v_lshlrev_b32 v15, 9, v15
v_bfe_u32 v13, v0, 2, 3
s_lshl_b32 s70, s3, 2
v_xor_b32 v13, s70, v13
v_lshl_add_u32 v15, v13, 5, v15
v_and_b32 v13, 3, v0
v_lshl_add_u32 v15, v13, 3, v15
v_add_u32 v15, {LWQ}, v15
v_xor_b32 v16, 32, v15
v_xor_b32 v17, 64, v15
v_xor_b32 v18, 96, v15
""")
for cbk in range(4):
    for ks in range(2):
        for jh in range(2):
            a(f"ds_read_b64_tr_b16 {R2(20 + 8*cbk + 4*ks + 2*jh)}, v{15+cbk} offset:{(32*ks+4*jh)*512}")
a(f"""
v_lshlrev_b32 v19, 2, v0
v_add_u32 v15, s64, v2
v_add_u32 v16, s64, v19
s_lshl_b32 s72, s5, 8
s_lshl_b32 s74, s7, 10
s_add_u32 s74, s74, s62
s_lshl_b32 s71, s3, 8
s_add_u32 s74, s74, s71
s_cmp_eq_u32 s63, 1
s_cbranch_scc0 L_ch2_g
v_add_u32 v17, s72, v16
ds_read_b128 v[4:7], v15
ds_read_b128 v[8:11], v15 offset:1024
ds_read_b32 v12, v16 offset:2048
ds_read_b32 v13, v17
s_waitcnt lgkmcnt(0)
s_branch L_ch2_x
L_ch2_g:
s_add_u32 s72, s72, s61
s_lshl_b32 s73, s4, 7
s_add_u32 s73, s73, s61
s_add_u32 s73, s73, 0x8000
""")
def issC():
    a("""buffer_load_dwordx4 v[4:7], v2, s[16:19], s61 offen sc1
    buffer_load_dwordx4 v[8:11], v2, s[16:19], s61 offen offset:1024 sc1
    buffer_load_dword v12, v19, s[16:19], s61 offen offset:2048 sc1
    buffer_load_dword v13, v19, s[16:19], s72 offen sc1""")
poll(issC, lambda: check_sentinel(range(4, 14), 14), s0=cfg.s0["C"], s0w=cfg.s0["Y"])
a("""s_or_b32 s70, s5, s3
s_cbranch_scc1 L_ch2_nh
""")
gstore("s_mov_b64 exec, 1\nbuffer_store_dword v19, v19, s[16:19], s73 offen sc1\ns_mov_b64 exec, -1")
a("""L_ch2_nh:
ds_write_b128 v15, v[4:7]
ds_write_b128 v15, v[8:11] offset:1024
ds_write_b32 v16, v12 offset:2048
L_ch2_x:
v_cvt_pk_bf16_f32 v14, v4, v5
v_cvt_pk_bf16_f32 v15, v6, v7
v_cvt_pk_bf16_f32 v16, v8, v9
v_cvt_pk_bf16_f32 v17, v10, v11
v_cvt_pk_bf16_f32 v18, v12, 0""")
stats([14, 15, 16, 17, 18], 4, 5, ["v_lshlrev_b32 v9, 1, v0", f"v_add_u32 v9, {LRED}, v9", "v_and_b32 v12, 48, v0", f"v_add_u32 v12, {LRED}, v12"])
ln_scalars(4, 5, 6, 7, 8)
a("v_readlane_b32 s70, v6, 63\nv_readlane_b32 s71, v7, 63\nv_subrev_f32 v13, s70, v13")
rbf(13, 8)
a("""v_mul_f32 v13, s71, v13
v_cvt_pk_bf16_f32 v13, v13, v13
ds_write_b16 v9, v13
ds_read_b128 v[4:7], v12
ds_read_b128 v[8:11], v12 offset:64
s_waitcnt lgkmcnt(0)""")
accs = [12, 20, 28, 36]
for cbk in range(4):
    d = accs[cbk]; f = 20 + 8 * cbk
    a(f"v_mfma_f32_16x16x32_bf16 {R4(d)}, v[4:7], {R4(f)}, 0")
    a(f"v_mfma_f32_16x16x32_bf16 {R4(d)}, v[8:11], {R4(f+4)}, {R4(d)}")
for cbk in range(1, 4):
    a(f"v_mov_b32_dpp v12, v{accs[cbk]} quad_perm:[0,1,2,3] row_mask:{1<<cbk:#x} bank_mask:0xf")
gstore("buffer_store_dword v12, v19, s[16:19], s74 offen sc1")
stamp("c.wq", 1)
ret()

if cfg.roles:
    a.hist = []
    a.label("SUB_RING")
    keep = LDS_T + [25]
    vts = [t for t in range(cfg.j0) if t not in keep] + keep
    NT = 64 + len(vts)
    slot = lambda n: (n - (NT - len(keep))) % NS
    lastso = [None]
    def rload(n):
        if n >= NT: return
        if n < 64:
            so, imm, va, srd = ("k", (n >> 3) * 8192), ((n >> 1) & 3) * 512 + (n & 1) * 128, "v1", "s[8:11]"
        else:
            vt = vts[n - 64]
            so, imm, va, srd = ("v", (vt >> 2) * 4096), (vt & 3) * 1024, "v2", "s[12:15]"
        if so != lastso[0]:
            a(f"s_add_u32 s28, s27, {so[1]}"); lastso[0] = so
        a(f"s_add_u32 m0, s57, {slot(n)*1024 - imm}")
        a(f"buffer_load_dwordx4 {va}, {srd}, s28 offen offset:{imm}{'' if n < cfg.l2n else ' nt'} lds")
    for n in range(16): rload(n)
    att_pre(zero=False)
    a("ds_read_b128 v[4:7], v12\nds_read_b128 v[8:11], v12 offset:128\nv_add_u32 v48, s57, v2")
    KT = [34, 38, 42]
    for n in range(66):
        if n < 64:
            rload(n + 16)
            a(f"s_waitcnt vmcnt(16)\nds_read_b128 {R4(KT[n%3])}, v48 offset:{slot(n)*1024}")
        if n >= 2:
            kt = n - 2
            a(f"s_waitcnt lgkmcnt({min(63, n) - kt})")
            kmm(kt, R4(KT[kt % 3]))
            if kt & 1 and (kt >> 1) >= 2: adds((kt >> 1) - 2)
    adds(30); adds(31)
    softmax()
    zero_a()
    a("v_add_u32 v33, s57, v2")
    NP = len(vts) // 2
    def rfetch(m):
        if m >= NP: return
        for h in range(2):
            n = 64 + 2*m + h
            rload(n + 16)
            a(f"s_waitcnt vmcnt({min(16, NT - 1 - n)})\nds_read_b128 {R4(4 + 8*(m&1) + 4*h)}, v33 offset:{slot(n)*1024}")
    rfetch(0)
    for m in range(NP):
        build(vts[2*m] >> 1, m & 1)
        rfetch(m + 1)
        a(f"s_waitcnt lgkmcnt({2 if m + 1 < NP else 0})")
        vmm(R8(4 + 8*(m&1)), m & 1)
    if cfg.j0 == 64:
        a("s_branch L_att_epi")
    else:
        a(f"""v_mov_b32 v47, v20
        ds_write_b128 v33, v[24:27] offset:{14*1024}
        ds_write_b128 v33, v[28:31] offset:{15*1024}
        ds_write_b64 v33, v[46:47] offset:{17*1024}
        ds_write_b128 v33, v[42:45] offset:{16*1024}
        s_waitcnt lgkmcnt(0)""")
        ret()
        a.hist = []
        a.label("SUB_RESUME")
        a(f"s_mov_b32 s82, {8 + cfg.j0//8}\ns_call_b64 s[80:81], SUB_LN")
        if cfg.j0 <= 48: a("s_call_b64 s[80:81], SUB_LN")
        att_pre()
        a(f"""v_add_u32 v33, s57, v2
        ds_read_b128 v[24:27], v33 offset:{14*1024}
        ds_read_b128 v[28:31], v33 offset:{15*1024}
        ds_read_b128 v[42:45], v33 offset:{16*1024}
        ds_read_b64 v[22:23], v33 offset:{17*1024}
        v_and_b32 v32, 3, v0
        v_mul_u32_u24 v32, 0x5555, v32
        s_mov_b64 vcc, -1
        s_waitcnt lgkmcnt(0)
        v_mov_b32 v46, v22
        v_mov_b32 v20, v23""")
        build(cfg.j0 // 2, (cfg.j0 // 2) & 1)
        a.flush()
        a("s_branch L_att_resume")

for Lo, Lb, wait, depth in tramps:
    a.hist = []
    a.label(Lo)
    if wait and cfg.adapt:
        a(f"s_call_b64 s[34:35], SUB_LNW\ns_branch {Lb}")
        continue
    for d in range(1, depth + 1):
        a("s_call_b64 s[80:81], SUB_LN")
        L2 = a.newlabel("Lt2")
        if d < depth: a(f"s_cmp_lt_u32 s82, 16\ns_cbranch_scc1 {L2}")
        if wait: a(f"s_waitcnt vmcnt({8*d})")
        a(f"s_branch {Lb}")
        if d < depth: a.label(L2)
for Lo, Lb, instrs in gstores:
    a.hist = []
    a.label(Lo); a("s_nop 7"); a(instrs); a(f"s_branch {Lb}")
for Rr, L, D, sl in retries:
    a.hist = []
    a.label(Rr)
    a(f"s_sleep {sl}\ns_add_u32 s68, s68, 1\ns_cmp_lt_u32 s68, {cfg.spin}\ns_cbranch_scc1 {L}\ns_branch {D}")
if cfg.stamps:
    n = len(stamp_names)
    a.hist = []
    a.label("L_stamps")
    if cfg.dbg:
        sel = ["start", "start", "q1", "P1b0", "wq0", "s.ring", "P2b0", "s.P1b1", "s.fin0", "P1b1", "c.B", "c.wq", "s.rel", "s.end", "f.B", "end"]
        a("v_mov_b32 v6, 0")
        a(f"s_not_b32 s70, s{POOL[0]}\nv_writelane_b32 v6, s70, 0")
        for i, nm in enumerate(sel):
            if i and nm in stamp_names: a(f"v_writelane_b32 v6, s{POOL[stamp_names.index(nm)]}, {i}")
        a("v_lshrrev_b32 v4, 2, v2\ns_mov_b64 exec, 0xffff\nglobal_atomic_umax v4, v6, s[54:55] sc1\ns_branch L_fin")
    a(f"""s_lshl_b32 s70, s2, 2
    s_add_u32 s70, s70, s3
    s_mul_i32 s70, s70, {8*n}
    s_add_u32 s70, s70, {STAMP}
    v_mov_b32 v4, 0
    v_mov_b32 v7, 0
    s_mov_b64 exec, 1""")
    if cfg.hwid:
        a(f"s_getreg_b32 s71, hwreg(HW_REG_HW_ID)\ns_getreg_b32 s72, hwreg(HW_REG_XCC_ID)\ns_and_b32 s71, s71, 0xffff\ns_and_b32 s72, s72, 15\ns_lshl_b32 s72, s72, 16\ns_or_b32 s71, s71, s72\ns_add_u32 s{POOL[1]}, s{POOL[0]}, s71")
    for i in range(n):
        a(f"v_mov_b32 v6, s{POOL[i]}\nbuffer_store_dwordx2 v[6:7], v4, s[16:19], s70 offen offset:{8*i}\ns_nop 1")
    a("s_branch L_fin")
    open(sys.argv[1] + ".names", "w").write(" ".join(stamp_names))
    print("nstamps", n, file=sys.stderr)
a.label("L_code_end")
hdr = open("cdna_kernels/" + NAME + ".s.ref").read().split("; Override launch")[0]
out = hdr + f"; @launch grid=(256,1,1) block=(256,1,1) lds={LDS_TOTAL}\n"
out += """; Persistent kernel, one 4-wave workgroup per CU (generated by the author's own script).
;  - stores are write-through (sc1) unless all 16 workgroups of a kv-head group report the same XCC_ID at run time
"""
out += f""".amdgcn_target "amdgcn-amd-amdhsa--gfx950"
.text
.globl {NAME}_kernel
.p2align 8
.type {NAME}_kernel,@function
{NAME}_kernel:
""" + a.text() + f""".section .rodata,"a"
.p2align 6
.amdhsa_kernel {NAME}_kernel
  .amdhsa_next_free_vgpr 512
  .amdhsa_next_free_sgpr 102
  .amdhsa_accum_offset 256
  .amdhsa_group_segment_fixed_size 0
  .amdhsa_kernarg_size 104
  .amdhsa_user_sgpr_count 2
  .amdhsa_user_sgpr_kernarg_segment_ptr 1
  .amdhsa_system_sgpr_workgroup_id_x 1
.end_amdhsa_kernel
"""
open(sys.argv[1], "w").write(out)
print("nops added", a.nops_added, "lines", len(a.lines), file=sys.stderr)
```

```python
import sys, struct, math
sys.path.insert(0, "gen")
from asmlib import *

NAME = "interleave_layers__gqa_block_cached__mixer_token_mlp__decode"
def f32(x): return "0x%08x" % struct.unpack("<I", struct.pack("<f", x))[0]

class Cfg:
    stamps = 0
    spin = 20000
    s0 = dict(A=18, B=14, C=18, D=8, X=18, Y=18, M=18, N=14)
    s1 = 2
    sh = 2
    sg = 8
    go = 24
    roles = 1
    latew = 0
    vsites = 1
    l2n = 128
    dbg = 0
    n0 = 16
    n1 = 5
    thr = 3
    hint = -1
    rel1 = 0
    xe1 = 0
    xe3 = 0
    zpre = 0
    xl = 1
    fA = 0
    fD = 0
    thr2 = -1
    pfc = 0
    pfi = 3
    cpf = 1
    hwid = 0
    late2 = 1
    adapt = 1
    warm = 0
    relfirst = 0
    ksites = 1
    pf0 = 8
    nogo = 1
    xthr = 0
    thrm = 4
    sA2 = 0
    sB2 = 32
    aw = 0
    d0 = 2
    thrall = 0
    thr3 = 0
    go0 = 32
    j0 = 40
    fa = 3
    dw = 2
    pre = 8
    d1 = 3
    d2 = 1
    d3 = 4
    d4 = 3
cfg = Cfg()
for arg in sys.argv[2:]:
    k, v = arg.split("=")
    if k.startswith("s0"): cfg.s0[k[2]] = int(v)
    else: setattr(cfg, k, int(v))

W = 52; NL = 13; NS = 20
LV = 0; LWO = 53248; LWQ = 86016; LMX = 118784; LXB = 146432; LX = 151040; LQ = 160256; LLN = 162304; LRED = 163456
LO = LX + 8448
LDS_TOTAL = 163840
A_O = lambda i: i * 0x40000
A_L = lambda i: 0x100000 + i * 0x1000
B_A = lambda i: 0x110000 + i * 0x10000
C_A = lambda i: 0x150000 + i * 0x1000
H_A = lambda i: 0x158000 + i * 0x1000
D_A = lambda i: 0x160000 + i * 0x40000
X_A = 0x15c000
STAMP = 0x10000000
CSM = math.log2(math.e) / math.sqrt(128.0)
C1 = -2.0 * math.sqrt(2.0 / math.pi) * math.log2(math.e)
C2 = C1 * 0.044715
GS = (-C2) ** (1.0 / 3.0)
GA = -C1 / GS
DPPALL = "row_mask:0xf bank_mask:0xf"
CTL4 = ["quad_perm:[1,0,3,2]", "quad_perm:[2,3,0,1]", "row_half_mirror", "row_mirror"]

a = Asm()
POOL = list(range(83, 100)) + [32, 38, 39, 43, 50, 51]
stamp_names = []
def stamp(name, cond=None):
    if not cfg.stamps: return
    if name in stamp_names: r = POOL[stamp_names.index(name)]
    else:
        r = POOL[len(stamp_names)]; stamp_names.append(name)
    a("s_memrealtime s[100:101]\ns_waitcnt lgkmcnt(0)")
    if cond is None: a(f"s_mov_b32 s{r}, s100")
    else: a(f"s_cmp_eq_u32 s79, {cond}\ns_cselect_b32 s{r}, s100, s{r}")

def khome(kt): return f"a[{4*kt}:{4*kt+3}]"
LDS_T = [0, 1, 4, 5, 8, 9, 12, 13, 16, 17, 20, 21, 24]
REG_T = [25] + [t for t in range(64) if t not in LDS_T and t != 25]
def vreg(vt): return W + 4 * REG_T.index(vt)
def vhome(vt):
    r = vreg(vt); return f"v[{r}:{r+3}]"
def R8(r): return f"v[{r}:{r+7}]"
def R4(r): return f"v[{r}:{r+3}]"
def R2(r): return f"v[{r}:{r+1}]"

def load_k(kts):
    lastG = None
    for kt in kts:
        G, t, half = kt >> 3, (kt >> 1) & 3, kt & 1
        if G != lastG:
            a(f"s_add_u32 s28, s27, {G*8192}"); lastG = G
        a(f"buffer_load_dwordx4 {khome(kt)}, v1, s[8:11], s28 offen offset:{t*512+half*128} nt")
def load_v(vts):
    lastQ = None
    for vt in vts:
        Q = vt >> 2
        if Q != lastQ:
            a(f"s_add_u32 s28, s27, {Q*4096}")
            if vt in LDS_T: a(f"s_add_u32 m0, s29, {LDS_T.index(vt)*1024 - (vt&3)*1024}")
            lastQ = Q
        if vt in LDS_T:
            a(f"buffer_load_dwordx4 v2, s[12:15], s28 offen offset:{(vt&3)*1024} nt lds")
        else:
            a(f"buffer_load_dwordx4 {vhome(vt)}, v2, s[12:15], s28 offen offset:{(vt&3)*1024} nt")

def rbf(v, t):
    a(f"v_cvt_pk_bf16_f32 v{t}, v{v}, v{v}\nv_lshlrev_b32 v{v}, 16, v{t}")
def rows_reduce(op, v, t):
    a(f"v_mov_b32 v{t}, v{v}\nv_permlane16_swap_b32 v{v}, v{t}\n{op} v{v}, v{v}, v{t}")
    a(f"v_mov_b32 v{t}, v{v}\nv_permlane32_swap_b32 v{v}, v{t}\n{op} v{v}, v{v}, v{t}")
def row16_reduce(op, vs):
    for ctl in CTL4:
        for v in vs: a(f"{op}_dpp v{v}, v{v}, v{v} {ctl} {DPPALL}")
def sum_to_row3(vs, fillers=()):
    fillers = list(fillers)
    steps = [f"{c} {DPPALL}" for c in CTL4] + ["row_bcast:15 row_mask:0xa bank_mask:0xf", "row_bcast:31 row_mask:0xc bank_mask:0xf"]
    per = (len(fillers) + 5) // 6
    for st in steps:
        for _ in range(per):
            if fillers: a(fillers.pop(0))
        for v in vs: a(f"v_add_f32_dpp v{v}, v{v}, v{v} {st}")
def stats(P, s1, s2, fillers=()):
    for i, p in enumerate(P):
        a(f"v_dot2_f32_bf16 v{s1}, v{p}, s67, {'0' if i == 0 else 'v%d' % s1}")
        a(f"v_dot2_f32_bf16 v{s2}, v{p}, v{p}, {'0' if i == 0 else 'v%d' % s2}")
    sum_to_row3([s1, s2], fillers)
    a(f"v_mul_f32 v{s1}, {f32(1.0/576)}, v{s1}\nv_mul_f32 v{s2}, {f32(1.0/576)}, v{s2}\nv_fma_f32 v{s2}, -v{s1}, v{s1}, v{s2}\nv_max_f32 v{s2}, 0, v{s2}")
def ln_scalars(m, q, mb, r, t):
    a(f"v_cvt_pk_bf16_f32 v{t}, v{m}, v{q}\nv_and_b32 v{r}, 0xffff0000, v{t}\nv_lshlrev_b32 v{mb}, 16, v{t}\nv_add_f32 v{r}, {f32(1e-5)}, v{r}")
    rbf(r, t); a(f"v_sqrt_f32 v{r}, v{r}"); rbf(r, t); a(f"v_rcp_f32 v{r}, v{r}")

def check_sentinel(regs, t):
    regs = list(regs)
    if len(regs) % 2 == 0:
        a(f"v_max_u32 v{t}, v{regs[0]}, v{regs[1]}"); regs = regs[2:]
    else:
        a(f"v_max3_u32 v{t}, v{regs[0]}, v{regs[1]}, v{regs[2]}"); regs = regs[3:]
    for i in range(0, len(regs), 2):
        a(f"v_max3_u32 v{t}, v{t}, v{regs[i]}, v{regs[i+1]}")
    a(f"v_cmp_eq_u32 vcc, -1, v{t}")

gstores = []
def gstore(instrs):
    Lo = a.newlabel("Lgs"); Lb = a.newlabel("Lgb")
    a(f"s_cmp_eq_u32 s33, 0\ns_cbranch_scc1 {Lo}")
    a.flush()
    a(instrs.replace(" sc1", ""))
    a.label(Lb)
    gstores.append((Lo, Lb, instrs))
tramps = []
def ln(wait, depth=None):
    Lo = a.newlabel("Lt"); Lb = a.newlabel("Ltb")
    a(f"s_cmp_lt_u32 s82, 16\ns_cbranch_scc1 {Lo}")
    if wait: a("s_waitcnt vmcnt(0)")
    a.label(Lb)
    tramps.append((Lo, Lb, wait, depth or (cfg.dw if wait else 1)))
retries = []
def poll(issue, check, s0=0, depth=None, s0w=None):
    L = a.newlabel("Lpoll"); D = a.newlabel("Lpd"); Rr = a.newlabel("Lpr")
    a("s_mov_b32 s68, 0")
    if s0 and s0w is not None and s0w < s0:
        Ls = a.newlabel("Lsl")
        a(f"s_cmp_eq_u32 s3, 0\ns_cbranch_scc1 {Ls}\ns_sleep {s0 - s0w}"); a.label(Ls)
        if s0w: a(f"s_sleep {s0w}")
    elif s0: a(f"s_sleep {s0}")
    a.label(L)
    issue(); ln(True, depth)
    check()
    a(f"s_cbranch_vccnz {Rr}")
    a.label(D)
    retries.append((Rr, L, D, cfg.s1))
def ln_until(n):
    L = a.newlabel("Lrest"); D = a.newlabel("Lrd")
    a.label(L); a(f"s_cmp_ge_u32 s82, {n}\ns_cbranch_scc1 {D}\ns_call_b64 s[80:81], SUB_LN\ns_branch {L}"); a.label(D)
def call(lbl):
    a.flush(); a(f"s_call_b64 s[30:31], {lbl}")
def ret():
    a.flush(); a("s_setpc_b64 s[30:31]")
def flagwait(inst, sl, off=0, count=0):
    a(f"s_lshl_b32 s70, s4, 7\ns_add_u32 s70, s70, {H_A(inst)+off}\nv_mov_b32 v4, 0")
    L = a.newlabel("Lh"); D = a.newlabel("Lhd")
    a(f"s_mov_b32 s68, 0\ns_cmp_lg_u32 s3, 0\ns_cbranch_scc1 {D}")
    a.label(L)
    a(f"buffer_load_dword v5, v4, s[16:19], s70 offen sc1\ns_waitcnt vmcnt(0)")
    a(f"v_cmp_gt_i32 vcc, {count*0xffff - 1}, v5" if count else "v_cmp_eq_u32 vcc, -1, v5")
    a(f"s_cbranch_vccz {D}")
    a(f"s_sleep {sl}\ns_add_u32 s68, s68, 1\ns_cmp_lt_u32 s68, {cfg.spin}\ns_cbranch_scc1 {L}")
    a.label(D)
    a("s_barrier")

def qg_issue(base, sb):
    for i in range(9):
        a(f"buffer_load_dword v{base+i}, v22, s[16:19], s{sb + (i>>2)} offen offset:{(i&3)*1024} sc1")
def qg_sum(base):
    b = base
    a(f"""v_add_f32 v{b}, v{b}, v{b+1}
    v_add_f32 v{b+2}, v{b+2}, v{b+3}
    v_add_f32 v{b+4}, v{b+4}, v{b+5}
    v_add_f32 v{b+6}, v{b+6}, v{b+7}
    v_add_f32 v{b}, v{b}, v{b+2}
    v_add_f32 v{b+4}, v{b+4}, v{b+6}
    v_add_f32 v{b}, v{b}, v{b+8}
    v_add_f32 v{b}, v{b}, v{b+4}
    v_cvt_pk_bf16_f32 v{b}, v{b}, v{b}""")

a(f"""
s_cmp_ge_u32 s2, 256
s_cbranch_scc1 L_end
s_load_dwordx16 s[32:47], s[0:1], 0
s_load_dwordx8 s[48:55], s[0:1], 64
s_load_dwordx2 s[56:57], s[0:1], 96
v_lshrrev_b32 v1, 6, v0
v_readfirstlane_b32 s3, v1
v_and_b32 v0, 63, v0
s_mov_b32 s69, s2
s_and_b32 s4, s2, 7
s_lshl_b32 s4, s4, 1
s_bfe_u32 s6, s2, 0x10003
s_or_b32 s4, s4, s6
s_lshr_b32 s6, s2, 4
s_lshl_b32 s2, s4, 4
s_or_b32 s2, s2, s6
s_add_u32 s5, s6, s4
s_and_b32 s5, s5, 15
v_lshlrev_b32 v2, 4, v0
v_bfe_u32 v1, v0, 2, 2
v_lshlrev_b32 v1, 11, v1
v_bfe_u32 v3, v0, 1, 1
v_lshl_add_u32 v1, v3, 8, v1
v_lshrrev_b32 v3, 4, v0
v_lshl_add_u32 v1, v3, 5, v1
v_and_b32 v3, 1, v0
v_lshl_add_u32 v1, v3, 4, v1
s_lshl_b32 s27, s2, 18
s_lshl_b32 s28, s3, 16
s_add_u32 s27, s27, s28
s_mov_b32 s10, 0x8000000
s_mov_b32 s11, 0x20000
s_mov_b32 s14, 0x8000000
s_mov_b32 s15, 0x20000
s_mov_b32 s18, 0x20000000
s_mov_b32 s19, 0x20000
s_mov_b32 s23, 0x20000
s_waitcnt lgkmcnt(0)
s_mov_b32 s8, s34
s_mov_b32 s9, s35
""")
load_k(range(0, cfg.pre))
a(f"""
s_mov_b32 s12, s36
s_mov_b32 s13, s37
s_mov_b32 s16, s56
s_mov_b32 s17, s57
s_mov_b32 s82, {cfg.pre//8}
s_mov_b32 s79, 0
s_cmp_ge_u32 s5, 9
s_cselect_b32 s42, 1, {cfg.thrall}
""")
if cfg.xe1: a("s_getreg_b32 s28, hwreg(HW_REG_XCC_ID)\ns_andn2_b32 s28, 1, s28\ns_lshl_b32 s28, s28, 1\ns_cmp_ge_u32 s5, 9\ns_cselect_b32 s42, 1, s28")
if cfg.xthr: a("s_getreg_b32 s42, hwreg(HW_REG_XCC_ID)\ns_andn2_b32 s42, 1, s42")
a(f"""
s_mov_b32 s24, 0xaaaaaaaa
s_mov_b32 s25, 0xaaaaaaaa
v_and_b32 v4, 4, v0
v_lshlrev_b32 v4, 2, v4
v_mov_b32 v3, 0xffff
v_lshlrev_b32 v3, v4, v3
s_mov_b32 s26, {f32(CSM)}
s_mov_b32 s67, 0x3f803f80
s_mul_i32 s29, s3, {NL*1024}
""")
for r in POOL[:17]:
    if cfg.stamps: a(f"s_mov_b32 s{r}, 0")
stamp("start")
if cfg.cpf:
    a(f"""s_cmp_ge_u32 s69, {32*cfg.cpf}
    s_cbranch_scc1 L_nocpf
    s_getpc_b64 s[70:71]
    L_cpf_pc:
    s_lshr_b32 s72, s69, 3
    s_and_b32 s72, s72, 3
    s_lshl_b32 s72, s72, 2
    s_add_u32 s72, s72, s3
    s_lshl_b32 s72, s72, 10
    v_add_u32 v42, s72, v2
    v_add_u32 v43, 0x4000, v42""")
    a.raw("    v_min_u32 v42, L_code_end-L_cpf_pc-16, v42")
    a.raw("    v_min_u32 v43, L_code_end-L_cpf_pc-16, v43")
    a("""global_load_dwordx4 v[44:47], v42, s[70:71]
    global_load_dwordx4 v[48:51], v43, s[70:71]
    L_nocpf:""")
if cfg.warm:
    a("""s_add_u32 s70, s27, 0x4000000
    s_mov_b64 exec, 1
    buffer_load_dword v40, v2, s[12:15], s27 offen nt
    buffer_load_dword v41, v2, s[8:11], s70 offen nt
    buffer_load_dword v42, v2, s[12:15], s70 offen nt
    global_load_ushort v43, v2, s[52:53]
    global_load_dword v44, v2, s[54:55] offset:192
    s_mov_b64 exec, -1""")
a(f"""
v_mov_b32 v4, -1
v_mov_b32 v5, -1
v_mov_b32 v6, -1
v_mov_b32 v7, -1
s_lshl_b32 s70, s3, 18
s_lshl_b32 s71, s2, 10
s_add_u32 s70, s70, s71
buffer_store_dwordx4 v[4:7], v2, s[16:19], s70 offen sc1
s_lshl_b32 s70, s3, 12
s_lshl_b32 s71, s4, 7
s_add_u32 s70, s70, s71
s_lshl_b32 s71, s6, 2
s_add_u32 s70, s70, s71
s_add_u32 s70, s70, {A_L(0)}
v_lshlrev_b32 v8, 6, v0
s_mov_b64 exec, 3
buffer_store_dword v4, v8, s[16:19], s70 offen sc1
s_mov_b64 exec, -1
s_getreg_b32 s70, hwreg(HW_REG_XCC_ID)
s_and_b32 s70, s70, 15
v_mov_b32 v10, s70
s_lshl_b32 s70, s2, 2
s_add_u32 s70, s70, {X_A}
v_mov_b32 v11, 0
s_mov_b64 exec, 1
buffer_store_dword v10, v11, s[16:19], s70 offen sc1
s_mov_b64 exec, -1
global_load_ushort v23, v11, s[50:51]
s_mul_i32 s7, s4, 9
s_add_u32 s7, s7, s5
s_cmp_ge_u32 s5, 9
s_cbranch_scc1 L_pro_s1
v_lshlrev_b32 v8, 2, v0
s_lshl_b32 s70, s3, 16
s_lshl_b32 s71, s7, 8
s_add_u32 s70, s70, s71
s_add_u32 s70, s70, {B_A(0)}
buffer_store_dword v4, v8, s[16:19], s70 offen sc1
s_lshl_b32 s70, s3, 18
s_lshl_b32 s71, s7, 10
s_add_u32 s70, s70, s71
s_add_u32 s70, s70, {D_A(0)}
buffer_store_dwordx4 v[4:7], v2, s[16:19], s70 offen sc1
s_lshl_b32 s70, s3, 12
s_lshl_b32 s71, s7, 4
s_add_u32 s70, s70, s71
s_add_u32 s70, s70, {C_A(0)}
s_mov_b64 exec, 15
buffer_store_dword v4, v8, s[16:19], s70 offen sc1
s_lshl_b32 s70, s3, 12
s_lshl_b32 s71, s4, 7
s_add_u32 s70, s70, s71
s_add_u32 s70, s70, {H_A(0)}
buffer_store_dword v4, v8, s[16:19], s70 offen sc1
buffer_store_dword v4, v8, s[16:19], s70 offen offset:2048 sc1
s_mov_b64 exec, -1
s_mov_b32 s20, s32
s_mov_b32 s21, s33
s_mov_b32 s22, 2304
v_lshlrev_b32 v9, 3, v0
v_lshlrev_b32 v10, 1, v0
buffer_load_dwordx2 v[12:13], v9, s[20:23], 0 offen
buffer_load_dwordx2 v[14:15], v9, s[20:23], 0 offen offset:512
buffer_load_ushort v16, v10, s[20:23], 0 offen offset:1024
buffer_load_dwordx2 v[18:19], v9, s[20:23], 0 offen offset:1152
buffer_load_dwordx2 v[20:21], v9, s[20:23], 0 offen offset:1664
buffer_load_ushort v22, v10, s[20:23], 0 offen offset:2176
s_mov_b32 s20, s38
s_mov_b32 s21, s39
s_mov_b32 s22, {576*8192}
v_lshrrev_b32 v24, 5, v0
v_and_b32 v25, 31, v0
v_lshlrev_b32 v25, 4, v25
v_lshlrev_b32 v26, 5, v24
v_xor_b32 v25, v25, v26
v_lshl_add_u32 v24, v24, 13, v25
v_xor_b32 v25, 64, v24
v_xor_b32 v26, 128, v24
v_xor_b32 v27, 192, v24
s_lshl_b32 s70, s5, 19
s_lshl_b32 s71, s3, 17
s_add_u32 s70, s70, s71
s_lshl_b32 s71, s4, 9
s_add_u32 s70, s70, s71
s_lshl_b32 s71, s3, 13
s_add_u32 s71, s71, {LWQ}
""")
for i in range(8):
    fs = ((i >> 2) & 1) * 2 + (i & 1)
    a(f"s_add_u32 m0, s71, {i*1024}\nbuffer_load_dwordx4 v{24+fs}, s[20:23], s70 offen nt lds")
    if i < 7: a("s_add_u32 s70, s70, 16384")
a.label("L_pro_s1")
a("s_mov_b32 s33, 0")
ln(True, cfg.d1)
pass
a(f"""
v_lshlrev_b32 v23, 16, v23
v_readfirstlane_b32 s78, v23
s_mov_b32 s56, {LMX}
s_cmp_ge_u32 s5, 9
s_cbranch_scc1 L_pro_s2
v_add_u32 v24, {LXB}, v2
v_lshlrev_b32 v25, 2, v0
v_add_u32 v25, {LXB+2048}, v25
""")
for b in range(2):
    r = 12 + 6 * b
    a(f"""v_lshlrev_b32 v28, 16, v{r}
    v_and_b32 v29, 0xffff0000, v{r}
    v_lshlrev_b32 v30, 16, v{r+1}
    v_and_b32 v31, 0xffff0000, v{r+1}
    v_lshlrev_b32 v32, 16, v{r+2}
    v_and_b32 v33, 0xffff0000, v{r+2}
    v_lshlrev_b32 v34, 16, v{r+3}
    v_and_b32 v35, 0xffff0000, v{r+3}
    v_lshlrev_b32 v36, 16, v{r+4}
    ds_write_b128 v24, v[28:31] offset:{b*2304}
    ds_write_b128 v24, v[32:35] offset:{b*2304+1024}
    ds_write_b32 v25, v36 offset:{b*2304}
    s_waitcnt lgkmcnt(0)""")
a.label("L_pro_s2")
a(f"""
s_barrier
s_cmp_lg_u32 s3, {cfg.aw}
s_cbranch_scc1 L_pro_arr
v_mov_b32 v4, 0
v_mov_b32 v5, 1
s_mov_b64 exec, 1
global_atomic_add v6, v4, v5, s[54:55] offset:64 sc0 sc1
s_mov_b64 exec, -1
""")
ln(True, cfg.d0)
a(f"""v_readfirstlane_b32 s70, v6
s_cmp_lg_u32 s70, 255
s_cbranch_scc1 L_pro_arr
s_mov_b64 exec, 1
global_store_dword v4, v5, s[54:55] offset:128 sc1
s_mov_b64 exec, -1
L_pro_arr:
s_cmp_ge_u32 s5, 9
s_cbranch_scc1 L_pro_s3
""")
for b in range(2):
    a(f"s_mov_b32 s63, 1\ns_mov_b32 s64, {LXB + b*2304}\ns_mov_b32 s62, {D_A(b)}")
    call("SUB_CH2")
    if b == 0: a("s_barrier")
def load_wo():
    a(f"""
    s_mov_b32 s20, s40
    s_mov_b32 s21, s41
    s_mov_b32 s22, {4096*1152}
    v_lshrrev_b32 v24, 3, v0
    v_mul_u32_u24 v24, 1152, v24
    v_and_b32 v25, 7, v0
    v_lshlrev_b32 v25, 4, v25
    v_bfe_u32 v26, v0, 4, 1
    v_lshlrev_b32 v26, 5, v26
    v_xor_b32 v25, v25, v26
    v_xor_b32 v26, 64, v25
    v_add_u32 v25, v25, v24
    v_add_u32 v26, v26, v24
    s_lshl_b32 s70, s4, 2
    s_add_u32 s70, s70, s3
    s_mul_i32 s70, s70, {64*1152}
    s_lshl_b32 s71, s5, 7
    s_add_u32 s70, s70, s71
    s_lshl_b32 s71, s3, 13
    s_add_u32 s71, s71, {LWO}
    """)
    for i in range(8):
        a(f"s_add_u32 m0, s71, {i*1024}\nbuffer_load_dwordx4 v{25+(i&1)}, s[20:23], s70 offen nt lds")
        if i < 7: a(f"s_add_u32 s70, s70, {8*1152}")
def load_mixer(base):
    a(f"""
    s_lshl_b32 s70, s3, 10
    v_add_u32 v24, s70, v2
    v_add_u32 v25, 4096, v24
    v_add_u32 v26, 8192, v2
    s_add_u32 s71, s70, {base}
    """)
    for j, p in enumerate((44, 46, 48)):
        a(f"""s_add_u32 m0, s71, {j*9216}
        global_load_lds_dwordx4 v24, s[{p}:{p+1}]
        s_add_u32 m0, s71, {j*9216+4096}
        global_load_lds_dwordx4 v25, s[{p}:{p+1}]
        s_mov_b32 m0, {base+j*9216+8192}
        global_load_lds_dwordx4 v26, s[{p}:{p+1}]""")
if not cfg.latew:
    load_wo(); load_mixer(LMX)
a.label("L_pro_s3")
for r in POOL[17:]:
    if cfg.stamps: a(f"s_mov_b32 s{r}, 0")
ln(False, cfg.d2)
a("v_mov_b32 v4, 0")
poll(lambda: a("global_load_dword v5, v4, s[54:55] offset:128 sc1"), lambda: a("v_cmp_eq_u32 vcc, 0, v5"), depth=cfg.d3)
a(f"""s_lshl_b32 s70, s3, 8
v_lshl_add_u32 v22, v0, 2, s70
s_mul_i32 s69, s4, 9216
s_add_u32 s70, s69, {D_A(0)}
s_add_u32 s71, s70, 4096
s_add_u32 s72, s70, 8192
s_add_u32 s73, s69, {D_A(1)}
s_add_u32 s74, s73, 4096
s_add_u32 s75, s73, 8192
v_lshrrev_b32 v24, 1, v22
v_add_u32 v24, {LQ}, v24""")
a(f"s_lshl_b32 s76, s4, 6\ns_add_u32 s76, s76, {X_A}\nv_and_b32 v25, 15, v0\nv_lshlrev_b32 v25, 2, v25")
poll(lambda: (a("buffer_load_dword v26, v25, s[16:19], s76 offen sc1"), qg_issue(4, 70), qg_issue(13, 73)), lambda: check_sentinel(range(4, 22), 23), depth=cfg.d4)
a(f"v_readfirstlane_b32 s70, v26\nv_cmp_ne_u32 vcc, s70, v26\ns_cmp_eq_u64 vcc, 0\ns_cselect_b32 s33, {cfg.xl}, 0")
qg_sum(4); qg_sum(13)
a("ds_write_b16 v24, v4\nds_write_b16 v24, v13 offset:512")
stamp("q1")
ln_until(10)
a("s_waitcnt lgkmcnt(0)\ns_barrier")

def att_params(ai, seq):
    a(f"s_mov_b32 s58, {A_O(ai)}\ns_mov_b32 s59, {A_L(ai)}\ns_mov_b32 s65, {LQ + ai*512}\ns_mov_b32 s64, {LX + (seq&1)*4224}")
def hint_addr(ai):
    a(f"s_lshl_b32 s62, s4, 7\ns_add_u32 s62, s62, {H_A(ai)+0x800}")
def att_p1(ai, seq):
    att_params(ai, seq); hint_addr(ai); a("s_mov_b64 vcc, -1"); call("SUB_ATT")
def qatt(ai, seq, loadnext):
    att_params(ai, seq); a(f"s_mov_b32 s62, {D_A(ai)}\ns_mov_b32 s63, {2 if loadnext else 0}"); call("SUB_QATT")
def ch1(inst, final, entry="SUB_CH1", aonly=False):
    b = inst & 1
    a(f"s_mov_b32 s58, {A_O(inst)}\ns_mov_b32 s59, {A_L(inst)}\ns_mov_b32 s60, {B_A(inst)}\ns_mov_b32 s64, {LXB + b*2304}")
    a(f"s_mov_b32 s63, {2 if aonly else 1 if final else 0}\ns_mov_b32 s61, {b*1152 if final else C_A(inst)}")
    call(entry)
def ch2(inst):
    b = inst & 1
    a(f"s_mov_b32 s63, 0\ns_mov_b32 s61, {C_A(inst)}\ns_mov_b32 s64, {LXB + b*2304}\ns_mov_b32 s62, {D_A(2+inst)}")
    call("SUB_CH2")

a(f"s_cmp_eq_u32 s3, 0\ns_cselect_b32 s63, 4, 0\ns_lshl_b32 s60, s4, 7\ns_add_u32 s60, s60, {H_A(2)+4}")
att_p1(0, 0)
stamp("P1b0")
a("s_add_u32 s27, s27, 0x4000000\ns_cmp_ge_u32 s5, 9\ns_cbranch_scc1 L_srole")
a(f"s_mov_b32 s42, {cfg.thr3}")
if cfg.xe3: a("s_getreg_b32 s42, hwreg(HW_REG_XCC_ID)\ns_andn2_b32 s42, 1, s42\ns_lshl_b32 s42, s42, 1")
if cfg.latew:
    load_wo(); load_mixer(LMX)
    a("s_waitcnt vmcnt(9)\ns_barrier")
ch1(0, False); ch2(0)
stamp("wq0")
a(f"s_xor_b32 s69, s33, 1")
qatt(2, 1, True)
stamp("P2b0")
if cfg.roles:
    ln_until(cfg.fa)
    ch1(2, True, aonly=True)
    a(f"""s_or_b32 s70, s5, s3
    s_cbranch_scc1 L_nf3
    s_lshl_b32 s70, s4, 7
    s_add_u32 s70, s70, {H_A(3)}
    s_mov_b64 exec, 1
    buffer_store_dword v2, v2, s[16:19], s70 offen sc1
    s_mov_b64 exec, -1
    L_nf3:""")
else:
    ch1(2, True)
stamp("fin0")
ln_until(10)
a(f"s_cmp_eq_u32 s3, 0\ns_cselect_b32 s63, 3, 0\ns_lshl_b32 s60, s4, 7\ns_add_u32 s60, s60, {H_A(2)}")
att_p1(1, 2)
stamp("P1b1")
a("s_mov_b32 s79, 1")
ch1(1, False); ch2(1)
qatt(3, 3, False)
stamp("P2b1")
a("s_mov_b32 s79, 2")
ch1(3, True)
stamp("end")
a("s_branch L_stamps" if cfg.stamps else "s_branch L_fin")
def s_reload():
    if not cfg.nogo: flagwait(2, cfg.sg, 0, cfg.n1)
    pass
    a(f"s_mov_b32 s82, {cfg.rel1}")
    ln_until(8)
    load_v([t for t in range(cfg.j0) if t not in LDS_T])
    a("s_mov_b32 s29, s57")
    a("s_mov_b32 s82, 16")
    if cfg.stamps: a("s_waitcnt vmcnt(0)")
    stamp("s.rel")
a.label("L_srole")
a("s_mov_b32 s42, 0")
a(f"s_mov_b32 s69, 0")
if cfg.roles:
    a(f"s_mul_i32 s57, s3, {NS*1024}\ns_add_u32 s57, s57, {LWO}")
    if cfg.go0 >= 0: flagwait(2, cfg.sh, 4, cfg.n0)
    att_params(1, 1); call("SUB_RING")
    stamp("s.ring")
    flagwait(0, cfg.sh)
    qatt(2, 2, False)
    stamp("s.P2b0")
    if cfg.j0 < 64:
        att_params(1, 1); hint_addr(1); a("s_mov_b32 s63, 0"); call("SUB_RESUME")
        stamp("s.P1b1")
    if cfg.pf0 < 8:
        nun = 36 * (8 - cfg.pf0)
        a(f"""v_lshlrev_b32 v4, 7, v0
        s_sub_u32 s70, s5, 9
        s_lshl_b32 s70, s70, 2
        s_add_u32 s70, s70, s3
        s_mov_b32 s71, {(1 << 32) // 36 + 1}""")
        for i in range((nun + 27) // 28):
            L = a.newlabel("Lpf")
            if (i + 1) * 28 > nun: a(f"s_cmp_ge_u32 s70, {nun}\ns_cbranch_scc1 {L}")
            a(f"""s_mul_hi_u32 s72, s70, s71
            s_mul_i32 s73, s72, 36
            s_sub_u32 s73, s70, s73
            s_lshr_b32 s74, s73, 2
            s_sub_u32 s74, s74, s4
            s_and_b32 s74, s74, 15
            s_lshl_b32 s75, s4, 4
            s_add_u32 s74, s74, s75
            s_lshl_b32 s74, s74, 18
            s_and_b32 s73, s73, 3
            s_lshl_b32 s73, s73, 16
            s_add_u32 s74, s74, s73
            s_lshl_b32 s72, s72, 13
            s_add_u32 s74, s74, s72
            s_add_u32 s74, s74, {0x4000000 + cfg.pf0 * 8192}
            s_add_u32 s73, s74, 4096
            s_add_u32 s70, s70, 28""")
            for t in range(8): a(f"buffer_load_dwordx4 a[{4*t}:{4*t+3}], v2, s[12:15], s{74 if t < 4 else 73} offen offset:{(t&3)*1024}")
            a.label(L)
    if cfg.relfirst: s_reload()
    if cfg.rel1:
        a("s_mov_b32 s82, 0"); ln_until(cfg.rel1); a("s_mov_b32 s82, 16")
    load_mixer(0)
    a(f"""s_mov_b32 s56, 0
    s_mov_b32 s70, {C_A(0)}
    v_lshlrev_b32 v13, 2, v0
    v_add_u32 v14, {LXB}, v2
    s_mul_i32 s7, s4, 7
    s_add_u32 s7, s7, s5
    s_sub_u32 s7, s7, 9""")
    poll(lambda: a("""buffer_load_dwordx4 v[4:7], v2, s[16:19], s70 offen sc1
    buffer_load_dwordx4 v[8:11], v2, s[16:19], s70 offen offset:1024 sc1
    buffer_load_dword v12, v13, s[16:19], s70 offen offset:2048 sc1"""), lambda: check_sentinel(range(4, 13), 15))
    a(f"""v_add_u32 v13, {LXB}, v13
    ds_write_b128 v14, v[4:7]
    ds_write_b128 v14, v[8:11] offset:1024
    ds_write_b32 v13, v12 offset:2048""")
    flagwait(3, cfg.sg)
    ch1(2, True, entry="SUB_CH1B")
    if not cfg.late2:
        a("s_add_u32 s7, s7, 112\ns_cmp_ge_u32 s7, 144\ns_cbranch_scc1 L_s_nf")
        call("SUB_CH1B")
        a.label("L_s_nf")
    stamp("s.fin0")
    if not cfg.relfirst: s_reload()
else:
    flagwait(0, cfg.sh)
    qatt(2, 1, True)
    ln_until(10)
    a("s_mov_b32 s63, 0")
    att_p1(1, 2)
    stamp("s.P1b1")
flagwait(1, cfg.sh)
qatt(3, 2 if (cfg.roles and cfg.j0 < 64) else 3, False)
stamp("s.end")
if cfg.roles and cfg.late2:
    a("s_add_u32 s7, s7, 112\ns_cmp_ge_u32 s7, 144\ns_cbranch_scc1 L_s_nf")
    ch1(2, True, entry="SUB_CH1B")
    stamp("s.fin2")
    a.label("L_s_nf")
if cfg.stamps: a("s_branch L_stamps")
a.label("L_fin")
a("s_waitcnt vmcnt(0)")
a.label("L_end")
a("s_endpgm")

def att_pre(zero=True):
    a(f"""
    v_bfe_u32 v15, v0, 1, 1
    v_lshlrev_b32 v12, 8, v15
    v_lshrrev_b32 v13, 4, v0
    v_lshl_add_u32 v12, v13, 5, v12
    v_and_b32 v14, 1, v0
    v_lshl_add_u32 v12, v14, 4, v12
    v_add_u32 v12, s65, v12
    v_bfe_u32 v15, v0, 4, 1
    v_lshlrev_b32 v47, 9, v15
    v_and_b32 v15, 15, v0
    v_lshl_add_u32 v47, v15, 5, v47
    v_lshrrev_b32 v15, 5, v0
    v_lshl_add_u32 v47, v15, 4, v47
    s_lshl_b32 s70, s3, 10
    s_add_u32 s70, s70, s64
    v_add_u32 v47, s70, v47
    """)
    if zero: zero_a()
def zero_a():
    for i in range(12): a(f"v_mov_b32 v{34+i}, 0")
def Dset(i): return 12 + 4 * (i % 3)
def adds(i):
    G, t = i >> 2, i & 3; d = Dset(i)
    a(f"v_add_f32_dpp v32, v{d+1}, v{d} quad_perm:[1,0,3,2] row_mask:{1<<t:#x} bank_mask:0xf")
    a(f"v_add_f32_dpp v33, v{d+2}, v{d+3} quad_perm:[1,0,3,2] row_mask:{1<<t:#x} bank_mask:0xf")
    if t == 3:
        a(f"v_cndmask_b32 v{24+G}, v32, v33, s[24:25]")
        if G == 1: a("v_max_f32 v46, v24, v25")
        elif G % 2 == 1: a(f"v_max3_f32 v46, v46, v{23+G}, v{24+G}")
def kmm(kt, src):
    d = Dset(kt >> 1)
    if kt & 1: a(f"v_mfma_f32_16x16x32_bf16 {R4(d)}, v[8:11], {src}, {R4(d)}")
    else: a(f"v_mfma_f32_16x16x32_bf16 {R4(d)}, v[4:7], {src}, 0")
def softmax():
    for ctl in ("quad_perm:[2,3,0,1]", "row_ror:4", "row_ror:8"):
        a(f"v_max_f32_dpp v46, v46, v46 {ctl} {DPPALL}")
    rows_reduce("v_max_f32", 46, 32)
    a("v_mul_f32 v32, s26, v46")
    for G in range(8): a(f"v_fma_f32 v{24+G}, v{24+G}, s26, -v32")
    for G in range(8): a(f"v_exp_f32 v{24+G}, v{24+G}")
    a("v_pk_add_f32 v[4:5], v[24:25], v[26:27]\nv_pk_add_f32 v[6:7], v[28:29], v[30:31]\nv_pk_add_f32 v[4:5], v[4:5], v[6:7]\nv_add_f32 v20, v4, v5")
    lctl = ["quad_perm:[2,3,0,1]", "row_ror:8", "row_ror:4"]
    for G in range(8):
        t = 21 + (G & 1)
        a(f"v_mov_b32_dpp v{t}, v{24+G} quad_perm:[1,0,3,2] {DPPALL}")
        if G in (1, 3, 5): a(f"v_add_f32_dpp v20, v20, v20 {lctl[G//2]} {DPPALL}")
        a(f"v_cvt_pk_bf16_f32 v{24+G}, v{24+G}, v{t}")
    rows_reduce("v_add_f32", 20, 21)
    a("v_and_b32 v32, 3, v0\nv_mul_u32_u24 v32, 0x5555, v32")
def build(p, par):
    G, pi = p >> 2, p & 3
    bs = 34 + 4 * par
    for k in range(4):
        a(f"v_and_b32_dpp v{bs+k}, v{24+G}, v3 row_newbcast:{4*pi + 2*(k>>1)} row_mask:0xf bank_mask:{0xc if k & 1 else 0x3:#x}")
def vmm(src, par):
    a(f"v_smfmac_f32_16x16x64_bf16 v[42:45], {R4(34+4*par)}, {src}, v32")

a.hist = []
outofline = []
def lnsite():
    Lo = a.newlabel("Lo"); Lb = a.newlabel("Lb")
    a(f"s_cbranch_vccnz {Lo}"); a.label(Lb)
    outofline.append((Lo, Lb, lambda: a("s_call_b64 s[80:81], SUB_LN")))
def lnif():
    L = a.newlabel("Lki")
    a(f"s_cmp_ge_u32 s82, 16\ns_cbranch_scc1 {L}\ns_call_b64 s[80:81], SUB_LN"); a.label(L)
sites = list(range(0, 60, 4)) + [60, 62]
def lbuf(p): return 48 if p == 12 else (4 if (p >> 1) % 2 == 0 else 12)
def vphase(p1):
    done_sites = []; nread = [0]; readpos = {}
    def arrived(t):
        if not p1: return
        for i in sites:
            if i > t or i in done_sites: continue
            done_sites.append(i)
            nxt = [x for x in sites if x > i]
            last = (nxt[0] if nxt else 64) - 1
            g = min(7, (i >> 3) + 2)
            if i % 8 == 0 and (i >> 3) + 2 <= 7:
                L = a.newlabel("Lsk")
                a(f"s_cmp_gt_u32 s82, {8+g}\ns_cbranch_scc1 {L}\ns_call_b64 s[80:81], SUB_LN"); a.label(L)
            a(f"s_waitcnt vmcnt({8*g + 7 - last})")
            for gi, code in ((-1 if cfg.nogo else cfg.go, 3), (cfg.go0, 4)):
                if i == gi:
                    L = a.newlabel("Lsg")
                    a(f"s_cmp_lg_u32 s63, {code}\ns_cbranch_scc1 {L}\ns_mov_b64 exec, 1\nbuffer_atomic_add v3, v2, s[16:19], s60 offen sc1\ns_mov_b64 exec, -1"); a.label(L)
    def fetch(p):
        if p > 12 or p & 1: return
        arrived(2*p + 1)
        b = lbuf(p)
        a(f"ds_read_b128 {R4(b)}, v33 offset:{p*1024}"); nread[0] += 1
        if p < 12: a(f"ds_read_b128 {R4(b+4)}, v33 offset:{p*1024+1024}"); nread[0] += 1
        readpos[p] = nread[0]
    a("v_add_u32 v33, s29, v2")
    fetch(0); fetch(2); build(0, 0)
    for p in range(32):
        if p1 and p == cfg.j0 // 2: a.label("L_att_resume")
        if p + 1 < 32: build(p + 1, (p + 1) & 1)
        arrived(2*p + 1)
        if p in readpos:
            a(f"s_waitcnt lgkmcnt({nread[0] - readpos[p]})"); src = R8(lbuf(p))
        else: src = R8(vreg(2*p))
        vmm(src, p & 1)
        fetch(p + 4)
        if not p1 and cfg.vsites and p in (1, 9, 17, 25): lnsite()

a.label("SUB_ATT")
att_pre()
a("ds_read_b128 v[4:7], v12\nds_read_b128 v[8:11], v12 offset:128\ns_waitcnt vmcnt(16) lgkmcnt(0)")
for i in range(32):
    kmm(2*i, khome(2*i)); kmm(2*i+1, khome(2*i+1))
    if i >= 2: adds(i - 2)
    if cfg.ksites and i in (0, 15): lnif()
adds(30); adds(31)
if cfg.ksites: lnif()
softmax()
vphase(True)
a("s_branch L_att_epi")

a.hist = []
a.label("SUB_QATT")
att_pre(zero=False)
QR = [24, 25, 26, 27, 28, 29, 30, 31, 46]
a(f"""v_bfe_u32 v32, v0, 1, 1
v_lshlrev_b32 v32, 8, v32
v_lshl_add_u32 v32, v13, 6, v32
v_lshl_add_u32 v32, v14, 4, v32
v_and_b32 v15, 4, v0
v_add3_u32 v32, v32, v15, s65
v_mul_u32_u24 v33, 0x2aaa, v15
v_add_u32 v33, 0x4444, v33
v_lshrrev_b32 v15, 1, v15
v_add_u32 v33, v33, v15""")
ZR = list(range(4, 21)) + [48, 49, 50, 51] + list(range(34, 46))
for r in ZR[:cfg.zpre]: a(f"v_mov_b32 v{r}, 0")
a(f"""s_lshl_b32 s70, s3, 8
v_lshl_add_u32 v22, v0, 2, s70
s_mul_i32 s70, s4, 9216
s_add_u32 s70, s70, s62
s_add_u32 s71, s70, 4096
s_add_u32 s72, s70, 8192
v_lshrrev_b32 v21, 1, v22
v_add_u32 v21, s65, v21
s_mov_b32 s74, 0x00ff00ff
s_mov_b32 s75, 0x00ff00ff
s_cmp_eq_u32 s69, 0
s_cbranch_scc1 L_qatt_ns
s_sleep {max(1, cfg.s0['D'])}
L_qatt_ns:""")
def qiss():
    for i in range(9): a(f"buffer_load_dword v{QR[i]}, v22, s[16:19], s{70 + (i>>2)} offen offset:{(i&3)*1024} sc1")
    for r in ZR[cfg.zpre:]: a(f"v_mov_b32 v{r}, 0")
poll(qiss, lambda: check_sentinel(QR, 23))
for (x, y) in ((0, 1), (2, 3), (4, 5), (6, 7), (0, 2), (4, 6), (0, 8), (0, 4)): a(f"v_add_f32 v{QR[x]}, v{QR[x]}, v{QR[y]}")
a("""v_cvt_pk_bf16_f32 v24, v24, v24
ds_write_b16 v21, v24
v_mov_b32 v21, 0
v_mov_b32 v22, 0
v_mov_b32 v23, 0
s_cmp_eq_u32 s63, 2
s_cselect_b32 s82, 0, s82
s_cselect_b64 vcc, -1, 0
s_mov_b64 exec, s[74:75]
s_waitcnt lgkmcnt(0)
s_barrier""")
stamp("q2b1", 1)
a("""ds_read2_b32 v[4:5], v32 offset0:0 offset1:2
ds_read2_b32 v[6:7], v32 offset0:8 offset1:10
s_not_b64 exec, exec
ds_read2_b32 v[8:9], v32 offset0:0 offset1:2
ds_read2_b32 v[10:11], v32 offset0:8 offset1:10
s_mov_b64 exec, -1
s_waitcnt lgkmcnt(0)""")
DA = (12, 20); DB = (16, 48)
def ksm(G, t):
    d = (DA, DB)[t & 1][G & 1]
    a(f"v_smfmac_f32_16x16x64_bf16 {R4(d)}, {R4(4 + 4*(t>>1))}, a[{32*G+8*t}:{32*G+8*t+7}], v33")
def xy(d):
    a(f"v_add_f32_dpp v32, v{d+1}, v{d} quad_perm:[1,0,3,2] {DPPALL}\nv_add_f32_dpp v46, v{d+2}, v{d+3} quad_perm:[1,0,3,2] {DPPALL}")
for G in range(10):
    if G < 8: ksm(G, 0); ksm(G, 1)
    if G >= 2: a(f"v_permlane16_swap_b32 v{22+G}, v32\nv_add_f32 v{22+G}, v{22+G}, v32")
    if 1 <= G <= 8: xy(DA[(G-1) & 1])
    if G < 8: ksm(G, 2)
    if 1 <= G <= 8: a(f"v_cndmask_b32 v{23+G}, v32, v46, s[24:25]"); xy(DB[(G-1) & 1])
    if G < 8: ksm(G, 3)
    if 1 <= G <= 8: a("v_cndmask_b32 v32, v32, v46, s[24:25]")
    if G in (0, 1): lnsite()
a("v_pk_add_f32 v[30:31], v[30:31], v[28:29] neg_lo:[0,1] neg_hi:[0,1]\nv_pk_add_f32 v[28:29], v[28:29], v[26:27] neg_lo:[0,1] neg_hi:[0,1]\nv_pk_add_f32 v[26:27], v[26:27], v[24:25] neg_lo:[0,1] neg_hi:[0,1]")
a("v_max3_f32 v46, v24, v25, v30\nv_max3_f32 v32, v31, v28, v29\nv_max3_f32 v46, v46, v26, v27\nv_max_f32 v46, v46, v32")
softmax()
vphase(False)
a.label("L_att_epi")
a(f"""
s_nop 3
v_and_b32 v32, 1, v0
v_lshlrev_b32 v32, 5, v32
s_lshl_b32 s70, s3, 2
s_add_u32 s70, s70, s64
s_add_u32 s70, s70, 4096
v_add_u32 v32, s70, v32
ds_write2_b32 v32, v46, v20 offset0:0 offset1:4
v_add_u32 v32, s64, v2
v_lshrrev_b32 v33, 5, v0
v_lshlrev_b32 v34, 6, v33
v_lshlrev_b32 v33, 5, v33
v_add_u32 v33, s64, v33
ds_write_b128 v47, v[42:45]
s_lshl_b32 s70, s2, 10
s_add_u32 s70, s70, s58
s_lshl_b32 s71, s4, 7
s_add_u32 s71, s71, s59
s_lshl_b32 s72, s6, 2
s_add_u32 s71, s71, s72
s_cmp_lg_u32 s3, 0
s_waitcnt lgkmcnt(0)
s_barrier
s_cbranch_scc1 L_att_ret
ds_read_b128 v[20:23], v33 offset:4096
ds_read_b128 v[24:27], v33 offset:4112
ds_read_b128 v[4:7], v32
ds_read_b128 v[8:11], v32 offset:1024
ds_read_b128 v[12:15], v32 offset:2048
ds_read_b128 v[16:19], v32 offset:3072
s_waitcnt lgkmcnt(4)
v_max3_f32 v28, v20, v21, v22
v_max_f32 v28, v28, v23
v_mul_f32 v28, s26, v28
""")
for w in range(4): a(f"v_fma_f32 v{20+w}, v{20+w}, s26, -v28")
for w in range(4): a(f"v_exp_f32 v{20+w}, v{20+w}")
a("""v_mul_f32 v30, v20, v24
v_fmac_f32 v30, v21, v25
v_fmac_f32 v30, v22, v26
v_fmac_f32 v30, v23, v27
s_waitcnt lgkmcnt(0)
v_pk_mul_f32 v[4:5], v[4:5], v[20:21] op_sel:[0,0] op_sel_hi:[1,0]
v_log_f32 v29, v30
v_rcp_f32 v30, v30
v_pk_mul_f32 v[6:7], v[6:7], v[20:21] op_sel:[0,0] op_sel_hi:[1,0]
v_pk_fma_f32 v[4:5], v[8:9], v[20:21], v[4:5] op_sel:[0,1,0] op_sel_hi:[1,1,1]
v_pk_fma_f32 v[6:7], v[10:11], v[20:21], v[6:7] op_sel:[0,1,0] op_sel_hi:[1,1,1]
v_pk_fma_f32 v[4:5], v[12:13], v[22:23], v[4:5] op_sel:[0,0,0] op_sel_hi:[1,0,1]
v_pk_fma_f32 v[6:7], v[14:15], v[22:23], v[6:7] op_sel:[0,0,0] op_sel_hi:[1,0,1]
v_pk_fma_f32 v[4:5], v[16:17], v[22:23], v[4:5] op_sel:[0,1,0] op_sel_hi:[1,1,1]
v_pk_fma_f32 v[6:7], v[18:19], v[22:23], v[6:7] op_sel:[0,1,0] op_sel_hi:[1,1,1]
v_pk_mul_f32 v[4:5], v[4:5], v[30:31] op_sel:[0,0] op_sel_hi:[1,0]
v_pk_mul_f32 v[6:7], v[6:7], v[30:31] op_sel:[0,0] op_sel_hi:[1,0]
v_add_f32 v29, v29, v28""")
gstore("""buffer_store_dwordx4 v[4:7], v2, s[16:19], s70 offen sc1
s_mov_b32 exec_lo, 1
s_mov_b32 exec_hi, 1
buffer_store_dword v29, v34, s[16:19], s71 offen sc1
s_mov_b64 exec, -1""")
a.label("L_att_ret")
ret()
for Lo, Lb, fn in outofline:
    a.hist = []
    a.label(Lo); fn(); a(f"s_branch {Lb}")

a.hist = []
a.label("SUB_LN")
T2 = f"s_waitcnt vmcnt({cfg.thr2})\ns_cmp_eq_u32 s42, 2\ns_cbranch_scc1 %s\n" if cfg.thr2 >= 0 else "%.0s"
if cfg.thr >= 0: a(f"s_cmp_eq_u32 s42, 0\ns_cbranch_scc1 L_ln_nt\n" + T2 % "L_ln_nt" + f"s_waitcnt vmcnt({cfg.thr})\nL_ln_nt:")
for k in range(15): a(f"s_cmp_eq_u32 s82, {k}\ns_cbranch_scc1 L_lnb{k}")
for k in [15] + list(range(15)):
    a.label(f"L_lnb{k}")
    for hlf in range(2):
        if hlf and cfg.thrm >= 0: a(f"s_cmp_eq_u32 s42, 0\ns_cbranch_scc1 L_lnm{k}\n" + T2 % f"L_lnm{k}" + f"s_waitcnt vmcnt({cfg.thrm})\nL_lnm{k}:")
        if k < 8: load_k(range(8*k+4*hlf, 8*k+4*hlf+4))
        else: load_v(range(8*(k-8)+4*hlf, 8*(k-8)+4*hlf+4))
    a("s_add_u32 s82, s82, 1\ns_setpc_b64 s[80:81]")

a.hist = []
a.label("SUB_LNW")
a(f"""s_mov_b32 s36, 0
L_lnw_i:
s_call_b64 s[80:81], SUB_LN
s_add_u32 s36, s36, 8
L_lnw_c:
s_getreg_b32 s37, hwreg(HW_REG_IB_STS)
s_and_b32 s28, s37, 15
s_lshr_b32 s37, s37, 18
s_and_b32 s37, s37, 0x30
s_or_b32 s37, s37, s28
s_cmp_le_u32 s37, s36
s_cbranch_scc1 L_lnw_r
s_cmp_ge_u32 s82, 16
s_cbranch_scc1 L_lnw_s
s_cmp_lt_u32 s37, 40
s_cbranch_scc1 L_lnw_i
L_lnw_s:
s_sleep 1
s_branch L_lnw_c
L_lnw_r:""")
for n in (8, 16, 24, 32, 40):
    a(f"s_cmp_gt_u32 s36, {n}\ns_cbranch_scc1 L_lnw_r{n}\ns_waitcnt vmcnt({n})\ns_setpc_b64 s[34:35]\nL_lnw_r{n}:")
a("s_waitcnt vmcnt(48)\ns_setpc_b64 s[34:35]")

a.hist = []
a.label("SUB_CH1")
a(f"""
v_lshrrev_b32 v21, 4, v0
v_bfe_u32 v22, v0, 2, 2
v_lshl_add_u32 v23, v21, 3, v22
v_lshlrev_b32 v23, 7, v23
v_bfe_u32 v21, v0, 3, 2
v_xor_b32 v21, s3, v21
v_lshl_add_u32 v23, v21, 5, v23
v_and_b32 v21, 3, v0
v_lshl_add_u32 v23, v21, 3, v23
v_add_u32 v23, {LWO}, v23
""")
for ks in range(7):
    for jh in range(2):
        a(f"ds_read_b64_tr_b16 {R2(24 + 4*ks + 2*jh)}, v23 offset:{(32*ks+4*jh)*128}")
a(f"""
v_lshlrev_b32 v21, 2, v0
s_lshl_b32 s70, s4, 14
s_add_u32 s70, s70, s58
s_lshl_b32 s71, s3, 8
s_add_u32 s70, s70, s71
s_add_u32 s71, s70, 4096
s_add_u32 s72, s70, 8192
s_add_u32 s73, s70, 12288
s_lshl_b32 s74, s4, 7
s_add_u32 s74, s74, s59
s_lshr_b32 s75, s3, 1
s_lshl_b32 s75, s75, 6
s_add_u32 s74, s74, s75
s_lshl_b32 s75, s3, 7
s_add_u32 s75, s75, {LO}
""")
def issA():
    a("v_and_b32 v20, 60, v21\nbuffer_load_dword v20, v20, s[16:19], s74 offen sc1")
    for s in range(16):
        a(f"buffer_load_dword v{4+s}, v21, s[16:19], s{70+(s>>2)} offen offset:{(s&3)*1024} sc1")
TGT = 16 * 0xffff - 1
if False:
    a(f"""s_cmp_lg_u32 s63, 0
    s_cbranch_scc1 L_ch1_sa
    s_lshl_b32 s76, s4, 7
    s_add_u32 s76, s76, s61
    s_add_u32 s76, s76, {0x8008}
    v_mov_b32 v4, 0
    s_mov_b32 s68, 0
    L_ch1_wa:
    buffer_load_dword v5, v4, s[16:19], s76 offen sc1
    s_waitcnt vmcnt(0)
    v_cmp_gt_i32 vcc, {TGT}, v5
    s_cbranch_vccz L_ch1_pa
    s_sleep {cfg.sh}
    s_add_u32 s68, s68, 1
    s_cmp_lt_u32 s68, {cfg.spin}
    s_cbranch_scc1 L_ch1_wa
    s_branch L_ch1_pa
    L_ch1_sa:
    s_sleep {cfg.s0['A']}
    L_ch1_pa:""")
    poll(issA, lambda: check_sentinel(range(4, 21), 22), s0=cfg.sA2)
else:
    if cfg.s0["M"] < cfg.s0["A"]:
        a(f"s_cmp_eq_u32 s63, 0\ns_cbranch_scc1 L_ch1_ms\ns_sleep {cfg.s0['A'] - cfg.s0['M']}\nL_ch1_ms:")
        poll(issA, lambda: check_sentinel(range(4, 21), 22), s0=cfg.s0["M"])
    else:
        a(f"s_cmp_lg_u32 s33, 0\ns_cbranch_scc1 L_ch1_fs\ns_sleep {cfg.s0['A'] - cfg.fA}\nL_ch1_fs:")
        poll(issA, lambda: check_sentinel(range(4, 21), 22), s0=cfg.fA)
stamp("c.A", 1); stamp("f.A", 2)
a(f"v_max_f32_dpp v22, v20, v20 {CTL4[0]} {DPPALL}")
for c in CTL4[1:]: a(f"v_max_f32_dpp v22, v22, v22 {c} {DPPALL}")
a("v_sub_f32 v20, v20, v22\nv_exp_f32 v20, v20")
a(f"v_mul_f32_dpp v21, v20, v4 row_newbcast:0 {DPPALL}\nv_add_f32_dpp v22, v20, v20 {CTL4[0]} {DPPALL}")
for s in range(1, 16):
    a(f"v_fmac_f32_dpp v21, v20, v{4+s} row_newbcast:{s} {DPPALL}")
    if s in (2, 4, 6): a(f"v_add_f32_dpp v22, v22, v22 {CTL4[s//2]} {DPPALL}")
    if s == 4: a(f"ds_read_b64_tr_b16 v[4:5], v23 offset:{(32*7)*128}\nds_read_b64_tr_b16 v[6:7], v23 offset:{(32*7+4)*128}")
    if s == 8: a("v_rcp_f32 v22, v22")
    if s == 9: a("v_lshl_add_u32 v23, v0, 1, s75")
a(f"""
v_mul_f32 v21, v21, v22
v_cvt_pk_bf16_f32 v21, v21, v21
ds_write_b16 v23, v21
v_and_b32 v0, 48, v0
v_add_u32 v0, {LO}, v0
s_lshl_b32 s70, s7, 8
s_add_u32 s70, s70, s60
s_lshl_b32 s71, s3, 6
s_add_u32 s74, s70, s71
s_mul_i32 s70, s3, 9216
s_add_u32 s70, s70, s60
s_add_u32 s71, s70, 2304
s_add_u32 s72, s70, 4608
s_add_u32 s73, s70, 6912
s_waitcnt lgkmcnt(0)
s_barrier
""")
order = [7, 0, 1, 2, 3, 4, 5, 6]
def frag(ks): return "v[4:7]" if ks == 7 else R4(24 + 4*ks)
bufs = ["v[8:11]", "v[12:15]", "v[16:19]"]
for n in range(3): a(f"ds_read_b128 {bufs[n]}, v0 offset:{order[n]*64}")
for n, ks in enumerate(order):
    a(f"s_waitcnt lgkmcnt({len(bufs) - 1 - n})")
    a(f"v_mfma_f32_16x16x32_bf16 v[20:23], {bufs[n]}, {frag(ks)}, {'0' if n == 0 else 'v[20:23]'}")
    for fr in (frag(ks), bufs[n]):
        if len(bufs) < 8:
            a(f"ds_read_b128 {fr}, v0 offset:{order[len(bufs)]*64}"); bufs.append(fr)
a(f"""
v_lshrrev_b32 v0, 4, v2
v_lshlrev_b32 v49, 2, v0
s_mul_i32 s75, s3, 2304
s_add_u32 s75, s75, {LX}
v_add_u32 v51, s75, v2
s_mov_b64 exec, 0xffff
buffer_store_dword v20, v49, s[16:19], s74 offen sc1
s_mov_b64 exec, -1
""")
a("s_cmp_eq_u32 s63, 2\ns_cbranch_scc1 L_ch1_ret")
a.label("L_ch1_b")
ln(False)
def issB():
    for r in range(4):
        a(f"buffer_load_dwordx4 {R4(4+8*r)}, v2, s[16:19], s{70+r} offen sc1")
        a(f"buffer_load_dwordx4 {R4(8+8*r)}, v2, s[16:19], s{70+r} offen offset:1024 sc1")
        a(f"buffer_load_dword v{36+r}, v49, s[16:19], s{70+r} offen offset:2048 sc1")
def chkB():
    for i in range(4): a(f"v_pk_add_f32 {R2(40+2*i)}, {R2(4+2*i)}, {R2(12+2*i)}")
    a("v_add_f32 v48, v36, v37")
    for r in (2, 3):
        for i in range(4): a(f"v_pk_add_f32 {R2(40+2*i)}, {R2(40+2*i)}, {R2(4+8*r+2*i)}")
        a(f"v_add_f32 v48, v48, v{36+r}")
    a("v_add_u32 v50, s75, v49\nds_write_b128 v51, v[40:43]\nds_write_b128 v51, v[44:47] offset:1024\nds_write_b32 v50, v48 offset:2048")
    check_sentinel(range(4, 40), 50)
if cfg.hint >= 0:
    a(f"""s_cmp_lg_u32 s63, 0
    s_cbranch_scc1 L_ch1_sb
    s_add_u32 s76, s61, {0x8800}
    v_and_b32 v4, 15, v0
    v_lshlrev_b32 v4, 7, v4
    buffer_load_dword v5, v4, s[16:19], s76 offen sc1
    s_waitcnt vmcnt(0)
    v_cmp_gt_i32 vcc, {TGT}, v5
    s_cbranch_vccz L_ch1_pb
    s_mov_b32 s68, 0
    L_ch1_wb:
    s_sleep {cfg.sh}
    buffer_load_dword v5, v4, s[16:19], s76 offen sc1
    s_waitcnt vmcnt(0)
    v_cmp_gt_i32 vcc, {TGT}, v5
    s_cbranch_vccz L_ch1_wb2
    s_add_u32 s68, s68, 1
    s_cmp_lt_u32 s68, {cfg.spin}
    s_cbranch_scc1 L_ch1_wb
    L_ch1_wb2:
    s_sleep {cfg.sB2}
    s_branch L_ch1_pb
    L_ch1_sb:
    s_sleep {cfg.s0['B']}
    L_ch1_pb:""")
    poll(issB, chkB)
else:
    if cfg.s0["N"] < cfg.s0["B"]:
        a(f"s_cmp_eq_u32 s63, 0\ns_cbranch_scc1 L_ch1_ns\ns_sleep {cfg.s0['B'] - cfg.s0['N']}\nL_ch1_ns:")
    poll(issB, chkB, s0=min(cfg.s0["B"], cfg.s0["N"]))
stamp("c.B", 1); stamp("f.B", 2)
a(f"""
v_add_u32 v14, s64, v2
v_add_u32 v15, s64, v49
ds_read_b128 v[4:7], v14
ds_read_b128 v[8:11], v14 offset:1024
ds_read_b32 v12, v15 offset:2048
v_add_u32 v14, {LX}, v2
v_add_u32 v15, {LX+2048}, v49
s_waitcnt lgkmcnt(3)
s_barrier
""")
for r in range(4):
    a(f"ds_read_b128 {R4(16+8*r)}, v14 offset:{r*2304}\nds_read_b128 {R4(20+8*r)}, v14 offset:{r*2304+1024}")
    if r == 0: a("ds_read2st64_b32 v[48:49], v15 offset0:0 offset1:9\nds_read2st64_b32 v[50:51], v15 offset0:18 offset1:27")
a(f"""
v_lshlrev_b32 v13, 3, v0
v_add_u32 v13, {LLN}, v13
v_lshlrev_b32 v14, 1, v0
v_add_u32 v14, {LLN+1024}, v14
v_and_b32 v15, 3, v0
s_lshl_b32 s70, s7, 3
s_add_u32 s70, s70, {LLN}
v_lshl_add_u32 v15, v15, 1, s70
s_lshl_b32 s70, s3, 8
s_add_u32 s70, s70, s56
""")
for r in range(4):
    a(f"s_waitcnt lgkmcnt({6 - 2*r})")
    for i in range(4): a(f"v_pk_add_f32 {R2(4+2*i)}, {R2(4+2*i)}, {R2(16+8*r+2*i)}")
    a(f"v_add_f32 v12, v12, v{48+r}")
a("""v_cvt_pk_bf16_f32 v16, v4, v5
v_cvt_pk_bf16_f32 v17, v6, v7
v_cvt_pk_bf16_f32 v18, v8, v9
v_cvt_pk_bf16_f32 v19, v10, v11
v_cvt_pk_bf16_f32 v20, v12, 0
ds_write_b64 v13, v[16:17]
ds_write_b64 v13, v[18:19] offset:512
ds_write_b16 v14, v20
ds_read_u16 v27, v15
v_lshl_add_u32 v26, v0, 2, s70""")
fill = [f"ds_read2st64_b32 {R2(28+2*i)}, v26 offset0:{4*i} offset1:{36+4*i}" for i in range(8)]
fill += [f"ds_read2st64_b32 {R2(44+2*i)}, v26 offset0:{72+8*i} offset1:{76+8*i}" for i in range(4)]
fill = [fill[0], fill[8]] + fill[1:8] + fill[9:]
stats([16, 17, 18, 19, 20], 4, 5, fill)
ln_scalars(4, 5, 6, 7, 8)
a("s_waitcnt lgkmcnt(12)\nv_lshlrev_b32 v27, 16, v27\nv_sub_f32 v9, v27, v6\nv_sub_f32 v4, v4, v6\nv_mul_f32 v5, v5, v7\nv_mul_f32 v4, v4, v7\nv_mul_f32 v5, v5, v7")
rbf(9, 10); a("v_mul_f32 v9, v9, v7"); rbf(9, 10)
ln_scalars(4, 5, 6, 7, 8)
a("v_sub_f32 v9, v9, v6"); rbf(9, 10); a("v_mul_f32 v9, v9, v7"); rbf(9, 10)
a(f"v_mul_f32 v9, {f32(GS)}, v9\nv_mov_b32 v25, v26")
for e in range(4): a(f"v_readlane_b32 s{70+2*e}, v9, {60+e}")
ln(False)
a(f"v_mov_b32 v26, {f32(GA)}\ns_mov_b32 s66, {f32(GS)}\ns_waitcnt lgkmcnt(0)")
for i in range(9):
    w1, b1, w2 = (28+2*i, 29+2*i, 44+i) if i < 8 else (28, 29, 44)
    if i == 8: a("s_waitcnt lgkmcnt(0)")
    for j, r in enumerate((w1, b1, w2)):
        a(f"v_lshlrev_b32 v{12+2*j}, 16, v{r}\nv_and_b32 v{13+2*j}, 0xffff0000, v{r}")
    a("v_pk_mul_f32 v[14:15], v[14:15], s[66:67] op_sel_hi:[1,0]")
    if i == 0: a("ds_read2st64_b32 v[28:29], v25 offset0:32 offset1:68\nds_read_b32 v44, v25 offset:26624")
    if cfg.pfc and i == cfg.pfi:
        a(f"s_cmp_eq_u32 s60, {B_A(0)}\ns_cbranch_scc1 L_mx_pf\nL_mx_pfb:")
    for e0 in (0, 2):
        U = (18, 22); T = (20, 24); E = (e0, e0 + 1)
        for k in range(2): a(f"v_pk_fma_f32 {R2(U[k])}, v[12:13], s[{70+2*E[k]}:{71+2*E[k]}], v[14:15] op_sel_hi:[1,0,1]")
        for k in range(2): a(f"v_pk_fma_f32 {R2(T[k])}, {R2(U[k])}, {R2(U[k])}, v[26:27] op_sel_hi:[1,1,0]")
        for k in range(2): a(f"v_pk_mul_f32 {R2(T[k])}, {R2(U[k])}, {R2(T[k])}")
        for k in range(2): a(f"v_exp_f32 v{T[k]}, -v{T[k]}\nv_exp_f32 v{T[k]+1}, -v{T[k]+1}")
        for k in range(2): a(f"v_pk_mul_f32 {R2(U[k])}, {R2(U[k])}, v[16:17]")
        for k in range(2): a(f"v_pk_add_f32 {R2(T[k])}, {R2(T[k])}, 1.0 op_sel_hi:[1,0]")
        for k in range(2): a(f"v_rcp_f32 v{T[k]}, v{T[k]}\nv_rcp_f32 v{T[k]+1}, v{T[k]+1}")
        for k in range(2):
            acc = R2(4 + 2*E[k])
            a(f"v_pk_mul_f32 {acc}, {R2(U[k])}, {R2(T[k])}" if i == 0 else f"v_pk_fma_f32 {acc}, {R2(U[k])}, {R2(T[k])}, {acc}")
stamp("c.mix", 1)
for e in range(4): a(f"v_add_f32 v{4+2*e}, v{4+2*e}, v{5+2*e}")
if cfg.pfc: a("s_waitcnt vmcnt(0)")
a(f"""v_lshrrev_b32 v12, 4, v0
v_lshlrev_b32 v12, 2, v12
s_lshl_b32 s66, s3, 4
s_add_u32 s66, s66, {LRED}
v_add_u32 v12, s66, v12""")
row16_reduce("v_add_f32", [4, 6, 8, 10])
a(f"""
ds_write2_b32 v12, v4, v6 offset0:0 offset1:16
ds_write2_b32 v12, v8, v10 offset0:32 offset1:48
v_and_b32 v13, 3, v0
v_lshlrev_b32 v12, 6, v13
v_add_u32 v12, {LRED}, v12
s_mov_b32 s20, s52
s_mov_b32 s21, s53
s_mov_b32 s22, 2304
s_lshl_b32 s66, s7, 4
s_lshr_b32 s66, s66, s63
s_add_u32 s66, s66, s61
v_lshlrev_b32 v13, 2, v13
v_lshrrev_b32 v13, s63, v13
s_cmp_lg_u32 s3, 0
s_waitcnt lgkmcnt(0)
s_barrier
s_cbranch_scc1 L_ch1_ret
ds_read_b128 v[16:19], v12
ds_read_b128 v[20:23], v12 offset:16
ds_read_b128 v[28:31], v12 offset:32
ds_read_b128 v[32:35], v12 offset:48
s_cmp_eq_u32 s63, 1
s_mov_b64 exec, 15
s_waitcnt lgkmcnt(2)
v_pk_add_f32 v[16:17], v[16:17], v[18:19]
v_pk_add_f32 v[20:21], v[20:21], v[22:23]
s_waitcnt lgkmcnt(0)
v_pk_add_f32 v[28:29], v[28:29], v[30:31]
v_pk_add_f32 v[32:33], v[32:33], v[34:35]
v_pk_add_f32 v[16:17], v[16:17], v[20:21]
v_pk_add_f32 v[28:29], v[28:29], v[32:33]
v_pk_add_f32 v[16:17], v[16:17], v[28:29]
v_add_f32 v16, v16, v17
v_mul_f32 v16, {f32(1.0/GS)}, v16
""")
rbf(16, 17); a("v_add_f32 v16, s78, v16"); rbf(16, 17); a("v_add_f32 v16, v16, v27"); rbf(16, 17)
a(f"""
s_cbranch_scc1 L_ch1_fin
buffer_store_dword v16, v13, s[16:19], s66 offen sc1
s_branch L_ch1_done
L_ch1_fin:
buffer_store_short v17, v13, s[20:23], s66 offen
L_ch1_done:
s_mov_b64 exec, -1
L_ch1_ret:
""")
ret()

if cfg.pfc:
    a.hist = []
    a.label("L_mx_pf")
    for kt in range(cfg.pfc):
        if kt % 8 == 0: a(f"s_add_u32 s28, s27, {(kt>>3)*8192}")
        a(f"buffer_load_dwordx4 v[30:33], v1, s[8:11], s28 offen offset:{((kt>>1)&3)*512+(kt&1)*128}")
    a("s_branch L_mx_pfb")
a.hist = []
a.label("SUB_CH1B")
a(f"""s_mul_i32 s70, s3, 9216
s_add_u32 s70, s70, s60
s_add_u32 s71, s70, 2304
s_add_u32 s72, s70, 4608
s_add_u32 s73, s70, 6912
v_lshlrev_b32 v49, 2, v0
s_mul_i32 s75, s3, 2304
s_add_u32 s75, s75, {LX}
v_add_u32 v51, s75, v2
s_barrier
s_branch L_ch1_b""")

a.hist = []
a.label("SUB_CH2")
a(f"""
v_lshrrev_b32 v13, 4, v0
v_bfe_u32 v14, v0, 2, 2
v_lshl_add_u32 v15, v13, 3, v14
v_lshlrev_b32 v15, 9, v15
v_bfe_u32 v13, v0, 2, 3
s_lshl_b32 s70, s3, 2
v_xor_b32 v13, s70, v13
v_lshl_add_u32 v15, v13, 5, v15
v_and_b32 v13, 3, v0
v_lshl_add_u32 v15, v13, 3, v15
v_add_u32 v15, {LWQ}, v15
v_xor_b32 v16, 32, v15
v_xor_b32 v17, 64, v15
v_xor_b32 v18, 96, v15
""")
for cbk in range(4):
    for ks in range(2):
        for jh in range(2):
            a(f"ds_read_b64_tr_b16 {R2(20 + 8*cbk + 4*ks + 2*jh)}, v{15+cbk} offset:{(32*ks+4*jh)*512}")
a(f"""
v_lshlrev_b32 v19, 2, v0
v_add_u32 v15, s64, v2
v_add_u32 v16, s64, v19
s_lshl_b32 s72, s5, 8
s_lshl_b32 s74, s7, 10
s_add_u32 s74, s74, s62
s_lshl_b32 s71, s3, 8
s_add_u32 s74, s74, s71
s_cmp_eq_u32 s63, 1
s_cbranch_scc0 L_ch2_g
v_add_u32 v17, s72, v16
ds_read_b128 v[4:7], v15
ds_read_b128 v[8:11], v15 offset:1024
ds_read_b32 v12, v16 offset:2048
ds_read_b32 v13, v17
s_waitcnt lgkmcnt(0)
s_branch L_ch2_x
L_ch2_g:
s_add_u32 s72, s72, s61
s_lshl_b32 s73, s4, 7
s_add_u32 s73, s73, s61
s_add_u32 s73, s73, 0x8000
""")
def issC():
    a("""buffer_load_dwordx4 v[4:7], v2, s[16:19], s61 offen sc1
    buffer_load_dwordx4 v[8:11], v2, s[16:19], s61 offen offset:1024 sc1
    buffer_load_dword v12, v19, s[16:19], s61 offen offset:2048 sc1
    buffer_load_dword v13, v19, s[16:19], s72 offen sc1""")
poll(issC, lambda: check_sentinel(range(4, 14), 14), s0=cfg.s0["C"], s0w=cfg.s0["Y"])
a("""s_or_b32 s70, s5, s3
s_cbranch_scc1 L_ch2_nh
""")
gstore("s_mov_b64 exec, 1\nbuffer_store_dword v19, v19, s[16:19], s73 offen sc1\ns_mov_b64 exec, -1")
a("""L_ch2_nh:
ds_write_b128 v15, v[4:7]
ds_write_b128 v15, v[8:11] offset:1024
ds_write_b32 v16, v12 offset:2048
L_ch2_x:
v_cvt_pk_bf16_f32 v14, v4, v5
v_cvt_pk_bf16_f32 v15, v6, v7
v_cvt_pk_bf16_f32 v16, v8, v9
v_cvt_pk_bf16_f32 v17, v10, v11
v_cvt_pk_bf16_f32 v18, v12, 0""")
stats([14, 15, 16, 17, 18], 4, 5, ["v_lshlrev_b32 v9, 1, v0", f"v_add_u32 v9, {LRED}, v9", "v_and_b32 v12, 48, v0", f"v_add_u32 v12, {LRED}, v12"])
ln_scalars(4, 5, 6, 7, 8)
a("v_readlane_b32 s70, v6, 63\nv_readlane_b32 s71, v7, 63\nv_subrev_f32 v13, s70, v13")
rbf(13, 8)
a("""v_mul_f32 v13, s71, v13
v_cvt_pk_bf16_f32 v13, v13, v13
ds_write_b16 v9, v13
ds_read_b128 v[4:7], v12
ds_read_b128 v[8:11], v12 offset:64
s_waitcnt lgkmcnt(0)""")
accs = [12, 20, 28, 36]
for cbk in range(4):
    d = accs[cbk]; f = 20 + 8 * cbk
    a(f"v_mfma_f32_16x16x32_bf16 {R4(d)}, v[4:7], {R4(f)}, 0")
    a(f"v_mfma_f32_16x16x32_bf16 {R4(d)}, v[8:11], {R4(f+4)}, {R4(d)}")
for cbk in range(1, 4):
    a(f"v_mov_b32_dpp v12, v{accs[cbk]} quad_perm:[0,1,2,3] row_mask:{1<<cbk:#x} bank_mask:0xf")
gstore("buffer_store_dword v12, v19, s[16:19], s74 offen sc1")
stamp("c.wq", 1)
ret()

if cfg.roles:
    a.hist = []
    a.label("SUB_RING")
    keep = LDS_T + [25]
    vts = [t for t in range(cfg.j0) if t not in keep] + keep
    NT = 64 + len(vts)
    slot = lambda n: (n - (NT - len(keep))) % NS
    lastso = [None]
    def rload(n):
        if n >= NT: return
        if n < 64:
            so, imm, va, srd = ("k", (n >> 3) * 8192), ((n >> 1) & 3) * 512 + (n & 1) * 128, "v1", "s[8:11]"
        else:
            vt = vts[n - 64]
            so, imm, va, srd = ("v", (vt >> 2) * 4096), (vt & 3) * 1024, "v2", "s[12:15]"
        if so != lastso[0]:
            a(f"s_add_u32 s28, s27, {so[1]}"); lastso[0] = so
        a(f"s_add_u32 m0, s57, {slot(n)*1024 - imm}")
        a(f"buffer_load_dwordx4 {va}, {srd}, s28 offen offset:{imm}{'' if n < cfg.l2n else ' nt'} lds")
    for n in range(16): rload(n)
    att_pre(zero=False)
    a("ds_read_b128 v[4:7], v12\nds_read_b128 v[8:11], v12 offset:128\nv_add_u32 v48, s57, v2")
    KT = [34, 38, 42]
    for n in range(66):
        if n < 64:
            rload(n + 16)
            a(f"s_waitcnt vmcnt(16)\nds_read_b128 {R4(KT[n%3])}, v48 offset:{slot(n)*1024}")
        if n >= 2:
            kt = n - 2
            a(f"s_waitcnt lgkmcnt({min(63, n) - kt})")
            kmm(kt, R4(KT[kt % 3]))
            if kt & 1 and (kt >> 1) >= 2: adds((kt >> 1) - 2)
    adds(30); adds(31)
    softmax()
    zero_a()
    a("v_add_u32 v33, s57, v2")
    NP = len(vts) // 2
    def rfetch(m):
        if m >= NP: return
        for h in range(2):
            n = 64 + 2*m + h
            rload(n + 16)
            a(f"s_waitcnt vmcnt({min(16, NT - 1 - n)})\nds_read_b128 {R4(4 + 8*(m&1) + 4*h)}, v33 offset:{slot(n)*1024}")
    rfetch(0)
    for m in range(NP):
        build(vts[2*m] >> 1, m & 1)
        rfetch(m + 1)
        a(f"s_waitcnt lgkmcnt({2 if m + 1 < NP else 0})")
        vmm(R8(4 + 8*(m&1)), m & 1)
    if cfg.j0 == 64:
        a("s_branch L_att_epi")
    else:
        a(f"""v_mov_b32 v47, v20
        ds_write_b128 v33, v[24:27] offset:{14*1024}
        ds_write_b128 v33, v[28:31] offset:{15*1024}
        ds_write_b64 v33, v[46:47] offset:{17*1024}
        ds_write_b128 v33, v[42:45] offset:{16*1024}
        s_waitcnt lgkmcnt(0)""")
        ret()
        a.hist = []
        a.label("SUB_RESUME")
        a(f"s_mov_b32 s82, {8 + cfg.j0//8}\ns_call_b64 s[80:81], SUB_LN")
        if cfg.j0 <= 48: a("s_call_b64 s[80:81], SUB_LN")
        att_pre()
        a(f"""v_add_u32 v33, s57, v2
        ds_read_b128 v[24:27], v33 offset:{14*1024}
        ds_read_b128 v[28:31], v33 offset:{15*1024}
        ds_read_b128 v[42:45], v33 offset:{16*1024}
        ds_read_b64 v[22:23], v33 offset:{17*1024}
        v_and_b32 v32, 3, v0
        v_mul_u32_u24 v32, 0x5555, v32
        s_mov_b64 vcc, -1
        s_waitcnt lgkmcnt(0)
        v_mov_b32 v46, v22
        v_mov_b32 v20, v23""")
        build(cfg.j0 // 2, (cfg.j0 // 2) & 1)
        a.flush()
        a("s_branch L_att_resume")

for Lo, Lb, wait, depth in tramps:
    a.hist = []
    a.label(Lo)
    if wait and cfg.adapt:
        a(f"s_call_b64 s[34:35], SUB_LNW\ns_branch {Lb}")
        continue
    for d in range(1, depth + 1):
        a("s_call_b64 s[80:81], SUB_LN")
        L2 = a.newlabel("Lt2")
        if d < depth: a(f"s_cmp_lt_u32 s82, 16\ns_cbranch_scc1 {L2}")
        if wait: a(f"s_waitcnt vmcnt({8*d})")
        a(f"s_branch {Lb}")
        if d < depth: a.label(L2)
for Lo, Lb, instrs in gstores:
    a.hist = []
    a.label(Lo); a("s_nop 7"); a(instrs); a(f"s_branch {Lb}")
for Rr, L, D, sl in retries:
    a.hist = []
    a.label(Rr)
    a(f"s_sleep {sl}\ns_add_u32 s68, s68, 1\ns_cmp_lt_u32 s68, {cfg.spin}\ns_cbranch_scc1 {L}\ns_branch {D}")
if cfg.stamps:
    n = len(stamp_names)
    a.hist = []
    a.label("L_stamps")
    if cfg.dbg:
        sel = ["start", "start", "q1", "P1b0", "wq0", "s.ring", "P2b0", "s.P1b1", "s.fin0", "P1b1", "c.B", "c.wq", "s.rel", "s.end", "f.B", "end"]
        a("v_mov_b32 v6, 0")
        a(f"s_not_b32 s70, s{POOL[0]}\nv_writelane_b32 v6, s70, 0")
        for i, nm in enumerate(sel):
            if i and nm in stamp_names: a(f"v_writelane_b32 v6, s{POOL[stamp_names.index(nm)]}, {i}")
        a("v_lshrrev_b32 v4, 2, v2\ns_mov_b64 exec, 0xffff\nglobal_atomic_umax v4, v6, s[54:55] sc1\ns_branch L_fin")
    a(f"""s_lshl_b32 s70, s2, 2
    s_add_u32 s70, s70, s3
    s_mul_i32 s70, s70, {8*n}
    s_add_u32 s70, s70, {STAMP}
    v_mov_b32 v4, 0
    v_mov_b32 v7, 0
    s_mov_b64 exec, 1""")
    if cfg.hwid:
        a(f"s_getreg_b32 s71, hwreg(HW_REG_HW_ID)\ns_getreg_b32 s72, hwreg(HW_REG_XCC_ID)\ns_and_b32 s71, s71, 0xffff\ns_and_b32 s72, s72, 15\ns_lshl_b32 s72, s72, 16\ns_or_b32 s71, s71, s72\ns_add_u32 s{POOL[1]}, s{POOL[0]}, s71")
    for i in range(n):
        a(f"v_mov_b32 v6, s{POOL[i]}\nbuffer_store_dwordx2 v[6:7], v4, s[16:19], s70 offen offset:{8*i}\ns_nop 1")
    a("s_branch L_fin")
    open(sys.argv[1] + ".names", "w").write(" ".join(stamp_names))
    print("nstamps", n, file=sys.stderr)
a.label("L_code_end")
hdr = open("cdna_kernels/" + NAME + ".s.ref").read().split("; Override launch")[0]
out = hdr + f"; @launch grid=(256,1,1) block=(256,1,1) lds={LDS_TOTAL}\n"
out += """; Persistent kernel, one 4-wave workgroup per CU (generated by the author's own script).
;  - stores are write-through (sc1) unless all 16 workgroups of a kv-head group report the same XCC_ID at run time
"""
out += f""".amdgcn_target "amdgcn-amd-amdhsa--gfx950"
.text
.globl {NAME}_kernel
.p2align 8
.type {NAME}_kernel,@function
{NAME}_kernel:
""" + a.text() + f""".section .rodata,"a"
.p2align 6
.amdhsa_kernel {NAME}_kernel
  .amdhsa_next_free_vgpr 512
  .amdhsa_next_free_sgpr 102
  .amdhsa_accum_offset 256
  .amdhsa_group_segment_fixed_size 0
  .amdhsa_kernarg_size 104
  .amdhsa_user_sgpr_count 2
  .amdhsa_user_sgpr_kernarg_segment_ptr 1
  .amdhsa_system_sgpr_workgroup_id_x 1
.end_amdhsa_kernel
"""
import re as _re
def _note(m):
    n = int(m.group(2))
    return m.group(0) + ("    ; back-off between polls" if n <= 8 else "    ; back-off before the first poll of a cross-die hand-off (polls that arrive early slow the producers' stores)")
out = _re.sub(r"^(\s+s_sleep )(\d+)$", _note, out, flags=_re.M)
open(sys.argv[1], "w").write(out)
print("nops added", a.nops_added, "lines", len(a.lines), file=sys.stderr)
```
